```python
import torch

def _softmax(x, axis=-1):
    return torch.softmax(x, dim=axis)

def _gelu(x):
    return torch.nn.functional.gelu(x, approximate='tanh')

def _silu(x):
    return torch.nn.functional.silu(x)

def _sigmoid(x):
    return torch.sigmoid(x)

def _layernorm(x, axis=-1, eps=1e-05):
    m = x.mean(dim=axis, keepdim=True)
    v = x.var(dim=axis, keepdim=True, unbiased=False)
    return (x - m) / torch.sqrt(v + eps)

def _scatter_add(tgt, idx, src, axis=0):
    return tgt.clone().index_add_(axis, idx, src)

def _segment_sum(src, seg, n):
    out = torch.zeros((n,) + src.shape[1:], dtype=src.dtype)
    return out.index_add_(0, seg, src)

def _pad(x, pw):
    flat = tuple((v for pair in reversed(pw) for v in pair))
    return torch.nn.functional.pad(x, flat)
kernel_name = 'sequential_preLN__memory_aug_recurrent_mem_tr__glu_gated_reglu__prompt'

def setup_inputs():

    _w = lambda a: (lambda t: t.to(torch.bfloat16) if t.is_floating_point() else t)(torch.as_tensor(a))

    def _A_setup():
        B, S, Dm = (1, 2048, 576)
        H, Dh = (32, 128)
        M, seg = (8, 32)
        seg = min(seg, S)
        S = S // seg * seg
        return {'x': _w((lambda *s: torch.randn(*s, dtype=torch.bfloat16) * 0.05)(B, S, Dm)), 'mem0': _w((lambda *s: torch.randn(*s, dtype=torch.bfloat16) * 0.2)(B, M, Dm)), 'Wq': _w((lambda *s: torch.randn(*s, dtype=torch.bfloat16) * 1.6)(Dm, H, Dh) * Dm ** (-0.5)), 'Wk': _w((lambda *s: torch.randn(*s, dtype=torch.bfloat16) * 1.6)(Dm, H, Dh) * Dm ** (-0.5)), 'Wv': _w((lambda *s: torch.randn(*s, dtype=torch.bfloat16) * 0.2)(Dm, H, Dh) * Dm ** (-0.5)), 'Wo': _w((lambda *s: torch.randn(*s, dtype=torch.bfloat16) * 0.2)(H, Dh, Dm) * (H * Dh) ** (-0.5)), 'seg_len': seg}
    _A_in = _A_setup()

    def _B_setup():
        B, S, D, F = (1, 2048, 576, 4608)
        return {'x': _w((lambda *s: torch.randn(*s, dtype=torch.bfloat16) * 0.05)(B, S, D)), 'W_gate': _w((lambda *s: torch.randn(*s, dtype=torch.bfloat16) * 0.2)(D, F) * (2.0 / D) ** 0.5), 'W_up': _w((lambda *s: torch.randn(*s, dtype=torch.bfloat16) * 0.2)(D, F) * (2.0 / D) ** 0.5), 'W_down': _w((lambda *s: torch.randn(*s, dtype=torch.bfloat16) * 0.2)(F, D) * (1.0 / F) ** 0.5)}
    _B_in = _B_setup()
    return {'A_x': _A_in['x'], 'A_mem0': _A_in['mem0'], 'A_Wq': _A_in['Wq'], 'A_Wk': _A_in['Wk'], 'A_Wv': _A_in['Wv'], 'A_Wo': _A_in['Wo'], 'A_seg_len': _A_in['seg_len'], 'B_x': _B_in['x'], 'B_W_gate': _B_in['W_gate'], 'B_W_up': _B_in['W_up'], 'B_W_down': _B_in['W_down']}

def reference(A_x, A_mem0, A_Wq, A_Wk, A_Wv, A_Wo, A_seg_len, B_x, B_W_gate, B_W_up, B_W_down):

    def _A_ref(x, mem0, Wq, Wk, Wv, Wo, seg_len):
        B, S, Dm = x.shape
        H, Dh = (Wq.shape[1], Wq.shape[2])
        M = mem0.shape[1]
        scale = Dh ** (-0.5)
        n_seg = S // seg_len
        L = M + seg_len
        idx = torch.arange(L)
        mask = (idx[:, None] < M) | (idx[:, None] >= idx[None, :])
        mem = mem0
        outs = []
        for s in range(n_seg):
            xs = x[:, s * seg_len:(s + 1) * seg_len, :].clone()
            h = torch.concatenate([mem, xs], axis=1)
            q = torch.einsum('btd,dhe->bhte', h, Wq)
            k = torch.einsum('btd,dhe->bhte', h, Wk)
            v = torch.einsum('btd,dhe->bhte', h, Wv)
            scores = torch.einsum('bhqe,bhke->bhqk', q, k) * scale
            scores = torch.where(mask[None, None], scores, -1000000000.0)
            p = _softmax(scores, axis=-1)
            o = torch.einsum('bhqk,bhke->bhqe', p, v)
            o = torch.einsum('bhte,hed->btd', o, Wo)
            mem = o[:, :M, :].clone()
            outs.append(o[:, M:, :])
        return torch.concatenate(outs, axis=1)

    def _B_ref(x, W_gate, W_up, W_down):
        gate = torch.einsum('bsd,df->bsf', x, W_gate)
        up = torch.einsum('bsd,df->bsf', x, W_up)
        gate = gate * (lambda x, dt: x.to(dt))(gate > 0, gate.dtype)
        h = gate * up
        return torch.einsum('bsf,fd->bsd', h, W_down)
    x = A_x
    h = x + _A_ref(_layernorm(x, axis=-1), A_mem0, A_Wq, A_Wk, A_Wv, A_Wo, A_seg_len)
    h2 = h + _B_ref(_layernorm(h, axis=-1), B_W_gate, B_W_up, B_W_down)
    return h2
```

```python
import re

REG_RE = re.compile(r'^(-?)(?:abs\()?([vas])(?:(\d+)|\[(\d+):(\d+)\])\)?$')

def regs_of(op):
    op = op.strip()
    if op in ('vcc',): return [('s', 'vcc_lo'), ('s', 'vcc_hi')]
    if op in ('vcc_lo', 'vcc_hi', 'm0', 'exec_lo', 'exec_hi', 'scc'): return [('s', op)]
    if op == 'exec': return [('s', 'exec_lo'), ('s', 'exec_hi')]
    m = REG_RE.match(op)
    if not m: return []
    c = m.group(2)
    if m.group(3) is not None: return [(c, int(m.group(3)))]
    return [(c, i) for i in range(int(m.group(4)), int(m.group(5)) + 1)]

TRANS = ('v_exp_f32', 'v_log_f32', 'v_rcp_f32', 'v_rsq_f32', 'v_sqrt_f32', 'v_sin_f32', 'v_cos_f32', 'v_rcp_iflag_f32')

class I:
    __slots__ = ('text', 'mn', 'ops', 'kind', 'defs', 'uses', 'passes', 'srcc', 'states', 'wide_store', 'label', 'target', 'dpp', 'sdefs', 'ab', 'lds_dma')
    def __init__(self, text):
        self.text = text
        t = text.split(';')[0].strip()
        self.label = None; self.target = None; self.kind = 'none'; self.defs = []; self.uses = []
        self.passes = 0; self.srcc = []; self.states = 0; self.wide_store = False; self.dpp = False; self.ab = []
        self.lds_dma = False
        self.mn = ''
        if not t or t.startswith('.'):
            return
        if t.endswith(':'):
            self.label = t[:-1]; self.kind = 'label'; return
        parts = t.split(None, 1)
        mn = parts[0]; self.mn = mn
        rest = parts[1] if len(parts) > 1 else ''
        ops = []; cur = ''; depth = 0
        for ch in rest:
            if ch in '[(': depth += 1
            if ch in '])': depth -= 1
            if ch == ',' and depth == 0: ops.append(cur.strip()); cur = ''
            else: cur += ch
        if cur.strip(): ops.append(cur.strip())
        mods = ''
        if ops:
            sp = ops[-1].split(None, 1)
            if len(sp) > 1 and not ops[-1].startswith('hwreg') and mn not in ('s_waitcnt',):
                ops[-1] = sp[0]; mods = sp[1]
        self.ops = ops
        self.states = 1
        base = mn.replace('_e32', '').replace('_e64', '').replace('_dpp', '').replace('_sdwa', '')
        R = regs_of
        if mn == 's_nop':
            self.kind = 'nop'; self.states = int(ops[0], 0) + 1
        elif mn.startswith('v_mfma') or mn.startswith('v_smfmac'):
            self.kind = 'mfma'
            self.passes = 8 if '32x32' in mn else 4
            self.defs = R(ops[0]); self.ab = R(ops[1]) + R(ops[2])
            if mn.startswith('v_smfmac'):
                self.srcc = R(ops[0]); self.ab += R(ops[3])
            else:
                self.srcc = R(ops[3])
            self.uses = self.ab + self.srcc
        elif mn.startswith('v_'):
            self.kind = 'trans' if base in TRANS else 'valu'
            if 'quad_perm' in mods or 'row_' in mods or 'wave_' in mods or mn.endswith('_dpp'): self.dpp = True
            if base.startswith('v_cmpx'):
                self.defs = R(ops[0]) + R('exec'); self.uses = sum((R(o) for o in ops[1:]), [])
            elif base.startswith('v_permlane') and 'swap' in base:
                self.defs = R(ops[0]) + R(ops[1]); self.uses = list(self.defs); self.kind = 'perm'
            elif base in ('v_add_co_u32', 'v_sub_co_u32', 'v_addc_co_u32', 'v_mad_u64_u32'):
                self.defs = R(ops[0]) + R(ops[1]); self.uses = sum((R(o) for o in ops[2:]), [])
            elif base == 'v_nop':
                pass
            else:
                self.defs = R(ops[0]); self.uses = sum((R(o) for o in ops[1:]), [])
                if base in ('v_fmac_f32', 'v_writelane_b32', 'v_dot2c_f32_bf16') or self.dpp: self.uses += R(ops[0])
                if base == 'v_cndmask_b32' and len(ops) == 3: self.uses += R('vcc')
        elif mn.startswith('ds_'):
            self.kind = 'ds'
            if 'read' in mn or 'bpermute' in mn or 'swizzle' in mn or 'permute' in mn or '_rtn' in mn:
                self.defs = R(ops[0]); self.uses = sum((R(o) for o in ops[1:]), [])
            else:
                self.uses = sum((R(o) for o in ops), [])
        elif mn.startswith('buffer_') or mn.startswith('global_'):
            self.kind = 'vmem'
            allmods = mods + ' ' + ' '.join(ops)
            if mn in ('buffer_wbl2', 'buffer_inv'):
                pass
            elif re.search(r'\blds\b', allmods) or 'load_lds' in mn:
                self.lds_dma = True
                self.uses = sum((R(o) for o in ops), []) + R('m0')
            elif 'load' in mn:
                self.defs = R(ops[0]); self.uses = sum((R(o) for o in ops[1:]), [])
            elif 'atomic' in mn:
                self.uses = sum((R(o) for o in ops), [])
                if 'sc0' in allmods: self.defs = R(ops[0])
            else:
                self.uses = sum((R(o) for o in ops), [])
                if 'x3' in mn or 'x4' in mn:
                    self.wide_store = True
                    self.srcc = R(ops[0]) if mn.startswith('buffer') else R(ops[1])
        elif mn.startswith('s_'):
            self.kind = 'salu'
            if mn.startswith('s_cbranch') or mn == 's_branch':
                self.target = ops[0]; self.kind = 'branch'
                if 'vcc' in mn: self.uses = R('vcc')
                if 'exec' in mn: self.uses = R('exec')
            elif mn in ('s_waitcnt', 's_barrier', 's_endpgm', 's_setprio', 's_sleep'):
                pass
            elif mn.startswith('s_cmp') or mn.startswith('s_bitcmp'):
                self.uses = sum((R(o) for o in ops), [])
            elif mn.startswith('s_load') or mn in ('s_memtime', 's_memrealtime', 's_getreg_b32'):
                self.defs = R(ops[0]); self.uses = sum((R(o) for o in ops[1:]), [])
            else:
                self.defs = R(ops[0]); self.uses = sum((R(o) for o in ops[1:]), [])
                if 'saveexec' in mn: self.defs += R('exec'); self.uses += R('exec')
                if mn in ('s_addk_i32', 's_mulk_i32'): self.uses += R(ops[0])
        else:
            raise ValueError('unknown instr: ' + text)

def isv(k): return k in ('valu', 'trans', 'perm')

def need(p, c):
    n = 0
    pd = set(p.defs)
    vd = {r for r in pd if r[0] in 'va'}
    sd = {r for r in pd if r[0] == 's'}
    cu = set(c.uses); cd = set(c.defs)
    if isv(p.kind):
        if c.kind == 'mfma' and vd & cu: n = max(n, 2)
        if c.kind == 'perm' and vd & cu: n = max(n, 2)
        if c.dpp and vd & cu: n = max(n, 2)
        if c.mn.startswith('v_readlane') or c.mn.startswith('v_readfirstlane'):
            if vd & cu: n = max(n, 1)
            if any(r[1] in ('exec_lo', 'exec_hi') for r in sd): n = max(n, 4)
            if c.mn.startswith('v_readlane') and sd & cu: n = max(n, 4)
        if c.mn.startswith('v_writelane') and sd & cu: n = max(n, 4)
        if p.kind == 'trans' and (isv(c.kind) or c.kind == 'mfma') and c.kind != 'trans' and vd & cu: n = max(n, 1)
        if p.kind == 'trans' and c.kind == 'trans' and vd & cu: n = max(n, 1)
        if sd:
            if c.kind == 'vmem' and sd & cu: n = max(n, 5)
            if isv(c.kind) and sd & cu: n = max(n, 2)
            ex = any(r[1] in ('exec_lo', 'exec_hi') for r in sd)
            if ex and c.kind == 'mfma': n = max(n, 4)
            if ex and c.dpp: n = max(n, 5)
            if ex and c.kind == 'perm': n = max(n, 4)
            if c.kind in ('salu', 'branch') and sd & cu: n = max(n, 1)
    if p.kind == 'mfma':
        far = 8 if p.passes == 4 else 12
        if c.kind == 'mfma':
            if vd & set(c.ab): n = max(n, far)
            if vd & set(c.srcc):
                same = (p.defs == c.srcc) and p.mn == c.mn
                if not same: n = max(n, far - 2)
            elif vd & cd:
                n = max(n, far)
        elif c.kind in ('valu', 'trans', 'perm', 'ds', 'vmem'):
            if vd & (cu | cd): n = max(n, far)
            if isv(c.kind) and set(p.srcc) & cd: n = max(n, 3 if p.passes == 4 else 7)
    if p.wide_store:
        if set(p.srcc) & cd: n = max(n, 2 if isv(c.kind) else 1)
    if p.kind == 'salu' and ('s', 'm0') in pd and c.lds_dma: n = max(n, 1)
    return n

def timed_dist(p, between, c):
    occ = lambda z: 2 if '16x16x16' in z.mn else z.passes
    t = 1; last = 0; lp = occ(p)
    for x in between + [c]:
        if x.kind == 'mfma':
            t = max(t, last + lp); last = t; lp = occ(x)
        if x is c: return t - 1
        t += x.states

class Asm:
    def __init__(self):
        self.timed = False
        self.L = []
        self.uid = 0
    def __call__(self, text):
        for line in text.split('\n'):
            s = line.strip()
            if s: self.L.append(I(s))
    def label(self, name): self.L.append(I(name + ':'))
    def newlabel(self, base):
        self.uid += 1
        return '%s_%d' % (base, self.uid)
    def fix(self, verbose=False):
        out = []
        nins = 0
        for c in self.L:
            if c.kind not in ('none', 'label'):
                req = 0; dist = 0
                seq = []
                for p in reversed(out):
                    if p.kind in ('none', 'label'): continue
                    if p.mn in ('s_branch', 's_endpgm'): break
                    if dist >= 20: break
                    nd = need(p, c)
                    if nd > dist:
                        r = nd - dist
                        if self.timed and p.kind == 'mfma':
                            r = 0
                            while r < nd - dist and timed_dist(p, seq[::-1] + ([I('s_nop %d' % (r - 1))] if r else []), c) - 1 < nd: r += 1
                        req = max(req, r)
                    seq.append(p)
                    dist += p.states
                if req > 0:
                    out.append(I('s_nop %d' % (req - 1))); nins += 1
                    if verbose: print('nop', req, 'before', c.text)
            out.append(c)
        self.L = out
        pos = {x.label: i for i, x in enumerate(out) if x.label}
        changed = True
        while changed:
            changed = False
            out = self.L
            pos = {x.label: i for i, x in enumerate(out) if x.label}
            for bi, b in enumerate(out):
                if b.kind != 'branch': continue
                hist = []; d = 0; j = bi
                while j >= 0 and d < 20:
                    p = out[j]
                    if p.kind not in ('none', 'label'):
                        if j != bi and p.mn in ('s_branch', 's_endpgm'): break
                        hist.append((p, d)); d += p.states
                    j -= 1
                j = pos[b.target]; fwd = 0; worst = 0
                while j < len(out) and fwd < 20:
                    c = out[j]
                    if c.kind not in ('none', 'label'):
                        for p, dd in hist:
                            r = need(p, c) - (dd + fwd)
                            worst = max(worst, r)
                        fwd += c.states
                        if c.mn in ('s_branch', 's_endpgm'): break
                    j += 1
                if worst > 0:
                    self.L.insert(bi, I('s_nop %d' % (worst - 1)))
                    if verbose: print('branch nop', worst, 'before', b.text)
                    changed = True
                    break
        return nins
    def text(self):
        o = []
        for x in self.L:
            o.append(x.text if x.kind == 'label' or x.text.startswith('.') else '  ' + x.text)
        return '\n'.join(o) + '\n'

def vr(i, n=1):
    return 'v%d' % i if n == 1 else 'v[%d:%d]' % (i, i + n - 1)
def ar(i, n=1):
    return 'a%d' % i if n == 1 else 'a[%d:%d]' % (i, i + n - 1)
def sr(i, n=1):
    return 's%d' % i if n == 1 else 's[%d:%d]' % (i, i + n - 1)
def ur(i, n=1):
    return vr(i, n) if i < 256 else ar(i - 256, n)

class Cnt:
    def __init__(self, a, name, mx):
        self.a = a; self.name = name; self.mx = mx; self.q = []
    def issue(self, tag=None): self.q.append(tag)
    def wait(self, *tags):
        idx = -1
        for t in tags:
            for i, x in enumerate(self.q):
                if x == t: idx = max(idx, i)
        if idx < 0: return
        n = len(self.q) - 1 - idx
        n = min(n, self.mx)
        self.a('s_waitcnt %s(%d)' % (self.name, n))
        self.q = self.q[len(self.q) - n:] if n else []
    def all(self):
        self.a('s_waitcnt %s(0)' % self.name); self.q = []
    def reset(self): self.q = []
```

```python
from asm import *
from lay import *
KXL = 0; VXL = 8192; ML = 16384; XL = 25600; OL = 29696; WL = 32768
L16, IDX, LW, AM, XW, XR0, XR1, OW, AST, ALD, BST, BLD = range(12)
def D(i): return 12 + 4 * i
S_H = S_ROLE
S_STEP = 40; S_A = 41; S_BW = 42; S_BN = 43; S_BF = 44
S_C = 46
S_KX = 48
S_KM = 49
S_SPIN = 50
S_P = 51
S_OMASK = 52
S_AO = 54
S_T0 = 56
S_FL = 60
SPIN = 1 << 16
WQ, WK, WV, WO = S_R0, S_R1, S_R2, S_R3

LK = [0, 1, 2, 3, 6, 8, 10, 12]
def wo_plan(w):
    pairs = [9 * w // 2 + i + (w & 1) for i in range(4)]
    single = 4 if w < 2 else 13
    seq = [('p', pairs[0], k) for k in range(4)] + [('p', pairs[1], k) for k in range(4)] + [('s', single, 0), ('s', single, 1)] \
        + [('p', pairs[2], k) for k in range(4)] + [('p', pairs[3], k) for k in range(4)]
    return seq, pairs, single
WO_LDS_POS = [0, 1, 6, 7, 11, 12, 16, 17]

def homes(w):
    seq, pairs, single = wo_plan(w)
    lds = [('k', k) for k in LK] + [('o', seq[p][1], seq[p][2]) for p in WO_LDS_POS]
    blocks = []
    for c in range(9): blocks.append(('old', [('v', c, 0), ('v', c, 1)]))
    for c in range(2): blocks.append(('old', [('s', c)]))
    newreg = [('q', k) for k in range(18)] + [('k', k) for k in range(18) if k not in LK] + \
             [('o', P, k) for P in pairs for k in range(4) if ('o', P, k) not in lds]
    for key in newreg: blocks.append(('new', [key]))
    for key in lds: blocks.append(('lds', [key]))
    reg = {}; f = 0
    for t, keys in blocks:
        if t == 'lds': continue
        for k in keys: reg[k] = 64 + 8 * f; f += 1
    assert f == 56
    slot = {}; i = 0
    for t, keys in blocks:
        if t == 'lds': slot[keys[0]] = i % 16
        i += 2 if t == 'old' else 1
    assert i == 74
    return reg, slot, blocks

def consts(a, w):
    T = D(0)
    a(f'''
    v_mov_b32 v{T}, v0
    v_lshlrev_b32 v{L16}, 4, v{T}
    v_and_b32 v{T+1}, 15, v{T}          ; r / n / j / t
    v_lshrrev_b32 v{T+2}, 4, v{T}       ; g
    v_mov_b32 v{IDX}, 0x4444
    v_and_b32 v{T+3}, 2, v{T}
    v_cmp_ne_u32 vcc, 0, v{T+3}
    v_mov_b32 v{T+4}, 0xeeee
    v_cndmask_b32 v{IDX}, v{IDX}, v{T+4}, vcc
    v_add_u32 v{LW}, {WL + w * 32768}, v{L16}
    ; AM = (4(r>>2) + 2(g&1) + (r&1) + 16(g>>1)) * 16
    v_and_b32 v{T+4}, 13, v{T+1}
    v_and_b32 v{T+5}, 1, v{T+2}
    v_lshl_add_u32 v{T+4}, v{T+5}, 1, v{T+4}
    v_lshrrev_b32 v{T+6}, 1, v{T+2}
    v_lshl_add_u32 v{T+4}, v{T+6}, 4, v{T+4}
    v_lshlrev_b32 v{AM}, 4, v{T+4}
    v_lshrrev_b32 v{T+4}, 2, v{T+1}
    v_xor_b32 v{T+7}, v{T+4}, v{T+2}
    v_lshlrev_b32 v{T+7}, 3, v{T+7}
    v_lshl_add_u32 v{T+7}, v{T+1}, 5, v{T+7}
    v_add_u32 v{XW}, {XL + w * 1024}, v{T+7}
    v_lshl_add_u32 v{T+7}, v{T+5}, 2, v{T+4}
    v_lshl_add_u32 v{T+7}, v{T+6}, 4, v{T+7}
    v_lshlrev_b32 v{T+7}, 5, v{T+7}
    v_and_b32 v{T+8}, 3, v{T+1}
    v_xor_b32 v{T+8}, v{T+8}, v{T+5}
    v_lshl_add_u32 v{XR0}, v{T+8}, 3, v{T+7}
    v_add_u32 v{XR0}, {XL}, v{XR0}
    v_xor_b32 v{T+8}, 2, v{T+8}
    v_lshl_add_u32 v{XR1}, v{T+8}, 3, v{T+7}
    v_add_u32 v{XR1}, {XL + 256}, v{XR1}
    v_and_b32 v{T+7}, 13, v{T+1}
    v_lshl_add_u32 v{T+7}, v{T+6}, 1, v{T+7}
    v_lshlrev_b32 v{T+7}, 4, v{T+7}
    v_lshl_add_u32 v{T+7}, v{T+5}, 3, v{T+7}
    v_add_u32 v{OW}, {OL + (w >> 1) * 1024 + (w & 1) * 512}, v{T+7}
    ; AST = g*4096 + n*16 + (h>>1)*256 + (h&1)*8
    s_lshr_b32 s{S_T}, s{S_H}, 1
    s_lshl_b32 s{S_T}, s{S_T}, 8
    s_and_b32 s{S_T+1}, s{S_H}, 1
    s_lshl_b32 s{S_T+1}, s{S_T+1}, 3
    s_add_u32 s{S_T}, s{S_T}, s{S_T+1}
    v_lshlrev_b32 v{T+7}, 4, v{T+1}
    v_lshl_add_u32 v{T+7}, v{T+2}, 12, v{T+7}
    v_add_u32 v{AST}, s{S_T}, v{T+7}
    s_add_u32 s{S_T}, s{S_H}, {32 * w}
    s_lshl_b32 s{S_T+1}, s{S_T}, 12
    v_add_u32 v{ALD}, s{S_T+1}, v{L16}
    s_lshl_b32 s{S_T+1}, s{S_T}, 7
    v_lshlrev_b32 v{T+7}, 5, v{T+1}
    v_lshl_add_u32 v{T+7}, v{T+2}, 3, v{T+7}
    v_add_u32 v{T+7}, s{S_T+1}, v{T+7}
    v_mov_b32 v{T+8}, 0x{OOB:x}
    v_cmp_gt_u32 vcc, 4, v{T+1}
    v_cndmask_b32 v{BST}, v{T+8}, v{T+7}, vcc
    ; BLD = 3w*1024 + (g>>1)*512 + (r>>2)*128 + (g&1)*64 + (r&1)*32 + ((r>>1)&1)*16
    v_lshlrev_b32 v{T+7}, 9, v{T+6}
    v_lshl_add_u32 v{T+7}, v{T+4}, 7, v{T+7}
    v_lshl_add_u32 v{T+7}, v{T+5}, 6, v{T+7}
    v_and_b32 v{T+8}, 1, v{T+1}
    v_lshl_add_u32 v{T+7}, v{T+8}, 5, v{T+7}
    v_and_b32 v{T+8}, 2, v{T+1}
    v_lshl_add_u32 v{T+7}, v{T+8}, 3, v{T+7}
    v_add_u32 v{BLD}, {3 * w * 1024}, v{T+7}
    ''')
    if w >= 2:
        lab = a.newlabel('L_tau')
        if w == 2:
            a(f's_cmp_lt_u32 s{S_H}, 8'); a(f's_cbranch_scc1 {lab}')
        a(f'v_mov_b32 v{ALD}, 0x{OOB:x}'); a(f'v_mov_b32 v{BST}, 0x{OOB:x}')
        a.label(lab)

def load_weights(a, w):
    reg, slot, blocks = homes(w)
    seq, pairs, single = wo_plan(w)
    T = D(0)
    GQ, GO, TN, TO = D(10), D(10) + 1, D(10) + 2, D(10) + 3
    a(f'''
    v_lshrrev_b32 v{T}, 4, v{L16}        ; lane
    v_lshrrev_b32 v{T+1}, 2, v{T}        ; l>>2
    v_and_b32 v{T+2}, 3, v{T}            ; l&3
    s_lshl_b32 s{S_T}, s{S_H}, 8
    s_add_u32 s{S_T}, s{S_T}, {w * 64}
    v_lshlrev_b32 v{GQ}, 13, v{T+1}
    v_lshl_add_u32 v{GQ}, v{T+2}, 4, v{GQ}
    v_add_u32 v{GQ}, s{S_T}, v{GQ}
    s_mul_i32 s{S_T}, s{S_H}, 147456
    v_mul_u32_u24 v{GO}, 1152, v{T+1}
    v_lshl_add_u32 v{GO}, v{T+2}, 4, v{GO}
    v_add_u32 v{GO}, s{S_T}, v{GO}
    v_lshrrev_b32 v{T+3}, 5, v{T}        ; gB>>1
    v_bfe_u32 v{T+4}, v{T}, 4, 1         ; gB&1
    v_bfe_u32 v{T+5}, v{T}, 2, 1         ; s&1
    v_bfe_u32 v{T+6}, v{T}, 3, 1         ; s>>1
    v_lshl_add_u32 v{T+7}, v{T+4}, 2, v{T+5}
    v_lshl_add_u32 v{T+8}, v{T+3}, 3, v{T+7}
    v_lshlrev_b32 v{T+8}, 6, v{T+8}
    v_lshl_add_u32 v{T+8}, v{T+6}, 5, v{T+8}
    v_lshl_add_u32 v{T+8}, v{T+2}, 3, v{T+8}
    v_add_u32 v{TN}, {WL + w * 32768}, v{T+8}
    v_lshl_add_u32 v{T+8}, v{T+3}, 4, v{T+7}
    v_lshl_add_u32 v{T+8}, v{T+6}, 3, v{T+8}
    v_lshlrev_b32 v{T+8}, 6, v{T+8}
    v_lshl_add_u32 v{T+8}, v{T+2}, 3, v{T+8}
    v_add_u32 v{TO}, {WL + w * 32768}, v{T+8}
    ''')
    raw = []
    first = []
    for t, keys in blocks:
        first.append(len(raw))
        k = keys[0]
        n = 2 if t == 'old' else 1
        for b in range(n):
            if k[0] == 'v': raw.append((WV, GQ, (64 * k[1] + 32 * b) * 8192, 8192))
            elif k[0] == 'q': raw.append((WQ, GQ, 32 * k[1] * 8192, 8192))
            elif k[0] == 'k': raw.append((WK, GQ, 32 * k[1] * 8192, 8192))
            elif k[0] == 's': raw.append((WO, GO, (64 * k[1] + 32 * b) * 1152 + 64 * single, 1152))
            elif k[0] == 'o': raw.append((WO, GO, 32 * k[2] * 1152 + 64 * k[1], 1152))
    vm = Cnt(a, 'vmcnt', 63)
    def dma(i):
        srd, vo, so, rb = raw[i]
        for u in range(2):
            a(f's_mov_b32 m0, {WL + w * 32768 + (i % 16) * 2048 + u * 1024}')
            a(f's_mov_b32 s{S_P}, {so + 16 * u * rb}')
            a(f'buffer_load_dwordx4 v{vo}, s[{srd}:{srd+3}], s{S_P} offen lds')
            vm.issue(i)
    return raw, first, blocks, reg, slot, vm, dma, (TN, TO)

def convert_weights(a, w, st, hook):
    raw, first, blocks, reg, slot, vm, dma, (TN, TO) = st
    nxt = 16
    for bi, (t, keys) in enumerate(blocks):
        i = first[bi]; n = 2 if t == 'old' else 1
        vm.wait(i + n - 1)
        if bi == 0: hook(vm)
        so = (i % 16) * 2048
        for ki, k in enumerate(keys):
            dst = reg[k] if t != 'lds' else D(0)
            for p in range(4):
                if t == 'old':
                    par = ki if k[0] == 'v' else (w & 1)
                    off = so + (32 * (p >> 1) + 2 * (p & 1)) * 64 + par * 32; ad = TO
                else:
                    off = so + (16 * (p >> 1) + 2 * (p & 1)) * 64; ad = TN
                a(f'ds_read_b64_tr_b16 {ur(dst + 2 * p, 2)}, v{ad} offset:{off}')
        a('s_waitcnt lgkmcnt(0)')
        if t == 'lds':
            a(f'ds_write_b128 v{LW}, {vr(D(0), 4)} offset:{so}')
            a(f'ds_write_b128 v{LW}, {vr(D(1), 4)} offset:{so + 1024}')
            a('s_waitcnt lgkmcnt(0)')
        for _ in range(n):
            if nxt < len(raw): dma(nxt); nxt += 1

def kv_dma(a, soff):
    for half in range(4):
        a(f's_add_u32 s{S_P}, s{soff}, {(half >> 1) * (VX - KX) + (half & 1) * 4096}')
        a(f's_mov_b32 m0, {KXL + half * 4096}')
        for u in range(4):
            a(f'buffer_load_dwordx4 v{L16}, s[{S_WS}:{S_WS+3}], s{S_P} offen offset:{u * 1024} sc1 lds')

def zero(a, q):
    a(f'v_mov_b64 {vr(q, 2)}, 0'); a(f'v_mov_b64 {vr(q + 2, 2)}, 0')

def pre_b0(a, w, slot, lg):
    zero(a, D(0)); zero(a, D(1))
    for i in range(4):
        for u in range(2):
            a(f'ds_read_b128 {vr(D(5 + 2 * i + u), 4)}, v{LW} offset:{slot[("k", LK[i])] * 2048 + u * 1024}')
            lg.issue(('F', i))

def stamp(a, i, on):
    if on: a(f's_memtime s[{64 + 2 * i}:{65 + 2 * i}]')

def step(a, w, slow, opt):
    reg, slot, blocks = homes(w)
    seq, pairs, single = wo_plan(w)
    sc = ' sc1' if slow else ''
    tag = f'c{w}{"s" if slow else "f"}'
    WS = f's[{S_WS}:{S_WS+3}]'
    lg = Cnt(a, 'lgkmcnt', 15)
    SM = 'v_smfmac_f32_16x16x64_bf16'
    MF = 'v_mfma_f32_16x16x32_bf16'
    MH = 'v_mfma_f32_16x16x16_bf16'
    tm = opt.get('stamps', False)
    a.label(f'L_loop_{tag}')
    a('s_barrier')
    stamp(a, 0, tm)
    accQ, accK = D(0), D(1); AR = [D(2), D(3), D(4)]
    F = [D(5), D(7), D(9), D(11)]
    accV = [D(5), D(6)]; VA = [D(7), D(8)]; KR = [D(9), D(10), D(11)]
    def rdA(ks):
        a(f'ds_read_b128 {vr(AR[ks % 3], 4)}, v{AM} offset:{ML + 512 * ks}'); lg.issue(('A', ks))
    def rdVA(c):
        a(f'ds_read_b128 {vr(VA[c % 2], 4)}, v{L16} offset:{ML + 1024 * c}'); lg.issue(('VA', c))
    kxseq = [(t, k) for k in range(4) for t in range(2)]
    def rdKX(i):
        t, k = kxseq[i]
        a(f'ds_read_b128 {vr(KR[i % 3], 4)}, v{L16} offset:{KXL + t * 4096 + k * 1024}'); lg.issue(('KX', i))
    for ks in range(3): rdA(ks)
    for ks in range(18):
        lg.wait(('A', ks))
        a(f'{SM} {vr(accQ,4)}, {vr(AR[ks%3],4)}, {ur(reg[("q",ks)],8)}, v{IDX}')
        if ks in LK:
            i = LK.index(ks)
            if i >= 4: lg.wait(('F', i))
            kb = vr(F[i % 4], 8)
        else: kb = ur(reg[('k', ks)], 8)
        a(f'{SM} {vr(accK,4)}, {vr(AR[ks%3],4)}, {kb}, v{IDX}')
        if ks + 3 < 18: rdA(ks + 3)
        if ks in LK and LK.index(ks) < 4:
            i = LK.index(ks) + 4
            for u in range(2):
                a(f'ds_read_b128 {vr(F[i % 4] + 4 * u, 4)}, v{LW} offset:{slot[("k", LK[i])] * 2048 + u * 1024}'); lg.issue(('F', i))
        if ks == 7: zero(a, accV[0])
        if ks == 9: zero(a, accV[1]); rdVA(0)
        if ks == 11: rdVA(1); rdKX(0)
        if ks == 13: rdKX(1)
        if ks == 14: rdKX(2)
        if w < 3 and ks == 14:
            a(f'v_mov_b64 {vr(D(12),2)}, -1'); a(f'v_mov_b64 {vr(D(12)+2,2)}, -1')
        if w < 3 and ks in (15, 16):
            skip = None
            for u in range(2):
                a(f'buffer_store_dwordx4 {vr(D(12),4)}, v{ALD}, {WS}, s{S_AO} offen offset:{((ks - 15) * 2 + u) * 1024}{sc}')
            if ks == 16:
                a(f'buffer_store_dwordx2 {vr(D(12),2)}, v{BST}, {WS}, s{S_BF} offen{sc}')
    stamp(a, 1, tm)
    vi = [0]
    def vsm(n):
        for _ in range(n):
            i = vi[0]
            if i >= 18: return
            c, T = i >> 1, i & 1
            lg.wait(('VA', c))
            a(f'{SM} {vr(accV[T],4)}, {vr(VA[c%2],4)}, {ur(reg[("v",c,T)],8)}, v{IDX}')
            if T == 1 and c + 2 < 9: rdVA(c + 2)
            vi[0] += 1
    XP = D(2)
    vsm(2)
    a(f'v_cvt_pk_bf16_f32 v{XP+1}, v{accQ}, v{accQ+1}')
    a(f'v_cvt_pk_bf16_f32 v{XP+3}, v{accQ+2}, v{accQ+3}')
    a(f'v_cvt_pk_bf16_f32 v{XP}, v{accK}, v{accK+1}')
    a(f'v_cvt_pk_bf16_f32 v{XP+2}, v{accK+2}, v{accK+3}')
    a(f'ds_write_b64 v{XW}, {vr(XP,2)}'); lg.issue('xw')
    a(f'ds_write_b64 v{XW}, {vr(XP+2,2)} offset:512'); lg.issue('xw')
    vsm(opt.get('v1', 4))
    lg.wait('xw')
    a('s_barrier')
    XO = [D(2), D(3), D(4), D(12)]
    for ks in range(4):
        for p in range(2):
            a(f'ds_read_b64_tr_b16 {vr(XO[ks] + 2 * p, 2)}, v{XR1 if p else XR0} offset:{1024 * ks}'); lg.issue(('XO', ks))
        if ks >= 1: vsm(1)
    vsm(16 - vi[0])
    stamp(a, 2, tm)
    Sm, S0, S1 = D(0), D(1), D(8)
    VXR = [D(9), D(10)]
    for ks in range(4):
        lg.wait(('XO', ks))
        c = lambda r: '0' if ks == 0 else vr(r, 4)
        a(f'{MF} {vr(Sm,4)}, {vr(XO[ks],4)}, {vr(XO[ks],4)}, {c(Sm)}')
        for t in range(2):
            i = 2 * ks + t
            lg.wait(('KX', i))
            S = S1 if t else S0
            a(f'{MF} {vr(S,4)}, {vr(KR[i%3],4)}, {vr(XO[ks],4)}, {c(S)}')
            if i + 3 < 8: rdKX(i + 3)
    for T in range(2):
        a(f'ds_read_b128 {vr(VXR[T],4)}, v{L16} offset:{VXL + w * 2048 + T * 1024}'); lg.issue(('VX', T))
    ONE = D(11); PX = D(3); PM = D(4); SUM = D(12); OA = [D(2), D(7)]
    a(f'v_mov_b32 v{ONE}, 0x3f803f80'); a(f'v_mov_b32 v{ONE+1}, 0x3f803f80')
    a(f'v_mov_b64 {vr(ONE+2,2)}, {vr(ONE,2)}')
    a(f'v_mov_b64 {vr(PM+1-1+0,2)}, 0'); a(f'v_mov_b64 {vr(PM+2,2)}, 0')
    M, M2 = D(2), D(2) + 1
    a(f'v_max3_f32 v{M}, v{Sm}, v{Sm+1}, v{S0}')
    a(f'v_max3_f32 v{M}, v{M}, v{S0+1}, v{S0+2}')
    a(f'v_max3_f32 v{M}, v{M}, v{S0+3}, v{S1}')
    a(f'v_max3_f32 v{M}, v{M}, v{S1+1}, v{S1+2}')
    a(f'v_max_f32 v{M2}, v{M}, v{S1+3}')
    a(f'v_max_f32 v{M}, v{M}, v{S1+3}')
    vsm(1)
    a(f'v_permlane32_swap_b32 v{M}, v{M2}')
    a(f'v_max_f32 v{M}, v{M}, v{M2}')
    a(f'v_mov_b32 v{M2}, v{M}')
    vsm(1)
    a(f'v_permlane16_swap_b32 v{M}, v{M2}')
    a(f'v_max_f32 v{M}, v{M}, v{M2}')
    a(f'v_mul_f32 v{M}, s{S_C+1}, v{M}')
    vals = [Sm, S0, S0 + 2, S1, S1 + 2]
    for r in vals:
        a(f'v_pk_fma_f32 {vr(r,2)}, {vr(r,2)}, s[{S_C}:{S_C+1}], {vr(M,2)} op_sel_hi:[1,0,0]')
    for r in vals:
        a(f'v_exp_f32 v{r}, v{r}'); a(f'v_exp_f32 v{r+1}, v{r+1}')
    a(f'v_cvt_pk_bf16_f32 v{PX}, v{S0}, v{S0+1}')
    a(f'v_cvt_pk_bf16_f32 v{PX+1}, v{S0+2}, v{S0+3}')
    a(f'v_cvt_pk_bf16_f32 v{PX+2}, v{S1}, v{S1+1}')
    a(f'v_cvt_pk_bf16_f32 v{PX+3}, v{S1+2}, v{S1+3}')
    a(f'v_cvt_pk_bf16_f32 v{PM}, v{Sm}, v{Sm+1}')
    a(f'v_cvt_pk_bf16_f32 v{PM+3}, v{Sm}, v{Sm+1}')
    stamp(a, 3, tm)
    a(f'{MF} {vr(SUM,4)}, {vr(ONE,4)}, {vr(PX,4)}, 0')
    a(f'v_pk_add_f32 {vr(accV[0],2)}, {vr(accV[0],2)}, {vr(accV[0]+2,2)}')
    a(f'v_pk_add_f32 {vr(accV[1],2)}, {vr(accV[1],2)}, {vr(accV[1]+2,2)}')
    a(f'{MH} {vr(SUM,4)}, {vr(ONE,2)}, {vr(PM,2)}, {vr(SUM,4)}')
    VMR = accV[0]
    a(f'v_cvt_pk_bf16_f32 v{VMR}, v{accV[0]}, v{accV[0]+1}')
    a(f'v_cvt_pk_bf16_f32 v{VMR+1}, v{accV[1]}, v{accV[1]+1}')
    lg.wait(('VX', 0))
    a(f'{MF} {vr(OA[0],4)}, {vr(VXR[0],4)}, {vr(PX,4)}, 0')
    lg.wait(('VX', 1))
    a(f'{MF} {vr(OA[1],4)}, {vr(VXR[1],4)}, {vr(PX,4)}, 0')
    TA = D(6)
    a(f'v_lshrrev_b32 v{TA}, 1, v{L16}')
    a(f'{MH} {vr(OA[0],4)}, {vr(VMR,2)}, {vr(PM,2)}, {vr(OA[0],4)}')
    a(f'ds_write_b64 v{TA}, {vr(VMR,2)} offset:{VXL + w * 2048}'); lg.issue('vmw')
    a(f'{MH} {vr(OA[1],4)}, {vr(VMR,2)}, {vr(PM+2,2)}, {vr(OA[1],4)}')
    WA = [D(0), D(1), D(8)]
    WF = [D(9), D(11)]
    R = D(6) + 1
    a(f'v_rcp_f32 v{R}, v{SUM}')
    zero(a, WA[0]); zero(a, WA[1]); zero(a, WA[2])
    def rdWF(i):
        _, P, k = seq[WO_LDS_POS[i]]
        for u in range(2):
            a(f'ds_read_b128 {vr(WF[i % 2] + 4 * u, 4)}, v{LW} offset:{slot[("o", P, k)] * 2048 + u * 1024}'); lg.issue(('WF', i))
    for T in range(2):
        for r in range(4): a(f'v_mul_f32 v{OA[T]+r}, v{R}, v{OA[T]+r}')
        a(f'v_cvt_pk_bf16_f32 v{OA[T]}, v{OA[T]}, v{OA[T]+1}')
        a(f'v_cvt_pk_bf16_f32 v{OA[T]+1}, v{OA[T]+2}, v{OA[T]+3}')
    a(f's_mov_b64 exec, s[{S_OMASK}:{S_OMASK+1}]')
    for T in range(2):
        a(f'ds_write_b64 v{OW}, {vr(OA[T],2)} offset:{256 * T}'); lg.issue('ow')
    a('s_mov_b64 exec, -1')
    rdWF(0); rdWF(1)
    lg.wait('ow')
    a('s_barrier')
    stamp(a, 4, tm)
    a(f's_cmp_eq_u32 s{S_STEP}, 63')
    a(f's_cbranch_scc1 L_after_wo_{tag}')
    OAf = [D(2), D(3), D(4), D(5)]; OS = [D(6), D(7)]
    for k in range(4):
        a(f'ds_read_b128 {vr(OAf[k],4)}, v{AM} offset:{OL + 512 * k}'); lg.issue(('oa', k))
    for c in range(2):
        a(f'ds_read_b128 {vr(OS[c],4)}, v{L16} offset:{OL + 1024 * c}'); lg.issue(('os', c))
    groups = [(0, 4), (4, 8), (8, 10), (10, 14), (14, 18)]
    pend = []
    def fin(gi):
        q = WA[gi % 3]; kind, P, _ = seq[groups[gi][0]]
        a(f's_add_u32 s{S_P}, s{S_A}, {P * 16384}')
        if kind == 'p':
            a(f'v_cvt_pk_bf16_f32 v{q}, v{q}, v{q+1}')
            a(f'v_cvt_pk_bf16_f32 v{q+1}, v{q+2}, v{q+3}')
            a(f'buffer_store_dwordx2 {vr(q,2)}, v{AST}, {WS}, s{S_P} offen{sc}')
        else:
            a(f'v_pk_add_f32 {vr(q,2)}, {vr(q,2)}, {vr(q+2,2)}')
            a(f'v_cvt_pk_bf16_f32 v{q}, v{q}, v{q+1}')
            a(f'buffer_store_dword v{q}, v{AST}, {WS}, s{S_P} offen offset:{4 * (w & 1)}{sc}')
        if gi + 3 < 5: zero(a, q)
    for pos, (kind, P, k) in enumerate(seq):
        gi = [i for i, (x, y) in enumerate(groups) if x <= pos < y][0]
        if kind == 'p': lg.wait(('oa', k)); A = OAf[k]
        else: lg.wait(('os', k)); A = OS[k]
        if pos in WO_LDS_POS:
            i = WO_LDS_POS.index(pos); lg.wait(('WF', i)); B = vr(WF[i % 2], 8)
        else:
            B = ur(reg[('o', P, k)] if kind == 'p' else reg[('s', k)], 8)
        a(f'{SM} {vr(WA[gi%3],4)}, {vr(A,4)}, {B}, v{IDX}')
        if pos in WO_LDS_POS and i + 2 < 8: rdWF(i + 2)
        for g2, (x, y) in enumerate(groups):
            if pos == y + 1: fin(g2)
    fin(4)
    stamp(a, 5, tm)
    a.label(f'L_after_wo_{tag}')
    lg.reset()
    a('s_waitcnt lgkmcnt(0)')
    if w < 3:
        a(f's_cmp_eq_u32 s{S_STEP}, 63')
        a(f's_cbranch_scc1 L_chain_end')
        RR = [D(2), D(3), D(4), D(5)]; SEL = D(6); RA = D(7); MX = D(8)
        if w == 2:
            a(f's_cmp_ge_u32 s{S_H}, 8')
            a(f's_cbranch_scc1 L_nored_{tag}')
        a(f's_mov_b32 s{S_SPIN}, 0')
        a.label(f'L_pollA_{tag}')
        for u in range(4):
            a(f'buffer_load_dwordx4 {vr(RR[u],4)}, v{ALD}, {WS}, s{S_A} offen offset:{u * 1024} sc1')
        a(f'v_bfe_u32 v{MX}, v{L16}, 4, 4')
        a(f'v_lshlrev_b32 v{MX+1}, 4, v{MX}')
        a(f'v_mov_b32 v{MX+2}, 0x3f80')
        a(f'v_mov_b32 v{MX+3}, 0')
        a(f'v_lshlrev_b64 {vr(SEL,2)}, v{MX+1}, {vr(MX+2,2)}')
        a(f'v_cmp_gt_u32 vcc, 4, v{MX}')
        a(f'v_cndmask_b32 v{SEL}, 0, v{SEL}, vcc')
        a(f'v_cndmask_b32 v{SEL+1}, 0, v{SEL+1}, vcc')
        a(f'v_mov_b64 {vr(SEL+2,2)}, {vr(SEL,2)}')
        a(f's_add_u32 s{S_SPIN}, s{S_SPIN}, 1')
        for u in range(4):
            a(f's_waitcnt vmcnt({3 - u})')
            a(f'{MF} {vr(RA,4)}, {vr(RR[u],4)}, {vr(SEL,4)}, {"0" if u == 0 else vr(RA,4)}')
            if u == 0: a(f'v_max3_u32 v{MX}, v{RR[u]}, v{RR[u]+1}, v{RR[u]+2}'); a(f'v_max_u32 v{MX}, v{MX}, v{RR[u]+3}')
            else: a(f'v_max3_u32 v{MX}, v{MX}, v{RR[u]}, v{RR[u]+1}'); a(f'v_max3_u32 v{MX}, v{MX}, v{RR[u]+2}, v{RR[u]+3}')
        a(f'v_cmp_eq_u32 vcc, -1, v{MX}')
        a(f's_cmp_lt_u32 s{S_SPIN}, {SPIN}')
        a(f's_cselect_b64 s[{S_T}:{S_T+1}], vcc, 0')
        a(f's_cmp_lg_u64 s[{S_T}:{S_T+1}], 0')
        a(f's_cbranch_scc1 L_pollA_{tag}')
        a(f'v_cvt_pk_bf16_f32 v{RA}, v{RA}, v{RA+1}')
        a(f'v_cvt_pk_bf16_f32 v{RA+1}, v{RA+2}, v{RA+3}')
        a(f'buffer_store_dwordx2 {vr(RA,2)}, v{BST}, {WS}, s{S_BW} offen{sc}')
        a.label(f'L_nored_{tag}')
        stamp(a, 6, tm)
        CR = [D(2), D(3), D(4)]
        first = True
        a(f's_mov_b32 s{S_SPIN}, 0')
        for u in range(3):
            a(f'buffer_load_dwordx4 {vr(CR[u],4)}, v{BLD}, {WS}, s{S_BW} offen offset:{u * 1024} sc1')
        pre_b0(a, w, slot, lg)
        a(f's_branch L_chkB_{tag}')
        a.label(f'L_pollB_{tag}')
        for u in range(3):
            a(f'buffer_load_dwordx4 {vr(CR[u],4)}, v{BLD}, {WS}, s{S_BW} offen offset:{u * 1024} sc1')
        a.label(f'L_chkB_{tag}')
        a(f's_add_u32 s{S_SPIN}, s{S_SPIN}, 1')
        for u in range(3):
            a(f's_waitcnt vmcnt({2 - u})')
            a(f'ds_write_b128 v{L16}, {vr(CR[u],4)} offset:{ML + (3 * w + u) * 1024}')
        VT = CR[0] + 1
        a(f'v_max3_u32 v{VT}, v{CR[0]}, v{CR[0]+2}, v{CR[1]}')
        a(f'v_max3_u32 v{VT}, v{VT}, v{CR[1]+2}, v{CR[2]}')
        a(f'v_max_u32 v{VT}, v{VT}, v{CR[2]+2}')
        a(f'v_cmp_eq_u32 vcc, -1, v{VT}')
        a(f's_cmp_lt_u32 s{S_SPIN}, {SPIN}')
        a(f's_cselect_b64 s[{S_T}:{S_T+1}], vcc, 0')
        a(f's_cmp_lg_u64 s[{S_T}:{S_T+1}], 0')
        a(f's_cbranch_scc1 L_pollB_{tag}')
        a(f's_waitcnt lgkmcnt(0)')
    else:
        XO = [D(2), D(3), D(4), D(5)]; VS = [D(6), D(7)]; T = D(8)
        for ks in range(4):
            for p in range(2):
                a(f'ds_read_b64_tr_b16 {vr(XO[ks] + 2 * p, 2)}, v{XR1 if p else XR0} offset:{1024 * ks}')
        a(f'v_and_b32 v{T}, 0x200, v{L16}')
        a(f'v_and_b32 v{T+1}, 0x1f0, v{L16}')
        a(f'v_lshl_add_u32 v{T}, v{T}, 2, v{T+1}')
        for u in range(2):
            a(f'ds_read_b128 {vr(VS[u],4)}, v{T} offset:{VXL + u * 4096}')
        a(f'v_and_b32 v{T+1}, 0x3c0, v{L16}')
        a(f'v_lshrrev_b32 v{T+1}, 1, v{T+1}')
        a(f'v_and_b32 v{T+2}, 0x10, v{L16}')
        a(f'v_or_b32 v{T+1}, v{T+1}, v{T+2}')
        a(f'v_and_b32 v{T+2}, 0x20, v{L16}')
        a(f'v_lshl_or_b32 v{T+1}, v{T+2}, 26, v{T+1}')
        a(f's_add_u32 s{S_P}, s{S_KM}, {VM - KM}')
        a('s_waitcnt lgkmcnt(0)')
        if not opt.get('nokm'):
            for ks in range(4):
                a(f'buffer_store_dwordx4 {vr(XO[ks],4)}, v{T+1}, {WS}, s{S_KM} offen offset:{512 * ks} sc1')
            for u in range(2):
                a(f'buffer_store_dwordx4 {vr(VS[u],4)}, v{L16}, {WS}, s{S_P} offen offset:{1024 * u} sc1')
        a(f's_cmp_eq_u32 s{S_STEP}, 63')
        a(f's_cbranch_scc1 L_chain_last')
        if opt.get('flags', False):
            a(f's_add_u32 s{S_T+2}, s{S_STEP}, 1')
            a(f's_cmp_gt_u32 s{S_FL}, s{S_T+2}')
            a(f's_cbranch_scc1 L_kvok_{tag}')
            a(f's_mov_b32 s{S_SPIN}, 0')
            a.label(f'L_kvpoll_{tag}')
            a(f's_lshl_b32 s{S_T}, s{S_H}, 7')
            a(f's_add_u32 s{S_T}, s{S_T}, {flag(F_PROJ)}')
            a(f'buffer_load_dwordx4 {vr(T,4)}, off, {WS}, s{S_T} sc1')
            a(f's_add_u32 s{S_SPIN}, s{S_SPIN}, 1')
            a('s_waitcnt vmcnt(0)')
            a(f'v_min3_u32 v{T}, v{T}, v{T+1}, v{T+2}'); a(f'v_min_u32 v{T}, v{T}, v{T+3}')
            a(f'v_readfirstlane_b32 s{S_FL}, v{T}')
            a(f's_cmp_ge_u32 s{S_SPIN}, {SPIN}')
            a(f's_cbranch_scc1 L_kvok_{tag}')
            a(f's_cmp_le_u32 s{S_FL}, s{S_T+2}')
            a(f's_cbranch_scc1 L_kvpoll_{tag}')
            a.label(f'L_kvok_{tag}')
        if not opt.get('nokv'): kv_dma(a, S_KX)
        pre_b0(a, w, slot, lg)
        a('s_waitcnt vmcnt(0) lgkmcnt(0)')
        if opt.get('flags', False):
            a(f's_lshl_b32 s{S_T}, s{S_H}, 7')
            a(f's_add_u32 s{S_T}, s{S_T}, {flag(F_CHAIN)}')
            a(f's_add_u32 s{S_T+2}, s{S_STEP}, 1')
            a(f'v_mov_b32 v{D(2)}, s{S_T+2}')
            a(f'buffer_store_dword v{D(2)}, off, {WS}, s{S_T} sc1')
    a(f's_add_u32 s{S_STEP}, s{S_STEP}, 1')
    a(f's_mov_b32 s{S_T}, s{S_A}'); a(f's_mov_b32 s{S_A}, s{S_AO}'); a(f's_mov_b32 s{S_AO}, s{S_T}')
    a(f's_mov_b32 s{S_T}, s{S_BF}'); a(f's_mov_b32 s{S_BF}, s{S_BN}'); a(f's_mov_b32 s{S_BN}, s{S_BW}'); a(f's_mov_b32 s{S_BW}, s{S_T}')
    a(f's_add_u32 s{S_KX}, s{S_KX}, {32 * 8192}')
    a(f's_add_u32 s{S_KM}, s{S_KM}, {32 * 2048}')
    stamp(a, 7, tm)
    if tm:
        a('s_waitcnt lgkmcnt(0)')
        for i in range(1, 8):
            a(f's_sub_u32 s{S_T}, s{64 + 2 * i}, s64')
            a(f's_add_u32 s{80 + i}, s{80 + i}, s{S_T}')
    a(f's_branch L_loop_{tag}')

def srd(a, dst, karg_off, nbytes):
    a(f's_load_dwordx2 s[{dst}:{dst+1}], s[0:1], {karg_off}')
    a('s_waitcnt lgkmcnt(0)')
    a(f's_and_b32 s{dst+1}, s{dst+1}, 0xffff')
    a(f's_mov_b32 s{dst+2}, {nbytes}')
    a(f's_mov_b32 s{dst+3}, 0x20000')

def entry(a, opt):
    WS = f's[{S_WS}:{S_WS+3}]'; DBG = f's[{S_DBG}:{S_DBG+3}]'
    a.label('L_chain')
    a(f's_load_dwordx4 s[{WQ}:{WQ+3}], s[0:1], 16')
    a(f's_load_dwordx4 s[{WV}:{WV+3}], s[0:1], 32')
    a(f's_load_dwordx2 s[{S_R4}:{S_R4+1}], s[0:1], 8')
    a('s_waitcnt lgkmcnt(0)')
    a(f's_mov_b32 s{WK}, s{WQ+2}'); a(f's_and_b32 s{WK+1}, s{WQ+3}, 0xffff')
    a(f's_mov_b32 s{WO}, s{WV+2}'); a(f's_and_b32 s{WO+1}, s{WV+3}, 0xffff')
    for r in (WQ, WV, S_R4): a(f's_and_b32 s{r+1}, s{r+1}, 0xffff')
    for r in (WQ, WK, WV, WO): a(f's_mov_b32 s{r+2}, 4718592'); a(f's_mov_b32 s{r+3}, 0x20000')
    a(f's_mov_b32 s{S_R4+2}, 9216'); a(f's_mov_b32 s{S_R4+3}, 0x20000')
    for w in range(1, 4):
        a(f's_cmp_eq_u32 s{S_WAVE}, {w}'); a(f's_cbranch_scc1 L_chain_w{w}')
    for w in range(4):
        a.label(f'L_chain_w{w}')
        consts(a, w)
        st = load_weights(a, w)
        vm = st[5]; dma = st[6]; slot = st[4]
        a(f'v_mov_b64 {vr(D(12),2)}, -1'); a(f'v_mov_b64 {vr(D(12)+2,2)}, -1')
        a(f's_mov_b32 s{S_A}, {HOPA}'); a(f's_mov_b32 s{S_AO}, {HOPA + HOPA_SLOT}')
        a(f's_mov_b32 s{S_BW}, {HOPB + HOPB_SLOT}'); a(f's_mov_b32 s{S_BN}, {HOPB}'); a(f's_mov_b32 s{S_BF}, {HOPB + 2 * HOPB_SLOT}')
        if w < 3:
            for s_ in (S_A, S_AO):
                for u in range(4): a(f'buffer_store_dwordx4 {vr(D(12),4)}, v{ALD}, {WS}, s{s_} offen offset:{u * 1024} sc1'); vm.issue('i')
            for s_ in (S_BW, S_BN, S_BF):
                a(f'buffer_store_dwordx2 {vr(D(12),2)}, v{BST}, {WS}, s{s_} offen sc1'); vm.issue('i')
        for i in range(16): dma(i)
        def hook(vm):
            a(f'v_mov_b32 v{D(12)}, 1')
            a('s_mov_b64 exec, 1')
            a(f'buffer_atomic_add v{D(12)}, off, {DBG}, 0 offset:8'); vm.issue('at')
            a('s_mov_b64 exec, -1')
        convert_weights(a, w, st, hook)
        a(f's_mov_b32 s{S_STEP}, 0')
        a(f's_mov_b32 s{S_C}, 0x{0x3e0293ee:x}'); a(f's_mov_b32 s{S_C+1}, 0x{0xbe0293ee:x}')
        a(f's_mov_b32 s{S_OMASK}, 0xcccccccc'); a(f's_mov_b32 s{S_OMASK+1}, 0xcccccccc')
        a(f's_lshl_b32 s{S_KX}, s{S_H}, 13'); a(f's_add_u32 s{S_KX}, s{S_KX}, {KX}')
        a(f's_lshl_b32 s{S_KM}, s{S_H}, 11'); a(f's_add_u32 s{S_KM}, s{S_KM}, {KM}')
        a(f's_mov_b32 s{S_FL}, 0')
        for i in range(1, 8): a(f's_mov_b32 s{80 + i}, 0')
        T = D(2)
        a(f's_mov_b32 s{S_SPIN}, 0')
        lab = a.newlabel('L_cwait')
        a.label(lab)
        a(f'buffer_load_dwordx4 {vr(T,4)}, off, {DBG}, 0 sc1')
        a(f's_add_u32 s{S_SPIN}, s{S_SPIN}, 1')
        a('s_waitcnt vmcnt(0)')
        a(f'v_readfirstlane_b32 s{S_T}, v{T}')
        a(f'v_readfirstlane_b32 s{S_T+1}, v{T+1}')
        a(f'v_readfirstlane_b32 s{S_T+2}, v{T+2}')
        a(f's_cmp_ge_u32 s{S_SPIN}, {SPIN}'); a(f's_cbranch_scc1 {lab}_x')
        a(f's_cmp_lt_u32 s{S_T+1}, 256'); a(f's_cbranch_scc1 {lab}')
        a(f's_cmp_lt_u32 s{S_T+2}, 128'); a(f's_cbranch_scc1 {lab}')
        a.label(lab + '_x')
        a(f's_lshr_b32 s{S_T+3}, s{S_T}, 16')
        lg = Cnt(a, 'lgkmcnt', 15)
        if w < 3:
            a(f'v_bfe_u32 v{T}, v{L16}, 6, 2')
            a(f'v_bfe_u32 v{T+1}, v{L16}, 4, 1')
            a(f'v_lshl_add_u32 v{T}, v{T}, 1, v{T+1}')
            a(f'v_mul_u32_u24 v{T}, 1152, v{T}')
            a(f'v_bfe_u32 v{T+1}, v{L16}, 8, 2')
            a(f'v_lshl_add_u32 v{T}, v{T+1}, 5, v{T}')
            a(f'v_bfe_u32 v{T+1}, v{L16}, 5, 1')
            a(f'v_lshl_add_u32 v{T}, v{T+1}, 4, v{T}')
            for u in range(3):
                a(f'buffer_load_dwordx4 {vr(D(5+u),4)}, v{T}, s[{S_R4}:{S_R4+3}], 0 offen offset:{(3 * w + u) * 128}')
            a('s_waitcnt vmcnt(0)')
            for u in range(3):
                a(f'ds_write_b128 v{L16}, {vr(D(5+u),4)} offset:{ML + (3 * w + u) * 1024}')
            a('s_waitcnt lgkmcnt(0)')
        else:
            if opt.get('flags', False):
                a(f's_mov_b32 s{S_SPIN}, 0')
                lab = a.newlabel('L_kv0')
                a.label(lab)
                a(f's_lshl_b32 s{S_T}, s{S_H}, 7')
                a(f's_add_u32 s{S_T}, s{S_T}, {flag(F_PROJ)}')
                a(f'buffer_load_dwordx4 {vr(T,4)}, off, {WS}, s{S_T} sc1')
                a(f's_add_u32 s{S_SPIN}, s{S_SPIN}, 1')
                a('s_waitcnt vmcnt(0)')
                a(f'v_min3_u32 v{T}, v{T}, v{T+1}, v{T+2}'); a(f'v_min_u32 v{T}, v{T}, v{T+3}')
                a(f'v_readfirstlane_b32 s{S_FL}, v{T}')
                a(f's_cmp_ge_u32 s{S_SPIN}, {SPIN}'); a(f's_cbranch_scc1 {lab}_x')
                a(f's_cmp_eq_u32 s{S_FL}, 0'); a(f's_cbranch_scc1 {lab}')
                a.label(lab + '_x')
            kv_dma(a, S_KX)
        a(f's_add_u32 s{S_KX}, s{S_KX}, {32 * 8192}')
        pre_b0(a, w, slot, lg)
        a('s_waitcnt vmcnt(0) lgkmcnt(0)')
        if opt.get('times', False): a(f's_memrealtime s[{S_T0}:{S_T0+1}]'); a('s_waitcnt lgkmcnt(0)')
        a(f's_cmp_lt_u32 s{S_T+3}, 32')
        a(f's_cbranch_scc1 L_loop_c{w}s')
        step(a, w, False, opt)
        step(a, w, True, opt)
    a.label('L_chain_last')
    a('s_waitcnt vmcnt(0)')
    if opt.get('flags', False):
        a(f's_lshl_b32 s{S_T}, s{S_H}, 7')
        a(f's_add_u32 s{S_T}, s{S_T}, {flag(F_CHAIN)}')
        a(f'v_mov_b32 v{D(2)}, 64')
        a(f'buffer_store_dword v{D(2)}, off, {WS}, s{S_T} sc1')
    a.label('L_chain_end')
    if opt.get('times', False):
        a(f's_memrealtime s[{S_T0+2}:{S_T0+3}]'); a('s_waitcnt lgkmcnt(0)')
        a(f's_lshl_b32 s{S_T}, s{S_H}, 2'); a(f's_add_u32 s{S_T}, s{S_T}, s{S_WAVE}'); a(f's_lshl_b32 s{S_T}, s{S_T}, 6')
        a(f's_add_u32 s{S_T}, s{S_T}, {TIMES}')
        vals = [62, S_T0, S_T0 + 2] + list(range(81, 88))
        for i, r in enumerate(vals):
            a(f'v_mov_b32 v{D(2)}, s{r}')
            a(f'buffer_store_dword v{D(2)}, off, {WS}, s{S_T} offset:{4 * i}')
    a('s_endpgm')
```

```python
FLAGS = 0
HOPA = 0x10000; HOPA_SLOT = 72 * 4096
HOPB = HOPA + 2 * HOPA_SLOT; HOPB_SLOT = 9216
TIMES = 0xB0000
XN = 0x100000
HB = 0x400000
XN2 = 0x700000
KM = 0xA00000
VM = 0xE00000
QX = 0x1200000
KX = 0x2200000
VX = 0x3200000
PA = 0x4200000
PF = 0x7000000
WS_BYTES = 268435456
assert HOPB + 3 * HOPB_SLOT <= TIMES
assert PA + 64 * 16 * 36864 <= PF and PF + 64 * 36 * 36864 <= WS_BYTES
OOB = 0x80000000
F_PROJ = 0
F_CHAIN = 48
F_ATT = 80
F_LN = 208
F_FFN = 272
DBG_XN = 128
def flag(line): return FLAGS + line * 128

S_WG = 2
S_WS = 4
S_DBG = 8
S_R0 = 12
S_R1 = 16
S_R2 = 20
S_R3 = 24
S_R4 = 28
S_ROLE = 32
S_WAVE = 33
S_T = 34
```

```python
from asm import *
from lay import *
SPIN = 1 << 18
S_SEG = 40; S_SPIN = 50; S_P = 51; S_Q = 41; S_B = 42; S_M = 43; S_G = 44; S_OB = 45
S_C = 46
S_MK = 52
S_TM = 64
WS = f's[{S_WS}:{S_WS+3}]'; DBG = f's[{S_DBG}:{S_DBG+3}]'
MF32 = 'v_mfma_f32_32x32x16_bf16'; MF = 'v_mfma_f32_16x16x32_bf16'; MH = 'v_mfma_f32_16x16x16_bf16'
def R(i): return f's[{i}:{i+3}]'

def srd_fix(a, r, nbytes):
    a(f's_and_b32 s{r+1}, s{r+1}, 0xffff'); a(f's_mov_b32 s{r+2}, {nbytes}'); a(f's_mov_b32 s{r+3}, 0x20000')

def poll(a, vaddr, srd, soff, sval, tmp, name, imm=0):
    lab = a.newlabel('L_' + name)
    a.label(lab)
    if vaddr is None: a(f'buffer_load_dword v{tmp}, off, {srd}, {soff} offset:{imm} sc1')
    else: a(f'buffer_load_dword v{tmp}, v{vaddr}, {srd}, {soff} offen offset:{imm} sc1')
    a(f's_add_u32 s{S_SPIN}, s{S_SPIN}, 1')
    a(f's_cmp_ge_u32 s{S_SPIN}, {SPIN}')
    a('s_waitcnt vmcnt(0)')
    a(f's_cbranch_scc1 {lab}_x')
    a(f'v_cmp_ge_u32 vcc, {sval}, v{tmp}')
    a(f's_cbranch_vccnz {lab}')
    a.label(lab + '_x')

def tstamp(a, opt, i):
    if opt.get('times'): a(f's_memrealtime s[{S_TM+2*i}:{S_TM+2*i+1}]'); a('s_waitcnt lgkmcnt(0)')
def tfirst(a, opt, first_cond):
    if opt.get('times'):
        lab = a.newlabel('L_tf'); a(first_cond); a(f's_cbranch_scc0 {lab}'); tstamp(a, opt, 1); a.label(lab)
def finish(a, opt):
    if opt.get('times'):
        tstamp(a, opt, 2)
        a(f's_add_u32 s{S_T}, s{S_ROLE}, 32'); a(f's_lshl_b32 s{S_T}, s{S_T}, 2'); a(f's_add_u32 s{S_T}, s{S_T}, s{S_WAVE}')
        a(f's_lshl_b32 s{S_T}, s{S_T}, 6'); a(f's_add_u32 s{S_T}, s{S_T}, {TIMES}')
        for i, r in enumerate([62, S_TM, S_TM + 2, S_TM + 4]):
            a(f'v_mov_b32 v1, s{r}'); a(f'buffer_store_dword v1, off, {WS}, s{S_T} offset:{4*i}')
    a('s_endpgm')

def x_consts(a, DO, XA, T):
    a(f's_mul_i32 s{S_T}, s{S_WAVE}, 576')
    a(f's_mov_b32 s{S_T+1}, 58255')
    for i in range(9):
        a(f'''
        v_add_u32 v{T}, s{S_T}, v0
        v_add_u32 v{T}, {64*i}, v{T}
        v_mul_lo_u32 v{T+1}, v{T}, s{S_T+1}
        v_lshrrev_b32 v{T+1}, 22, v{T+1}
        v_mul_u32_u24 v{T+2}, 72, v{T+1}
        v_sub_u32 v{T+2}, v{T}, v{T+2}
        v_bfe_u32 v{T+3}, v{T+1}, 1, 3
        v_xor_b32 v{T+2}, v{T+2}, v{T+3}
        v_mul_u32_u24 v{T+1}, 1152, v{T+1}
        v_lshl_add_u32 v{DO+i}, v{T+2}, 4, v{T+1}
        ''')
    a(f'''
    v_and_b32 v{T}, 31, v0
    v_lshrrev_b32 v{T+1}, 5, v0
    v_bfe_u32 v{T+2}, v{T}, 1, 3
    v_mul_u32_u24 v{T}, 1152, v{T}
    ''')
    for m in range(4):
        a(f'v_add_u32 v{T+3}, {2*m}, v{T+1}'); a(f'v_xor_b32 v{T+3}, v{T+3}, v{T+2}'); a(f'v_lshl_add_u32 v{XA+m}, v{T+3}, 4, v{T}')
assert all((x * 58255) >> 22 == x // 72 for x in range(2304))

def x_dma(a, DO, soff, sbuf):
    for i in range(9):
        if i == 0: a(f's_mov_b32 m0, s{sbuf}')
        else: a(f's_add_u32 m0, s{sbuf}, {1024*i}')
        a(f'buffer_load_dwordx4 v{DO+i}, {WS}, s{soff} offen sc1 lds')

def sel(a, dst, T, mode):
    a(f'v_and_b32 v{T}, 15, v0')
    if mode == 'hi': a(f'v_xor_b32 v{T}, 8, v{T}')
    if mode == 'dup': a(f'v_and_b32 v{T}, 7, v{T}')
    a(f'v_and_b32 v{T+1}, 1, v{T}'); a(f'v_lshlrev_b32 v{T+1}, 4, v{T+1}')
    a(f'v_mov_b32 v{T+2}, 0x3f80'); a(f'v_lshlrev_b32 v{T+2}, v{T+1}, v{T+2}')
    a(f'v_lshrrev_b32 v{T}, 1, v{T}')
    for d in range(4):
        a(f'v_cmp_eq_u32 vcc, {d}, v{T}'); a(f'v_cndmask_b32 v{dst+d}, 0, v{T+2}, vcc')

def proj(a, opt):
    DO = 1; XA = 10; ST = 14; TA = 15; ACC = [16, 32]; XR = [48, 52, 56, 60]; T = 64; FV = 70
    def W(kk, cb): return ur(224 + 8 * kk + 4 * cb, 4)
    a.label('L_proj')
    a(f's_load_dwordx4 s[{S_R1}:{S_R1+3}], s[0:1], 16')
    a(f's_load_dwordx2 s[{S_R2}:{S_R2+1}], s[0:1], 32')
    a(f's_mov_b32 s{S_SPIN}, 0')
    a('s_waitcnt lgkmcnt(0)')
    a(f's_and_b32 s{S_T+2}, s{S_WAVE}, 1')
    a(f's_cmp_lt_u32 s{S_ROLE}, 32'); a('s_cbranch_scc1 L_proj_kv')
    a(f's_mov_b32 s{S_R0}, s{S_R1}'); a(f's_mov_b32 s{S_R0+1}, s{S_R1+1}')
    a(f's_sub_u32 s{S_T}, s{S_ROLE}, 32'); a(f's_lshl_b32 s{S_T}, s{S_T}, 1'); a(f's_lshr_b32 s{S_T+1}, s{S_WAVE}, 1'); a(f's_add_u32 s{S_T}, s{S_T}, s{S_T+1}')
    a(f's_mov_b32 s{S_OB}, {QX}'); a(f's_mov_b32 s{S_G}, 0')
    a('s_branch L_proj_j')
    a.label('L_proj_kv')
    a(f's_mov_b32 s{S_T}, s{S_ROLE}')
    a(f's_cmp_ge_u32 s{S_WAVE}, 2'); a('s_cbranch_scc1 L_proj_v')
    a(f's_mov_b32 s{S_R0}, s{S_R1+2}'); a(f's_mov_b32 s{S_R0+1}, s{S_R1+3}')
    a(f's_mov_b32 s{S_OB}, {KX}'); a(f's_mov_b32 s{S_G}, 0')
    a('s_branch L_proj_j')
    a.label('L_proj_v')
    a(f's_mov_b32 s{S_R0}, s{S_R2}'); a(f's_mov_b32 s{S_R0+1}, s{S_R2+1}')
    a(f's_mov_b32 s{S_OB}, {VX}'); a(f's_mov_b32 s{S_G}, 1')
    a.label('L_proj_j')
    srd_fix(a, S_R0, 4718592)
    a(f's_lshl_b32 s{S_T+1}, s{S_T}, 13'); a(f's_add_u32 s{S_OB}, s{S_OB}, s{S_T+1}')
    a(f's_add_u32 s{S_T+3}, s{S_G}, 11'); a(f's_lshl_b32 s{S_T+1}, s{S_T+2}, s{S_T+3}'); a(f's_add_u32 s{S_OB}, s{S_OB}, s{S_T+1}')
    a(f's_lshl_b32 s{S_T}, s{S_T}, 8'); a(f's_lshl_b32 s{S_T+2}, s{S_T+2}, 7'); a(f's_add_u32 s{S_T}, s{S_T}, s{S_T+2}')
    a(f's_lshl_b32 s{S_B}, s{S_WAVE}, 15')
    a(f'''
    v_lshrrev_b32 v{T}, 3, v0
    v_and_b32 v{T+1}, 7, v0
    v_lshlrev_b32 v{T}, 13, v{T}
    v_lshl_add_u32 v{T}, v{T+1}, 4, v{T}
    v_add_u32 v{FV+1}, s{S_T}, v{T}
    ''')
    vm = Cnt(a, 'vmcnt', 63)
    def dma(i):
        a(f's_add_u32 m0, s{S_B}, {(i % 32) * 1024}'); a(f's_mov_b32 s{S_P}, {i * 65536}')
        a(f'buffer_load_dwordx4 v{FV+1}, {R(S_R0)}, s{S_P} offen lds'); vm.issue(i)
    for i in range(32): dma(i)
    a(f'''
    v_lshrrev_b32 v{T}, 5, v0
    v_bfe_u32 v{T+1}, v0, 2, 2
    v_lshl_add_u32 v{T}, v{T}, 3, v{T+1}
    v_lshlrev_b32 v{T}, 7, v{T}
    v_bfe_u32 v{T+1}, v0, 4, 1
    v_lshl_add_u32 v{T}, v{T+1}, 5, v{T}
    v_and_b32 v{T+1}, 3, v0
    v_lshl_add_u32 v{T}, v{T+1}, 3, v{T}
    v_add_u32 v{TA}, s{S_B}, v{T}
    ''')
    x_consts(a, DO, XA, T)
    a(f's_lshl_b32 s{S_T}, s{S_G}, 1'); a(f's_sub_u32 s{S_T}, 12, s{S_T}')
    a(f'''
    v_bfe_u32 v{T}, v0, 4, 1
    v_lshlrev_b32 v{T}, s{S_T}, v{T}
    v_lshrrev_b32 v{T+1}, 5, v0
    v_lshl_add_u32 v{T}, v{T+1}, 8, v{T}
    v_and_b32 v{T+1}, 15, v0
    v_lshl_add_u32 v{ST}, v{T+1}, 4, v{T}
    ''')
    for kk in range(36):
        vm.wait(2 * kk + 1)
        for cb in range(2):
            for p in range(2):
                a(f'ds_read_b64_tr_b16 {ur(224 + 8*kk + 4*cb + 2*p, 2)}, v{TA} offset:{(kk % 16) * 2048 + p * 512 + cb * 64}')
        if kk >= 1 and 2 * (kk - 1) + 32 < 72:
            a('s_waitcnt lgkmcnt(4)')
            dma(2 * (kk - 1) + 32); dma(2 * (kk - 1) + 33)
    a('s_waitcnt lgkmcnt(0)')
    poll(a, None, DBG, 0, '255', T, 'pw0', 4)
    poll(a, None, DBG, 0, '255', T, 'pw1', DBG_XN)
    a('s_barrier')
    tstamp(a, opt, 0)
    a(f's_mul_i32 s{S_B}, s{S_WAVE}, 9216')
    a(f's_mov_b32 s{S_Q}, {XN}')
    x_dma(a, DO, S_Q, S_B)
    a(f's_mov_b32 s{S_SEG}, 0')
    a(f's_lshl_b32 s{S_M}, s{S_ROLE}, 7'); a(f's_lshl_b32 s{S_T}, s{S_WAVE}, 2'); a(f's_add_u32 s{S_M}, s{S_M}, s{S_T}'); a(f's_add_u32 s{S_M}, s{S_M}, {flag(F_PROJ)}')
    a('s_waitcnt vmcnt(0)')
    a(f's_cmp_eq_u32 s{S_G}, 1'); a('s_cbranch_scc1 L_proj_lv')
    for isv in range(2):
        L = 'L_proj_lv' if isv else 'L_proj_lk'
        a.label(L)
        a('s_waitcnt vmcnt(4)')
        a('s_barrier')
        lg = Cnt(a, 'lgkmcnt', 15)
        def rd(kk):
            a(f'ds_read_b128 {vr(XR[kk % 4], 4)}, v{XA + (kk & 3)} offset:{(kk >> 2) * 128}'); lg.issue(kk)
        for kk in range(3): rd(kk)
        a(f's_cmp_lt_u32 s{S_SEG}, 63'); a(f's_cselect_b32 s{S_T}, 36864, 0'); a(f's_add_u32 s{S_Q}, s{S_Q}, s{S_T}')
        a(f's_xor_b32 s{S_B}, s{S_B}, 0x10000')
        x_dma(a, DO, S_Q, S_B)
        for kk in range(36):
            lg.wait(kk)
            for cb in range(2):
                c = '0' if kk == 0 else vr(ACC[cb], 16)
                x = vr(XR[kk % 4], 4)
                if isv: a(f'{MF32} {vr(ACC[cb],16)}, {x}, {W(kk,cb)}, {c}')
                else: a(f'{MF32} {vr(ACC[cb],16)}, {W(kk,cb)}, {x}, {c}')
            if kk + 3 < 36: rd(kk + 3)
            if kk == 12:
                a('s_waitcnt vmcnt(9)')
                a(f'v_mov_b32 v{FV}, s{S_SEG}')
                a(f'buffer_store_dword v{FV}, off, {WS}, s{S_M} sc1')
        for m in range(4): a(f'v_xor_b32 v{XA+m}, 0x10000, v{XA+m}')
        for cb in range(2):
            q = ACC[cb]
            src = [[0, 2, 8, 10], [4, 6, 12, 14]] if isv else [[0, 2, 4, 6], [8, 10, 12, 14]]
            for b in range(2):
                for d in range(4): a(f'v_cvt_pk_bf16_f32 v{q+4*b+d}, v{q+src[b][d]}, v{q+src[b][d]+1}')
            for b in range(2):
                a(f'buffer_store_dwordx4 {vr(q+4*b,4)}, v{ST}, {WS}, s{S_OB} offen offset:{cb * (2048 if isv else 1024) + b * 512} sc1')
        tfirst(a, opt, f's_cmp_eq_u32 s{S_SEG}, 0')
        a(f's_add_u32 s{S_OB}, s{S_OB}, {32 * 8192}')
        a(f's_add_u32 s{S_SEG}, s{S_SEG}, 1')
        a(f's_cmp_lt_u32 s{S_SEG}, 64'); a(f's_cbranch_scc1 {L}')
        if not isv: a('s_branch L_proj_end')
    a.label('L_proj_end')
    a('s_waitcnt vmcnt(0)')
    a(f'v_mov_b32 v{FV}, 64')
    a(f'buffer_store_dword v{FV}, off, {WS}, s{S_M} sc1')
    finish(a, opt)

def tiles_of(w):
    b = 9 * (w >> 1)
    if w & 1 == 0: return [(b + i, T) for i in range(4) for T in range(2)] + [(b + 4, 0)]
    return [(b + 5 + i, T) for i in range(4) for T in range(2)] + [(b + 4, 1)]

def row_stage_dma(a, srd, L16, st, sbase, vm, tag):
    for i in range(9):
        a(f's_add_u32 m0, s{S_B}, {(st % 4) * 36864 + (i & ~3) * 1024}') if i % 4 == 0 else None
        if i % 4 == 0: a(f's_add_u32 s{S_P}, s{sbase}, {st * 36864 + i * 1024}')
        a(f'buffer_load_dwordx4 v{L16}, {R(srd)}, s{S_P} offen offset:{(i & 3) * 1024} lds'); vm.issue(tag)

def allreduce(a, v, t, op='v_add_f32', lanes=64):
    for d in ('quad_perm:[1,0,3,2]', 'quad_perm:[2,3,0,1]', 'row_half_mirror', 'row_mirror')[:3 if lanes == 8 else 4]:
        a(f'{op}_dpp v{v}, v{v}, v{v} {d} row_mask:0xf bank_mask:0xf')
    if lanes == 64:
        for sw in ('v_permlane16_swap_b32', 'v_permlane32_swap_b32'):
            a(f'v_mov_b32 v{t}, v{v}'); a(f'{sw} v{v}, v{t}'); a(f'{op} v{v}, v{v}, v{t}')

def att(a, opt):
    L16, KMA, L8, PST, RB, XO, XO2, FP, FA4, T = 1, 2, 3, 4, 5, 6, 7, 8, 9, 10
    Q = 16; K = 32; V = 64; KMF = 96; VMF = 112; SM, S0, S1 = 120, 124, 128; PX = 132; PM = 136; ONE = 140; SUM = 144
    O = 148; OF = 148; ACC = 96
    SLO, SHI = 212, 216
    RR = 128
    XX, WO_ = S_R0, S_R1
    a.label('L_att')
    a(f's_load_dwordx2 s[{XX}:{XX+1}], s[0:1], 0')
    a(f's_load_dwordx2 s[{WO_}:{WO_+1}], s[0:1], 40')
    a(f's_mov_b32 s{S_SPIN}, 0')
    a(f's_sub_u32 s{S_T}, s{S_ROLE}, 48'); a(f's_and_b32 s{S_M}, s{S_T}, 15'); a(f's_lshr_b32 s{S_G}, s{S_T}, 4')
    a(f'v_lshlrev_b32 v{L16}, 4, v0')
    a('s_waitcnt lgkmcnt(0)')
    srd_fix(a, XX, 2359296); srd_fix(a, WO_, 4718592)
    X = 16; Fp = 64
    a(f's_mul_i32 s{S_Q}, s{S_T}, 36864'); a(f's_mul_i32 s{S_B}, s{S_WAVE}, 9216'); a(f's_add_u32 s{S_Q}, s{S_Q}, s{S_B}')
    a(f'v_lshrrev_b32 v{T}, 3, v0'); a(f'v_mul_u32_u24 v{T}, 1152, v{T}'); a(f'v_and_b32 v{T+1}, 7, v0'); a(f'v_lshl_add_u32 v{T}, v{T+1}, 4, v{T}')
    vm = Cnt(a, 'vmcnt', 63)
    for i in range(9): a(f'buffer_load_dwordx4 {vr(X+4*i,4)}, v{T}, {R(XX)}, s{S_Q} offen offset:{128*i}'); vm.issue('x')
    a(f's_mul_i32 s{S_OB}, s{S_M}, {2 * 147456}'); a(f's_add_u32 s{S_OB}, s{S_OB}, s{S_B}')
    vm.wait('x')
    for i in range(36):
        a(f'v_lshlrev_b32 v{Fp+2*i}, 16, v{X+i}'); a(f'v_and_b32 v{Fp+2*i+1}, 0xffff0000, v{X+i}')
    A4 = [T + 2, T + 3, T + 4, T + 5]
    for i in range(72):
        if i < 4: a(f'v_add_f32 v{A4[i]}, v{Fp+i}, v{Fp+i+4}')
        elif i >= 8: a(f'v_add_f32 v{A4[i&3]}, v{A4[i&3]}, v{Fp+i}')
    a(f'v_add_f32 v{A4[0]}, v{A4[0]}, v{A4[1]}'); a(f'v_add_f32 v{A4[2]}, v{A4[2]}, v{A4[3]}'); a(f'v_add_f32 v{A4[0]}, v{A4[0]}, v{A4[2]}')
    allreduce(a, A4[0], T + 1, lanes=8)
    a(f'v_mul_f32 v{T+1}, 0x{0x3ae38e39:x}, v{A4[0]}')
    for i in range(72): a(f'v_sub_f32 v{Fp+i}, v{Fp+i}, v{T+1}')
    for i in range(72):
        if i < 4: a(f'v_mul_f32 v{A4[i]}, v{Fp+i}, v{Fp+i}')
        else: a(f'v_fmac_f32 v{A4[i&3]}, v{Fp+i}, v{Fp+i}')
    a(f'v_add_f32 v{A4[0]}, v{A4[0]}, v{A4[1]}'); a(f'v_add_f32 v{A4[2]}, v{A4[2]}, v{A4[3]}'); a(f'v_add_f32 v{A4[0]}, v{A4[0]}, v{A4[2]}')
    allreduce(a, A4[0], T + 1, lanes=8)
    a(f'v_mov_b32 v{T+1}, 0x{0x3727c5ac:x}')
    a(f'v_fmac_f32 v{T+1}, 0x{0x3ae38e39:x}, v{A4[0]}')
    a(f'v_rsq_f32 v{T+1}, v{T+1}')
    for i in range(72): a(f'v_mul_f32 v{Fp+i}, v{T+1}, v{Fp+i}')
    for i in range(36): a(f'v_cvt_pk_bf16_f32 v{X+i}, v{Fp+2*i}, v{Fp+2*i+1}')
    a(f's_add_u32 s{S_Q}, s{S_Q}, {XN}')
    for i in range(9): a(f'buffer_store_dwordx4 {vr(X+4*i,4)}, v{T}, {WS}, s{S_Q} offen offset:{128*i} sc1'); vm.issue('xs')
    for st in range(4): row_stage_dma(a, WO_, L16, st, S_OB, vm, st)
    for w in range(1, 4):
        a(f's_cmp_eq_u32 s{S_WAVE}, {w}'); a(f's_cbranch_scc1 L_att_w{w}')
    vm0 = list(vm.q)
    for w in range(4):
        hh, qt = w >> 1, w & 1
        tl = tiles_of(w)
        def WOF(ti, k8): return ur(224 + 4 * (ti * 8 + k8), 4)
        a.label(f'L_att_w{w}')
        vm.q = list(vm0)
        TA = T + 2
        a(f'v_lshrrev_b32 v{TA}, 2, v0'); a(f'v_mul_u32_u24 v{TA}, 1152, v{TA}'); a(f'v_and_b32 v{T+3}, 3, v0'); a(f'v_lshl_add_u32 v{TA}, v{T+3}, 4, v{TA}')
        a(f'v_add_u32 v{TA+1}, {2 * 36864}, v{TA}')
        for st in range(8):
            if st == 0:
                vm.wait('xs')
                a(f'v_mov_b32 v{T+4}, 1'); a('s_mov_b64 exec, 1')
                a(f'buffer_atomic_add v{T+4}, off, {DBG}, 0 offset:{DBG_XN}'); vm.issue('at')
                a('s_mov_b64 exec, -1')
            vm.wait(st)
            a('s_barrier')
            for ti, (P, TT) in enumerate(tl):
                for p in range(2):
                    off = (st % 2) * 36864 + p * 16 * 1152 + P * 64 + TT * 8
                    a(f'ds_read_b64_tr_b16 {ur(224 + 4*(ti*8+st) + 2*p, 2)}, v{TA + ((st % 4) >> 1)} offset:{off}')
            a('s_waitcnt lgkmcnt(0)')
            if st < 4:
                a('s_barrier')
                row_stage_dma(a, WO_, L16, st + 4, S_OB, vm, st + 4)
        a(f'''
        v_and_b32 v{T}, 15, v0
        v_lshrrev_b32 v{T+1}, 4, v0
        v_lshrrev_b32 v{T+2}, 2, v{T}
        v_and_b32 v{T+3}, 1, v0
        v_lshl_add_u32 v{T+4}, v{T+2}, 1, v{T+3}
        v_lshlrev_b32 v{T+4}, 4, v{T+4}
        v_lshl_add_u32 v{KMA}, v{T+1}, 7, v{T+4}
        v_lshlrev_b32 v{L8}, 3, v0
        v_lshrrev_b32 v{T+4}, 1, v{T}
        v_mul_u32_u24 v{T+4}, 36864, v{T+4}
        v_lshl_add_u32 v{T+4}, v{T+3}, 6, v{T+4}
        v_lshl_add_u32 v{T+4}, v{T+1}, 4, v{T+4}
        s_mul_i32 s{S_T}, s{S_M}, 2304
        v_add_u32 v{PST}, s{S_T}, v{T+4}
        v_mul_u32_u24 v{T+4}, 2304, v{T+1}
        v_lshl_add_u32 v{T+4}, v{T+2}, 7, v{T+4}
        v_and_b32 v{T+5}, 3, v0
        v_lshl_add_u32 v{T+4}, v{T+5}, 4, v{T+4}
        s_mul_i32 s{S_T}, s{S_M}, 36864
        s_add_u32 s{S_T}, s{S_T}, {64 * (w & 1)}
        v_add_u32 v{RB}, s{S_T}, v{T+4}
        v_lshrrev_b32 v{T+4}, 1, v{T+1}
        v_lshlrev_b32 v{T+4}, 8, v{T+4}
        v_lshl_add_u32 v{T+4}, v{T}, 4, v{T+4}
        v_and_b32 v{T+5}, 1, v{T+1}
        v_lshl_add_u32 v{T+4}, v{T+5}, 3, v{T+4}
        s_mul_i32 s{S_T}, s{S_M}, 2304
        s_add_u32 s{S_T}, s{S_T}, {1152 * (w & 1)}
        v_add_u32 v{XO}, s{S_T}, v{T+4}
        s_mov_b32 s{S_T}, 0x00ff00ff
        s_mov_b32 s{S_T+1}, 0
        v_mov_b32 v{T+4}, 0x{OOB:x}
        v_cndmask_b32 v{XO2}, v{T+4}, v{XO}, s[{S_T}:{S_T+1}]
        v_lshlrev_b32 v{FA4}, 2, v0
        s_lshl_b32 s{S_T}, s{S_M}, 8
        s_add_u32 s{S_T}, s{S_T}, {flag(F_PROJ + hh)}
        s_lshl_b32 s{S_T+1}, s{S_M}, 7
        s_add_u32 s{S_T+1}, s{S_T+1}, {flag(F_PROJ + 32) + 8 * hh}
        v_and_b32 v{T+4}, 3, v0
        v_lshlrev_b32 v{T+4}, 2, v{T+4}
        v_add_u32 v{T+4}, s{S_T}, v{T+4}
        v_lshlrev_b32 v{T+5}, 2, v{T+3}
        v_add_u32 v{T+5}, s{S_T+1}, v{T+5}
        v_cmp_gt_u32 vcc, 4, v0
        v_cndmask_b32 v{FP}, v{T+5}, v{T+4}, vcc
        ''')
        if w < 2: sel(a, SLO, T, 'lo'); sel(a, SHI, T, 'hi')
        for r in range(4):
            mk = sum(1 << l for l in range(64) if 4 * (l >> 4) + r <= (l & 15))
            a(f's_mov_b32 s{S_MK+2*r}, 0x{mk & 0xffffffff:x}'); a(f's_mov_b32 s{S_MK+2*r+1}, 0x{mk >> 32:x}')
        a(f's_mov_b32 s{S_C}, 0x3e0293ee'); a(f's_mov_b32 s{S_C+1}, 0xbe0293ee')
        poll(a, None, DBG, 0, '255', T, 'aw0', 4)
        a('s_barrier')
        tstamp(a, opt, 0)
        a(f's_mov_b32 s{S_SEG}, s{S_G}')
        a(f's_mov_b32 s{S_B}, 0')
        L = f'L_att_l{w}'
        a.label(L)
        vm.reset()
        poll(a, FP, WS, 0, f's{S_SEG}', T, 'ap')
        a(f's_lshl_b32 s{S_Q}, s{S_SEG}, 5'); a(f's_lshl_b32 s{S_T}, s{S_M}, 1'); a(f's_add_u32 s{S_Q}, s{S_Q}, s{S_T}'); a(f's_add_u32 s{S_Q}, s{S_Q}, {hh}')
        a(f's_lshl_b32 s{S_T}, s{S_Q}, 13')
        a(f's_add_u32 s{S_P}, s{S_T}, {QX + qt * 4096}')
        for ks in range(4): a(f'buffer_load_dwordx4 {vr(Q+4*ks,4)}, v{L16}, {WS}, s{S_P} offen offset:{1024*ks} sc1')
        for kt in range(qt + 1):
            a(f's_add_u32 s{S_P}, s{S_T}, {KX + kt * 4096}')
            for ks in range(4): a(f'buffer_load_dwordx4 {vr(K+16*kt+4*ks,4)}, v{L16}, {WS}, s{S_P} offen offset:{1024*ks} sc1')
        for hf in range(2):
            a(f's_add_u32 s{S_P}, s{S_T}, {VX + hf * 4096}')
            for u in range(4): a(f'buffer_load_dwordx4 {vr(V+16*hf+4*u,4)}, v{L16}, {WS}, s{S_P} offen offset:{1024*u} sc1')
        a(f's_lshl_b32 s{S_T}, s{S_M}, 8'); a(f's_add_u32 s{S_T}, s{S_T}, {flag(F_CHAIN + hh)}')
        poll(a, None, WS, f's{S_T}', f's{S_SEG}', T, 'ac')
        a(f's_lshl_b32 s{S_T}, s{S_Q}, 11')
        a(f's_add_u32 s{S_P}, s{S_T}, {KM}')
        for ks in range(4): a(f'buffer_load_dwordx4 {vr(KMF+4*ks,4)}, v{KMA}, {WS}, s{S_P} offen offset:{512*ks} sc1'); vm.issue(('km', ks))
        a(f's_add_u32 s{S_P}, s{S_T}, {VM}')
        for u in range(4): a(f'buffer_load_dwordx2 {vr(VMF+2*u,2)}, v{L8}, {WS}, s{S_P} offen offset:{512*u} sc1'); vm.issue(('vm', u))
        for ks in range(4):
            for kt in range(qt + 1):
                S = S1 if kt else S0
                a(f'{MF} {vr(S,4)}, {vr(K+16*kt+4*ks,4)}, {vr(Q+4*ks,4)}, {"0" if ks == 0 else vr(S,4)}')
        a(f'v_mov_b32 v{ONE}, 0x3f803f80'); a(f'v_mov_b32 v{ONE+1}, 0x3f803f80'); a(f'v_mov_b64 {vr(ONE+2,2)}, {vr(ONE,2)}')
        a(f'v_mov_b64 {vr(PM,2)}, 0'); a(f'v_mov_b64 {vr(PM+2,2)}, 0')
        if qt == 0: a(f'v_mov_b64 {vr(PX+2,2)}, 0')
        SD = S1 if qt else S0
        a(f'v_mov_b32 v{T}, 0xff800000')
        for r in range(4): a(f'v_cndmask_b32 v{SD+r}, v{T}, v{SD+r}, s[{S_MK+2*r}:{S_MK+2*r+1}]')
        M, M2 = T + 2, T + 3
        a(f'v_max3_f32 v{M}, v{S0}, v{S0+1}, v{S0+2}')
        if qt:
            a(f'v_max3_f32 v{M}, v{M}, v{S0+3}, v{S1}'); a(f'v_max3_f32 v{M}, v{M}, v{S1+1}, v{S1+2}'); a(f'v_max_f32 v{M}, v{M}, v{S1+3}')
        else: a(f'v_max_f32 v{M}, v{M}, v{S0+3}')
        for ks in range(4):
            vm.wait(('km', ks))
            a(f'{MF} {vr(SM,4)}, {vr(KMF+4*ks,4)}, {vr(Q+4*ks,4)}, {"0" if ks == 0 else vr(SM,4)}')
        a(f'v_max3_f32 v{M}, v{M}, v{SM}, v{SM+1}')
        for sw in ('v_permlane32_swap_b32', 'v_permlane16_swap_b32'):
            a(f'v_mov_b32 v{M2}, v{M}'); a(f'{sw} v{M}, v{M2}'); a(f'v_max_f32 v{M}, v{M}, v{M2}')
        a(f'v_mul_f32 v{M}, s{S_C+1}, v{M}')
        vals = [SM, SM + 1, S0, S0 + 1, S0 + 2, S0 + 3] + ([S1, S1 + 1, S1 + 2, S1 + 3] if qt else [])
        for r in vals: a(f'v_fma_f32 v{r}, v{r}, s{S_C}, v{M}')
        for r in vals: a(f'v_exp_f32 v{r}, v{r}')
        a(f'v_cvt_pk_bf16_f32 v{PX}, v{S0}, v{S0+1}'); a(f'v_cvt_pk_bf16_f32 v{PX+1}, v{S0+2}, v{S0+3}')
        if qt: a(f'v_cvt_pk_bf16_f32 v{PX+2}, v{S1}, v{S1+1}'); a(f'v_cvt_pk_bf16_f32 v{PX+3}, v{S1+2}, v{S1+3}')
        a(f'v_cvt_pk_bf16_f32 v{PM}, v{SM}, v{SM+1}'); a(f'v_cvt_pk_bf16_f32 v{PM+3}, v{SM}, v{SM+1}')
        a(f'{MF} {vr(SUM,4)}, {vr(ONE,4)}, {vr(PX,4)}, 0')
        a(f'{MH} {vr(SUM,4)}, {vr(ONE,2)}, {vr(PM,2)}, {vr(SUM,4)}')
        for u in range(8): a(f'{MF} {vr(O+4*u,4)}, {vr(V+4*u,4)}, {vr(PX,4)}, 0')
        a(f'v_rcp_f32 v{T}, v{SUM}')
        vm.wait(('vm', 3))
        for u in range(8): a(f'{MH} {vr(O+4*u,4)}, {vr(VMF+2*(u>>1),2)}, {vr(PM+2*(u&1),2)}, {vr(O+4*u,4)}')
        a(f'v_add_u32 v{T+1}, s{S_B}, v{L16}')
        for w4 in range(4):
            q = O + 8 * w4
            for r in range(8): a(f'v_mul_f32 v{q+r}, v{T}, v{q+r}')
            for d in range(4): a(f'v_cvt_pk_bf16_f32 v{q+d}, v{q+2*d}, v{q+2*d+1}')
            a(f'ds_write_b128 v{T+1}, {vr(q,4)} offset:{(w * 4 + w4) * 1024}')
        a('s_waitcnt lgkmcnt(0)')
        a('s_barrier')
        lg = Cnt(a, 'lgkmcnt', 15)
        for k8 in range(8):
            for tt in range(2):
                a(f'ds_read_b128 {vr(OF+4*(2*k8+tt),4)}, v{T+1} offset:{(((k8 >> 2) * 2 + tt) * 4 + (k8 & 3)) * 1024}'); lg.issue((k8, tt))
        a(f's_xor_b32 s{S_B}, s{S_B}, 0x4000')
        a(f's_mul_i32 s{S_OB}, s{S_SEG}, 589824'); a(f's_add_u32 s{S_OB}, s{S_OB}, {PA}'); a(f's_add_u32 s{S_P}, s{S_OB}, 294912')
        pend = None
        def fin(gi):
            base = ACC + 16 * (gi & 1)
            for tt in range(2):
                so = S_P if tt else S_OB
                if gi < 4:
                    q = base + 8 * tt
                    for d in range(4): a(f'v_cvt_pk_bf16_f32 v{q+d}, v{q+2*d}, v{q+2*d+1}')
                    a(f'buffer_store_dwordx4 {vr(q,4)}, v{PST}, {WS}, s{so} offen offset:{tl[2*gi][0]*128} sc1')
                else:
                    q = base + 8 * tt
                    for d in range(2): a(f'v_cvt_pk_bf16_f32 v{q+d}, v{q+2*d}, v{q+2*d+1}')
                    a(f'buffer_store_dwordx2 {vr(q,2)}, v{PST}, {WS}, s{so} offen offset:{tl[8][0]*128 + 8*tl[8][1]} sc1')
        for gi in range(5):
            base = ACC + 16 * (gi & 1)
            for k8 in range(8):
                for tt in range(2):
                    if gi == 0: lg.wait((k8, tt))
                    for TT in range(2 if gi < 4 else 1):
                        q = base + 8 * tt + 4 * TT
                        a(f'{MF} {vr(q,4)}, {WOF(2*gi+TT,k8)}, {vr(OF+4*(2*k8+tt),4)}, {"0" if k8 == 0 else vr(q,4)}')
                if k8 == 1 and gi > 0: fin(gi - 1)
        fin(4)
        a(f's_lshl_b32 s{S_T}, s{S_SEG}, 8'); a(f's_add_u32 s{S_T}, s{S_T}, {flag(F_ATT)}')
        a(f's_lshl_b32 s{S_T+1}, s{S_M}, 4'); a(f's_add_u32 s{S_T+1}, s{S_T+1}, s{S_T}')
        a(f'v_mov_b32 v{T}, 1')
        if w < 2:
            XV = 96
            a(f's_mul_i32 s{S_Q}, s{S_SEG}, 36864')
            a('s_waitcnt vmcnt(0)')
            a(f'buffer_store_dword v{T}, off, {WS}, s{S_T+1} offset:{4*w} sc1')
            for q in range(3): a(f'buffer_load_dwordx2 {vr(XV+2*q,2)}, v{XO2 if q == 2 else XO}, {R(XX)}, s{S_Q} offen offset:{512*q}')
            poll(a, FA4, WS, f's{S_T}', '0', T, 'ar')
            vm.reset()
            for u in range(4):
                a(f's_add_u32 s{S_P}, s{S_OB}, {u * 9216}')
                for t5 in range(5): a(f'buffer_load_dwordx4 {vr(RR+4*(5*u+t5),4)}, v{RB}, {WS}, s{S_P} offen offset:{512*t5} sc1'); vm.issue((u, t5))
            RA = 104; H = 116; XF = 16
            for q in range(3):
                for d in range(2):
                    a(f'v_lshlrev_b32 v{XF+4*q+2*d}, 16, v{XV+2*q+d}'); a(f'v_and_b32 v{XF+4*q+2*d+1}, 0xffff0000, v{XV+2*q+d}')
            for u in range(4):
                for t5 in range(5):
                    vm.wait((u, t5))
                    q = RA + 4 * (t5 >> 1)
                    c = vr(XF + 4 * (t5 >> 1), 4) if (u == 0 and t5 & 1 == 0) else vr(q, 4)
                    a(f'{MF} {vr(q,4)}, {vr(SHI if t5 & 1 else SLO,4)}, {vr(RR+4*(5*u+t5),4)}, {c}')
            a(f's_mov_b32 s{S_T}, 0x00ff00ff'); a(f's_mov_b32 s{S_T+1}, 0')
            for i in range(6): a(f'v_cvt_pk_bf16_f32 v{H+i}, v{RA+2*i}, v{RA+2*i+1}')
            for i in (4, 5): a(f'v_cndmask_b32 v{H+i}, 0, v{H+i}, s[{S_T}:{S_T+1}]')
            a(f's_add_u32 s{S_P}, s{S_Q}, {HB}')
            for q in range(3): a(f'buffer_store_dwordx2 {vr(H+2*q,2)}, v{XO2 if q == 2 else XO}, {WS}, s{S_P} offen offset:{512*q} sc1')
            for i in range(6): a(f'v_lshlrev_b32 v{RA+2*i}, 16, v{H+i}'); a(f'v_and_b32 v{RA+2*i+1}, 0xffff0000, v{H+i}')
            a(f'v_add_f32 v{T}, v{RA}, v{RA+1}'); a(f'v_add_f32 v{T+1}, v{RA+2}, v{RA+3}')
            for i in range(4, 12): a(f'v_add_f32 v{T+(i&1)}, v{T+(i&1)}, v{RA+i}')
            a(f'v_add_f32 v{T}, v{T}, v{T+1}')
            allreduce(a, T, T + 1)
            a(f'v_mul_f32 v{T}, 0x{0x3ae38e39:x}, v{T}')
            for i in range(12): a(f'v_sub_f32 v{RA+i}, v{RA+i}, v{T}')
            for i in range(8, 12): a(f'v_cndmask_b32 v{RA+i}, 0, v{RA+i}, s[{S_T}:{S_T+1}]')
            a(f'v_mul_f32 v{T}, v{RA}, v{RA}'); a(f'v_mul_f32 v{T+1}, v{RA+1}, v{RA+1}')
            for i in range(2, 12): a(f'v_fmac_f32 v{T+(i&1)}, v{RA+i}, v{RA+i}')
            a(f'v_add_f32 v{T}, v{T}, v{T+1}')
            allreduce(a, T, T + 1)
            a(f'v_mov_b32 v{T+1}, 0x{0x3727c5ac:x}'); a(f'v_fmac_f32 v{T+1}, 0x{0x3ae38e39:x}, v{T}'); a(f'v_rsq_f32 v{T+1}, v{T+1}')
            for i in range(12): a(f'v_mul_f32 v{RA+i}, v{T+1}, v{RA+i}')
            H2 = 122
            for i in range(6): a(f'v_cvt_pk_bf16_f32 v{H2+i}, v{RA+2*i}, v{RA+2*i+1}')
            a(f's_add_u32 s{S_P}, s{S_Q}, {XN2}')
            for q in range(3): a(f'buffer_store_dwordx2 {vr(H2+2*q,2)}, v{XO2 if q == 2 else XO}, {WS}, s{S_P} offen offset:{512*q} sc1')
            a(f's_lshl_b32 s{S_T}, s{S_SEG}, 7'); a(f's_lshl_b32 s{S_T+1}, s{S_M}, 3'); a(f's_add_u32 s{S_T}, s{S_T}, s{S_T+1}'); a(f's_add_u32 s{S_T}, s{S_T}, {flag(F_LN) + 4 * w}')
            a(f'v_mov_b32 v{T}, 1')
            a('s_waitcnt vmcnt(0)')
            a(f'buffer_store_dword v{T}, off, {WS}, s{S_T} sc1')
        else:
            a('s_waitcnt vmcnt(0)')
            a(f'buffer_store_dword v{T}, off, {WS}, s{S_T+1} offset:{4*w} sc1')
        tfirst(a, opt, f's_cmp_lt_u32 s{S_SEG}, 4')
        a(f's_add_u32 s{S_SEG}, s{S_SEG}, 4')
        a(f's_cmp_lt_u32 s{S_SEG}, 64'); a(f's_cbranch_scc1 {L}')
        finish(a, opt)

def ffn(a, opt):
    DO = 1; XA = 10; L16 = 14; PST = 15; RB = 16; OA = 17; FL = 18; FF = 19; T = 20
    SEL = 28; ACC = [32, 48]; XR = [64, 68, 72, 76]
    AF = 32
    DA = 64
    WG, WU, WD, OUT = S_R0, S_R1, S_R2, S_R3
    ACTL = 40960
    def GU(m, kk): return 80 + 8 * kk + 4 * m
    a.label('L_ffn')
    a(f's_load_dwordx4 s[{WG}:{WG+3}], s[0:1], 64')
    a(f's_load_dwordx4 s[{WD}:{WD+3}], s[0:1], 80')
    a(f's_mov_b32 s{S_SPIN}, 0')
    a(f's_sub_u32 s{S_M}, s{S_ROLE}, 112'); a(f's_mov_b32 s{S_G}, 0')
    for _ in range(2):
        a(f's_cmp_ge_u32 s{S_M}, 36'); a(f's_cselect_b32 s{S_T}, 36, 0'); a(f's_cselect_b32 s{S_T+1}, 1, 0')
        a(f's_sub_u32 s{S_M}, s{S_M}, s{S_T}'); a(f's_add_u32 s{S_G}, s{S_G}, s{S_T+1}')
    a(f'v_lshlrev_b32 v{L16}, 4, v0')
    a('s_waitcnt lgkmcnt(0)')
    a(f's_mov_b32 s{WU}, s{WG+2}'); a(f's_mov_b32 s{WU+1}, s{WG+3}'); a(f's_mov_b32 s{OUT}, s{WD+2}'); a(f's_mov_b32 s{OUT+1}, s{WD+3}')
    for r in (WG, WU, WD): srd_fix(a, r, 5308416)
    srd_fix(a, OUT, 2359296)
    GA = T + 4; TA = T + 5
    a(f's_mul_i32 s{S_T}, s{S_WAVE}, {16 * 9216}'); a(f's_lshl_b32 s{S_T+1}, s{S_M}, 8'); a(f's_add_u32 s{S_T}, s{S_T}, s{S_T+1}')
    a(f'''
    v_lshrrev_b32 v{T}, 4, v0
    v_mul_u32_u24 v{T}, 9216, v{T}
    v_and_b32 v{T+1}, 15, v0
    v_lshl_add_u32 v{T}, v{T+1}, 4, v{T}
    v_add_u32 v{GA}, s{S_T}, v{T}
    ''')
    a(f's_lshl_b32 s{S_B}, s{S_WAVE}, 12')
    vm = Cnt(a, 'vmcnt', 63)
    def gdma(st):
        for m in range(2):
            for u in range(4):
                a(f's_add_u32 m0, s{S_B}, {(st % 4) * 32768 + m * 16384 + u * 1024}')
                a(f's_mov_b32 s{S_P}, {(64 * st + 4 * u) * 9216}')
                a(f'buffer_load_dwordx4 v{GA}, {R(WU if m else WG)}, s{S_P} offen lds'); vm.issue(st)
    for st in range(4): gdma(st)
    a(f's_lshl_b32 s{S_T}, s{S_WAVE}, 6')
    a(f'''
    v_lshrrev_b32 v{T}, 5, v0
    v_bfe_u32 v{T+1}, v0, 2, 2
    v_lshl_add_u32 v{T}, v{T}, 3, v{T+1}
    v_lshlrev_b32 v{T}, 8, v{T}
    v_bfe_u32 v{T+1}, v0, 4, 1
    v_lshl_add_u32 v{T}, v{T+1}, 5, v{T}
    v_and_b32 v{T+1}, 3, v0
    v_lshl_add_u32 v{T}, v{T+1}, 3, v{T}
    v_add_u32 v{TA}, s{S_T}, v{T}
    v_add_u32 v{TA+1}, 65536, v{TA}
    ''')
    x_consts(a, DO, XA, T)
    for st in range(9):
        vm.wait(st)
        a('s_barrier')
        for k4 in range(4):
            for m in range(2):
                for p in range(2):
                    a(f'ds_read_b64_tr_b16 {ur(GU(m, 4*st+k4) + 2*p, 2)}, v{TA + ((st % 4) >> 1)} offset:{(st % 2) * 32768 + m * 16384 + k4 * 4096 + p * 1024}')
        a('s_waitcnt lgkmcnt(0)')
        if st + 4 < 9:
            a('s_barrier'); gdma(st + 4)
    a('s_barrier')
    a(f's_mul_i32 s{S_B}, s{S_WAVE}, 9216'); a(f's_mul_i32 s{S_OB}, s{S_M}, 147456'); a(f's_add_u32 s{S_OB}, s{S_OB}, s{S_B}')
    for st in range(4): row_stage_dma(a, WD, L16, st, S_OB, vm, 100 + st)
    sel(a, SEL, T, 'dup')
    a(f'''
    v_and_b32 v{T}, 15, v0
    v_lshrrev_b32 v{T+1}, 4, v0
    v_lshlrev_b32 v{T+2}, 6, v{T}
    v_lshl_add_u32 v{T+2}, v{T+1}, 4, v{T+2}
    s_lshl_b32 s{S_T}, s{S_M}, 10
    v_add_u32 v{PST}, s{S_T}, v{T+2}
    v_lshlrev_b32 v{T+2}, 4, v{T}
    v_lshl_add_u32 v{T+2}, v{T+1}, 10, v{T+2}
    s_mul_i32 s{S_T}, s{S_M}, 36864
    s_lshl_b32 s{S_T+1}, s{S_WAVE}, 8
    s_add_u32 s{S_T}, s{S_T}, s{S_T+1}
    v_add_u32 v{RB}, s{S_T}, v{T+2}
    s_cmp_ge_u32 s{S_M}, 18
    s_cselect_b32 s{S_T}, {16 * 1152 - 18 * 64}, 0
    s_lshl_b32 s{S_T+1}, s{S_M}, 6
    s_add_u32 s{S_T}, s{S_T}, s{S_T+1}
    s_mul_i32 s{S_T+1}, s{S_WAVE}, 4608
    s_add_u32 s{S_T}, s{S_T}, s{S_T+1}
    v_lshrrev_b32 v{T+2}, 2, v{T}
    v_mul_u32_u24 v{T+2}, 1152, v{T+2}
    v_and_b32 v{T+3}, 3, v0
    v_lshl_add_u32 v{T+2}, v{T+3}, 4, v{T+2}
    v_lshl_add_u32 v{T+2}, v{T+1}, 3, v{T+2}
    v_add_u32 v{T+2}, s{S_T}, v{T+2}
    v_mov_b32 v{T+3}, 0x{OOB:x}
    v_cmp_gt_u32 vcc, 32, v0
    v_cndmask_b32 v{OA}, v{T+3}, v{T+2}, vcc
    v_and_b32 v{FL}, 31, v0
    v_lshlrev_b32 v{FL}, 2, v{FL}
    v_min_u32 v{FF}, 35, v0
    v_lshlrev_b32 v{FF}, 2, v{FF}
    ''')
    a(f'''
    v_lshrrev_b32 v{T}, 5, v0
    v_bfe_u32 v{T+1}, v0, 2, 3
    v_lshl_add_u32 v{T}, v{T}, 4, v{T+1}
    v_mul_u32_u24 v{T}, 1152, v{T}
    v_and_b32 v{T+1}, 3, v0
    v_lshl_add_u32 v{TA}, v{T+1}, 4, v{T}
    v_add_u32 v{TA+1}, {2 * 36864}, v{TA}
    ''')
    for w in range(1, 4):
        a(f's_cmp_eq_u32 s{S_WAVE}, {w}'); a(f's_cbranch_scc1 L_ffn_w{w}')
    vm0 = list(vm.q)
    for w in range(4):
        tl = tiles_of(w)
        def WDF(ti, ks): return 368 + 4 * (ti * 4 + ks)
        a.label(f'L_ffn_w{w}')
        vm.q = list(vm0)
        for st in range(4):
            vm.wait(100 + st)
            a('s_barrier')
            for ti, (P, TT) in enumerate(tl):
                for p in range(2):
                    a(f'ds_read_b64_tr_b16 {ur(WDF(ti, st) + 2*p, 2)}, v{TA + (st >> 1)} offset:{(st % 2) * 36864 + p * 8 * 1152 + P * 64 + TT * 8}')
        a('s_waitcnt lgkmcnt(0)')
        poll(a, None, DBG, 0, '255', T, 'fw0', 4)
        a('s_barrier')
        tstamp(a, opt, 0)
        a(f's_mov_b32 s{S_SEG}, s{S_G}')
        AW = T + 4
        a(f'''
        v_bfe_u32 v{T}, v0, 4, 1
        v_lshlrev_b32 v{T}, 10, v{T}
        v_lshrrev_b32 v{T+1}, 5, v0
        v_lshl_add_u32 v{T}, v{T+1}, 8, v{T}
        v_and_b32 v{T+1}, 15, v0
        v_lshl_add_u32 v{AW}, v{T+1}, 4, v{T}
        ''')
        L = f'L_ffn_l{w}'
        a.label(L)
        a(f's_lshl_b32 s{S_T}, s{S_SEG}, 7'); a(f's_add_u32 s{S_T}, s{S_T}, {flag(F_LN)}')
        a(f's_mul_i32 s{S_OB}, s{S_SEG}, 36864'); a(f's_add_u32 s{S_Q}, s{S_OB}, {XN2}')
        poll(a, FL, WS, f's{S_T}', '0', T, 'fl')
        x_dma(a, DO, S_Q, S_B)
        a('s_waitcnt vmcnt(0)')
        a('s_barrier')
        lg = Cnt(a, 'lgkmcnt', 15)
        def rd(kk):
            a(f'ds_read_b128 {vr(XR[kk % 4], 4)}, v{XA + (kk & 3)} offset:{(kk >> 2) * 128}'); lg.issue(kk)
        for kk in range(3): rd(kk)
        for kk in range(36):
            lg.wait(kk)
            for m in range(2):
                a(f'{MF32} {vr(ACC[m],16)}, {ur(GU(m,kk),4)}, {vr(XR[kk%4],4)}, {"0" if kk == 0 else vr(ACC[m],16)}')
            if kk + 3 < 36: rd(kk + 3)
        g, u = ACC
        for r in range(16): a(f'v_max_f32 v{g+r}, 0, v{g+r}')
        for r in range(16): a(f'v_mul_f32 v{g+r}, v{g+r}, v{u+r}')
        for d in range(8): a(f'v_cvt_pk_bf16_f32 v{g+d}, v{g+2*d}, v{g+2*d+1}')
        for b in range(2): a(f'ds_write_b128 v{AW}, {vr(g+4*b,4)} offset:{ACTL + w * 2048 + b * 512}')
        a('s_waitcnt lgkmcnt(0)')
        a('s_barrier')
        for ks in range(4):
            for tt in range(2):
                a(f'ds_read_b128 {vr(AF+4*(2*ks+tt),4)}, v{L16} offset:{ACTL + ks * 2048 + tt * 1024}'); lg.issue((ks, tt))
        a(f's_mul_i32 s{S_Q}, s{S_SEG}, {36 * 36864}'); a(f's_add_u32 s{S_Q}, s{S_Q}, {PF}')
        groups = [(gi, tt) for gi in range(5) for tt in range(2)]
        def fin(n):
            gi, tt = groups[n]; q = DA + 8 * (n & 1); P = tl[2 * gi][0]
            a(f's_add_u32 s{S_P}, s{S_Q}, {(tt * 18 + P) * 36864}')
            if gi < 4:
                for d in range(4): a(f'v_cvt_pk_bf16_f32 v{q+d}, v{q+2*d}, v{q+2*d+1}')
                a(f'buffer_store_dwordx4 {vr(q,4)}, v{PST}, {WS}, s{S_P} offen sc1')
            else:
                for d in range(2): a(f'v_cvt_pk_bf16_f32 v{q+d}, v{q+2*d}, v{q+2*d+1}')
                a(f'buffer_store_dwordx2 {vr(q,2)}, v{PST}, {WS}, s{S_P} offen offset:{8*tl[8][1]} sc1')
        for n, (gi, tt) in enumerate(groups):
            for ks in range(4):
                if n < 2: lg.wait((ks, tt))
                for TT in range(2 if gi < 4 else 1):
                    q = DA + 8 * (n & 1) + 4 * TT
                    a(f'{MF} {vr(q,4)}, {ur(WDF(2*gi+TT,ks),4)}, {vr(AF+4*(2*ks+tt),4)}, {"0" if ks == 0 else vr(q,4)}')
                if ks == 1 and n > 0: fin(n - 1)
        fin(9)
        a(f's_lshl_b32 s{S_T}, s{S_SEG}, 8'); a(f's_add_u32 s{S_T}, s{S_T}, {flag(F_FFN)}')
        a('s_waitcnt vmcnt(0)')
        a('s_barrier')
        if w == 0:
            a(f's_lshl_b32 s{S_T+1}, s{S_M}, 2'); a(f's_add_u32 s{S_T+1}, s{S_T+1}, s{S_T}')
            a(f'v_mov_b32 v{T}, 1'); a(f'buffer_store_dword v{T}, off, {WS}, s{S_T+1} sc1')
        HV = 72; RA = 76; RR = 32
        a(f's_add_u32 s{S_P}, s{S_OB}, {HB}')
        a(f'buffer_load_dwordx2 {vr(HV,2)}, v{OA}, {WS}, s{S_P} offen sc1')
        poll(a, FF, WS, f's{S_T}', '0', T, 'ff')
        vm.reset()
        for u9 in range(9):
            a(f's_add_u32 s{S_P}, s{S_Q}, {u9 * 4096}')
            a(f'buffer_load_dwordx4 {vr(RR+4*u9,4)}, v{RB}, {WS}, s{S_P} offen sc1'); vm.issue(u9)
        for d in range(2): a(f'v_lshlrev_b32 v{RA+2*d}, 16, v{HV+d}'); a(f'v_and_b32 v{RA+2*d+1}, 0xffff0000, v{HV+d}')
        for u9 in range(9):
            vm.wait(u9)
            a(f'{MF} {vr(RA,4)}, {vr(SEL,4)}, {vr(RR+4*u9,4)}, {vr(RA,4)}')
        for d in range(2): a(f'v_cvt_pk_bf16_f32 v{RA+d}, v{RA+2*d}, v{RA+2*d+1}')
        a(f'buffer_store_dwordx2 {vr(RA,2)}, v{OA}, {R(OUT)}, s{S_OB} offen')
        tfirst(a, opt, f's_cmp_lt_u32 s{S_SEG}, 3')
        a(f's_add_u32 s{S_SEG}, s{S_SEG}, 3')
        a(f's_cmp_lt_u32 s{S_SEG}, 64'); a(f's_cbranch_scc1 {L}')
        if opt.get('times'): a('s_waitcnt vmcnt(0)')
        finish(a, opt)

def roles(a, opt):
    a(f's_cmp_ge_u32 s{S_ROLE}, 112'); a('s_cbranch_scc1 L_ffn')
    a(f's_cmp_ge_u32 s{S_ROLE}, 48'); a('s_cbranch_scc1 L_att')
    proj(a, opt); att(a, opt); ffn(a, opt)
```

```python
import sys, json
sys.path.insert(0, 'gen')
from asm import *
from lay import *
import os, importlib, workers
chain = importlib.import_module(os.environ.get('CHAIN', 'chain3'))
NAME = 'sequential_preLN__memory_aug_recurrent_mem_tr__glu_gated_reglu__prompt'

def build(opt):
    a = Asm(); a.timed = opt.get('timed', True)
    DBG = f's[{S_DBG}:{S_DBG+3}]'; WS = f's[{S_WS}:{S_WS+3}]'
    a(f's_cmp_ge_u32 s{S_WG}, 256'); a('s_cbranch_scc1 L_exit')
    if opt.get('times', False): a('s_memrealtime s[62:63]')
    a(f's_load_dwordx4 s[{S_DBG}:{S_DBG+3}], s[0:1], 96')
    a(f's_getreg_b32 s{S_T}, hwreg(HW_REG_XCC_ID)')
    a(f'v_readfirstlane_b32 s{S_WAVE}, v0')
    a(f's_and_b32 s{S_T}, s{S_T}, 15')
    a(f's_lshr_b32 s{S_WAVE}, s{S_WAVE}, 6')
    a('v_and_b32 v0, 63, v0')
    a('s_waitcnt lgkmcnt(0)')
    a(f's_mov_b32 s{S_WS}, s{S_DBG+2}'); a(f's_and_b32 s{S_WS+1}, s{S_DBG+3}, 0xffff')
    a(f's_mov_b32 s{S_WS+2}, {WS_BYTES}'); a(f's_mov_b32 s{S_WS+3}, 0x20000')
    a(f's_and_b32 s{S_DBG+1}, s{S_DBG+1}, 0xffff'); a(f's_mov_b32 s{S_DBG+2}, 256'); a(f's_mov_b32 s{S_DBG+3}, 0x20000')
    if opt.get('force_slow'): a(f's_or_b32 s{S_T}, s{S_T}, {opt["force_slow"]}')
    a(f's_cmp_lg_u32 s{S_WAVE}, 0'); a('s_cbranch_scc1 L_noticket')
    a(f's_cmp_eq_u32 s{S_T}, 0'); a(f's_cselect_b32 s{S_T+1}, 0x10001, 1')
    a(f'v_mov_b32 v1, s{S_T+1}'); a('v_mov_b32 v2, 0'); a('v_lshlrev_b32 v3, 2, v0')
    a(f's_lshl_b32 s{S_T+2}, s{S_WG}, 8')
    a('s_mov_b64 exec, 1')
    a(f'buffer_atomic_add v1, off, {DBG}, 0 sc0')
    a('s_mov_b64 exec, -1')
    a(f'buffer_store_dword v2, v3, {WS}, s{S_T+2} offen sc1')
    a('s_waitcnt vmcnt(1)')
    a(f'v_readfirstlane_b32 s{S_T+1}, v1')
    a(f'v_mov_b32 v1, s{S_T+1}')
    a('ds_write_b32 v2, v1')
    a('s_waitcnt vmcnt(0) lgkmcnt(0)')
    a('v_mov_b32 v1, 1')
    a('s_mov_b64 exec, 1')
    a(f'buffer_atomic_add v1, off, {DBG}, 0 offset:4')
    a('s_mov_b64 exec, -1')
    a.label('L_noticket')
    a('s_barrier')
    a('v_mov_b32 v2, 0'); a('ds_read_b32 v1, v2'); a('s_waitcnt lgkmcnt(0)')
    a(f'v_readfirstlane_b32 s{S_T+1}, v1')
    a('s_barrier')
    a(f's_lshr_b32 s{S_T+2}, s{S_T+1}, 16')
    a(f's_and_b32 s{S_T+1}, s{S_T+1}, 0xffff')
    a(f's_cmp_lg_u32 s{S_T}, 0'); a('s_cbranch_scc1 L_worker')
    a(f's_cmp_ge_u32 s{S_T+2}, 32'); a('s_cbranch_scc1 L_worker')
    a(f's_mov_b32 s{S_ROLE}, s{S_T+2}')
    a('s_branch L_chain')
    a.label('L_worker')
    a(f's_min_u32 s{S_T+2}, s{S_T+2}, 32')
    a(f's_sub_u32 s{S_ROLE}, s{S_T+1}, s{S_T+2}')
    NW = opt.get('nworkers', 220)
    a(f's_cmp_lt_u32 s{S_ROLE}, {NW}'); a('s_cbranch_scc1 L_roles')
    a(f's_mov_b32 s{S_T+3}, 0')
    a.label('L_spare')
    a(f'buffer_load_dword v1, off, {DBG}, 0 sc1')
    a(f's_add_u32 s{S_T+3}, s{S_T+3}, 1')
    a('s_waitcnt vmcnt(0)')
    a(f'v_readfirstlane_b32 s{S_T+1}, v1')
    a(f's_cmp_ge_u32 s{S_T+3}, {chain.SPIN}'); a('s_cbranch_scc1 L_exit')
    a(f's_and_b32 s{S_T+2}, s{S_T+1}, 0xffff')
    a(f's_cmp_lt_u32 s{S_T+2}, 256'); a('s_cbranch_scc1 L_spare')
    a(f's_lshr_b32 s{S_T+2}, s{S_T+1}, 16')
    a(f's_sub_u32 s{S_ROLE}, s{S_ROLE}, {NW}')
    a(f's_add_u32 s{S_ROLE}, s{S_ROLE}, s{S_T+2}')
    a(f's_cmp_lt_u32 s{S_ROLE}, 32'); a('s_cbranch_scc1 L_chain')
    a.label('L_exit')
    a('s_endpgm')
    a.label('L_roles')
    if opt.get('flags'): workers.roles(a, opt)
    else: a('s_endpgm')
    chain.entry(a, opt)
    n = a.fix(verbose=opt.get('verbose', False))
    head = open('cdna_kernels/' + NAME + '.s.ref').read().split('\n')
    hdr = [l for l in head if l.startswith(';') and '@launch' not in l]
    hdr = hdr[:[i for i, l in enumerate(hdr) if 'Override launch' in l][0]]
    out = '\n'.join(hdr) + '\n; @launch grid=(256,1,1) block=(256,1,1) lds=163840\n'
    out += f'''.amdgcn_target "amdgcn-amd-amdhsa--gfx950"
.text
.globl {NAME}_kernel
.p2align 8
.type {NAME}_kernel,@function
{NAME}_kernel:
''' + a.text() + f'''.section .rodata,"a"
.p2align 6
.amdhsa_kernel {NAME}_kernel
  .amdhsa_next_free_vgpr 512
  .amdhsa_next_free_sgpr 102
  .amdhsa_accum_offset 256
  .amdhsa_group_segment_fixed_size 0
  .amdhsa_kernarg_size 112
  .amdhsa_user_sgpr_count 2
  .amdhsa_user_sgpr_kernarg_segment_ptr 1
  .amdhsa_system_sgpr_workgroup_id_x 1
.end_amdhsa_kernel
'''
    return out

if __name__ == '__main__':
    opt = json.loads(sys.argv[2]) if len(sys.argv) > 2 else {}
    open(sys.argv[1], 'w').write(build(opt))
```

```python
from asm import *
from lay import *
KXL = 0; VXL = 8192; ML = 16384; XL = 25600; OL = 29696; PFL = OL + 2048; WL = 32768
L16, IDX, LW, LW2, AM, XW, XR0, OW, AST, KMA, BST, BLD = range(12)
def D(i): return 12 + 4 * i
S_H = S_ROLE
S_STEP = 40; S_RA = 41; S_BW = 42; S_BN = 43; S_BF = 44; S_BR = 45
S_C = 46
S_KX = 48
S_KM = 49
S_SPIN = 50
S_P = 51
S_OMASK = 52
S_TAG = 54; S_SGL = 55
S_T0 = 56
S_FL = 60; S_FA = 61
S_AO = 88
S_PF = 93; S_CF = 94; S_ND = 95
S_FV = 96
SPIN = 1 << 18
WQ, WK, WV, WO = S_R0, S_R1, S_R2, S_R3
WS = f's[{S_WS}:{S_WS+3}]'; DBG = f's[{S_DBG}:{S_DBG+3}]'
SM = 'v_smfmac_f32_16x16x64_bf16'; MF = 'v_mfma_f32_16x16x32_bf16'; MH = 'v_mfma_f32_16x16x16_bf16'

OWN = [[0, 1], [2, 3], [4, 5], [6, 7, 8]]
KRES = [0, 2, 3, 5, 6, 8]
ORDER = [[0, 1, 2, 3, 4, 5, 6, 8, 7], [2, 3, 1, 0, 5, 4, 6, 8, 7], [4, 5, 0, 2, 1, 3, 6, 8, 7], [6, 7, 8, 0, 1, 2, 3, 5, 4]]
WO_LDS_POS = [2, 6, 11, 15]
def wo_plan(w):
    pairs = [9 * w // 2 + i + (w & 1) for i in range(4)]
    single = 4 if w < 2 else 13
    seq = [('s', single, 0), ('s', single, 1)] + [('p', P, k) for P in pairs for k in range(4)]
    return seq, pairs, single
def homes(w):
    seq, pairs, single = wo_plan(w)
    olds = [('o', seq[p][1], seq[p][2]) for p in WO_LDS_POS]
    keys = [('v', c, T) for c in range(9) for T in range(2)] + [('q', c, T) for c in range(9) for T in range(2)] + \
           [('k', c, T) for c in range(9) if c not in KRES for T in range(2)] + [('s', 0), ('s', 1)] + \
           [('o', P, k) for P in pairs for k in range(4) if ('o', P, k) not in olds]
    assert len(keys) == 56
    reg = {k: 64 + 8 * i for i, k in enumerate(keys)}
    lds = {('k', c, T): KRES.index(c) * 16384 + T * 2048 for c in KRES for T in range(2)}
    for i, k in enumerate(olds): lds[k] = (6 + (i >> 1)) * 16384 + (i & 1) * 2048
    return reg, lds, olds
def ldsaddr(off):
    return (LW, off) if off < 65536 else (LW2, off - 65536)

def consts(a, w):
    T = D(0)
    a(f'''
    v_mov_b32 v{T}, v0
    v_lshlrev_b32 v{L16}, 4, v{T}
    v_and_b32 v{T+1}, 15, v{T}          ; r / n / j / t
    v_lshrrev_b32 v{T+2}, 4, v{T}       ; g
    v_mov_b32 v{IDX}, 0x4444
    v_and_b32 v{T+3}, 2, v{T}
    v_cmp_ne_u32 vcc, 0, v{T+3}
    v_mov_b32 v{T+4}, 0xeeee
    v_cndmask_b32 v{IDX}, v{IDX}, v{T+4}, vcc
    v_add_u32 v{LW}, {WL + w * 4096}, v{L16}
    v_add_u32 v{LW2}, {WL + w * 4096 + 65536}, v{L16}
    v_and_b32 v{T+4}, 13, v{T+1}
    v_and_b32 v{T+5}, 1, v{T+2}
    v_lshl_add_u32 v{T+4}, v{T+5}, 1, v{T+4}
    v_lshrrev_b32 v{T+6}, 1, v{T+2}
    v_lshl_add_u32 v{T+4}, v{T+6}, 4, v{T+4}
    v_lshlrev_b32 v{AM}, 4, v{T+4}
    v_lshrrev_b32 v{T+4}, 2, v{T+1}
    v_xor_b32 v{T+7}, v{T+4}, v{T+2}
    v_lshlrev_b32 v{T+7}, 3, v{T+7}
    v_lshl_add_u32 v{T+7}, v{T+1}, 5, v{T+7}
    v_add_u32 v{XW}, {XL + w * 1024}, v{T+7}
    v_lshl_add_u32 v{T+7}, v{T+5}, 2, v{T+4}
    v_lshl_add_u32 v{T+7}, v{T+6}, 4, v{T+7}
    v_lshlrev_b32 v{T+7}, 5, v{T+7}
    v_and_b32 v{T+8}, 3, v{T+1}
    v_xor_b32 v{T+8}, v{T+8}, v{T+5}
    v_lshl_add_u32 v{XR0}, v{T+8}, 3, v{T+7}
    v_add_u32 v{XR0}, {XL}, v{XR0}
    v_and_b32 v{T+7}, 13, v{T+1}
    v_lshl_add_u32 v{T+7}, v{T+6}, 1, v{T+7}
    v_lshlrev_b32 v{T+7}, 4, v{T+7}
    v_lshl_add_u32 v{T+7}, v{T+5}, 3, v{T+7}
    v_add_u32 v{OW}, {OL + (w >> 1) * 1024 + (w & 1) * 512}, v{T+7}
    ; AST = g*4096 + h*128 + (n&7)*16 + (n>>3)*8
    s_lshl_b32 s{S_T}, s{S_H}, 7
    v_and_b32 v{T+7}, 7, v{T+1}
    v_lshlrev_b32 v{T+7}, 4, v{T+7}
    v_lshrrev_b32 v{T+8}, 3, v{T+1}
    v_lshl_add_u32 v{T+7}, v{T+8}, 3, v{T+7}
    v_lshl_add_u32 v{T+7}, v{T+2}, 12, v{T+7}
    v_add_u32 v{AST}, s{S_T}, v{T+7}
    v_and_b32 v{T+7}, 0x3c0, v{L16}
    v_lshrrev_b32 v{T+7}, 1, v{T+7}
    v_and_b32 v{T+8}, 0x10, v{L16}
    v_or_b32 v{T+7}, v{T+7}, v{T+8}
    v_and_b32 v{T+8}, 0x20, v{L16}
    v_lshl_or_b32 v{KMA}, v{T+8}, 26, v{T+7}
    s_add_u32 s{S_T}, s{S_H}, {32 * w}
    s_lshl_b32 s{S_RA}, s{S_T}, 12
    s_add_u32 s{S_RA}, s{S_RA}, {HOPA}
    s_lshr_b32 s{S_T+2}, s{S_T}, 2
    s_cmp_eq_u32 s{S_T+2}, {4 if w == 0 else 13}
    s_cselect_b32 s{S_SGL}, 1, 0
    s_lshl_b32 s{S_T+1}, s{S_T}, 7
    v_bfe_u32 v{T+7}, v{T+1}, 1, 1
    v_lshlrev_b32 v{T+7}, 6, v{T+7}
    v_and_b32 v{T+8}, 1, v{T+1}
    v_lshl_add_u32 v{T+7}, v{T+8}, 5, v{T+7}
    v_lshl_add_u32 v{T+7}, v{T+4}, 4, v{T+7}
    v_lshl_add_u32 v{T+7}, v{T+5}, 3, v{T+7}
    v_lshl_add_u32 v{T+7}, v{T+6}, 2, v{T+7}
    v_add_u32 v{T+7}, s{S_T+1}, v{T+7}
    v_mov_b32 v{T+8}, 0x{OOB:x}
    v_cmp_gt_u32 vcc, 8, v{T+1}
    v_cndmask_b32 v{BST}, v{T+8}, v{T+7}, vcc
    ; BLD = c0*1024 + (g>>1)*512 + (r>>2)*128 + (g&1)*64 + (r&1)*32 + ((r>>1)&1)*16
    v_lshlrev_b32 v{T+7}, 9, v{T+6}
    v_lshl_add_u32 v{T+7}, v{T+4}, 7, v{T+7}
    v_lshl_add_u32 v{T+7}, v{T+5}, 6, v{T+7}
    v_and_b32 v{T+8}, 1, v{T+1}
    v_lshl_add_u32 v{T+7}, v{T+8}, 5, v{T+7}
    v_and_b32 v{T+8}, 2, v{T+1}
    v_lshl_add_u32 v{T+7}, v{T+8}, 3, v{T+7}
    v_add_u32 v{BLD}, {OWN[w][0] * 1024}, v{T+7}
    ''')

def load_weights(a, w, vm, hook):
    reg, lds, olds = homes(w)
    seq, pairs, single = wo_plan(w)
    T = D(0)
    GQ = D(11); TO = D(10); AD = D(10) + 2; TN = D(12); TS = D(12) + 1
    PARK = D(0); TMP = [D(8), D(11)]
    a(f'''
    v_lshrrev_b32 v{T}, 4, v{L16}        ; lane
    v_lshrrev_b32 v{T+1}, 4, v{T}        ; l>>4
    v_and_b32 v{T+2}, 15, v{T}
    v_and_b32 v{T+3}, 1, v{T+1}
    v_lshlrev_b32 v{T+3}, 1, v{T+3}
    v_xor_b32 v{T+2}, v{T+2}, v{T+3}
    s_lshl_b32 s{S_T}, s{S_H}, 8
    s_add_u32 s{S_T}, s{S_T}, {16 * w * 8192}
    v_lshlrev_b32 v{T+3}, 13, v{T+1}
    v_lshl_add_u32 v{T+3}, v{T+2}, 4, v{T+3}
    v_add_u32 v{GQ}, s{S_T}, v{T+3}
    v_xor_b32 v{GQ+1}, 64, v{GQ}
    v_xor_b32 v{GQ+2}, 128, v{GQ}
    v_xor_b32 v{GQ+3}, 192, v{GQ}
    v_and_b32 v{T+2}, 3, v{T}            ; t&3
    v_lshrrev_b32 v{T+3}, 5, v{T}        ; gB>>1
    v_bfe_u32 v{T+4}, v{T}, 4, 1         ; gB&1
    v_bfe_u32 v{T+5}, v{T}, 2, 1         ; s&1
    v_bfe_u32 v{T+6}, v{T}, 3, 1         ; s>>1
    v_lshl_add_u32 v{T+7}, v{T+4}, 2, v{T+5}          ; 4(gB&1) + (s&1)
    v_lshl_add_u32 v{T+8}, v{T+3}, 4, v{T+7}
    v_lshl_add_u32 v{T+8}, v{T+6}, 3, v{T+8}
    ; swz = (b0 | b2<<1 | b3<<2) << 1
    v_lshl_add_u32 v{T+9}, v{T+4}, 1, v{T+5}
    v_lshl_add_u32 v{T+9}, v{T+6}, 2, v{T+9}
    v_lshlrev_b32 v{T+9}, 1, v{T+9}
    v_lshrrev_b32 v{T+10}, 1, v{T+2}
    v_add_u32 v{T+10}, {4 * w}, v{T+10}
    v_xor_b32 v{T+10}, v{T+10}, v{T+9}
    v_lshlrev_b32 v{T+10}, 4, v{T+10}
    v_lshl_add_u32 v{T+10}, v{T+8}, 8, v{T+10}
    v_and_b32 v{T+11}, 1, v{T}
    v_lshl_add_u32 v{TO}, v{T+11}, 3, v{T+10}
    v_xor_b32 v{TO+1}, 32, v{TO}
    v_mul_u32_u24 v{T+8}, 1152, v{T+8}
    v_lshl_add_u32 v{T+8}, v{T+2}, 3, v{T+8}
    v_add_u32 v{TS}, {single * 64 + (w & 1) * 32}, v{T+8}
    v_lshl_add_u32 v{T+8}, v{T+3}, 3, v{T+7}
    v_mul_u32_u24 v{T+8}, 1152, v{T+8}
    v_lshl_add_u32 v{T+8}, v{T+6}, 5, v{T+8}
    v_lshl_add_u32 v{TN}, v{T+2}, 3, v{T+8}
    s_mul_i32 s{S_FA}, s{S_H}, 147456
    s_add_u32 s{S_FA}, s{S_FA}, {w * 9216}
    ''')
    stages = [('o', k, 36864 * k, 36864) for k in range(4)]
    chunks = [('v', c) for c in range(9)] + [('q', c) for c in range(9)] + [('k', c) for c in range(9) if c not in KRES] + [('k', c) for c in KRES]
    for j, (m, c) in enumerate(chunks): stages.append((m, c, ((j + 1) % 10) * 16384, 16384))
    for i, c in enumerate(KRES): assert stages[4 + 21 + i][2] == WL + i * 16384
    def dma(i):
        m, c, base, n = stages[i]
        if m == 'o':
            for u in range(9):
                if u % 4 == 0:
                    a(f's_mov_b32 m0, {base + w * 9216 + u * 1024}'); a(f's_add_u32 s{S_P}, s{S_FA}, {c * 36864 + u * 1024}')
                a(f'buffer_load_dwordx4 v{L16}, s[{WO}:{WO+3}], s{S_P} offen offset:{(u & 3) * 1024} lds'); vm.issue(i)
        else:
            srd = {'v': WV, 'q': WQ, 'k': WK}[m]
            for u in range(4):
                a(f's_mov_b32 m0, {base + w * 4096 + u * 1024}'); a(f's_mov_b32 s{S_P}, {(64 * c + 4 * u) * 8192}')
                a(f'buffer_load_dwordx4 v{GQ+u}, s[{srd}:{srd+3}], s{S_P} offen lds'); vm.issue(i)
    issued = 0
    def issue_ready(done):
        nonlocal issued
        while issued < len(stages):
            _, _, b, n = stages[issued]
            if any(b < stages[j][2] + stages[j][3] and stages[j][2] < b + n for j in range(done, issued)): break
            dma(issued); issued += 1
    issue_ready(0)
    for i, (m, c, base, n) in enumerate(stages):
        vm.wait(i)
        if i == 0: hook()
        a('s_barrier')
        issue_ready(i)
        if m == 'o':
            a(f'v_add_u32 v{AD}, {base}, v{TN}'); a(f'v_add_u32 v{AD+1}, {base}, v{TS}')
            for P in pairs:
                k = ('o', P, c)
                dst = reg[k] if k in reg else PARK + 8 * olds.index(k)
                for p in range(4):
                    a(f'ds_read_b64_tr_b16 {ur(dst + 2 * p, 2)}, v{AD} offset:{(16 * (p >> 1) + 2 * (p & 1)) * 1152 + P * 64}')
            for p in range(2):
                a(f'ds_read_b64_tr_b16 {ur(reg[("s", c >> 1)] + 2 * (2 * (c & 1) + p), 2)}, v{AD+1} offset:{2 * p * 1152}')
            a('s_waitcnt lgkmcnt(0)')
        else:
            res = (m == 'k' and c in KRES)
            a(f'v_add_u32 v{AD}, {base}, v{TO}'); a(f'v_add_u32 v{AD+1}, {base}, v{TO+1}')
            if res: assert issued == len(stages)
            for Tt in range(2):
                dst = TMP[Tt] if res else reg[(m, c, Tt)]
                for p in range(4):
                    a(f'ds_read_b64_tr_b16 {ur(dst + 2 * p, 2)}, v{AD+Tt} offset:{(32 * (p >> 1) + 2 * (p & 1)) * 256}')
            a('s_waitcnt lgkmcnt(0)')
            if res:
                a('s_barrier')
                for Tt in range(2):
                    r, o = ldsaddr(lds[(m, c, Tt)])
                    for u in range(2): a(f'ds_write_b128 v{r}, {vr(TMP[Tt] + 4 * u, 4)} offset:{o + 1024 * u}')
                if c == KRES[0]:
                    for i2, k in enumerate(olds):
                        r, o = ldsaddr(lds[k])
                        for u in range(2): a(f'ds_write_b128 v{r}, {vr(PARK + 8 * i2 + 4 * u, 4)} offset:{o + 1024 * u}')
                a('s_waitcnt lgkmcnt(0)')

def kv_dma(a, w, part):
    a(f's_add_u32 s{S_P}, s{S_KX}, {part * (VX - KX) + w * 2048}')
    a(f's_mov_b32 m0, {(VXL if part else KXL) + w * 2048}')
    for u in range(2):
        a(f'buffer_load_dwordx4 v{L16}, {WS}, s{S_P} offen offset:{u * 1024} sc1 lds')

def zero(a, q):
    a(f'v_mov_b64 {vr(q, 2)}, 0'); a(f'v_mov_b64 {vr(q + 2, 2)}, 0')

FR = [D(7), D(9), D(11)]
def fseq(w): return [('k', c, T) for c in ORDER[w] if c in KRES for T in range(2)]
def pre_b0(a, w):
    reg, lds, olds = homes(w)
    for i in range(3):
        r, o = ldsaddr(lds[fseq(w)[i]])
        for u in range(2): a(f'ds_read_b128 {vr(FR[i] + 4 * u, 4)}, v{r} offset:{o + u * 1024}')
    for i in range(4): zero(a, D(i))

def stamp(a, i, on):
    if on: a(f's_memtime s[{64 + 2 * i}:{65 + 2 * i}]')

def flagwait(a, tag, once=False):
    lab = a.newlabel('L_fw' + tag)
    a(f's_cmp_ge_u32 s{S_FL}, ' + ('64' if once else f's{S_ND}')); a(f's_cbranch_scc1 {lab}_x')
    a.label(lab)
    a(f's_load_dwordx4 s[{S_FV}:{S_FV+3}], s[{S_WS}:{S_WS+1}], s{S_FA} glc')
    if not once: a(f's_add_u32 s{S_SPIN}, s{S_SPIN}, 1')
    a('s_waitcnt lgkmcnt(0)')
    a(f's_min_u32 s{S_FV}, s{S_FV}, s{S_FV+1}'); a(f's_min_u32 s{S_FV+2}, s{S_FV+2}, s{S_FV+3}'); a(f's_min_u32 s{S_FL}, s{S_FV}, s{S_FV+2}')
    if not once:
        a(f's_cmp_ge_u32 s{S_SPIN}, {SPIN}'); a(f's_cbranch_scc1 {lab}_x')
        a(f's_cmp_lt_u32 s{S_FL}, s{S_ND}'); a(f's_cbranch_scc1 {lab}')
    a.label(lab + '_x')

def last_step(a, w, opt):
    reg, lds, olds = homes(w)
    order = ORDER[w]; nown = len(OWN[w]); fs = fseq(w)
    lg = Cnt(a, 'lgkmcnt', 15)
    accV = [D(0), D(1)]; accK = [D(2), D(3)]; AR = [D(4), D(5), D(6)]
    a.label(f'L_last_{w}')
    for _ in range(nown): lg.issue('mw')
    def rdA(pos):
        a(f'ds_read_b128 {vr(AR[pos % 3], 4)}, v{L16} offset:{ML + 1024 * order[pos]}'); lg.issue(('A', pos))
    fi = 0
    for pos, c in enumerate(order):
        if pos >= nown: lg.wait(('A', pos))
        for T in range(2):
            a(f'{SM} {vr(accV[T],4)}, {vr(AR[pos%3],4)}, {ur(reg[("v",c,T)],8)}, v{IDX}')
            if c in KRES:
                if fi >= 3: lg.wait(('F', fi))
                kb = vr(FR[fi % 3], 8)
            else: kb = ur(reg[('k', c, T)], 8)
            a(f'{SM} {vr(accK[T],4)}, {vr(AR[pos%3],4)}, {kb}, v{IDX}')
            if c in KRES:
                if fi + 3 < 12:
                    r, o = ldsaddr(lds[fs[fi + 3]])
                    for u in range(2):
                        a(f'ds_read_b128 {vr(FR[fi % 3] + 4 * u, 4)}, v{r} offset:{o + u * 1024}'); lg.issue(('F', fi + 3))
                fi += 1
        if pos == 0:
            lg.wait('mw')
            a('s_barrier')
            if nown == 2: rdA(2)
        if pos + 3 < 9: rdA(pos + 3)
    def padd(q): a(f'v_pk_add_f32 {vr(q,2)}, {vr(q,2)}, {vr(q+2,2)}')
    TA = D(9); XR1 = D(9) + 1
    a(f'v_lshrrev_b32 v{TA}, 1, v{L16}')
    a(f'v_xor_b32 v{XR1}, 16, v{XR0}')
    a(f's_add_u32 s{S_P}, s{S_KM}, {VM - KM}')
    padd(accV[0]); padd(accK[0]); padd(accV[1]); padd(accK[1])
    for T in range(2):
        a(f'v_cvt_pk_bf16_f32 v{accK[T]}, v{accK[T]}, v{accK[T]+1}')
        a(f'ds_write_b64 v{XW}, {vr(accK[T],2)} offset:{512 * T}')
    a(f'v_cvt_pk_bf16_f32 v{accV[0]}, v{accV[0]}, v{accV[0]+1}')
    a(f'v_cvt_pk_bf16_f32 v{accV[0]+1}, v{accV[1]}, v{accV[1]+1}')
    a('s_waitcnt lgkmcnt(0)')
    for p in range(2):
        a(f'ds_read_b64_tr_b16 {vr(D(4) + 2 * p, 2)}, v{XR1 if p else XR0} offset:{1024 * w + 256 * p}')
    a(f'buffer_store_dwordx2 {vr(accV[0],2)}, v{TA}, {WS}, s{S_P} offen offset:{512 * w} sc1')
    a('s_waitcnt lgkmcnt(0)')
    a(f'buffer_store_dwordx4 {vr(D(4),4)}, v{KMA}, {WS}, s{S_KM} offen offset:{512 * w} sc1')
    a('s_branch L_chain_end')

def step(a, w, slow, opt):
    reg, lds, olds = homes(w)
    seq, pairs, single = wo_plan(w)
    order = ORDER[w]; nown = len(OWN[w]); fs = fseq(w)
    sc = ' sc1' if slow else ''
    tag = f'c{w}{"s" if slow else "f"}'
    lg = Cnt(a, 'lgkmcnt', 15)
    tm = opt.get('stamps', False); flags = opt.get('flags', False)
    accQ = [D(0), D(1)]; accK = [D(2), D(3)]; AR = [D(4), D(5), D(6)]; accV = [D(7), D(8)]
    def prefetch():
        if opt.get('nopf'): return
        a(f's_mov_b32 m0, {PFL + w * 256}')
        a(f'buffer_load_dword v{L16}, s[{S_R4}:{S_R4+3}], s{S_PF} idxen sc1 lds')
    a.label(f'L_loop_{tag}')
    if w == 0 and flags:
        a(f'v_mov_b32 v{AR[2]}, s{S_STEP}')
        a(f'buffer_store_dword v{AR[2]}, off, {WS}, s{S_CF} sc1')
    a(f's_cbranch_scc1 L_last_{w}')
    a.label(f'L_enter_{tag}')
    for _ in range(nown): lg.issue('mw')
    stamp(a, 0, tm)
    def rdA(pos, slot=None):
        s_ = pos % 3 if slot is None else slot
        a(f'ds_read_b128 {vr(AR[s_], 4)}, v{L16} offset:{ML + 1024 * order[pos]}'); lg.issue(('A', pos))
    fi = 0
    for pos, c in enumerate(order):
        if pos >= nown: lg.wait(('A', pos))
        for T in range(2):
            a(f'{SM} {vr(accQ[T],4)}, {vr(AR[pos%3],4)}, {ur(reg[("q",c,T)],8)}, v{IDX}')
            if pos == 8 and T == 0: zero(a, accV[0])
            if pos == 8 and T == 1: zero(a, accV[1])
            if c in KRES:
                if fi >= 3: lg.wait(('F', fi))
                kb = vr(FR[fi % 3], 8)
            else: kb = ur(reg[('k', c, T)], 8)
            a(f'{SM} {vr(accK[T],4)}, {vr(AR[pos%3],4)}, {kb}, v{IDX}')
            if c in KRES:
                if fi + 3 < 12:
                    r, o = ldsaddr(lds[fs[fi + 3]])
                    for u in range(2):
                        a(f'ds_read_b128 {vr(FR[fi % 3] + 4 * u, 4)}, v{r} offset:{o + u * 1024}'); lg.issue(('F', fi + 3))
                fi += 1
        if pos == 0:
            if opt.get('pf', 'b0') == 'b0': prefetch()
            lg.wait('mw')
            a('s_barrier')
            if nown == 2: rdA(2)
        if pos + 3 < 9: rdA(pos + 3)
    stamp(a, 1, tm)
    ring3 = opt.get('ring3', True)
    vplan = [(6, 0), (7, 1), (8, 2), (0, 0), (1, 1)] + ([(2, 2), (3, 0), (4, 1), (5, 0)] if ring3 else [(2, 0), (3, 1), (4, 0), (5, 1)])
    vi = [0]
    def vsm(n):
        for _ in range(n):
            i = vi[0]
            if i >= 18: return
            pos, sl = vplan[i >> 1]; T = i & 1
            if i >= 6: lg.wait(('A', pos))
            a(f'{SM} {vr(accV[T],4)}, {vr(AR[sl],4)}, {ur(reg[("v",order[pos],T)],8)}, v{IDX}')
            if T == 1:
                nx = [p for p, s_ in vplan[(i >> 1) + 1:] if s_ == sl]
                if nx: rdA(nx[0], sl)
            vi[0] += 1
    kso = [(w + 1) & 3, (w + 2) & 3, (w + 3) & 3, w]
    XO = {kso[i]: D(i) for i in range(4)}
    KD = [D(12), D(9), D(6), D(9), D(0), D(6), D(9), D(1)]
    def rdKX(i):
        a(f'ds_read_b128 {vr(KD[i], 4)}, v{L16} offset:{KXL + (i & 1) * 4096 + kso[i >> 1] * 1024}'); lg.issue(('KX', i))
    def padd(q): a(f'v_pk_add_f32 {vr(q,2)}, {vr(q,2)}, {vr(q+2,2)}')
    padd(accQ[0]); padd(accK[0])
    vsm(1)
    a(f'v_cvt_pk_bf16_f32 v{accK[0]+3}, v{accQ[0]}, v{accQ[0]+1}')
    a(f'v_cvt_pk_bf16_f32 v{accK[0]+2}, v{accK[0]}, v{accK[0]+1}')
    a(f'ds_write_b64 v{XW}, {vr(accK[0]+2,2)}'); lg.issue('xw')
    vsm(1)
    padd(accQ[1]); padd(accK[1])
    a(f'v_cvt_pk_bf16_f32 v{accK[1]+3}, v{accQ[1]}, v{accQ[1]+1}')
    a(f'v_cvt_pk_bf16_f32 v{accK[1]+2}, v{accK[1]}, v{accK[1]+1}')
    a(f'ds_write_b64 v{XW}, {vr(accK[1]+2,2)} offset:512'); lg.issue('xw')
    XR1 = D(10)
    vsm(1)
    a(f'v_xor_b32 v{XR1}, 16, v{XR0}')
    rdKX(0)
    vsm(1)
    rdKX(1)
    if opt.get('pf', 'b0') == 'gap': prefetch()
    vsm(opt.get('v1', 2))
    lg.wait('xw')
    a('s_barrier')
    for i in range(4):
        for p in range(2):
            a(f'ds_read_b64_tr_b16 {vr(D(i) + 2 * p, 2)}, v{XR1 if p else XR0} offset:{1024 * kso[i] + 256 * p}'); lg.issue(('XO', i))
        if i >= 1: vsm(1)
    vsm((12 if ring3 else 10) - vi[0])
    stamp(a, 2, tm)
    Sm, S0, S1 = D(10), D(11), D(12)
    sseq = [('k', 0), ('k', 1), ('m', 0), ('m', 1), ('k', 2), ('k', 3), ('m', 2), ('k', 4), ('k', 5), ('m', 3), ('k', 6), ('k', 7)]
    after = {0: [2], 1: [3], 2: [4], 4: [5], 5: [6, 7]}
    VXR = [D(2), D(0)]
    for n, (kind, i) in enumerate(sseq):
        if kind == 'm':
            lg.wait(('XO', i))
            a(f'{MF} {vr(Sm,4)}, {vr(D(i),4)}, {vr(D(i),4)}, {"0" if i == 0 else vr(Sm,4)}')
        else:
            lg.wait(('XO', i >> 1), ('KX', i))
            S = S1 if i & 1 else S0
            a(f'{MF} {vr(S,4)}, {vr(KD[i],4)}, {vr(D(i>>1),4)}, {"0" if i < 2 else vr(S,4)}')
        for j in after.get(n, []): rdKX(j)
        if n == 8:
            for T in range(2):
                a(f'ds_read_b128 {vr(VXR[T],4)}, v{L16} offset:{VXL + w * 2048 + T * 1024}'); lg.issue(('VX', T))
    if not opt.get('nokm'):
        a(f'buffer_store_dwordx4 {vr(D(3),4)}, v{KMA}, {WS}, s{S_KM} offen offset:{512 * w} sc1')
    ONE = D(6); PX = D(3); PM = D(1); SUM = D(10); OA = [D(11), D(12)]
    M, M2 = D(9), D(9) + 1
    vsm(2)
    a(f'v_mov_b32 v{ONE}, 0x3f803f80'); a(f'v_mov_b32 v{ONE+1}, 0x3f803f80')
    a(f'v_max3_f32 v{M}, v{Sm}, v{Sm+1}, v{S0}')
    a(f'v_max3_f32 v{M}, v{M}, v{S0+1}, v{S0+2}')
    a(f'v_max3_f32 v{M}, v{M}, v{S0+3}, v{S1}')
    a(f'v_max3_f32 v{M}, v{M}, v{S1+1}, v{S1+2}')
    a(f'v_max_f32 v{M2}, v{M}, v{S1+3}')
    a(f'v_max_f32 v{M}, v{M}, v{S1+3}')
    vsm(1)
    a(f'v_mov_b64 {vr(ONE+2,2)}, {vr(ONE,2)}')
    a(f'v_permlane32_swap_b32 v{M}, v{M2}')
    a(f'v_max_f32 v{M}, v{M}, v{M2}')
    a(f'v_mov_b32 v{M2}, v{M}')
    vsm(1)
    a(f'v_mov_b64 {vr(PM+0,2)}, 0')
    a(f'v_permlane16_swap_b32 v{M}, v{M2}')
    a(f'v_max_f32 v{M}, v{M}, v{M2}')
    a(f'v_mul_f32 v{M}, s{S_C+1}, v{M}')
    vals = [S0, S0 + 2, S1, S1 + 2, Sm]
    for r in vals:
        a(f'v_pk_fma_f32 {vr(r,2)}, {vr(r,2)}, s[{S_C}:{S_C+1}], {vr(M,2)} op_sel_hi:[1,0,0]')
    rest = 18 - vi[0]
    for n, r in enumerate(vals):
        if n < rest: vsm(1)
        a(f'v_exp_f32 v{r}, v{r}'); a(f'v_exp_f32 v{r+1}, v{r+1}')
    assert vi[0] == 18
    a(f'v_mov_b64 {vr(PM+2,2)}, 0')
    a(f'v_cvt_pk_bf16_f32 v{PX}, v{S0}, v{S0+1}')
    a(f'v_cvt_pk_bf16_f32 v{PX+1}, v{S0+2}, v{S0+3}')
    a(f'v_cvt_pk_bf16_f32 v{PX+2}, v{S1}, v{S1+1}')
    a(f'v_cvt_pk_bf16_f32 v{PX+3}, v{S1+2}, v{S1+3}')
    a(f'v_cvt_pk_bf16_f32 v{PM}, v{Sm}, v{Sm+1}')
    a(f'v_cvt_pk_bf16_f32 v{PM+3}, v{Sm}, v{Sm+1}')
    stamp(a, 3, tm)
    VMR = accV[0]
    lg.wait(('VX', 1))
    a(f'{MF} {vr(SUM,4)}, {vr(ONE,4)}, {vr(PX,4)}, 0')
    padd(accV[0]); padd(accV[1])
    a(f'{MF} {vr(OA[0],4)}, {vr(VXR[0],4)}, {vr(PX,4)}, 0')
    a(f'v_cvt_pk_bf16_f32 v{VMR}, v{accV[0]}, v{accV[0]+1}')
    a(f'v_cvt_pk_bf16_f32 v{VMR+1}, v{accV[1]}, v{accV[1]+1}')
    a(f'{MF} {vr(OA[1],4)}, {vr(VXR[1],4)}, {vr(PX,4)}, 0')
    WA = [D(8), D(6), D(0), D(11), D(12)]
    WF = [D(4), D(2)]
    def rdWF(i):
        r, o = ldsaddr(lds[olds[i]])
        for u in range(2):
            a(f'ds_read_b128 {vr(WF[i % 2] + 4 * u, 4)}, v{r} offset:{o + u * 1024}'); lg.issue(('WF', i))
    TA = D(9) + 2; R = D(9)
    a(f'v_lshrrev_b32 v{TA}, 1, v{L16}')
    a(f's_add_u32 s{S_P}, s{S_KM}, {VM - KM}')
    a(f'{MH} {vr(SUM,4)}, {vr(ONE,2)}, {vr(PM,2)}, {vr(SUM,4)}')
    zero(a, WA[0])
    a(f'{MH} {vr(OA[0],4)}, {vr(VMR,2)}, {vr(PM,2)}, {vr(OA[0],4)}')
    zero(a, WA[2])
    a(f'{MH} {vr(OA[1],4)}, {vr(VMR,2)}, {vr(PM+2,2)}, {vr(OA[1],4)}')
    zero(a, WA[1])
    if not opt.get('nokm'):
        a(f'buffer_store_dwordx2 {vr(VMR,2)}, v{TA}, {WS}, s{S_P} offen offset:{512 * w} sc1')
    a(f'v_rcp_f32 v{R}, v{SUM}')
    rdWF(0); rdWF(1)
    a(f's_mov_b64 exec, s[{S_OMASK}:{S_OMASK+1}]')
    for T in range(2):
        for r in range(2): a(f'v_pk_mul_f32 {vr(OA[T]+2*r,2)}, {vr(OA[T]+2*r,2)}, {vr(R,2)} op_sel_hi:[1,0]')
        a(f'v_cvt_pk_bf16_f32 v{OA[T]}, v{OA[T]}, v{OA[T]+1}')
        a(f'v_cvt_pk_bf16_f32 v{OA[T]+1}, v{OA[T]+2}, v{OA[T]+3}')
        a(f'ds_write_b64 v{OW}, {vr(OA[T],2)} offset:{256 * T}'); lg.issue('ow')
    a('s_mov_b64 exec, -1')
    if w == 3 and flags: flagwait(a, tag)
    lg.wait('ow')
    a('s_barrier')
    stamp(a, 4, tm)
    OAf = [D(1), D(7), D(9), D(10)]; OS = [D(11), D(12)]
    for c in range(2):
        a(f'ds_read_b128 {vr(OS[c],4)}, v{L16} offset:{OL + 1024 * c}'); lg.issue(('os', c))
    for k in range(4):
        a(f'ds_read_b128 {vr(OAf[k],4)}, v{AM} offset:{OL + 512 * k}'); lg.issue(('oa', k))
    if not opt.get('nokv'): kv_dma(a, w, 0); kv_dma(a, w, 1)
    groups = [(0, 2), (2, 6), (6, 10), (10, 14), (14, 18)]
    def fin(gi):
        q = WA[gi]
        if gi > 0:
            a(f'v_cvt_pk_bf16_f32 v{q}, v{q}, v{q+1}')
            a(f'v_cvt_pk_bf16_f32 v{q+1}, v{q+2}, v{q+3}')
            a(f'v_bfi_b32 v{q}, 1, s{S_TAG}, v{q}')
            a(f'buffer_store_dwordx2 {vr(q,2)}, v{AST}, {WS}, s{S_AO+gi} offen{sc}')
        else:
            padd(q)
            a(f'v_cvt_pk_bf16_f32 v{q}, v{q}, v{q+1}')
            a(f'v_bfi_b32 v{q}, 1, s{S_TAG}, v{q}')
            a(f'buffer_store_dword v{q}, v{AST}, {WS}, s{S_AO+gi} offen offset:{4 * (w & 1)}{sc}')
    for pos, (kind, P, k) in enumerate(seq):
        gi = [i for i, (x, y) in enumerate(groups) if x <= pos < y][0]
        if kind == 'p':
            if pos == 2: lg.wait(('oa', 1))
            if pos == 4: lg.wait(('oa', 3))
            A = OAf[k]
        else: lg.wait(('os', k)); A = OS[k]
        if pos in WO_LDS_POS:
            i = WO_LDS_POS.index(pos); lg.wait(('WF', i)); B = vr(WF[i % 2], 8)
        else:
            B = ur(reg[('o', P, k)] if kind == 'p' else reg[('s', k)], 8)
        a(f'{SM} {vr(WA[gi],4)}, {vr(A,4)}, {B}, v{IDX}')
        if pos in WO_LDS_POS and i + 2 < 4: rdWF(i + 2)
        if pos == 4: zero(a, WA[3])
        if pos == 5: zero(a, WA[4])
        for g2, (x, y) in enumerate(groups):
            if pos == y + 1: fin(g2)
    fin(4)
    stamp(a, 5, tm)
    lg.reset()
    if w < 3:
        RR = [D(2), D(3), D(4), D(5)]; SEL = D(6); RA = D(7); MX = D(9)
        if w == 2:
            a(f's_cmp_ge_u32 s{S_H}, 8'); a(f's_cbranch_scc1 L_nored_{tag}')
        def loads():
            for u in range(4):
                a(f'buffer_load_dwordx4 {vr(RR[u],4)}, v{L16}, {WS}, s{S_RA} offen offset:{u * 1024} sc1')
        loads()
        a(f'v_mov_b32 v{MX+3}, -1')
        a(f'buffer_store_dword v{MX+3}, v{BST}, {WS}, s{S_BF} offen{sc}')
        a(f'v_bfe_u32 v{MX}, v{L16}, 4, 1'); a(f'v_lshlrev_b32 v{MX}, 4, v{MX}')
        a(f'v_mov_b32 v{MX+1}, 0x3f80'); a(f'v_lshlrev_b32 v{MX+1}, v{MX}, v{MX+1}')
        a(f'v_bfe_u32 v{MX}, v{L16}, 5, 3')
        for d in range(4):
            a(f'v_cmp_eq_u32 vcc, {d}, v{MX}'); a(f'v_cndmask_b32 v{SEL+d}, 0, v{MX+1}, vcc')
        variants = [0, 1] if w < 2 else [0]
        if w < 2: a(f's_cmp_eq_u32 s{S_SGL}, 1'); a(f's_cbranch_scc1 L_chkA1_{tag}')
        for var in variants:
            first = True
            a.label(f'L_chkA{var}_{tag}')
            for u in range(4):
                a(f's_waitcnt vmcnt({4 - u})')
                a(f'{MF} {vr(RA,4)}, {vr(RR[u],4)}, {vr(SEL,4)}, {"0" if u == 0 else vr(RA,4)}')
                a(f'v_bitop3_b32 v{MX+(u&1)}, v{RR[u]}, v{RR[u]+2}, s{S_TAG} bitop3:0x7e')
                if var:
                    a(f'v_bitop3_b32 v{MX+3}, v{RR[u]+1}, v{RR[u]+3}, s{S_TAG} bitop3:0x7e')
                    a(f'v_or_b32 v{MX+(u&1)}, v{MX+(u&1)}, v{MX+3}')
                if u == 1: a(f'v_or_b32 v{MX+2}, v{MX}, v{MX+1}')
                if u == 3: a(f'v_or3_b32 v{MX+2}, v{MX+2}, v{MX}, v{MX+1}')
            a(f'v_and_b32 v{MX+2}, 1, v{MX+2}')
            a(f'v_cmp_eq_u32 vcc, 1, v{MX+2}')
            a(f's_cbranch_vccz L_okA_{tag}')
            a(f's_add_u32 s{S_SPIN}, s{S_SPIN}, 1')
            if opt.get('cnt'): a('s_add_u32 s81, s81, 63')
            a(f's_cmp_ge_u32 s{S_SPIN}, {SPIN}'); a(f's_cbranch_scc1 L_okA_{tag}')
            loads()
            a(f'buffer_load_dword v{MX+3}, off, {WS}, s{S_RA} sc1')
            a(f's_branch L_chkA{var}_{tag}')
        a.label(f'L_okA_{tag}')
        a(f'v_permlane32_swap_b32 v{RA}, v{RA+2}')
        a(f'v_permlane32_swap_b32 v{RA+1}, v{RA+3}')
        a(f'v_add_f32 v{RA}, v{RA}, v{RA+2}')
        a(f'v_add_f32 v{RA+1}, v{RA+1}, v{RA+3}')
        a(f'v_cvt_pk_bf16_f32 v{RA}, v{RA}, v{RA+1}')
        a(f'buffer_store_dword v{RA}, v{BST}, {WS}, s{S_BW} offen{sc}')
        if w == 2:
            a(f's_branch L_b3_{tag}')
            a.label(f'L_nored_{tag}')
            a('s_waitcnt vmcnt(0)')
            a.label(f'L_b3_{tag}')
    else:
        if flags:
            flagwait(a, tag, once=True)
            a(f's_add_u32 s{S_ND}, s{S_STEP}, 3')
        a('s_waitcnt vmcnt(0)')
    stamp(a, 6, tm)
    if not opt.get('nob3'): a('s_barrier')
    CR = AR
    def loadsB():
        for u in range(nown):
            a(f'buffer_load_dwordx4 {vr(CR[u],4)}, v{BLD}, {WS}, s{S_BR} offen offset:{u * 1024} sc1')
    a(f's_mov_b32 s{S_BR}, s{S_BW}')
    loadsB()
    pre_b0(a, w)
    a(f's_add_u32 s{S_STEP}, s{S_STEP}, 1')
    a(f's_xor_b32 s{S_TAG}, s{S_TAG}, 1')
    a(f's_mov_b32 s{S_BW}, s{S_BF}'); a(f's_mov_b32 s{S_BF}, s{S_BN}'); a(f's_mov_b32 s{S_BN}, s{S_BR}')
    a(f's_add_u32 s{S_KX}, s{S_KX}, {32 * 8192}')
    a(f's_add_u32 s{S_PF}, s{S_PF}, {32 * 8192}')
    a(f's_add_u32 s{S_KM}, s{S_KM}, {32 * 2048}')
    a.label(f'L_chkB_{tag}')
    a(f's_cmp_eq_u32 s{S_STEP}, 63')
    VT = AR[2] if nown == 2 else BST
    for u in range(nown):
        a(f's_waitcnt vmcnt({nown - 1 - u})' + (' lgkmcnt(0)' if u == 0 else ''))
        a(f'ds_write_b128 v{L16}, {vr(CR[u],4)} offset:{ML + OWN[w][u] * 1024}')
        if u == 0: a(f'v_max3_u32 v{VT}, v{CR[u]}, v{CR[u]+1}, v{CR[u]+2}'); a(f'v_max_u32 v{VT}, v{VT}, v{CR[u]+3}')
        else: a(f'v_max3_u32 v{VT}, v{VT}, v{CR[u]}, v{CR[u]+1}'); a(f'v_max3_u32 v{VT}, v{VT}, v{CR[u]+2}, v{CR[u]+3}')
    a(f'v_cmp_eq_u32 vcc, -1, v{VT}')
    if tm:
        a(f's_cbranch_vccz L_okB_{tag}')
    else:
        a(f's_cbranch_vccz L_loop_{tag}')
    a(f's_add_u32 s{S_SPIN}, s{S_SPIN}, 1')
    if opt.get('cnt'): a('s_add_u32 s82, s82, 63')
    a(f's_cmp_ge_u32 s{S_SPIN}, {SPIN}'); a(f's_cbranch_scc1 L_okB_{tag}')
    loadsB()
    a(f's_branch L_chkB_{tag}')
    a.label(f'L_okB_{tag}')
    stamp(a, 7, tm)
    if tm:
        a('s_waitcnt lgkmcnt(0)')
        for i in range(1, 8):
            a(f's_sub_u32 s{S_T}, s{64 + 2 * i}, s64')
            a(f's_add_u32 s{80 + i}, s{80 + i}, s{S_T}')
    a(f's_cmp_eq_u32 s{S_STEP}, 63')
    a(f's_branch L_loop_{tag}')

def entry(a, opt):
    flags = opt.get('flags', False)
    a.label('L_chain')
    a(f's_load_dwordx4 s[{WQ}:{WQ+3}], s[0:1], 16')
    a(f's_load_dwordx4 s[{WV}:{WV+3}], s[0:1], 32')
    a(f's_load_dwordx2 s[{S_R4}:{S_R4+1}], s[0:1], 8')
    a('s_waitcnt lgkmcnt(0)')
    a(f's_mov_b32 s{WK}, s{WQ+2}'); a(f's_and_b32 s{WK+1}, s{WQ+3}, 0xffff')
    a(f's_mov_b32 s{WO}, s{WV+2}'); a(f's_and_b32 s{WO+1}, s{WV+3}, 0xffff')
    for r in (WQ, WV, S_R4): a(f's_and_b32 s{r+1}, s{r+1}, 0xffff')
    for r in (WQ, WK, WV, WO): a(f's_mov_b32 s{r+2}, 4718592'); a(f's_mov_b32 s{r+3}, 0x20000')
    a(f's_mov_b32 s{S_R4+2}, 9216'); a(f's_mov_b32 s{S_R4+3}, 0x20000')
    a(f's_mov_b32 s{S_SPIN}, 0')
    for w in range(1, 4):
        a(f's_cmp_eq_u32 s{S_WAVE}, {w}'); a(f's_cbranch_scc1 L_chain_w{w}')
    for w in range(4):
        a.label(f'L_chain_w{w}')
        seq, pairs, single = wo_plan(w)
        nown = len(OWN[w])
        consts(a, w)
        vm = Cnt(a, 'vmcnt', 63)
        a(f's_mov_b32 s{S_BW}, {HOPB + HOPB_SLOT}'); a(f's_mov_b32 s{S_BN}, {HOPB}'); a(f's_mov_b32 s{S_BF}, {HOPB + 2 * HOPB_SLOT}')
        a(f'v_mov_b64 {vr(D(8),2)}, -1'); a(f'v_mov_b64 {vr(D(8)+2,2)}, -1')
        a(f's_lshl_b32 s{S_KM}, s{S_H}, 11'); a(f's_add_u32 s{S_P}, s{S_KM}, {KM + 63 * 65536}')
        a(f'buffer_store_dwordx4 {vr(D(8),4)}, v{KMA}, {WS}, s{S_P} offen offset:{512 * w} sc1')
        a(f'v_lshrrev_b32 v{D(9)}, 1, v{L16}'); a(f's_add_u32 s{S_P}, s{S_KM}, {VM + 63 * 65536}')
        a(f'buffer_store_dwordx2 {vr(D(8),2)}, v{D(9)}, {WS}, s{S_P} offen offset:{512 * w} sc1')
        if w < 3:
            lab = a.newlabel('L_noinit')
            if w == 2: a(f's_cmp_ge_u32 s{S_H}, 8'); a(f's_cbranch_scc1 {lab}')
            for u in range(4): a(f'buffer_store_dwordx4 {vr(D(8),4)}, v{L16}, {WS}, s{S_RA} offen offset:{u * 1024} sc1')
            for s_ in (S_BW, S_BN, S_BF): a(f'buffer_store_dword v{D(8)}, v{BST}, {WS}, s{s_} offen sc1')
            a.label(lab)
        def hook():
            a(f'v_mov_b32 v{D(8)}, 1')
            a('s_mov_b64 exec, 1')
            a(f'buffer_atomic_add v{D(8)}, off, {DBG}, 0 offset:8'); vm.issue('at')
            a('s_mov_b64 exec, -1')
        load_weights(a, w, vm, hook)
        a(f's_mov_b32 s{S_STEP}, 0'); a(f's_mov_b32 s{S_TAG}, 0')
        a(f's_mov_b32 s{S_C}, 0x3e0293ee'); a(f's_mov_b32 s{S_C+1}, 0xbe0293ee')
        a(f's_mov_b32 s{S_OMASK}, 0xcccccccc'); a(f's_mov_b32 s{S_OMASK+1}, 0xcccccccc')
        a(f's_lshl_b32 s{S_KX}, s{S_H}, 13'); a(f's_add_u32 s{S_KX}, s{S_KX}, {KX}')
        a(f's_add_u32 s{S_PF}, s{S_KX}, {opt.get("pfd", 1) * 32 * 8192 + (w >> 1) * (VX - KX) + (w & 1) * 4096}')
        a(f's_lshl_b32 s{S_KM}, s{S_H}, 11'); a(f's_add_u32 s{S_KM}, s{S_KM}, {KM}')
        a(f's_mov_b32 s{S_FL}, 0')
        a(f's_lshl_b32 s{S_FA}, s{S_H}, 7'); a(f's_add_u32 s{S_CF}, s{S_FA}, {flag(F_CHAIN)}'); a(f's_add_u32 s{S_FA}, s{S_FA}, {flag(F_PROJ)}')
        for gi, P in enumerate([single] + pairs): a(f's_mov_b32 s{S_AO+gi}, {HOPA + P * 16384}')
        for i in range(1, 8): a(f's_mov_b32 s{80 + i}, 0')
        T = D(0)
        a(f'v_bfe_u32 v{T}, v{L16}, 6, 2'); a(f'v_bfe_u32 v{T+1}, v{L16}, 4, 1'); a(f'v_lshl_add_u32 v{T}, v{T}, 1, v{T+1}')
        a(f'v_mul_u32_u24 v{T}, 1152, v{T}')
        a(f'v_bfe_u32 v{T+1}, v{L16}, 8, 2'); a(f'v_lshl_add_u32 v{T}, v{T+1}, 5, v{T}')
        a(f'v_bfe_u32 v{T+1}, v{L16}, 5, 1'); a(f'v_lshl_add_u32 v{T}, v{T+1}, 4, v{T}')
        for u in range(nown):
            a(f'buffer_load_dwordx4 {vr(D(4+u),4)}, v{T}, s[{S_R4}:{S_R4+3}], 0 offen offset:{OWN[w][u] * 128}')
        T = D(1)
        lab = a.newlabel('L_cwait')
        a.label(lab)
        a(f'buffer_load_dwordx4 {vr(T,4)}, off, {DBG}, 0 sc1')
        a(f's_add_u32 s{S_SPIN}, s{S_SPIN}, 1')
        a('s_waitcnt vmcnt(0)')
        a(f'v_readfirstlane_b32 s{S_T}, v{T}'); a(f'v_readfirstlane_b32 s{S_T+1}, v{T+1}'); a(f'v_readfirstlane_b32 s{S_T+2}, v{T+2}')
        a(f's_cmp_ge_u32 s{S_SPIN}, {SPIN}'); a(f's_cbranch_scc1 {lab}_x')
        a(f's_cmp_lt_u32 s{S_T+1}, 256'); a(f's_cbranch_scc1 {lab}')
        a(f's_cmp_lt_u32 s{S_T+2}, 128'); a(f's_cbranch_scc1 {lab}')
        a.label(lab + '_x')
        a(f's_lshr_b32 s{S_T+3}, s{S_T}, 16')
        a(f's_mov_b32 s{S_R4}, s{S_WS}'); a(f's_or_b32 s{S_R4+1}, s{S_WS+1}, 0x40000'); a(f's_mov_b32 s{S_R4+2}, {WS_BYTES // 4}')
        if flags:
            a(f's_mov_b32 s{S_ND}, 1')
            flagwait(a, 'i')
            a(f's_mov_b32 s{S_ND}, 2')
        a('s_barrier')
        kv_dma(a, w, 0); kv_dma(a, w, 1)
        a(f's_add_u32 s{S_KX}, s{S_KX}, {32 * 8192}')
        pre_b0(a, w)
        a('s_waitcnt vmcnt(0) lgkmcnt(0)')
        for u in range(nown):
            a(f'ds_write_b128 v{L16}, {vr(D(4+u),4)} offset:{ML + OWN[w][u] * 1024}')
        if opt.get('times', False): a(f's_memrealtime s[{S_T0}:{S_T0+1}]'); a('s_waitcnt lgkmcnt(0)')
        a(f's_cmp_lt_u32 s{S_T+3}, 32')
        a(f's_cbranch_scc1 L_enter_c{w}s')
        a(f's_branch L_enter_c{w}f')
        step(a, w, False, opt)
        step(a, w, True, opt)
        last_step(a, w, opt)
    a.label('L_chain_end')
    if opt.get('times', False):
        a(f's_memrealtime s[{S_T0+2}:{S_T0+3}]'); a('s_waitcnt lgkmcnt(0)')
        a(f's_lshl_b32 s{S_T}, s{S_H}, 2'); a(f's_add_u32 s{S_T}, s{S_T}, s{S_WAVE}'); a(f's_lshl_b32 s{S_T}, s{S_T}, 6')
        a(f's_add_u32 s{S_T}, s{S_T}, {TIMES}')
        vals = [62, S_T0, S_T0 + 2] + list(range(81, 88)) + [S_SPIN]
        for i, r in enumerate(vals):
            a(f'v_mov_b32 v{D(2)}, s{r}')
            a(f'buffer_store_dword v{D(2)}, off, {WS}, s{S_T} offset:{4 * i}')
    a('s_endpgm')
```

```python
FLAGS = 0
HOPA = 0x10000; HOPA_SLOT = 72 * 4096
HOPB = HOPA + 2 * HOPA_SLOT; HOPB_SLOT = 9216
TIMES = 0xB0000
XN = 0x100000
HB = 0x400000
XN2 = 0x700000
KM = 0xA00000
VM = 0xE00000
QX = 0x1200000
KX = 0x2200000
VX = 0x3200000
PA = 0x4200000
PA_SLOT = 16 * 36864
PF = 0x4800000
PF_SLOT = 36 * 36864
WS_BYTES = 268435456
assert HOPB + 3 * HOPB_SLOT <= TIMES
assert PA + 8 * PA_SLOT <= PF and PF + 6 * PF_SLOT <= WS_BYTES
OOB = 0x80000000
F_PROJ = 0
F_CHAIN = 48
F_AI = 80
F_FI = 81
DBG_XN = 128
def flag(line): return FLAGS + line * 128

S_WG = 2
S_WS = 4
S_DBG = 8
S_R0 = 12
S_R1 = 16
S_R2 = 20
S_R3 = 24
S_R4 = 28
S_ROLE = 32
S_WAVE = 33
S_T = 34
```

```python
from asm import *
from lay import *
SPIN = 1 << 18
S_SEG = 40; S_SPIN = 50; S_P = 51; S_Q = 41; S_B = 42; S_M = 43; S_G = 44; S_OB = 45
S_C = 46
S_MK = 52
S_TM = 64
WS = f's[{S_WS}:{S_WS+3}]'; DBG = f's[{S_DBG}:{S_DBG+3}]'
MF32 = 'v_mfma_f32_32x32x16_bf16'; MF = 'v_mfma_f32_16x16x32_bf16'; MH = 'v_mfma_f32_16x16x16_bf16'
def R(i): return f's[{i}:{i+3}]'

def srd_fix(a, r, nbytes):
    a(f's_and_b32 s{r+1}, s{r+1}, 0xffff'); a(f's_mov_b32 s{r+2}, {nbytes}'); a(f's_mov_b32 s{r+3}, 0x20000')

def poll(a, vaddr, srd, soff, sval, tmp, name, imm=0):
    lab = a.newlabel('L_' + name)
    a.label(lab)
    if vaddr is None: a(f'buffer_load_dword v{tmp}, off, {srd}, {soff} offset:{imm} sc1')
    else: a(f'buffer_load_dword v{tmp}, v{vaddr}, {srd}, {soff} offen offset:{imm} sc1')
    a(f's_add_u32 s{S_SPIN}, s{S_SPIN}, 1')
    a(f's_cmp_ge_u32 s{S_SPIN}, {SPIN}')
    a('s_waitcnt vmcnt(0)')
    a(f's_cbranch_scc1 {lab}_x')
    a(f'v_cmp_ge_u32 vcc, {sval}, v{tmp}')
    a(f's_cbranch_vccnz {lab}')
    a.label(lab + '_x')

S_FP = 48; S_FC = 49; S_TAG = 60; S_SL = 61; S_FA = 92
S_N = 95; S_FV = 96
def spoll(a, cache, need, loads, name, sentinel=False):
    lab = a.newlabel('L_' + name)
    if not sentinel: a(f's_cmp_ge_u32 s{cache}, {need}'); a(f's_cbranch_scc1 {lab}_x')
    a.label(lab)
    r = S_FV; regs = []
    for n, off in loads:
        a(f's_load_dword{"" if n == 1 else "x%d" % n} {sr(r, n)}, s[{S_WS}:{S_WS+1}], {off} glc')
        regs += list(range(r, r + n)); r += n
    a(f's_add_u32 s{S_SPIN}, s{S_SPIN}, 1')
    a(f's_cmp_ge_u32 s{S_SPIN}, {SPIN}'); a(f's_cbranch_scc1 {lab}_y')
    a('s_waitcnt lgkmcnt(0)')
    if sentinel:
        a(f's_cmp_eq_u32 s{S_FV}, -1')
    else:
        if len(regs) == 1: a(f's_mov_b32 s{cache}, s{regs[0]}')
        else:
            a(f's_min_u32 s{cache}, s{regs[0]}, s{regs[1]}')
            for x in regs[2:]: a(f's_min_u32 s{cache}, s{cache}, s{x}')
        a(f's_cmp_lt_u32 s{cache}, {need}')
    a(f's_cbranch_scc1 {lab}')
    a.label(lab + '_y')
    a('s_waitcnt lgkmcnt(0)')
    a.label(lab + '_x')

def fill(a, L16, T, sbases):
    a(f'v_mov_b64 {vr(T,2)}, -1'); a(f'v_mov_b64 {vr(T+2,2)}, -1')
    for sb, base in sbases:
        for i in range(9):
            if i % 4 == 0: a(f's_add_u32 s{S_P}, s{sb}, {base + i * 1024}')
            a(f'buffer_store_dwordx4 {vr(T,4)}, v{L16}, {WS}, s{S_P} offen offset:{(i & 3) * 1024} sc1')

def arrive(a, T, line):
    a('s_waitcnt vmcnt(0)')
    a('s_barrier')
    lab = a.newlabel('L_arr')
    a(f's_cmp_lg_u32 s{S_WAVE}, 0'); a(f's_cbranch_scc1 {lab}')
    a(f'v_mov_b32 v{T}, 1'); a('s_mov_b64 exec, 1')
    a(f's_mov_b32 s{S_P}, {flag(line)}')
    a(f'buffer_atomic_add v{T}, off, {WS}, s{S_P}')
    a('s_mov_b64 exec, -1')
    return lab

def retry(a, lab_ok):
    a(f's_add_u32 s{S_SPIN}, s{S_SPIN}, 1')
    a(f's_cmp_ge_u32 s{S_SPIN}, {SPIN}'); a(f's_cbranch_scc1 {lab_ok}')

def tstamp(a, opt, i):
    if opt.get('times'): a(f's_memrealtime s[{S_TM+2*i}:{S_TM+2*i+1}]'); a('s_waitcnt lgkmcnt(0)')
def tk(a, opt, i):
    if opt.get('wst'): a(f's_memrealtime s[{S_TM+2*i}:{S_TM+2*i+1}]')
def tfirst(a, opt, first_cond):
    if opt.get('times'):
        lab = a.newlabel('L_tf'); a(first_cond); a(f's_cbranch_scc0 {lab}'); tstamp(a, opt, 1); a.label(lab)
def finish(a, opt):
    if opt.get('times'):
        tstamp(a, opt, 2)
        a(f's_add_u32 s{S_T}, s{S_ROLE}, 32'); a(f's_lshl_b32 s{S_T}, s{S_T}, 2'); a(f's_add_u32 s{S_T}, s{S_T}, s{S_WAVE}')
        a(f's_lshl_b32 s{S_T}, s{S_T}, 6'); a(f's_add_u32 s{S_T}, s{S_T}, {TIMES}')
        for i, r in enumerate([62] + [S_TM + 2 * k for k in range(14)]):
            a(f'v_mov_b32 v1, s{r}'); a(f'buffer_store_dword v1, off, {WS}, s{S_T} offset:{4*i}')
    a('s_endpgm')

def x_consts(a, DO, XA, T):
    a(f's_mul_i32 s{S_T}, s{S_WAVE}, 576')
    a(f's_mov_b32 s{S_T+1}, 58255')
    for i in range(9):
        a(f'''
        v_add_u32 v{T}, s{S_T}, v0
        v_add_u32 v{T}, {64*i}, v{T}
        v_mul_lo_u32 v{T+1}, v{T}, s{S_T+1}
        v_lshrrev_b32 v{T+1}, 22, v{T+1}
        v_mul_u32_u24 v{T+2}, 72, v{T+1}
        v_sub_u32 v{T+2}, v{T}, v{T+2}
        v_bfe_u32 v{T+3}, v{T+1}, 1, 3
        v_xor_b32 v{T+2}, v{T+2}, v{T+3}
        v_mul_u32_u24 v{T+1}, 1152, v{T+1}
        v_lshl_add_u32 v{DO+i}, v{T+2}, 4, v{T+1}
        ''')
    a(f'''
    v_and_b32 v{T}, 31, v0
    v_lshrrev_b32 v{T+1}, 5, v0
    v_bfe_u32 v{T+2}, v{T}, 1, 3
    v_mul_u32_u24 v{T}, 1152, v{T}
    ''')
    for m in range(4):
        a(f'v_add_u32 v{T+3}, {2*m}, v{T+1}'); a(f'v_xor_b32 v{T+3}, v{T+3}, v{T+2}'); a(f'v_lshl_add_u32 v{XA+m}, v{T+3}, 4, v{T}')
assert all((x * 58255) >> 22 == x // 72 for x in range(2304))

def x_dma(a, DO, soff, sbuf):
    for i in range(9):
        if i == 0: a(f's_mov_b32 m0, s{sbuf}')
        else: a(f's_add_u32 m0, s{sbuf}, {1024*i}')
        a(f'buffer_load_dwordx4 v{DO+i}, {WS}, s{soff} offen sc1 lds')

def sel(a, dst, T, mode):
    a(f'v_and_b32 v{T}, 15, v0')
    if mode == 'hi': a(f'v_xor_b32 v{T}, 8, v{T}')
    if mode == 'dup': a(f'v_and_b32 v{T}, 7, v{T}')
    a(f'v_and_b32 v{T+1}, 1, v{T}'); a(f'v_lshlrev_b32 v{T+1}, 4, v{T+1}')
    a(f'v_mov_b32 v{T+2}, 0x3f80'); a(f'v_lshlrev_b32 v{T+2}, v{T+1}, v{T+2}')
    a(f'v_lshrrev_b32 v{T}, 1, v{T}')
    for d in range(4):
        a(f'v_cmp_eq_u32 vcc, {d}, v{T}'); a(f'v_cndmask_b32 v{dst+d}, 0, v{T+2}, vcc')

def proj(a, opt):
    DO = 1; XA = 10; ST = 14; TA = 15; ACC = [16, 32]; XR = [48, 52, 56, 60]; T = 64; FV = 70
    def W(kk, cb): return ur(224 + 8 * kk + 4 * cb, 4)
    a.label('L_proj')
    a(f's_load_dwordx4 s[{S_R1}:{S_R1+3}], s[0:1], 16')
    a(f's_load_dwordx2 s[{S_R2}:{S_R2+1}], s[0:1], 32')
    a(f's_mov_b32 s{S_SPIN}, 0')
    a('s_waitcnt lgkmcnt(0)')
    a(f's_and_b32 s{S_T+2}, s{S_WAVE}, 1')
    a(f's_cmp_lt_u32 s{S_ROLE}, 32'); a('s_cbranch_scc1 L_proj_kv')
    a(f's_mov_b32 s{S_R0}, s{S_R1}'); a(f's_mov_b32 s{S_R0+1}, s{S_R1+1}')
    a(f's_sub_u32 s{S_T}, s{S_ROLE}, 32'); a(f's_lshl_b32 s{S_T}, s{S_T}, 1'); a(f's_lshr_b32 s{S_T+1}, s{S_WAVE}, 1'); a(f's_add_u32 s{S_T}, s{S_T}, s{S_T+1}')
    a(f's_mov_b32 s{S_OB}, {QX}'); a(f's_mov_b32 s{S_G}, 0')
    a('s_branch L_proj_j')
    a.label('L_proj_kv')
    a(f's_mov_b32 s{S_T}, s{S_ROLE}')
    a(f's_cmp_ge_u32 s{S_WAVE}, 2'); a('s_cbranch_scc1 L_proj_v')
    a(f's_mov_b32 s{S_R0}, s{S_R1+2}'); a(f's_mov_b32 s{S_R0+1}, s{S_R1+3}')
    a(f's_mov_b32 s{S_OB}, {KX}'); a(f's_mov_b32 s{S_G}, 0')
    a('s_branch L_proj_j')
    a.label('L_proj_v')
    a(f's_mov_b32 s{S_R0}, s{S_R2}'); a(f's_mov_b32 s{S_R0+1}, s{S_R2+1}')
    a(f's_mov_b32 s{S_OB}, {VX}'); a(f's_mov_b32 s{S_G}, 1')
    a.label('L_proj_j')
    srd_fix(a, S_R0, 4718592)
    a(f's_lshl_b32 s{S_T+1}, s{S_T}, 13'); a(f's_add_u32 s{S_OB}, s{S_OB}, s{S_T+1}')
    a(f's_add_u32 s{S_T+3}, s{S_G}, 11'); a(f's_lshl_b32 s{S_T+1}, s{S_T+2}, s{S_T+3}'); a(f's_add_u32 s{S_OB}, s{S_OB}, s{S_T+1}')
    a(f's_lshl_b32 s{S_T}, s{S_T}, 8'); a(f's_lshl_b32 s{S_T+2}, s{S_T+2}, 7'); a(f's_add_u32 s{S_T}, s{S_T}, s{S_T+2}')
    a(f's_lshl_b32 s{S_B}, s{S_WAVE}, 15')
    a(f'''
    v_lshrrev_b32 v{T}, 3, v0
    v_and_b32 v{T+1}, 7, v0
    v_lshlrev_b32 v{T}, 13, v{T}
    v_lshl_add_u32 v{T}, v{T+1}, 4, v{T}
    v_add_u32 v{FV+1}, s{S_T}, v{T}
    ''')
    vm = Cnt(a, 'vmcnt', 63)
    def dma(i):
        a(f's_add_u32 m0, s{S_B}, {(i % 32) * 1024}'); a(f's_mov_b32 s{S_P}, {i * 65536}')
        a(f'buffer_load_dwordx4 v{FV+1}, {R(S_R0)}, s{S_P} offen lds'); vm.issue(i)
    for i in range(32): dma(i)
    a(f'''
    v_lshrrev_b32 v{T}, 5, v0
    v_bfe_u32 v{T+1}, v0, 2, 2
    v_lshl_add_u32 v{T}, v{T}, 3, v{T+1}
    v_lshlrev_b32 v{T}, 7, v{T}
    v_bfe_u32 v{T+1}, v0, 4, 1
    v_lshl_add_u32 v{T}, v{T+1}, 5, v{T}
    v_and_b32 v{T+1}, 3, v0
    v_lshl_add_u32 v{T}, v{T+1}, 3, v{T}
    v_add_u32 v{TA}, s{S_B}, v{T}
    ''')
    x_consts(a, DO, XA, T)
    a(f's_lshl_b32 s{S_T}, s{S_G}, 1'); a(f's_sub_u32 s{S_T}, 12, s{S_T}')
    a(f'''
    v_bfe_u32 v{T}, v0, 4, 1
    v_lshlrev_b32 v{T}, s{S_T}, v{T}
    v_lshrrev_b32 v{T+1}, 5, v0
    v_lshl_add_u32 v{T}, v{T+1}, 8, v{T}
    v_and_b32 v{T+1}, 15, v0
    v_lshl_add_u32 v{ST}, v{T+1}, 4, v{T}
    ''')
    for kk in range(36):
        vm.wait(2 * kk + 1)
        for cb in range(2):
            for p in range(2):
                a(f'ds_read_b64_tr_b16 {ur(224 + 8*kk + 4*cb + 2*p, 2)}, v{TA} offset:{(kk % 16) * 2048 + p * 512 + cb * 64}')
        if kk >= 1 and 2 * (kk - 1) + 32 < 72:
            a('s_waitcnt lgkmcnt(4)')
            dma(2 * (kk - 1) + 32); dma(2 * (kk - 1) + 33)
    a('s_waitcnt lgkmcnt(0)')
    poll(a, None, DBG, 0, '255', T, 'pw0', 4)
    poll(a, None, DBG, 0, '255', T, 'pw1', DBG_XN)
    a('s_barrier')
    tstamp(a, opt, 0)
    a(f's_mul_i32 s{S_B}, s{S_WAVE}, 9216')
    a(f's_mov_b32 s{S_Q}, {XN}')
    x_dma(a, DO, S_Q, S_B)
    a(f's_mov_b32 s{S_SEG}, 0')
    a(f's_lshl_b32 s{S_M}, s{S_ROLE}, 7'); a(f's_lshl_b32 s{S_T}, s{S_WAVE}, 2'); a(f's_add_u32 s{S_M}, s{S_M}, s{S_T}'); a(f's_add_u32 s{S_M}, s{S_M}, {flag(F_PROJ)}')
    STR = 72
    a(f'v_mov_b32 v{STR}, v{ST}'); a(f'v_mov_b32 v{ST}, 0x{OOB:x}')
    a(f's_sub_u32 s{S_OB}, s{S_OB}, {32 * 8192}')
    a('s_waitcnt vmcnt(0)')
    a(f's_cmp_eq_u32 s{S_G}, 1'); a('s_cbranch_scc1 L_proj_lv')
    ACCS = [[16, 32], [80, 96]]
    for isv in range(2):
        L = 'L_proj_lv' if isv else 'L_proj_lk'
        def epi(acc, cb, b):
            q = acc[cb]
            src = [[0, 2, 8, 10], [4, 6, 12, 14]] if isv else [[0, 2, 4, 6], [8, 10, 12, 14]]
            for d in range(4): a(f'v_cvt_pk_bf16_f32 v{q+4*b+d}, v{q+src[b][d]}, v{q+src[b][d]+1}')
            a(f'buffer_store_dwordx4 {vr(q+4*b,4)}, v{ST}, {WS}, s{S_OB} offen offset:{cb * (2048 if isv else 1024) + b * 512} sc1')
        a.label(L)
        for par in range(2):
            acc = ACCS[par]
            a('s_waitcnt vmcnt(1)')
            a('s_barrier')
            lg = Cnt(a, 'lgkmcnt', 15)
            def rd(kk):
                a(f'ds_read_b128 {vr(XR[kk % 4], 4)}, v{XA + (kk & 3)} offset:{(kk >> 2) * 128}'); lg.issue(kk)
            for kk in range(3): rd(kk)
            a(f's_cmp_lt_u32 s{S_SEG}, 63'); a(f's_cselect_b32 s{S_T}, 36864, 0'); a(f's_add_u32 s{S_Q}, s{S_Q}, s{S_T}')
            a(f's_xor_b32 s{S_B}, s{S_B}, 0x10000')
            for kk in range(36):
                lg.wait(kk)
                for cb in range(2):
                    c = '0' if kk == 0 else vr(acc[cb], 16)
                    x = vr(XR[kk % 4], 4)
                    if isv: a(f'{MF32} {vr(acc[cb],16)}, {x}, {W(kk,cb)}, {c}')
                    else: a(f'{MF32} {vr(acc[cb],16)}, {W(kk,cb)}, {x}, {c}')
                    if cb == 0 and kk + 3 < 36: rd(kk + 3)
                if 1 <= kk <= 4: epi(ACCS[par ^ 1], (kk - 1) >> 1, (kk - 1) & 1)
                if 5 <= kk <= 13:
                    i = kk - 5
                    a(f's_add_u32 m0, s{S_B}, {1024*i}')
                    a(f'buffer_load_dwordx4 v{DO+i}, {WS}, s{S_Q} offen sc1 lds')
                if kk == 5 and par == 1: tfirst(a, opt, f's_cmp_eq_u32 s{S_SEG}, 1')
                if kk == opt.get('pfk', 22):
                    a('s_waitcnt vmcnt(9)')
                    a(f'v_mov_b32 v{FV}, s{S_SEG}')
                    a(f'buffer_store_dword v{FV}, off, {WS}, s{S_M} sc1')
                if kk == 33:
                    for m in range(4): a(f'v_xor_b32 v{XA+m}, 0x10000, v{XA+m}')
                if kk == 34:
                    a(f'v_mov_b32 v{ST}, v{STR}')
                    a(f's_add_u32 s{S_OB}, s{S_OB}, {32 * 8192}')
                    a(f's_add_u32 s{S_SEG}, s{S_SEG}, 1')
            if par == 1: a(f's_cmp_lt_u32 s{S_SEG}, 64'); a(f's_cbranch_scc1 {L}')
        for cb in range(2):
            for b in range(2): epi(ACCS[1], cb, b)
        if not isv: a('s_branch L_proj_end')
    a.label('L_proj_end')
    a('s_waitcnt vmcnt(0)')
    a(f'v_mov_b32 v{FV}, 64')
    a(f'buffer_store_dword v{FV}, off, {WS}, s{S_M} sc1')
    finish(a, opt)

def tiles_of(w):
    b = 9 * (w >> 1)
    if w & 1 == 0: return [(b + i, T) for i in range(4) for T in range(2)] + [(b + 4, 0)]
    return [(b + 5 + i, T) for i in range(4) for T in range(2)] + [(b + 4, 1)]

def row_stage_dma(a, srd, L16, st, sbase, vm, tag):
    for i in range(9):
        a(f's_add_u32 m0, s{S_B}, {(st % 4) * 36864 + (i & ~3) * 1024}') if i % 4 == 0 else None
        if i % 4 == 0: a(f's_add_u32 s{S_P}, s{sbase}, {st * 36864 + i * 1024}')
        a(f'buffer_load_dwordx4 v{L16}, {R(srd)}, s{S_P} offen offset:{(i & 3) * 1024} lds'); vm.issue(tag)

def allreduce(a, v, t, op='v_add_f32', lanes=64):
    for d in ('quad_perm:[1,0,3,2]', 'quad_perm:[2,3,0,1]', 'row_half_mirror', 'row_mirror')[:3 if lanes == 8 else 4]:
        a(f'{op}_dpp v{v}, v{v}, v{v} {d} row_mask:0xf bank_mask:0xf')
    if lanes == 64:
        for sw in ('v_permlane16_swap_b32', 'v_permlane32_swap_b32'):
            a(f'v_mov_b32 v{t}, v{v}'); a(f'{sw} v{v}, v{t}'); a(f'{op} v{v}, v{v}, v{t}')

def att(a, opt):
    L16, KMA, L8, PST, RB, XO, XO2, RB4, XO4, T = 1, 2, 3, 4, 5, 6, 7, 8, 9, 10
    Q = 16; K = 32; V = 64; KMF = 96; VMF = 112; SM, S0, S1 = 120, 124, 128; PX = 132; PM = 136; ONE = 140; SUM = 144
    O = 148; OF = 148; ACC = 96
    SLO, SHI = 212, 216
    RR = 128
    XX, WO_ = S_R0, S_R1
    a.label('L_att')
    a(f's_load_dwordx2 s[{XX}:{XX+1}], s[0:1], 0')
    a(f's_load_dwordx2 s[{WO_}:{WO_+1}], s[0:1], 40')
    a(f's_mov_b32 s{S_SPIN}, 0')
    a(f's_sub_u32 s{S_T}, s{S_ROLE}, 48'); a(f's_and_b32 s{S_M}, s{S_T}, 15'); a(f's_lshr_b32 s{S_G}, s{S_T}, 4')
    a(f'v_lshlrev_b32 v{L16}, 4, v0')
    a('s_waitcnt lgkmcnt(0)')
    srd_fix(a, XX, 2359296); srd_fix(a, WO_, 4718592)
    X = 16; Fp = 64
    a(f's_mul_i32 s{S_Q}, s{S_T}, 36864'); a(f's_mul_i32 s{S_B}, s{S_WAVE}, 9216'); a(f's_add_u32 s{S_Q}, s{S_Q}, s{S_B}')
    a(f'v_lshrrev_b32 v{T}, 3, v0'); a(f'v_mul_u32_u24 v{T}, 1152, v{T}'); a(f'v_and_b32 v{T+1}, 7, v0'); a(f'v_lshl_add_u32 v{T}, v{T+1}, 4, v{T}')
    vm = Cnt(a, 'vmcnt', 63)
    for i in range(9): a(f'buffer_load_dwordx4 {vr(X+4*i,4)}, v{T}, {R(XX)}, s{S_Q} offen offset:{128*i}'); vm.issue('x')
    a(f's_mul_i32 s{S_OB}, s{S_M}, {2 * 147456}'); a(f's_add_u32 s{S_OB}, s{S_OB}, s{S_B}')
    vm.wait('x')
    for i in range(36):
        a(f'v_lshlrev_b32 v{Fp+2*i}, 16, v{X+i}'); a(f'v_and_b32 v{Fp+2*i+1}, 0xffff0000, v{X+i}')
    A4 = [T + 2, T + 3, T + 4, T + 5]
    for i in range(72):
        if i < 4: a(f'v_add_f32 v{A4[i]}, v{Fp+i}, v{Fp+i+4}')
        elif i >= 8: a(f'v_add_f32 v{A4[i&3]}, v{A4[i&3]}, v{Fp+i}')
    a(f'v_add_f32 v{A4[0]}, v{A4[0]}, v{A4[1]}'); a(f'v_add_f32 v{A4[2]}, v{A4[2]}, v{A4[3]}'); a(f'v_add_f32 v{A4[0]}, v{A4[0]}, v{A4[2]}')
    allreduce(a, A4[0], T + 1, lanes=8)
    a(f'v_mul_f32 v{T+1}, 0x{0x3ae38e39:x}, v{A4[0]}')
    for i in range(72): a(f'v_sub_f32 v{Fp+i}, v{Fp+i}, v{T+1}')
    for i in range(72):
        if i < 4: a(f'v_mul_f32 v{A4[i]}, v{Fp+i}, v{Fp+i}')
        else: a(f'v_fmac_f32 v{A4[i&3]}, v{Fp+i}, v{Fp+i}')
    a(f'v_add_f32 v{A4[0]}, v{A4[0]}, v{A4[1]}'); a(f'v_add_f32 v{A4[2]}, v{A4[2]}, v{A4[3]}'); a(f'v_add_f32 v{A4[0]}, v{A4[0]}, v{A4[2]}')
    allreduce(a, A4[0], T + 1, lanes=8)
    a(f'v_mov_b32 v{T+1}, 0x{0x3727c5ac:x}')
    a(f'v_fmac_f32 v{T+1}, 0x{0x3ae38e39:x}, v{A4[0]}')
    a(f'v_rsq_f32 v{T+1}, v{T+1}')
    for i in range(72): a(f'v_mul_f32 v{Fp+i}, v{T+1}, v{Fp+i}')
    for i in range(36): a(f'v_cvt_pk_bf16_f32 v{X+i}, v{Fp+2*i}, v{Fp+2*i+1}')
    a(f's_add_u32 s{S_Q}, s{S_Q}, {XN}')
    for i in range(9): a(f'buffer_store_dwordx4 {vr(X+4*i,4)}, v{T}, {WS}, s{S_Q} offen offset:{128*i} sc1'); vm.issue('xs')
    for st in range(4): row_stage_dma(a, WO_, L16, st, S_OB, vm, st)
    for w in range(1, 4):
        a(f's_cmp_eq_u32 s{S_WAVE}, {w}'); a(f's_cbranch_scc1 L_att_w{w}')
    vm0 = list(vm.q)
    for w in range(4):
        hh, qt = w >> 1, w & 1
        tl = tiles_of(w)
        def WOF(ti, k8): return ur(224 + 4 * (ti * 8 + k8), 4)
        a.label(f'L_att_w{w}')
        vm.q = list(vm0)
        TA = T + 2
        a(f'v_lshrrev_b32 v{TA}, 2, v0'); a(f'v_mul_u32_u24 v{TA}, 1152, v{TA}'); a(f'v_and_b32 v{T+3}, 3, v0'); a(f'v_lshl_add_u32 v{TA}, v{T+3}, 4, v{TA}')
        a(f'v_add_u32 v{TA+1}, {2 * 36864}, v{TA}')
        for st in range(8):
            if st == 0:
                vm.wait('xs')
                a(f'v_mov_b32 v{T+4}, 1'); a('s_mov_b64 exec, 1')
                a(f'buffer_atomic_add v{T+4}, off, {DBG}, 0 offset:{DBG_XN}'); vm.issue('at')
                a('s_mov_b64 exec, -1')
            vm.wait(st)
            a('s_barrier')
            for ti, (P, TT) in enumerate(tl):
                for p in range(2):
                    off = (st % 2) * 36864 + p * 16 * 1152 + P * 64 + TT * 8
                    a(f'ds_read_b64_tr_b16 {ur(224 + 4*(ti*8+st) + 2*p, 2)}, v{TA + ((st % 4) >> 1)} offset:{off}')
            a('s_waitcnt lgkmcnt(0)')
            if st < 4:
                a('s_barrier')
                row_stage_dma(a, WO_, L16, st + 4, S_OB, vm, st + 4)
        red = qt == 0
        a(f'''
        v_and_b32 v{T}, 15, v0
        v_lshrrev_b32 v{T+1}, 4, v0
        v_lshrrev_b32 v{T+2}, 2, v{T}
        v_and_b32 v{T+3}, 1, v0
        v_lshl_add_u32 v{T+4}, v{T+2}, 1, v{T+3}
        v_lshlrev_b32 v{T+4}, 4, v{T+4}
        v_lshl_add_u32 v{KMA}, v{T+1}, 7, v{T+4}
        v_lshlrev_b32 v{L8}, 3, v0
        v_lshrrev_b32 v{T+4}, 1, v{T}
        v_mul_u32_u24 v{T+4}, 36864, v{T+4}
        v_lshl_add_u32 v{T+4}, v{T+3}, 6, v{T+4}
        v_lshl_add_u32 v{T+4}, v{T+1}, 4, v{T+4}
        s_mul_i32 s{S_T}, s{S_M}, 2304
        v_add_u32 v{PST}, s{S_T}, v{T+4}
        ''')
        if red:
            a(f'''
            v_mul_u32_u24 v{T+4}, 2304, v{T+1}
            v_and_b32 v{T+5}, 3, v0
            v_lshl_add_u32 v{T+4}, v{T+5}, 4, v{T+4}
            s_mul_i32 s{S_T}, s{S_M}, 36864
            s_add_u32 s{S_T}, s{S_T}, {64 * hh}
            v_add_u32 v{T+4}, s{S_T}, v{T+4}
            v_lshl_add_u32 v{RB}, v{T+2}, 7, v{T+4}
            v_and_b32 v{RB4}, 1, v{T+2}
            v_lshl_add_u32 v{RB4}, v{RB4}, 7, v{T+4}
            s_mul_i32 s{S_T}, s{S_M}, 2304
            s_add_u32 s{S_T}, s{S_T}, {1152 * hh}
            v_lshlrev_b32 v{T+5}, 4, v{T+5}
            v_add_u32 v{T+5}, s{S_T}, v{T+5}
            v_lshrrev_b32 v{T+4}, 1, v{T+2}
            v_mul_u32_u24 v{T+4}, 9, v{T+4}
            v_and_b32 v{T+3}, 1, v{T+2}
            v_mul_u32_u24 v{T}, 5, v{T+3}
            v_add_u32 v{T+4}, v{T+4}, v{T}
            v_lshrrev_b32 v{T}, 1, v{T+1}
            v_add_u32 v{T+4}, v{T+4}, v{T}
            v_lshl_add_u32 v{T+4}, v{T+4}, 6, v{T+5}
            v_and_b32 v{T+1}, 1, v{T+1}
            v_lshl_add_u32 v{XO}, v{T+1}, 3, v{T+4}
            v_lshl_add_u32 v{XO4}, v{T+1}, 7, v{T+4}
            v_mul_u32_u24 v{T+3}, 576, v{T+3}
            v_add_u32 v{T+3}, 256, v{T+3}
            v_add_u32 v{T+3}, v{T+3}, v{T+5}
            v_lshl_add_u32 v{T+3}, v{T+1}, 3, v{T+3}
            s_mov_b32 s{S_T}, 0x00ff00ff
            s_mov_b32 s{S_T+1}, 0
            v_mov_b32 v{T+4}, 0x{OOB:x}
            v_cndmask_b32 v{XO2}, v{T+4}, v{T+3}, s[{S_T}:{S_T+1}]
            ''')
            sel(a, SLO, T, 'lo'); sel(a, SHI, T, 'hi')
        a(f'''
        s_lshl_b32 s{S_T}, s{S_M}, 8
        s_add_u32 s{S_FA}, s{S_T}, {flag(F_PROJ + hh)}
        s_add_u32 s{S_FA+2}, s{S_T}, {flag(F_CHAIN + hh)}
        s_lshl_b32 s{S_T}, s{S_M}, 7
        s_add_u32 s{S_FA+1}, s{S_T}, {flag(F_PROJ + 32) + 8 * hh}
        s_mov_b32 s{S_FP}, 0
        s_mov_b32 s{S_FC}, 0
        ''')
        for r in range(4):
            mk = sum(1 << l for l in range(64) if 4 * (l >> 4) + r <= (l & 15))
            a(f's_mov_b32 s{S_MK+2*r}, 0x{mk & 0xffffffff:x}'); a(f's_mov_b32 s{S_MK+2*r+1}, 0x{mk >> 32:x}')
        a(f's_mov_b32 s{S_C}, 0x3e0293ee'); a(f's_mov_b32 s{S_C+1}, 0xbe0293ee')
        a(f's_mul_i32 s{S_T}, s{S_G}, {2 * PA_SLOT}'); a(f's_mul_i32 s{S_T+1}, s{S_M}, 36864'); a(f's_add_u32 s{S_T}, s{S_T}, s{S_T+1}')
        a(f's_sub_u32 s{S_T+1}, s{S_ROLE}, 48'); a(f's_mul_i32 s{S_T+1}, s{S_T+1}, 36864')
        fill(a, L16, 16, [(S_T, PA + w * 9216), (S_T, PA + PA_SLOT + w * 9216), (S_T + 1, HB + w * 9216), (S_T + 1, XN2 + w * 9216)])
        poll(a, None, DBG, 0, '255', T, 'aw0', 4)
        lab = arrive(a, T, F_AI)
        a(f's_mov_b32 s{S_N}, 0')
        spoll(a, S_N, 64, [(1, flag(F_AI))], 'ai')
        a.label(lab)
        a('s_barrier')
        tstamp(a, opt, 0)
        a(f's_mov_b32 s{S_SEG}, s{S_G}')
        a(f's_mov_b32 s{S_B}, 0')
        def qkv(step):
            a(f's_add_u32 s{S_N}, s{S_SEG}, {step + 1}')
            spoll(a, S_FP, f's{S_N}', [(4, f's{S_FA}'), (2, f's{S_FA+1}')], 'ap')
            a(f's_lshl_b32 s{S_T}, s{S_SEG}, 5'); a(f's_lshl1_add_u32 s{S_T}, s{S_M}, s{S_T}'); a(f's_add_u32 s{S_T}, s{S_T}, {32 * step + hh}')
            a(f's_lshl_b32 s{S_T}, s{S_T}, 13')
            a(f's_add_u32 s{S_P}, s{S_T}, {QX + qt * 4096}')
            for ks in range(4): a(f'buffer_load_dwordx4 {vr(Q+4*ks,4)}, v{L16}, {WS}, s{S_P} offen offset:{1024*ks} sc1')
            for kt in range(qt + 1):
                a(f's_add_u32 s{S_P}, s{S_T}, {KX + kt * 4096}')
                for ks in range(4): a(f'buffer_load_dwordx4 {vr(K+16*kt+4*ks,4)}, v{L16}, {WS}, s{S_P} offen offset:{1024*ks} sc1')
            for hf in range(2):
                a(f's_add_u32 s{S_P}, s{S_T}, {VX + hf * 4096}')
                for u in range(4): a(f'buffer_load_dwordx4 {vr(V+16*hf+4*u,4)}, v{L16}, {WS}, s{S_P} offen offset:{1024*u} sc1')
        qkv(0)
        L = f'L_att_l{w}'
        a.label(L)
        vm.reset()
        a(f's_lshl_b32 s{S_Q}, s{S_SEG}, 5'); a(f's_lshl1_add_u32 s{S_Q}, s{S_M}, s{S_Q}'); a(f's_add_u32 s{S_Q}, s{S_Q}, {hh}')
        a(f's_lshl_b32 s{S_Q}, s{S_Q}, 11')
        a(f's_lshr_b32 s{S_T}, s{S_SEG}, 2'); a(f's_bfe_u32 s{S_TAG}, s{S_T}, 0x10001'); a(f's_and_b32 s{S_T}, s{S_T}, 1')
        a(f's_lshl1_add_u32 s{S_T}, s{S_G}, s{S_T}'); a(f's_mul_i32 s{S_OB}, s{S_T}, {PA_SLOT}'); a(f's_add_u32 s{S_OB}, s{S_OB}, {PA}')
        a(f'v_mov_b32 v{ONE}, 0x3f803f80'); a(f'v_mov_b32 v{ONE+1}, 0x3f803f80'); a(f'v_mov_b64 {vr(ONE+2,2)}, {vr(ONE,2)}')
        a(f'v_mov_b64 {vr(PM,2)}, 0'); a(f'v_mov_b64 {vr(PM+2,2)}, 0')
        if qt == 0: a(f'v_mov_b64 {vr(PX+2,2)}, 0')
        a('s_waitcnt vmcnt(0)')
        tk(a, opt, 3)
        for ks in range(4):
            for kt in range(qt + 1):
                S = S1 if kt else S0
                a(f'{MF} {vr(S,4)}, {vr(K+16*kt+4*ks,4)}, {vr(Q+4*ks,4)}, {"0" if ks == 0 else vr(S,4)}')
        SD = S1 if qt else S0
        a(f'v_mov_b32 v{T}, 0xff800000')
        for r in range(4): a(f'v_cndmask_b32 v{SD+r}, v{T}, v{SD+r}, s[{S_MK+2*r}:{S_MK+2*r+1}]')
        M, M2 = T + 2, T + 3
        a(f'v_max3_f32 v{M}, v{S0}, v{S0+1}, v{S0+2}')
        if qt:
            a(f'v_max3_f32 v{M}, v{M}, v{S0+3}, v{S1}'); a(f'v_max3_f32 v{M}, v{M}, v{S1+1}, v{S1+2}'); a(f'v_max_f32 v{M}, v{M}, v{S1+3}')
        else: a(f'v_max_f32 v{M}, v{M}, v{S0+3}')
        a(f's_add_u32 s{S_N}, s{S_SEG}, 1'); a(f's_cmp_eq_u32 s{S_SEG}, 63'); a(f's_cselect_b32 s{S_N}, 0, s{S_N}')
        spoll(a, S_FC, f's{S_N}', [(1, f's{S_FA+2}')], 'ac')
        tk(a, opt, 4)
        LK = f'L_att_k{w}'
        a.label(LK)
        a(f's_add_u32 s{S_P}, s{S_Q}, {KM}')
        for ks in range(4): a(f'buffer_load_dwordx4 {vr(KMF+4*ks,4)}, v{KMA}, {WS}, s{S_P} offen offset:{512*ks} sc1'); vm.issue(('km', ks))
        a(f's_add_u32 s{S_P}, s{S_Q}, {VM}')
        for u in range(4): a(f'buffer_load_dwordx2 {vr(VMF+2*u,2)}, v{L8}, {WS}, s{S_P} offen offset:{512*u} sc1'); vm.issue(('vm', u))
        for ks in range(4):
            vm.wait(('km', ks))
            a(f'{MF} {vr(SM,4)}, {vr(KMF+4*ks,4)}, {vr(Q+4*ks,4)}, {"0" if ks == 0 else vr(SM,4)}')
        a(f'v_max3_u32 v{T}, v{KMF}, v{KMF+4}, v{KMF+8}')
        vm.wait(('vm', 3))
        a(f'v_max3_u32 v{T}, v{T}, v{KMF+12}, v{VMF}')
        a(f'v_max3_u32 v{T}, v{T}, v{VMF+2}, v{VMF+4}')
        a(f'v_max_u32 v{T}, v{T}, v{VMF+6}')
        a(f'v_cmp_eq_u32 vcc, -1, v{T}')
        a(f's_cbranch_vccz {LK}_x')
        retry(a, LK + '_x')
        a(f's_branch {LK}')
        a.label(LK + '_x')
        a(f'v_max3_f32 v{M}, v{M}, v{SM}, v{SM+1}')
        tk(a, opt, 5)
        for sw in ('v_permlane32_swap_b32', 'v_permlane16_swap_b32'):
            a(f'v_mov_b32 v{M2}, v{M}'); a(f'{sw} v{M}, v{M2}'); a(f'v_max_f32 v{M}, v{M}, v{M2}')
        a(f'v_mul_f32 v{M}, s{S_C+1}, v{M}')
        vals = [SM, SM + 1, S0, S0 + 1, S0 + 2, S0 + 3] + ([S1, S1 + 1, S1 + 2, S1 + 3] if qt else [])
        for r in vals: a(f'v_fma_f32 v{r}, v{r}, s{S_C}, v{M}')
        for r in vals: a(f'v_exp_f32 v{r}, v{r}')
        a(f'v_cvt_pk_bf16_f32 v{PX}, v{S0}, v{S0+1}'); a(f'v_cvt_pk_bf16_f32 v{PX+1}, v{S0+2}, v{S0+3}')
        if qt: a(f'v_cvt_pk_bf16_f32 v{PX+2}, v{S1}, v{S1+1}'); a(f'v_cvt_pk_bf16_f32 v{PX+3}, v{S1+2}, v{S1+3}')
        a(f'v_cvt_pk_bf16_f32 v{PM}, v{SM}, v{SM+1}'); a(f'v_cvt_pk_bf16_f32 v{PM+3}, v{SM}, v{SM+1}')
        a(f'{MF} {vr(SUM,4)}, {vr(ONE,4)}, {vr(PX,4)}, 0')
        for u in range(4): a(f'{MF} {vr(O+4*u,4)}, {vr(V+4*u,4)}, {vr(PX,4)}, 0')
        a(f'{MH} {vr(SUM,4)}, {vr(ONE,2)}, {vr(PM,2)}, {vr(SUM,4)}')
        for u in range(4, 8): a(f'{MF} {vr(O+4*u,4)}, {vr(V+4*u,4)}, {vr(PX,4)}, 0')
        a(f'v_add_u32 v{T+1}, s{S_B}, v{L16}')
        for u in range(8):
            a(f'{MH} {vr(O+4*u,4)}, {vr(VMF+2*(u>>1),2)}, {vr(PM+2*(u&1),2)}, {vr(O+4*u,4)}')
            if u == 0: a(f'v_rcp_f32 v{T+2}, v{SUM}')
        for w4 in range(4):
            q = O + 8 * w4
            for r in range(4): a(f'v_pk_mul_f32 {vr(q+2*r,2)}, {vr(q+2*r,2)}, {vr(T+2,2)} op_sel_hi:[1,0]')
            for d in range(4): a(f'v_cvt_pk_bf16_f32 v{q+d}, v{q+2*d}, v{q+2*d+1}')
            a(f'ds_write_b128 v{T+1}, {vr(q,4)} offset:{(w * 4 + w4) * 1024}')
        a('s_waitcnt lgkmcnt(0)')
        a('s_barrier')
        tk(a, opt, 6)
        if opt.get('wst'): a('s_waitcnt lgkmcnt(0)')
        lg = Cnt(a, 'lgkmcnt', 15)
        for k8 in range(8):
            for tt in range(2):
                a(f'ds_read_b128 {vr(OF+4*(2*k8+tt),4)}, v{T+1} offset:{(((k8 >> 2) * 2 + tt) * 4 + (k8 & 3)) * 1024}'); lg.issue((k8, tt))
        a(f's_xor_b32 s{S_B}, s{S_B}, 0x4000')
        a(f's_add_u32 s{S_P}, s{S_OB}, 294912')
        XV = 48
        if red: a(f's_mul_i32 s{S_Q}, s{S_SEG}, 36864')
        def fin(gi):
            base = ACC + 16 * (gi & 1)
            for tt in range(2):
                so = S_P if tt else S_OB
                q = base + 8 * tt
                if gi < 4:
                    for d in range(4): a(f'v_cvt_pk_bf16_f32 v{q+d}, v{q+2*d}, v{q+2*d+1}')
                    for d in (0, 2): a(f'v_bfi_b32 v{q+d}, 1, s{S_TAG}, v{q+d}')
                    a(f'buffer_store_dwordx4 {vr(q,4)}, v{PST}, {WS}, s{so} offen offset:{(4 * gi + w) * 128} sc1')
                else:
                    for d in range(2): a(f'v_cvt_pk_bf16_f32 v{q+d}, v{q+2*d}, v{q+2*d+1}')
                    a(f'v_bfi_b32 v{q}, 1, s{S_TAG}, v{q}')
                    a(f'buffer_store_dwordx2 {vr(q,2)}, v{PST}, {WS}, s{so} offen offset:{(16 + hh) * 128 + 8*tl[8][1]} sc1')
        for gi in range(5):
            base = ACC + 16 * (gi & 1)
            for k8 in range(8):
                for tt in range(2):
                    if gi == 0: lg.wait((k8, tt))
                    for TT in range(2 if gi < 4 else 1):
                        q = base + 8 * tt + 4 * TT
                        a(f'{MF} {vr(q,4)}, {WOF(2*gi+TT,k8)}, {vr(OF+4*(2*k8+tt),4)}, {"0" if k8 == 0 else vr(q,4)}')
                if k8 == 1 and gi > 0: fin(gi - 1)
                if red and gi == 0 and 2 <= k8 <= 4:
                    q3 = k8 - 2
                    a(f'buffer_load_dwordx2 {vr(XV+2*q3,2)}, v{XO2 if q3 == 2 else XO}, {R(XX)}, s{S_Q} offen offset:{128*q3 if q3 < 2 else 0}')
        fin(4)
        tk(a, opt, 7)
        if red:
            RA = 96; H = 108; H2 = 116
            def rl(t0):
                for t5 in range(t0, 5):
                    for u in range(4):
                        a(f's_add_u32 s{S_P}, s{S_OB}, {u * 9216}')
                        a(f'buffer_load_dwordx4 {vr(RR+4*(4*t5+u),4)}, v{RB4 if t5 == 4 else RB}, {WS}, s{S_P} offen offset:{512*t5} sc1')
            rl(0)
            tk(a, opt, 8)
            for t5 in range(5):
                LR = f'L_att_r{w}_{t5}'
                a.label(LR)
                a(f's_waitcnt vmcnt({4 * (4 - t5)})')
                z = [RR + 4 * (4 * t5 + u) for u in range(4)]
                for u in range(4): a(f'v_bitop3_b32 v{T+u}, v{z[u]}, v{z[u]+2}, s{S_TAG} bitop3:0x7e')
                a(f'v_or3_b32 v{T}, v{T}, v{T+1}, v{T+2}')
                a(f'v_bitop3_b32 v{T}, v{T}, v{T+3}, 1 bitop3:0xa8')
                a(f'v_cmp_eq_u32 vcc, 1, v{T}')
                a(f's_cbranch_vccz {LR}_x')
                retry(a, LR + '_x')
                rl(t5)
                a(f's_branch {LR}')
                a.label(LR + '_x')
                if t5 == 0:
                    for q in range(3):
                        for d in range(2):
                            a(f'v_lshlrev_b32 v{RA+4*q+2*d}, 16, v{XV+2*q+d}'); a(f'v_and_b32 v{RA+4*q+2*d+1}, 0xffff0000, v{XV+2*q+d}')
                if t5 == 4: tk(a, opt, 9)
                q = RA + 4 * (t5 >> 1)
                for u in range(4): a(f'{MF} {vr(q,4)}, {vr(SHI if t5 & 1 else SLO,4)}, {vr(z[u],4)}, {vr(q,4)}')
            tk(a, opt, 10)
            a(f's_mov_b32 s{S_T}, 0x00ff00ff'); a(f's_mov_b32 s{S_T+1}, 0')
            for i in range(6): a(f'v_cvt_pk_bf16_f32 v{H+i}, v{RA+2*i}, v{RA+2*i+1}')
            for i in (4, 5): a(f'v_cndmask_b32 v{H+i}, 0, v{H+i}, s[{S_T}:{S_T+1}]')
            for i in range(6): a(f'v_lshlrev_b32 v{RA+2*i}, 16, v{H+i}'); a(f'v_and_b32 v{RA+2*i+1}, 0xffff0000, v{H+i}')
            def put(r, base):
                a(f's_add_u32 s{S_P}, s{S_Q}, {base}')
                for d in range(2): a(f'v_permlane16_swap_b32 v{r+d}, v{r+2+d}')
                a(f'buffer_store_dwordx4 {vr(r,4)}, v{XO4}, {WS}, s{S_P} offen sc1')
                a(f'buffer_store_dwordx2 {vr(r+4,2)}, v{XO2}, {WS}, s{S_P} offen sc1')
            put(H, HB)
            a(f'v_add_f32 v{T}, v{RA}, v{RA+1}'); a(f'v_add_f32 v{T+1}, v{RA+2}, v{RA+3}')
            for i in range(4, 12): a(f'v_add_f32 v{T+(i&1)}, v{T+(i&1)}, v{RA+i}')
            a(f'v_add_f32 v{T}, v{T}, v{T+1}')
            allreduce(a, T, T + 1)
            a(f'v_mul_f32 v{T}, 0x{0x3ae38e39:x}, v{T}')
            for i in range(12): a(f'v_sub_f32 v{RA+i}, v{RA+i}, v{T}')
            for i in range(8, 12): a(f'v_cndmask_b32 v{RA+i}, 0, v{RA+i}, s[{S_T}:{S_T+1}]')
            a(f'v_mul_f32 v{T}, v{RA}, v{RA}'); a(f'v_mul_f32 v{T+1}, v{RA+1}, v{RA+1}')
            for i in range(2, 12): a(f'v_fmac_f32 v{T+(i&1)}, v{RA+i}, v{RA+i}')
            a(f'v_add_f32 v{T}, v{T}, v{T+1}')
            allreduce(a, T, T + 1)
            a(f'v_mov_b32 v{T+1}, 0x{0x3727c5ac:x}'); a(f'v_fmac_f32 v{T+1}, 0x{0x3ae38e39:x}, v{T}'); a(f'v_rsq_f32 v{T+1}, v{T+1}')
            for i in range(12): a(f'v_mul_f32 v{RA+i}, v{T+1}, v{RA+i}')
            for i in range(6): a(f'v_cvt_pk_bf16_f32 v{H2+i}, v{RA+2*i}, v{RA+2*i+1}')
            put(H2, XN2)
            tk(a, opt, 11)
        tfirst(a, opt, f's_cmp_lt_u32 s{S_SEG}, 4')
        a(f's_cmp_ge_u32 s{S_SEG}, 60'); a(f's_cbranch_scc1 {L}_end')
        if not red: a('s_waitcnt vmcnt(0)')
        qkv(4)
        a(f's_add_u32 s{S_SEG}, s{S_SEG}, 4')
        a(f's_branch {L}')
        a.label(L + '_end')
        finish(a, opt)

def ffn(a, opt):
    DO = 1; XA = 10; L16 = 14; PST = 15; RB = 16; OA = 17; XW = 18; T = 20
    SEL = 28; ACC = [32, 48]; XR = [64, 68, 72, 76]
    AF = 32
    DA = 64
    WG, WU, WD, OUT = S_R0, S_R1, S_R2, S_R3
    ACTL = 40960
    def GU(m, kk): return 80 + 8 * kk + 4 * m
    a.label('L_ffn')
    a(f's_load_dwordx4 s[{WG}:{WG+3}], s[0:1], 64')
    a(f's_load_dwordx4 s[{WD}:{WD+3}], s[0:1], 80')
    a(f's_mov_b32 s{S_SPIN}, 0')
    a(f's_sub_u32 s{S_M}, s{S_ROLE}, 112'); a(f's_mov_b32 s{S_G}, 0')
    for _ in range(2):
        a(f's_cmp_ge_u32 s{S_M}, 36'); a(f's_cselect_b32 s{S_T}, 36, 0'); a(f's_cselect_b32 s{S_T+1}, 1, 0')
        a(f's_sub_u32 s{S_M}, s{S_M}, s{S_T}'); a(f's_add_u32 s{S_G}, s{S_G}, s{S_T+1}')
    a(f'v_lshlrev_b32 v{L16}, 4, v0')
    a('s_waitcnt lgkmcnt(0)')
    a(f's_mov_b32 s{WU}, s{WG+2}'); a(f's_mov_b32 s{WU+1}, s{WG+3}'); a(f's_mov_b32 s{OUT}, s{WD+2}'); a(f's_mov_b32 s{OUT+1}, s{WD+3}')
    for r in (WG, WU, WD): srd_fix(a, r, 5308416)
    srd_fix(a, OUT, 2359296)
    GA = T + 4; TA = T + 5
    a(f's_mul_i32 s{S_T}, s{S_WAVE}, {16 * 9216}'); a(f's_lshl_b32 s{S_T+1}, s{S_M}, 8'); a(f's_add_u32 s{S_T}, s{S_T}, s{S_T+1}')
    a(f'''
    v_lshrrev_b32 v{T}, 4, v0
    v_mul_u32_u24 v{T}, 9216, v{T}
    v_and_b32 v{T+1}, 15, v0
    v_lshl_add_u32 v{T}, v{T+1}, 4, v{T}
    v_add_u32 v{GA}, s{S_T}, v{T}
    ''')
    a(f's_lshl_b32 s{S_B}, s{S_WAVE}, 12')
    vm = Cnt(a, 'vmcnt', 63)
    def gdma(st):
        for m in range(2):
            for u in range(4):
                a(f's_add_u32 m0, s{S_B}, {(st % 4) * 32768 + m * 16384 + u * 1024}')
                a(f's_mov_b32 s{S_P}, {(64 * st + 4 * u) * 9216}')
                a(f'buffer_load_dwordx4 v{GA}, {R(WU if m else WG)}, s{S_P} offen lds'); vm.issue(st)
    for st in range(4): gdma(st)
    a(f's_lshl_b32 s{S_T}, s{S_WAVE}, 6')
    a(f'''
    v_lshrrev_b32 v{T}, 5, v0
    v_bfe_u32 v{T+1}, v0, 2, 2
    v_lshl_add_u32 v{T}, v{T}, 3, v{T+1}
    v_lshlrev_b32 v{T}, 8, v{T}
    v_bfe_u32 v{T+1}, v0, 4, 1
    v_lshl_add_u32 v{T}, v{T+1}, 5, v{T}
    v_and_b32 v{T+1}, 3, v0
    v_lshl_add_u32 v{T}, v{T+1}, 3, v{T}
    v_add_u32 v{TA}, s{S_T}, v{T}
    v_add_u32 v{TA+1}, 65536, v{TA}
    ''')
    x_consts(a, DO, XA, T)
    for st in range(9):
        vm.wait(st)
        a('s_barrier')
        for k4 in range(4):
            for m in range(2):
                for p in range(2):
                    a(f'ds_read_b64_tr_b16 {ur(GU(m, 4*st+k4) + 2*p, 2)}, v{TA + ((st % 4) >> 1)} offset:{(st % 2) * 32768 + m * 16384 + k4 * 4096 + p * 1024}')
        a('s_waitcnt lgkmcnt(0)')
        if st + 4 < 9:
            a('s_barrier'); gdma(st + 4)
    a('s_barrier')
    a(f's_mul_i32 s{S_B}, s{S_WAVE}, 9216'); a(f's_mul_i32 s{S_OB}, s{S_M}, 147456'); a(f's_add_u32 s{S_OB}, s{S_OB}, s{S_B}')
    for st in range(4): row_stage_dma(a, WD, L16, st, S_OB, vm, 100 + st)
    sel(a, SEL, T, 'dup')
    a(f'''
    v_and_b32 v{T}, 15, v0
    v_lshrrev_b32 v{T+1}, 4, v0
    v_lshlrev_b32 v{T+2}, 6, v{T}
    v_lshl_add_u32 v{T+2}, v{T+1}, 4, v{T+2}
    s_lshl_b32 s{S_T}, s{S_M}, 10
    v_add_u32 v{PST}, s{S_T}, v{T+2}
    v_lshlrev_b32 v{T+2}, 4, v{T}
    v_lshl_add_u32 v{T+2}, v{T+1}, 10, v{T+2}
    s_mul_i32 s{S_T}, s{S_M}, 36864
    s_lshl_b32 s{S_T+1}, s{S_WAVE}, 8
    s_add_u32 s{S_T}, s{S_T}, s{S_T+1}
    v_add_u32 v{RB}, s{S_T}, v{T+2}
    s_cmp_ge_u32 s{S_M}, 18
    s_cselect_b32 s{S_T}, {16 * 1152 - 18 * 64}, 0
    s_lshl_b32 s{S_T+1}, s{S_M}, 6
    s_add_u32 s{S_T}, s{S_T}, s{S_T+1}
    s_mul_i32 s{S_T+1}, s{S_WAVE}, 4608
    s_add_u32 s{S_T}, s{S_T}, s{S_T+1}
    v_lshrrev_b32 v{T+2}, 2, v{T}
    v_mul_u32_u24 v{T+2}, 1152, v{T+2}
    v_and_b32 v{T+3}, 3, v0
    v_lshl_add_u32 v{T+2}, v{T+3}, 4, v{T+2}
    v_lshl_add_u32 v{T+2}, v{T+1}, 3, v{T+2}
    v_add_u32 v{T+2}, s{S_T}, v{T+2}
    v_mov_b32 v{T+3}, 0x{OOB:x}
    v_cmp_gt_u32 vcc, 32, v0
    v_cndmask_b32 v{OA}, v{T+3}, v{T+2}, vcc
    v_add_u32 v{XW}, s{S_B}, v{L16}
    ''')
    a(f'''
    v_lshrrev_b32 v{T}, 5, v0
    v_bfe_u32 v{T+1}, v0, 2, 3
    v_lshl_add_u32 v{T}, v{T}, 4, v{T+1}
    v_mul_u32_u24 v{T}, 1152, v{T}
    v_and_b32 v{T+1}, 3, v0
    v_lshl_add_u32 v{TA}, v{T+1}, 4, v{T}
    v_add_u32 v{TA+1}, {2 * 36864}, v{TA}
    ''')
    for w in range(1, 4):
        a(f's_cmp_eq_u32 s{S_WAVE}, {w}'); a(f's_cbranch_scc1 L_ffn_w{w}')
    vm0 = list(vm.q)
    for w in range(4):
        tl = tiles_of(w)
        def WDF(ti, ks): return 368 + 4 * (ti * 4 + ks)
        a.label(f'L_ffn_w{w}')
        vm.q = list(vm0)
        for st in range(4):
            vm.wait(100 + st)
            a('s_barrier')
            for ti, (P, TT) in enumerate(tl):
                for p in range(2):
                    a(f'ds_read_b64_tr_b16 {ur(WDF(ti, st) + 2*p, 2)}, v{TA + (st >> 1)} offset:{(st % 2) * 36864 + p * 8 * 1152 + P * 64 + TT * 8}')
        a('s_waitcnt lgkmcnt(0)')
        a(f's_mul_i32 s{S_T}, s{S_G}, {2 * PF_SLOT}'); a(f's_mul_i32 s{S_T+1}, s{S_M}, 36864'); a(f's_add_u32 s{S_T}, s{S_T}, s{S_T+1}')
        fill(a, L16, 32, [(S_T, PF + w * 9216), (S_T, PF + PF_SLOT + w * 9216)])
        poll(a, None, DBG, 0, '255', T, 'fw0', 4)
        lab = arrive(a, T, F_FI)
        a(f's_mov_b32 s{S_N}, 0')
        spoll(a, S_N, 108, [(1, flag(F_FI))], 'fi')
        a(f's_mov_b32 s{S_N}, 0')
        spoll(a, S_N, 64, [(1, flag(F_AI))], 'fa')
        a.label(lab)
        a('s_barrier')
        tstamp(a, opt, 0)
        a(f's_mov_b32 s{S_SEG}, s{S_G}')
        a(f's_mov_b32 s{S_N}, 0')
        AW = T + 4; HV = 26
        a(f'''
        v_bfe_u32 v{T}, v0, 4, 1
        v_lshlrev_b32 v{T}, 10, v{T}
        v_lshrrev_b32 v{T+1}, 5, v0
        v_lshl_add_u32 v{T}, v{T+1}, 8, v{T}
        v_and_b32 v{T+1}, 15, v0
        v_lshl_add_u32 v{AW}, v{T+1}, 4, v{T}
        ''')
        L = f'L_ffn_l{w}'
        a.label(L)
        a(f's_mul_i32 s{S_OB}, s{S_SEG}, 36864'); a(f's_add_u32 s{S_T+1}, s{S_OB}, {XN2}')
        a(f's_add_u32 s{S_T}, s{S_OB}, {HB + w * 9216}')
        a(f's_bfe_u32 s{S_TAG}, s{S_N}, 0x10001'); a(f's_and_b32 s{S_Q}, s{S_N}, 1')
        a(f's_lshl1_add_u32 s{S_Q}, s{S_G}, s{S_Q}'); a(f's_mul_i32 s{S_Q}, s{S_Q}, {PF_SLOT}'); a(f's_add_u32 s{S_Q}, s{S_Q}, {PF}')
        tk(a, opt, 3)
        spoll(a, None, None, [(1, f's{S_T}')], 'fh', sentinel=True)
        tk(a, opt, 4)
        XL = 32
        def xl(g0):
            for i in range(3 * g0, 9): a(f'buffer_load_dwordx4 {vr(XL+4*i,4)}, v{DO+i}, {WS}, s{S_T+1} offen sc1')
        xl(0)
        for g3 in range(3):
            LX = f'L_ffn_x{w}_{g3}'
            a.label(LX)
            z = [XL + 4 * (3 * g3 + u) for u in range(3)]
            for u in range(3):
                a(f's_waitcnt vmcnt({8 - 3 * g3 - u})')
                a(f'ds_write_b128 v{XW}, {vr(z[u],4)} offset:{1024 * (3 * g3 + u)}')
                if u == 0: a(f'v_max_u32 v{T}, v{z[u]}, v{z[u]+2}')
                else: a(f'v_max3_u32 v{T}, v{T}, v{z[u]}, v{z[u]+2}')
            a(f'v_cmp_eq_u32 vcc, -1, v{T}')
            a(f's_cbranch_vccz {LX}_x')
            retry(a, LX + '_x')
            a('s_waitcnt lgkmcnt(0)')
            xl(g3)
            a(f's_branch {LX}')
            a.label(LX + '_x')
        a('s_waitcnt lgkmcnt(0)')
        a('s_barrier')
        tk(a, opt, 5)
        if opt.get('wst'): a('s_waitcnt lgkmcnt(0)')
        lg = Cnt(a, 'lgkmcnt', 15)
        def rd(kk):
            a(f'ds_read_b128 {vr(XR[kk % 4], 4)}, v{XA + (kk & 3)} offset:{(kk >> 2) * 128}'); lg.issue(kk)
        for kk in range(3): rd(kk)
        a(f's_add_u32 s{S_T}, s{S_OB}, {HB}')
        for kk in range(36):
            lg.wait(kk)
            for m in range(2):
                a(f'{MF32} {vr(ACC[m],16)}, {ur(GU(m,kk),4)}, {vr(XR[kk%4],4)}, {"0" if kk == 0 else vr(ACC[m],16)}')
                if m == 0 and kk + 3 < 36: rd(kk + 3)
            if kk == 8: a(f'buffer_load_dwordx2 {vr(HV,2)}, v{OA}, {WS}, s{S_T} offen sc1')
        g, u = ACC
        tk(a, opt, 6)
        for r in range(16): a(f'v_max_f32 v{g+r}, 0, v{g+r}')
        for b in range(2):
            for r in range(4): a(f'v_pk_mul_f32 {vr(g+8*b+2*r,2)}, {vr(g+8*b+2*r,2)}, {vr(u+8*b+2*r,2)}')
            for d in range(4): a(f'v_cvt_pk_bf16_f32 v{g+8*b+d}, v{g+8*b+2*d}, v{g+8*b+2*d+1}')
            a(f'ds_write_b128 v{AW}, {vr(g+8*b,4)} offset:{ACTL + w * 2048 + b * 512}')
        a('s_waitcnt lgkmcnt(0)')
        a('s_barrier')
        for ks in range(4):
            for tt in range(2):
                a(f'ds_read_b128 {vr(AF+4*(2*ks+tt),4)}, v{L16} offset:{ACTL + ks * 2048 + tt * 1024}'); lg.issue((ks, tt))
        groups = [(gi, tt) for gi in range(5) for tt in range(2)]
        def fin(n):
            gi, tt = groups[n]; q = DA + 8 * (n & 1); P = tl[2 * gi][0]
            a(f's_add_u32 s{S_P}, s{S_Q}, {(tt * 18 + P) * 36864}')
            if gi < 4:
                for d in range(4): a(f'v_cvt_pk_bf16_f32 v{q+d}, v{q+2*d}, v{q+2*d+1}')
                for d in (0, 2): a(f'v_bfi_b32 v{q+d}, 1, s{S_TAG}, v{q+d}')
                a(f'buffer_store_dwordx4 {vr(q,4)}, v{PST}, {WS}, s{S_P} offen sc1')
            else:
                for d in range(2): a(f'v_cvt_pk_bf16_f32 v{q+d}, v{q+2*d}, v{q+2*d+1}')
                a(f'v_bfi_b32 v{q}, 1, s{S_TAG}, v{q}')
                a(f'buffer_store_dwordx2 {vr(q,2)}, v{PST}, {WS}, s{S_P} offen offset:{8*tl[8][1]} sc1')
        for n, (gi, tt) in enumerate(groups):
            for ks in range(4):
                if n < 2: lg.wait((ks, tt))
                for TT in range(2 if gi < 4 else 1):
                    q = DA + 8 * (n & 1) + 4 * TT
                    a(f'{MF} {vr(q,4)}, {ur(WDF(2*gi+TT,ks),4)}, {vr(AF+4*(2*ks+tt),4)}, {"0" if ks == 0 else vr(q,4)}')
                if ks == 1 and n > 0: fin(n - 1)
        fin(9)
        tk(a, opt, 7)
        RA = 68; RR = 32
        def pl(g0):
            for u9 in range(3 * g0, 9):
                a(f's_add_u32 s{S_P}, s{S_Q}, {u9 * 4096}')
                a(f'buffer_load_dwordx4 {vr(RR+4*u9,4)}, v{RB}, {WS}, s{S_P} offen sc1')
        pl(0)
        tk(a, opt, 8)
        for g3 in range(3):
            LF = f'L_ffn_f{w}_{g3}'
            a.label(LF)
            a(f's_waitcnt vmcnt({6 - 3 * g3})')
            z = [RR + 4 * (3 * g3 + u) for u in range(3)]
            for u in range(3): a(f'v_bitop3_b32 v{T+u}, v{z[u]}, v{z[u]+2}, s{S_TAG} bitop3:0x7e')
            a(f'v_or3_b32 v{T}, v{T}, v{T+1}, v{T+2}')
            a(f'v_and_b32 v{T}, 1, v{T}')
            if g3 == 0:
                a(f'v_cmp_eq_u32 vcc, -1, v{HV}'); a(f'v_cndmask_b32 v{T}, v{T}, 1, vcc')
            a(f'v_cmp_eq_u32 vcc, 1, v{T}')
            a(f's_cbranch_vccz {LF}_x')
            retry(a, LF + '_x')
            if g3 == 0: a(f'buffer_load_dwordx2 {vr(HV,2)}, v{OA}, {WS}, s{S_T} offen sc1')
            pl(g3)
            a(f's_branch {LF}')
            a.label(LF + '_x')
            if g3 == 0:
                for d in range(2): a(f'v_lshlrev_b32 v{RA+2*d}, 16, v{HV+d}'); a(f'v_and_b32 v{RA+2*d+1}, 0xffff0000, v{HV+d}')
            if g3 == 2: tk(a, opt, 9)
            for u in range(3): a(f'{MF} {vr(RA,4)}, {vr(SEL,4)}, {vr(z[u],4)}, {vr(RA,4)}')
        tk(a, opt, 10)
        for d in range(2): a(f'v_cvt_pk_bf16_f32 v{RA+d}, v{RA+2*d}, v{RA+2*d+1}')
        a(f'buffer_store_dwordx2 {vr(RA,2)}, v{OA}, {R(OUT)}, s{S_OB} offen')
        tfirst(a, opt, f's_cmp_lt_u32 s{S_SEG}, 3')
        a(f's_add_u32 s{S_SEG}, s{S_SEG}, 3'); a(f's_add_u32 s{S_N}, s{S_N}, 1')
        a(f's_cmp_lt_u32 s{S_SEG}, 64'); a(f's_cbranch_scc1 {L}')
        if opt.get('times'): a('s_waitcnt vmcnt(0)')
        finish(a, opt)

def roles(a, opt):
    a(f's_cmp_ge_u32 s{S_ROLE}, 112'); a('s_cbranch_scc1 L_ffn')
    a(f's_cmp_ge_u32 s{S_ROLE}, 48'); a('s_cbranch_scc1 L_att')
    proj(a, opt); att(a, opt); ffn(a, opt)
```

```python
FLAGS = 0
HOPA = 0x10000; HOPA_SLOT = 72 * 4096
HOPB = HOPA + 2 * HOPA_SLOT; HOPB_SLOT = 9216
TIMES = 0xB0000
XN = 0x100000
HB = 0x400000
XN2 = 0x700000
KM = 0xA00000
VM = 0xE00000
QX = 0x1200000
KX = 0x2200000
VX = 0x3200000
PA = 0x4200000
PA_SLOT = 16 * 36864
PF = 0x4800000
PF_SLOT = 36 * 36864
WS_BYTES = 268435456
assert HOPB + 3 * HOPB_SLOT <= TIMES
assert PA + 9 * PA_SLOT <= PF and PF + 8 * PF_SLOT <= WS_BYTES
OOB = 0x80000000
F_PROJ = 0
F_CHAIN = 48
DB_WT = 0
DB_Z = 4
DB_CI = 8
DB_X = 12
DB_P = 16
DB_C = 20
DB_AI = 24
DB_FI = 28
DB_F4 = 64; GO_F4 = 156
DB_CX = 96
DB_CT = 128
DB_C1 = 152
GO_X = 132; GO_P = 136; GO_C = 140; GO_AI = 144; GO_FI = 148
NZ = 10
def flag(line): return FLAGS + line * 128

S_WG = 2
S_WS = 4
S_DBG = 8
S_R0 = 12
S_R1 = 16
S_R2 = 20
S_R3 = 24
S_R4 = 28
S_ROLE = 32
S_WAVE = 33
S_T = 34
```

```python
from asm import *
from lay import *
SPIN = 1 << 18
S_SEG = 40; S_SPIN = 50; S_P = 51; S_Q = 41; S_B = 42; S_M = 43; S_G = 44; S_OB = 45
S_C = 46
S_MK = 52
S_TM = 64
WS = f's[{S_WS}:{S_WS+3}]'; DBG = f's[{S_DBG}:{S_DBG+3}]'
MF32 = 'v_mfma_f32_32x32x16_bf16'; MF = 'v_mfma_f32_16x16x32_bf16'; MH = 'v_mfma_f32_16x16x16_bf16'
def R(i): return f's[{i}:{i+3}]'

def srd_fix(a, r, nbytes):
    a(f's_and_b32 s{r+1}, s{r+1}, 0xffff'); a(f's_mov_b32 s{r+2}, {nbytes}'); a(f's_mov_b32 s{r+3}, 0x20000')

def poll(a, vaddr, srd, soff, sval, tmp, name, imm=0):
    lab = a.newlabel('L_' + name)
    a.label(lab)
    if vaddr is None: a(f'buffer_load_dword v{tmp}, off, {srd}, {soff} offset:{imm} sc1')
    else: a(f'buffer_load_dword v{tmp}, v{vaddr}, {srd}, {soff} offen offset:{imm} sc1')
    a(f's_add_u32 s{S_SPIN}, s{S_SPIN}, 1')
    a(f's_cmp_ge_u32 s{S_SPIN}, {SPIN}')
    a('s_waitcnt vmcnt(0)')
    a(f's_cbranch_scc1 {lab}_x')
    a(f'v_cmp_ge_u32 vcc, {sval}, v{tmp}')
    a(f's_cbranch_vccnz {lab}')
    a.label(lab + '_x')

S_FP = 48; S_FC = 49; S_TAG = 60; S_SL = 61; S_FA = 92
S_N = 95; S_FV = 96
def spoll(a, cache, need, loads, name, sentinel=False):
    lab = a.newlabel('L_' + name)
    if not sentinel: a(f's_cmp_ge_u32 s{cache}, {need}'); a(f's_cbranch_scc1 {lab}_x')
    a.label(lab)
    r = S_FV; regs = []
    for n, off in loads:
        a(f's_load_dword{"" if n == 1 else "x%d" % n} {sr(r, n)}, s[{S_WS}:{S_WS+1}], {off} glc')
        regs += list(range(r, r + n)); r += n
    a(f's_add_u32 s{S_SPIN}, s{S_SPIN}, 1')
    a(f's_cmp_ge_u32 s{S_SPIN}, {SPIN}'); a(f's_cbranch_scc1 {lab}_y')
    a('s_waitcnt lgkmcnt(0)')
    if sentinel:
        a(f's_cmp_eq_u32 s{S_FV}, -1')
    else:
        if len(regs) == 1: a(f's_mov_b32 s{cache}, s{regs[0]}')
        else:
            a(f's_min_u32 s{cache}, s{regs[0]}, s{regs[1]}')
            for x in regs[2:]: a(f's_min_u32 s{cache}, s{cache}, s{x}')
        a(f's_cmp_lt_u32 s{cache}, {need}')
    a(f's_cbranch_scc1 {lab}')
    a.label(lab + '_y')
    a('s_waitcnt lgkmcnt(0)')
    a.label(lab + '_x')

def dpoll(a, T, words, name):
    for off, need in words: poll(a, None, DBG, 0, str(need - 1), T, name, off)

def count(a, T, cnt, total, go):
    lab = a.newlabel('L_cnt')
    a(f'v_mov_b32 v{T}, 1'); a('s_mov_b64 exec, 1')
    a(f'buffer_atomic_add v{T}, off, {DBG}, 0 offset:{cnt} sc0')
    a('s_waitcnt vmcnt(0)')
    a(f'v_readfirstlane_b32 s{S_P}, v{T}')
    a(f'v_mov_b32 v{T}, 1')
    a(f's_cmp_lg_u32 s{S_P}, {total - 1}'); a(f's_cbranch_scc1 {lab}')
    a(f'buffer_store_dword v{T}, off, {DBG}, 0 offset:{go} sc1')
    a.label(lab)
    a('s_mov_b64 exec, -1')

def meet(a, T, cnt, words, name):
    lab = a.newlabel('L_meet')
    if cnt:
        a('s_waitcnt vmcnt(0)')
        a('s_barrier')
    a(f's_cmp_lg_u32 s{S_WAVE}, 0'); a(f's_cbranch_scc1 {lab}')
    if cnt: count(a, T, *cnt)
    dpoll(a, T, words, name)
    a.label(lab)
    if words: a('s_barrier')

def fill(a, L16, T, sbases):
    a(f'v_mov_b64 {vr(T,2)}, -1'); a(f'v_mov_b64 {vr(T+2,2)}, -1')
    for sb, base in sbases:
        for i in range(9):
            if i % 4 == 0: a(f's_add_u32 s{S_P}, s{sb}, {base + i * 1024}')
            a(f'buffer_store_dwordx4 {vr(T,4)}, v{L16}, {WS}, s{S_P} offen offset:{(i & 3) * 1024} sc1')

def retry(a, lab_ok):
    a(f's_add_u32 s{S_SPIN}, s{S_SPIN}, 1')
    a(f's_cmp_ge_u32 s{S_SPIN}, {SPIN}'); a(f's_cbranch_scc1 {lab_ok}')

def tstamp(a, opt, i):
    if opt.get('times'): a(f's_memrealtime s[{S_TM+2*i}:{S_TM+2*i+1}]'); a('s_waitcnt lgkmcnt(0)')
def tk(a, opt, i):
    if opt.get('wst'): a(f's_memrealtime s[{S_TM+2*i}:{S_TM+2*i+1}]')
def th(a, opt, i):
    if opt.get('hst'): a(f's_memrealtime s[{S_TM+2*i}:{S_TM+2*i+1}]'); a('s_waitcnt lgkmcnt(0)')
def tfirst(a, opt, first_cond):
    if opt.get('times'):
        lab = a.newlabel('L_tf'); a(first_cond); a(f's_cbranch_scc0 {lab}'); tstamp(a, opt, 1); a.label(lab)
def finish(a, opt):
    if opt.get('times'):
        tstamp(a, opt, 2)
        a(f's_add_u32 s{S_T}, s{S_ROLE}, 32'); a(f's_lshl_b32 s{S_T}, s{S_T}, 2'); a(f's_add_u32 s{S_T}, s{S_T}, s{S_WAVE}')
        a(f's_lshl_b32 s{S_T}, s{S_T}, 6'); a(f's_add_u32 s{S_T}, s{S_T}, {TIMES}')
        for i, r in enumerate([62] + [S_TM + 2 * k for k in range(14)]):
            a(f'v_mov_b32 v1, s{r}'); a(f'buffer_store_dword v1, off, {WS}, s{S_T} offset:{4*i}')
    a('s_endpgm')

def x_consts(a, DO, XA, T):
    a(f's_mul_i32 s{S_T}, s{S_WAVE}, 576')
    a(f's_mov_b32 s{S_T+1}, 58255')
    for i in range(9):
        a(f'''
        v_add_u32 v{T}, s{S_T}, v0
        v_add_u32 v{T}, {64*i}, v{T}
        v_mul_lo_u32 v{T+1}, v{T}, s{S_T+1}
        v_lshrrev_b32 v{T+1}, 22, v{T+1}
        v_mul_u32_u24 v{T+2}, 72, v{T+1}
        v_sub_u32 v{T+2}, v{T}, v{T+2}
        v_bfe_u32 v{T+3}, v{T+1}, 1, 3
        v_xor_b32 v{T+2}, v{T+2}, v{T+3}
        v_mul_u32_u24 v{T+1}, 1152, v{T+1}
        v_lshl_add_u32 v{DO+i}, v{T+2}, 4, v{T+1}
        ''')
    a(f'''
    v_and_b32 v{T}, 31, v0
    v_lshrrev_b32 v{T+1}, 5, v0
    v_bfe_u32 v{T+2}, v{T}, 1, 3
    v_mul_u32_u24 v{T}, 1152, v{T}
    ''')
    for m in range(4):
        a(f'v_add_u32 v{T+3}, {2*m}, v{T+1}'); a(f'v_xor_b32 v{T+3}, v{T+3}, v{T+2}'); a(f'v_lshl_add_u32 v{XA+m}, v{T+3}, 4, v{T}')
assert all((x * 58255) >> 22 == x // 72 for x in range(2304))

def x_dma(a, DO, soff, sbuf):
    for i in range(9):
        if i == 0: a(f's_mov_b32 m0, s{sbuf}')
        else: a(f's_add_u32 m0, s{sbuf}, {1024*i}')
        a(f'buffer_load_dwordx4 v{DO+i}, {WS}, s{soff} offen sc1 lds')

def sel(a, dst, T, mode):
    a(f'v_and_b32 v{T}, 15, v0')
    if mode == 'hi': a(f'v_xor_b32 v{T}, 8, v{T}')
    if mode == 'dup': a(f'v_and_b32 v{T}, 7, v{T}')
    a(f'v_and_b32 v{T+1}, 1, v{T}'); a(f'v_lshlrev_b32 v{T+1}, 4, v{T+1}')
    a(f'v_mov_b32 v{T+2}, 0x3f80'); a(f'v_lshlrev_b32 v{T+2}, v{T+1}, v{T+2}')
    a(f'v_lshrrev_b32 v{T}, 1, v{T}')
    for d in range(4):
        a(f'v_cmp_eq_u32 vcc, {d}, v{T}'); a(f'v_cndmask_b32 v{dst+d}, 0, v{T+2}, vcc')

def proj(a, opt):
    DO = 1; XA = 10; ST = 14; TA = 15; ACC = [16, 32]; XR = [48, 52, 56, 60]; T = 64; FV = 70
    def W(kk, cb): return ur(224 + 8 * kk + 4 * cb, 4)
    a.label('L_proj')
    a(f's_load_dwordx4 s[{S_R1}:{S_R1+3}], s[0:1], 16')
    a(f's_load_dwordx2 s[{S_R2}:{S_R2+1}], s[0:1], 32')
    a(f's_mov_b32 s{S_SPIN}, 0')
    a('s_waitcnt lgkmcnt(0)')
    a(f's_and_b32 s{S_T+2}, s{S_WAVE}, 1')
    a(f's_cmp_lt_u32 s{S_ROLE}, 32'); a('s_cbranch_scc1 L_proj_kv')
    a(f's_mov_b32 s{S_R0}, s{S_R1}'); a(f's_mov_b32 s{S_R0+1}, s{S_R1+1}')
    a(f's_sub_u32 s{S_T}, s{S_ROLE}, 32'); a(f's_lshl_b32 s{S_T}, s{S_T}, 1'); a(f's_lshr_b32 s{S_T+1}, s{S_WAVE}, 1'); a(f's_add_u32 s{S_T}, s{S_T}, s{S_T+1}')
    a(f's_mov_b32 s{S_OB}, {QX}'); a(f's_mov_b32 s{S_G}, 0')
    a('s_branch L_proj_j')
    a.label('L_proj_kv')
    a(f's_mov_b32 s{S_T}, s{S_ROLE}')
    a(f's_cmp_ge_u32 s{S_WAVE}, 2'); a('s_cbranch_scc1 L_proj_v')
    a(f's_mov_b32 s{S_R0}, s{S_R1+2}'); a(f's_mov_b32 s{S_R0+1}, s{S_R1+3}')
    a(f's_mov_b32 s{S_OB}, {KX}'); a(f's_mov_b32 s{S_G}, 0')
    a('s_branch L_proj_j')
    a.label('L_proj_v')
    a(f's_mov_b32 s{S_R0}, s{S_R2}'); a(f's_mov_b32 s{S_R0+1}, s{S_R2+1}')
    a(f's_mov_b32 s{S_OB}, {VX}'); a(f's_mov_b32 s{S_G}, 1')
    a.label('L_proj_j')
    srd_fix(a, S_R0, 4718592)
    a(f's_lshl_b32 s{S_T+1}, s{S_T}, 13'); a(f's_add_u32 s{S_OB}, s{S_OB}, s{S_T+1}')
    a(f's_add_u32 s{S_T+3}, s{S_G}, 11'); a(f's_lshl_b32 s{S_T+1}, s{S_T+2}, s{S_T+3}'); a(f's_add_u32 s{S_OB}, s{S_OB}, s{S_T+1}')
    a(f's_lshl_b32 s{S_T}, s{S_T}, 8'); a(f's_lshl_b32 s{S_T+2}, s{S_T+2}, 7'); a(f's_add_u32 s{S_T}, s{S_T}, s{S_T+2}')
    a(f's_lshl_b32 s{S_B}, s{S_WAVE}, 15')
    a(f'''
    v_lshrrev_b32 v{T}, 3, v0
    v_and_b32 v{T+1}, 7, v0
    v_lshlrev_b32 v{T}, 13, v{T}
    v_lshl_add_u32 v{T}, v{T+1}, 4, v{T}
    v_add_u32 v{FV+1}, s{S_T}, v{T}
    ''')
    vm = Cnt(a, 'vmcnt', 63)
    def dma(i):
        a(f's_add_u32 m0, s{S_B}, {(i % 32) * 1024}'); a(f's_mov_b32 s{S_P}, {i * 65536}')
        a(f'buffer_load_dwordx4 v{FV+1}, {R(S_R0)}, s{S_P} offen lds'); vm.issue(i)
    for i in range(32): dma(i)
    a(f'''
    v_lshrrev_b32 v{T}, 5, v0
    v_bfe_u32 v{T+1}, v0, 2, 2
    v_lshl_add_u32 v{T}, v{T}, 3, v{T+1}
    v_lshlrev_b32 v{T}, 7, v{T}
    v_bfe_u32 v{T+1}, v0, 4, 1
    v_lshl_add_u32 v{T}, v{T+1}, 5, v{T}
    v_and_b32 v{T+1}, 3, v0
    v_lshl_add_u32 v{T}, v{T+1}, 3, v{T}
    v_add_u32 v{TA}, s{S_B}, v{T}
    ''')
    x_consts(a, DO, XA, T)
    a(f's_lshl_b32 s{S_T}, s{S_G}, 1'); a(f's_sub_u32 s{S_T}, 12, s{S_T}')
    a(f'''
    v_bfe_u32 v{T}, v0, 4, 1
    v_lshlrev_b32 v{T}, s{S_T}, v{T}
    v_lshrrev_b32 v{T+1}, 5, v0
    v_lshl_add_u32 v{T}, v{T+1}, 8, v{T}
    v_and_b32 v{T+1}, 15, v0
    v_lshl_add_u32 v{ST}, v{T+1}, 4, v{T}
    ''')
    for kk in range(36):
        vm.wait(2 * kk + 1)
        for cb in range(2):
            for p in range(2):
                a(f'ds_read_b64_tr_b16 {ur(224 + 8*kk + 4*cb + 2*p, 2)}, v{TA} offset:{(kk % 16) * 2048 + p * 512 + cb * 64}')
        if kk >= 1 and 2 * (kk - 1) + 32 < 72:
            a('s_waitcnt lgkmcnt(4)')
            dma(2 * (kk - 1) + 32); dma(2 * (kk - 1) + 33)
    a('s_waitcnt lgkmcnt(0)')
    th(a, opt, 3)
    meet(a, T, (DB_P, 48, GO_P), [(DB_Z, NZ), (GO_X, 1)], 'pw')
    tstamp(a, opt, 0)
    a(f's_mul_i32 s{S_B}, s{S_WAVE}, 9216')
    a(f's_mov_b32 s{S_Q}, {XN}')
    x_dma(a, DO, S_Q, S_B)
    a(f's_mov_b32 s{S_SEG}, 0')
    a(f's_lshl_b32 s{S_M}, s{S_ROLE}, 7'); a(f's_lshl_b32 s{S_T}, s{S_WAVE}, 2'); a(f's_add_u32 s{S_M}, s{S_M}, s{S_T}'); a(f's_add_u32 s{S_M}, s{S_M}, {flag(F_PROJ)}')
    STR = 72
    a(f'v_mov_b32 v{STR}, v{ST}'); a(f'v_mov_b32 v{ST}, 0x{OOB:x}')
    a(f's_sub_u32 s{S_OB}, s{S_OB}, {32 * 8192}')
    a('s_waitcnt vmcnt(0)')
    a(f's_cmp_eq_u32 s{S_G}, 1'); a('s_cbranch_scc1 L_proj_lv')
    ACCS = [[16, 32], [80, 96]]
    for isv in range(2):
        L = 'L_proj_lv' if isv else 'L_proj_lk'
        def epi(acc, cb, b):
            q = acc[cb]
            src = [[0, 2, 8, 10], [4, 6, 12, 14]] if isv else [[0, 2, 4, 6], [8, 10, 12, 14]]
            for d in range(4): a(f'v_cvt_pk_bf16_f32 v{q+4*b+d}, v{q+src[b][d]}, v{q+src[b][d]+1}')
            a(f'buffer_store_dwordx4 {vr(q+4*b,4)}, v{ST}, {WS}, s{S_OB} offen offset:{cb * (2048 if isv else 1024) + b * 512} sc1')
        a.label(L)
        for par in range(2):
            acc = ACCS[par]
            a('s_waitcnt vmcnt(1)')
            a('s_barrier')
            lg = Cnt(a, 'lgkmcnt', 15)
            def rd(kk):
                a(f'ds_read_b128 {vr(XR[kk % 4], 4)}, v{XA + (kk & 3)} offset:{(kk >> 2) * 128}'); lg.issue(kk)
            for kk in range(3): rd(kk)
            a(f's_cmp_lt_u32 s{S_SEG}, 63'); a(f's_cselect_b32 s{S_T}, 36864, 0'); a(f's_add_u32 s{S_Q}, s{S_Q}, s{S_T}')
            a(f's_xor_b32 s{S_B}, s{S_B}, 0x10000')
            for kk in range(36):
                lg.wait(kk)
                for cb in range(2):
                    c = '0' if kk == 0 else vr(acc[cb], 16)
                    x = vr(XR[kk % 4], 4)
                    if isv: a(f'{MF32} {vr(acc[cb],16)}, {x}, {W(kk,cb)}, {c}')
                    else: a(f'{MF32} {vr(acc[cb],16)}, {W(kk,cb)}, {x}, {c}')
                    if cb == 0 and kk + 3 < 36: rd(kk + 3)
                if 1 <= kk <= 4: epi(ACCS[par ^ 1], (kk - 1) >> 1, (kk - 1) & 1)
                if 5 <= kk <= 13:
                    i = kk - 5
                    a(f's_add_u32 m0, s{S_B}, {1024*i}')
                    a(f'buffer_load_dwordx4 v{DO+i}, {WS}, s{S_Q} offen sc1 lds')
                if kk == 5 and par == 1: tfirst(a, opt, f's_cmp_eq_u32 s{S_SEG}, 1')
                if kk == opt.get('pfk', 22):
                    a('s_waitcnt vmcnt(9)')
                    a(f'v_mov_b32 v{FV}, s{S_SEG}')
                    a(f'buffer_store_dword v{FV}, off, {WS}, s{S_M} sc1')
                if kk == 33:
                    for m in range(4): a(f'v_xor_b32 v{XA+m}, 0x10000, v{XA+m}')
                if kk == 34:
                    a(f'v_mov_b32 v{ST}, v{STR}')
                    a(f's_add_u32 s{S_OB}, s{S_OB}, {32 * 8192}')
                    a(f's_add_u32 s{S_SEG}, s{S_SEG}, 1')
            if par == 1: a(f's_cmp_lt_u32 s{S_SEG}, 64'); a(f's_cbranch_scc1 {L}')
        for cb in range(2):
            for b in range(2): epi(ACCS[1], cb, b)
        if not isv: a('s_branch L_proj_end')
    a.label('L_proj_end')
    a('s_waitcnt vmcnt(0)')
    a(f'v_mov_b32 v{FV}, 64')
    a(f'buffer_store_dword v{FV}, off, {WS}, s{S_M} sc1')
    finish(a, opt)

def tiles_of(w):
    b = 9 * (w >> 1)
    if w & 1 == 0: return [(b + i, T) for i in range(4) for T in range(2)] + [(b + 4, 0)]
    return [(b + 5 + i, T) for i in range(4) for T in range(2)] + [(b + 4, 1)]

def row_stage_dma(a, srd, L16, st, sbase, vm, tag):
    for i in range(9):
        a(f's_add_u32 m0, s{S_B}, {(st % 4) * 36864 + (i & ~3) * 1024}') if i % 4 == 0 else None
        if i % 4 == 0: a(f's_add_u32 s{S_P}, s{sbase}, {st * 36864 + i * 1024}')
        a(f'buffer_load_dwordx4 v{L16}, {R(srd)}, s{S_P} offen offset:{(i & 3) * 1024} lds'); vm.issue(tag)

def allreduce(a, v, t, op='v_add_f32', lanes=64):
    for d in ('quad_perm:[1,0,3,2]', 'quad_perm:[2,3,0,1]', 'row_half_mirror', 'row_mirror')[:3 if lanes == 8 else 4]:
        a(f'{op}_dpp v{v}, v{v}, v{v} {d} row_mask:0xf bank_mask:0xf')
    if lanes == 64:
        for sw in ('v_permlane16_swap_b32', 'v_permlane32_swap_b32'):
            a(f'v_mov_b32 v{t}, v{v}'); a(f'{sw} v{v}, v{t}'); a(f'{op} v{v}, v{v}, v{t}')

def att(a, opt):
    L16, KMA, L8, PST, RB, XO, XO2, RB4, XO4, T = 1, 2, 3, 4, 5, 6, 7, 8, 9, 10
    Q = 16; K = 32; V = 64; KMF = 96; VMF = 112; SM, S0, S1 = 120, 124, 128; PX = 132; PM = 136; ONE = 140; SUM = 144
    O = 148; OF = 148; ACC = 96
    SLO, SHI = 212, 216
    RR = 128
    XX, WO_ = S_R0, S_R1
    a.label('L_att')
    a(f's_load_dwordx2 s[{XX}:{XX+1}], s[0:1], 0')
    a(f's_load_dwordx2 s[{WO_}:{WO_+1}], s[0:1], 40')
    a(f's_mov_b32 s{S_SPIN}, 0')
    a(f's_sub_u32 s{S_T}, s{S_ROLE}, 48'); a(f's_and_b32 s{S_M}, s{S_T}, 15'); a(f's_lshr_b32 s{S_G}, s{S_T}, 4')
    a(f'v_lshlrev_b32 v{L16}, 4, v0')
    a('s_waitcnt lgkmcnt(0)')
    srd_fix(a, XX, 2359296); srd_fix(a, WO_, 4718592)
    X = 16; Fp = 64
    a(f's_mul_i32 s{S_Q}, s{S_T}, 36864'); a(f's_mul_i32 s{S_B}, s{S_WAVE}, 9216'); a(f's_add_u32 s{S_Q}, s{S_Q}, s{S_B}')
    a(f'v_lshrrev_b32 v{T}, 3, v0'); a(f'v_mul_u32_u24 v{T}, 1152, v{T}'); a(f'v_and_b32 v{T+1}, 7, v0'); a(f'v_lshl_add_u32 v{T}, v{T+1}, 4, v{T}')
    vm = Cnt(a, 'vmcnt', 63)
    for i in range(9): a(f'buffer_load_dwordx4 {vr(X+4*i,4)}, v{T}, {R(XX)}, s{S_Q} offen offset:{128*i}'); vm.issue('x')
    a(f's_mul_i32 s{S_OB}, s{S_M}, {2 * 147456}'); a(f's_add_u32 s{S_OB}, s{S_OB}, s{S_B}')
    vm.wait('x')
    th(a, opt, 3)
    for i in range(36):
        a(f'v_lshlrev_b32 v{Fp+2*i}, 16, v{X+i}'); a(f'v_and_b32 v{Fp+2*i+1}, 0xffff0000, v{X+i}')
    A4 = [T + 2, T + 3, T + 4, T + 5]
    for i in range(72):
        if i < 4: a(f'v_add_f32 v{A4[i]}, v{Fp+i}, v{Fp+i+4}')
        elif i >= 8: a(f'v_add_f32 v{A4[i&3]}, v{A4[i&3]}, v{Fp+i}')
    a(f'v_add_f32 v{A4[0]}, v{A4[0]}, v{A4[1]}'); a(f'v_add_f32 v{A4[2]}, v{A4[2]}, v{A4[3]}'); a(f'v_add_f32 v{A4[0]}, v{A4[0]}, v{A4[2]}')
    allreduce(a, A4[0], T + 1, lanes=8)
    a(f'v_mul_f32 v{T+1}, 0x{0x3ae38e39:x}, v{A4[0]}')
    for i in range(72): a(f'v_sub_f32 v{Fp+i}, v{Fp+i}, v{T+1}')
    for i in range(72):
        if i < 4: a(f'v_mul_f32 v{A4[i]}, v{Fp+i}, v{Fp+i}')
        else: a(f'v_fmac_f32 v{A4[i&3]}, v{Fp+i}, v{Fp+i}')
    a(f'v_add_f32 v{A4[0]}, v{A4[0]}, v{A4[1]}'); a(f'v_add_f32 v{A4[2]}, v{A4[2]}, v{A4[3]}'); a(f'v_add_f32 v{A4[0]}, v{A4[0]}, v{A4[2]}')
    allreduce(a, A4[0], T + 1, lanes=8)
    a(f'v_mov_b32 v{T+1}, 0x{0x3727c5ac:x}')
    a(f'v_fmac_f32 v{T+1}, 0x{0x3ae38e39:x}, v{A4[0]}')
    a(f'v_rsq_f32 v{T+1}, v{T+1}')
    for i in range(72): a(f'v_mul_f32 v{Fp+i}, v{T+1}, v{Fp+i}')
    for i in range(36): a(f'v_cvt_pk_bf16_f32 v{X+i}, v{Fp+2*i}, v{Fp+2*i+1}')
    a(f's_add_u32 s{S_Q}, s{S_Q}, {XN}')
    for i in range(9): a(f'buffer_store_dwordx4 {vr(X+4*i,4)}, v{T}, {WS}, s{S_Q} offen offset:{128*i} sc1'); vm.issue('xs')
    th(a, opt, 4)
    GATE = {'p': [(GO_P, 1)], 'c': [(GO_C, 1)], None: []}
    meet(a, T + 4, (DB_X, 64, GO_X), GATE[opt.get('gate_att')], 'ga')
    vm.reset()
    th(a, opt, 5)
    for st in range(4): row_stage_dma(a, WO_, L16, st, S_OB, vm, st)
    for w in range(1, 4):
        a(f's_cmp_eq_u32 s{S_WAVE}, {w}'); a(f's_cbranch_scc1 L_att_w{w}')
    vm0 = list(vm.q)
    for w in range(4):
        hh, qt = w >> 1, w & 1
        tl = tiles_of(w)
        def WOF(ti, k8): return ur(224 + 4 * (ti * 8 + k8), 4)
        a.label(f'L_att_w{w}')
        vm.q = list(vm0)
        TA = T + 2
        a(f'v_lshrrev_b32 v{TA}, 2, v0'); a(f'v_mul_u32_u24 v{TA}, 1152, v{TA}'); a(f'v_and_b32 v{T+3}, 3, v0'); a(f'v_lshl_add_u32 v{TA}, v{T+3}, 4, v{TA}')
        a(f'v_add_u32 v{TA+1}, {2 * 36864}, v{TA}')
        for st in range(8):
            vm.wait(st)
            a('s_barrier')
            for ti, (P, TT) in enumerate(tl):
                for p in range(2):
                    off = (st % 2) * 36864 + p * 16 * 1152 + P * 64 + TT * 8
                    a(f'ds_read_b64_tr_b16 {ur(224 + 4*(ti*8+st) + 2*p, 2)}, v{TA + ((st % 4) >> 1)} offset:{off}')
            a('s_waitcnt lgkmcnt(0)')
            if st < 4:
                a('s_barrier')
                row_stage_dma(a, WO_, L16, st + 4, S_OB, vm, st + 4)
        th(a, opt, 6)
        red = qt == 0
        a(f'''
        v_and_b32 v{T}, 15, v0
        v_lshrrev_b32 v{T+1}, 4, v0
        v_lshrrev_b32 v{T+2}, 2, v{T}
        v_and_b32 v{T+3}, 1, v0
        v_lshl_add_u32 v{T+4}, v{T+2}, 1, v{T+3}
        v_lshlrev_b32 v{T+4}, 4, v{T+4}
        v_lshl_add_u32 v{KMA}, v{T+1}, 7, v{T+4}
        v_lshlrev_b32 v{L8}, 3, v0
        v_lshrrev_b32 v{T+4}, 1, v{T}
        v_mul_u32_u24 v{T+4}, 36864, v{T+4}
        v_lshl_add_u32 v{T+4}, v{T+3}, 6, v{T+4}
        v_lshl_add_u32 v{T+4}, v{T+1}, 4, v{T+4}
        s_mul_i32 s{S_T}, s{S_M}, 2304
        v_add_u32 v{PST}, s{S_T}, v{T+4}
        ''')
        if red:
            a(f'''
            v_mul_u32_u24 v{T+4}, 2304, v{T+1}
            v_and_b32 v{T+5}, 3, v0
            v_lshl_add_u32 v{T+4}, v{T+5}, 4, v{T+4}
            s_mul_i32 s{S_T}, s{S_M}, 36864
            s_add_u32 s{S_T}, s{S_T}, {64 * hh}
            v_add_u32 v{T+4}, s{S_T}, v{T+4}
            v_lshl_add_u32 v{RB}, v{T+2}, 7, v{T+4}
            v_and_b32 v{RB4}, 1, v{T+2}
            v_lshl_add_u32 v{RB4}, v{RB4}, 7, v{T+4}
            s_mul_i32 s{S_T}, s{S_M}, 2304
            s_add_u32 s{S_T}, s{S_T}, {1152 * hh}
            v_lshlrev_b32 v{T+5}, 4, v{T+5}
            v_add_u32 v{T+5}, s{S_T}, v{T+5}
            v_lshrrev_b32 v{T+4}, 1, v{T+2}
            v_mul_u32_u24 v{T+4}, 9, v{T+4}
            v_and_b32 v{T+3}, 1, v{T+2}
            v_mul_u32_u24 v{T}, 5, v{T+3}
            v_add_u32 v{T+4}, v{T+4}, v{T}
            v_lshrrev_b32 v{T}, 1, v{T+1}
            v_add_u32 v{T+4}, v{T+4}, v{T}
            v_lshl_add_u32 v{T+4}, v{T+4}, 6, v{T+5}
            v_and_b32 v{T+1}, 1, v{T+1}
            v_lshl_add_u32 v{XO}, v{T+1}, 3, v{T+4}
            v_lshl_add_u32 v{XO4}, v{T+1}, 7, v{T+4}
            v_mul_u32_u24 v{T+3}, 576, v{T+3}
            v_add_u32 v{T+3}, 256, v{T+3}
            v_add_u32 v{T+3}, v{T+3}, v{T+5}
            v_lshl_add_u32 v{T+3}, v{T+1}, 3, v{T+3}
            s_mov_b32 s{S_T}, 0x00ff00ff
            s_mov_b32 s{S_T+1}, 0
            v_mov_b32 v{T+4}, 0x{OOB:x}
            v_cndmask_b32 v{XO2}, v{T+4}, v{T+3}, s[{S_T}:{S_T+1}]
            ''')
            sel(a, SLO, T, 'lo'); sel(a, SHI, T, 'hi')
        a(f'''
        s_lshl_b32 s{S_T}, s{S_M}, 8
        s_add_u32 s{S_FA}, s{S_T}, {flag(F_PROJ + hh)}
        s_add_u32 s{S_FA+2}, s{S_T}, {flag(F_CHAIN + hh)}
        s_lshl_b32 s{S_T}, s{S_M}, 7
        s_add_u32 s{S_FA+1}, s{S_T}, {flag(F_PROJ + 32) + 8 * hh}
        s_mov_b32 s{S_FP}, 0
        s_mov_b32 s{S_FC}, 0
        ''')
        for r in range(4):
            mk = sum(1 << l for l in range(64) if 4 * (l >> 4) + r <= (l & 15))
            a(f's_mov_b32 s{S_MK+2*r}, 0x{mk & 0xffffffff:x}'); a(f's_mov_b32 s{S_MK+2*r+1}, 0x{mk >> 32:x}')
        a(f's_mov_b32 s{S_C}, 0x3e0293ee'); a(f's_mov_b32 s{S_C+1}, 0xbe0293ee')
        a(f's_mul_i32 s{S_T}, s{S_G}, {2 * PA_SLOT}'); a(f's_mul_i32 s{S_T+1}, s{S_M}, 36864'); a(f's_add_u32 s{S_T}, s{S_T}, s{S_T+1}')
        a(f's_sub_u32 s{S_T+1}, s{S_ROLE}, 48'); a(f's_mul_i32 s{S_T+1}, s{S_T+1}, 36864')
        fill(a, L16, 16, [(S_T, PA + w * 9216), (S_T, PA + PA_SLOT + w * 9216), (S_T + 1, HB + w * 9216), (S_T + 1, XN2 + w * 9216)])
        th(a, opt, 7)
        meet(a, T, (DB_AI, 64, GO_AI), [(DB_Z, NZ), (GO_AI, 1)], 'ai')
        tstamp(a, opt, 0)
        a(f's_mov_b32 s{S_SEG}, s{S_G}')
        a(f's_mov_b32 s{S_B}, 0')
        def qkv(step):
            a(f's_add_u32 s{S_N}, s{S_SEG}, {step + 1}')
            spoll(a, S_FP, f's{S_N}', [(4, f's{S_FA}'), (2, f's{S_FA+1}')], 'ap')
            a(f's_lshl_b32 s{S_T}, s{S_SEG}, 5'); a(f's_lshl1_add_u32 s{S_T}, s{S_M}, s{S_T}'); a(f's_add_u32 s{S_T}, s{S_T}, {32 * step + hh}')
            a(f's_lshl_b32 s{S_T}, s{S_T}, 13')
            a(f's_add_u32 s{S_P}, s{S_T}, {QX + qt * 4096}')
            for ks in range(4): a(f'buffer_load_dwordx4 {vr(Q+4*ks,4)}, v{L16}, {WS}, s{S_P} offen offset:{1024*ks} sc1')
            for kt in range(qt + 1):
                a(f's_add_u32 s{S_P}, s{S_T}, {KX + kt * 4096}')
                for ks in range(4): a(f'buffer_load_dwordx4 {vr(K+16*kt+4*ks,4)}, v{L16}, {WS}, s{S_P} offen offset:{1024*ks} sc1')
            for hf in range(2):
                a(f's_add_u32 s{S_P}, s{S_T}, {VX + hf * 4096}')
                for u in range(4): a(f'buffer_load_dwordx4 {vr(V+16*hf+4*u,4)}, v{L16}, {WS}, s{S_P} offen offset:{1024*u} sc1')
        qkv(0)
        L = f'L_att_l{w}'
        a.label(L)
        vm.reset()
        a(f's_lshl_b32 s{S_Q}, s{S_SEG}, 5'); a(f's_lshl1_add_u32 s{S_Q}, s{S_M}, s{S_Q}'); a(f's_add_u32 s{S_Q}, s{S_Q}, {hh}')
        a(f's_lshl_b32 s{S_Q}, s{S_Q}, 11')
        a(f's_lshr_b32 s{S_T}, s{S_SEG}, 2'); a(f's_bfe_u32 s{S_TAG}, s{S_T}, 0x10001'); a(f's_and_b32 s{S_T}, s{S_T}, 1')
        a(f's_lshl1_add_u32 s{S_T}, s{S_G}, s{S_T}'); a(f's_mul_i32 s{S_OB}, s{S_T}, {PA_SLOT}'); a(f's_add_u32 s{S_OB}, s{S_OB}, {PA}')
        a(f'v_mov_b32 v{ONE}, 0x3f803f80'); a(f'v_mov_b32 v{ONE+1}, 0x3f803f80'); a(f'v_mov_b64 {vr(ONE+2,2)}, {vr(ONE,2)}')
        a(f'v_mov_b64 {vr(PM,2)}, 0'); a(f'v_mov_b64 {vr(PM+2,2)}, 0')
        if qt == 0: a(f'v_mov_b64 {vr(PX+2,2)}, 0')
        a('s_waitcnt vmcnt(0)')
        tk(a, opt, 3)
        for ks in range(4):
            for kt in range(qt + 1):
                S = S1 if kt else S0
                a(f'{MF} {vr(S,4)}, {vr(K+16*kt+4*ks,4)}, {vr(Q+4*ks,4)}, {"0" if ks == 0 else vr(S,4)}')
        SD = S1 if qt else S0
        a(f'v_mov_b32 v{T}, 0xff800000')
        for r in range(4): a(f'v_cndmask_b32 v{SD+r}, v{T}, v{SD+r}, s[{S_MK+2*r}:{S_MK+2*r+1}]')
        M, M2 = T + 2, T + 3
        a(f'v_max3_f32 v{M}, v{S0}, v{S0+1}, v{S0+2}')
        if qt:
            a(f'v_max3_f32 v{M}, v{M}, v{S0+3}, v{S1}'); a(f'v_max3_f32 v{M}, v{M}, v{S1+1}, v{S1+2}'); a(f'v_max_f32 v{M}, v{M}, v{S1+3}')
        else: a(f'v_max_f32 v{M}, v{M}, v{S0+3}')
        a(f's_add_u32 s{S_N}, s{S_SEG}, 1'); a(f's_cmp_eq_u32 s{S_SEG}, 63'); a(f's_cselect_b32 s{S_N}, 0, s{S_N}')
        spoll(a, S_FC, f's{S_N}', [(1, f's{S_FA+2}')], 'ac')
        tk(a, opt, 4)
        LK = f'L_att_k{w}'
        a.label(LK)
        a(f's_add_u32 s{S_P}, s{S_Q}, {KM}')
        for ks in range(4): a(f'buffer_load_dwordx4 {vr(KMF+4*ks,4)}, v{KMA}, {WS}, s{S_P} offen offset:{512*ks} sc1'); vm.issue(('km', ks))
        a(f's_add_u32 s{S_P}, s{S_Q}, {VM}')
        for u in range(4): a(f'buffer_load_dwordx2 {vr(VMF+2*u,2)}, v{L8}, {WS}, s{S_P} offen offset:{512*u} sc1'); vm.issue(('vm', u))
        for ks in range(4):
            vm.wait(('km', ks))
            a(f'{MF} {vr(SM,4)}, {vr(KMF+4*ks,4)}, {vr(Q+4*ks,4)}, {"0" if ks == 0 else vr(SM,4)}')
        a(f'v_max3_u32 v{T}, v{KMF}, v{KMF+4}, v{KMF+8}')
        vm.wait(('vm', 3))
        a(f'v_max3_u32 v{T}, v{T}, v{KMF+12}, v{VMF}')
        a(f'v_max3_u32 v{T}, v{T}, v{VMF+2}, v{VMF+4}')
        a(f'v_max_u32 v{T}, v{T}, v{VMF+6}')
        a(f'v_cmp_eq_u32 vcc, -1, v{T}')
        a(f's_cbranch_vccz {LK}_x')
        retry(a, LK + '_x')
        a(f's_branch {LK}')
        a.label(LK + '_x')
        a(f'v_max3_f32 v{M}, v{M}, v{SM}, v{SM+1}')
        tk(a, opt, 5)
        for sw in ('v_permlane32_swap_b32', 'v_permlane16_swap_b32'):
            a(f'v_mov_b32 v{M2}, v{M}'); a(f'{sw} v{M}, v{M2}'); a(f'v_max_f32 v{M}, v{M}, v{M2}')
        a(f'v_mul_f32 v{M}, s{S_C+1}, v{M}')
        vals = [SM, SM + 1, S0, S0 + 1, S0 + 2, S0 + 3] + ([S1, S1 + 1, S1 + 2, S1 + 3] if qt else [])
        for r in vals: a(f'v_fma_f32 v{r}, v{r}, s{S_C}, v{M}')
        for r in vals: a(f'v_exp_f32 v{r}, v{r}')
        a(f'v_cvt_pk_bf16_f32 v{PX}, v{S0}, v{S0+1}'); a(f'v_cvt_pk_bf16_f32 v{PX+1}, v{S0+2}, v{S0+3}')
        if qt: a(f'v_cvt_pk_bf16_f32 v{PX+2}, v{S1}, v{S1+1}'); a(f'v_cvt_pk_bf16_f32 v{PX+3}, v{S1+2}, v{S1+3}')
        a(f'v_cvt_pk_bf16_f32 v{PM}, v{SM}, v{SM+1}'); a(f'v_cvt_pk_bf16_f32 v{PM+3}, v{SM}, v{SM+1}')
        a(f'{MF} {vr(SUM,4)}, {vr(ONE,4)}, {vr(PX,4)}, 0')
        for u in range(4): a(f'{MF} {vr(O+4*u,4)}, {vr(V+4*u,4)}, {vr(PX,4)}, 0')
        a(f'{MH} {vr(SUM,4)}, {vr(ONE,2)}, {vr(PM,2)}, {vr(SUM,4)}')
        for u in range(4, 8): a(f'{MF} {vr(O+4*u,4)}, {vr(V+4*u,4)}, {vr(PX,4)}, 0')
        a(f'v_add_u32 v{T+1}, s{S_B}, v{L16}')
        for u in range(8):
            a(f'{MH} {vr(O+4*u,4)}, {vr(VMF+2*(u>>1),2)}, {vr(PM+2*(u&1),2)}, {vr(O+4*u,4)}')
            if u == 0: a(f'v_rcp_f32 v{T+2}, v{SUM}')
        for w4 in range(4):
            q = O + 8 * w4
            for r in range(4): a(f'v_pk_mul_f32 {vr(q+2*r,2)}, {vr(q+2*r,2)}, {vr(T+2,2)} op_sel_hi:[1,0]')
            for d in range(4): a(f'v_cvt_pk_bf16_f32 v{q+d}, v{q+2*d}, v{q+2*d+1}')
            a(f'ds_write_b128 v{T+1}, {vr(q,4)} offset:{(w * 4 + w4) * 1024}')
        a('s_waitcnt lgkmcnt(0)')
        a('s_barrier')
        tk(a, opt, 6)
        if opt.get('wst'): a('s_waitcnt lgkmcnt(0)')
        lg = Cnt(a, 'lgkmcnt', 15)
        for k8 in range(8):
            for tt in range(2):
                a(f'ds_read_b128 {vr(OF+4*(2*k8+tt),4)}, v{T+1} offset:{(((k8 >> 2) * 2 + tt) * 4 + (k8 & 3)) * 1024}'); lg.issue((k8, tt))
        a(f's_xor_b32 s{S_B}, s{S_B}, 0x4000')
        a(f's_add_u32 s{S_P}, s{S_OB}, 294912')
        XV = 48
        if red: a(f's_mul_i32 s{S_Q}, s{S_SEG}, 36864')
        def fin(gi):
            base = ACC + 16 * (gi & 1)
            for tt in range(2):
                so = S_P if tt else S_OB
                q = base + 8 * tt
                if gi < 4:
                    for d in range(4): a(f'v_cvt_pk_bf16_f32 v{q+d}, v{q+2*d}, v{q+2*d+1}')
                    for d in (0, 2): a(f'v_bfi_b32 v{q+d}, 1, s{S_TAG}, v{q+d}')
                    a(f'buffer_store_dwordx4 {vr(q,4)}, v{PST}, {WS}, s{so} offen offset:{(4 * gi + w) * 128} sc1')
                else:
                    for d in range(2): a(f'v_cvt_pk_bf16_f32 v{q+d}, v{q+2*d}, v{q+2*d+1}')
                    a(f'v_bfi_b32 v{q}, 1, s{S_TAG}, v{q}')
                    a(f'buffer_store_dwordx2 {vr(q,2)}, v{PST}, {WS}, s{so} offen offset:{(16 + hh) * 128 + 8*tl[8][1]} sc1')
        for gi in range(5):
            base = ACC + 16 * (gi & 1)
            for k8 in range(8):
                for tt in range(2):
                    if gi == 0: lg.wait((k8, tt))
                    for TT in range(2 if gi < 4 else 1):
                        q = base + 8 * tt + 4 * TT
                        a(f'{MF} {vr(q,4)}, {WOF(2*gi+TT,k8)}, {vr(OF+4*(2*k8+tt),4)}, {"0" if k8 == 0 else vr(q,4)}')
                if k8 == 1 and gi > 0: fin(gi - 1)
                if red and gi == 0 and 2 <= k8 <= 4:
                    q3 = k8 - 2
                    a(f'buffer_load_dwordx2 {vr(XV+2*q3,2)}, v{XO2 if q3 == 2 else XO}, {R(XX)}, s{S_Q} offen offset:{128*q3 if q3 < 2 else 0}')
        fin(4)
        tk(a, opt, 7)
        if red:
            RA = 96; H = 108; H2 = 116
            def rl(t0):
                for t5 in range(t0, 5):
                    for u in range(4):
                        a(f's_add_u32 s{S_P}, s{S_OB}, {u * 9216}')
                        a(f'buffer_load_dwordx4 {vr(RR+4*(4*t5+u),4)}, v{RB4 if t5 == 4 else RB}, {WS}, s{S_P} offen offset:{512*t5} sc1')
            rl(0)
            tk(a, opt, 8)
            for t5 in range(5):
                LR = f'L_att_r{w}_{t5}'
                a.label(LR)
                a(f's_waitcnt vmcnt({4 * (4 - t5)})')
                z = [RR + 4 * (4 * t5 + u) for u in range(4)]
                for u in range(4): a(f'v_bitop3_b32 v{T+u}, v{z[u]}, v{z[u]+2}, s{S_TAG} bitop3:0x7e')
                a(f'v_or3_b32 v{T}, v{T}, v{T+1}, v{T+2}')
                a(f'v_bitop3_b32 v{T}, v{T}, v{T+3}, 1 bitop3:0xa8')
                a(f'v_cmp_eq_u32 vcc, 1, v{T}')
                a(f's_cbranch_vccz {LR}_x')
                retry(a, LR + '_x')
                rl(t5)
                a(f's_branch {LR}')
                a.label(LR + '_x')
                if t5 == 0:
                    for q in range(3):
                        for d in range(2):
                            a(f'v_lshlrev_b32 v{RA+4*q+2*d}, 16, v{XV+2*q+d}'); a(f'v_and_b32 v{RA+4*q+2*d+1}, 0xffff0000, v{XV+2*q+d}')
                if t5 == 4: tk(a, opt, 9)
                q = RA + 4 * (t5 >> 1)
                for u in range(4): a(f'{MF} {vr(q,4)}, {vr(SHI if t5 & 1 else SLO,4)}, {vr(z[u],4)}, {vr(q,4)}')
            tk(a, opt, 10)
            a(f's_mov_b32 s{S_T}, 0x00ff00ff'); a(f's_mov_b32 s{S_T+1}, 0')
            for i in range(6): a(f'v_cvt_pk_bf16_f32 v{H+i}, v{RA+2*i}, v{RA+2*i+1}')
            for i in (4, 5): a(f'v_cndmask_b32 v{H+i}, 0, v{H+i}, s[{S_T}:{S_T+1}]')
            for i in range(6): a(f'v_lshlrev_b32 v{RA+2*i}, 16, v{H+i}'); a(f'v_and_b32 v{RA+2*i+1}, 0xffff0000, v{H+i}')
            def put(r, base):
                a(f's_add_u32 s{S_P}, s{S_Q}, {base}')
                for d in range(2): a(f'v_permlane16_swap_b32 v{r+d}, v{r+2+d}')
                a(f'buffer_store_dwordx4 {vr(r,4)}, v{XO4}, {WS}, s{S_P} offen sc1')
                a(f'buffer_store_dwordx2 {vr(r+4,2)}, v{XO2}, {WS}, s{S_P} offen sc1')
            put(H, HB)
            a(f'v_add_f32 v{T}, v{RA}, v{RA+1}'); a(f'v_add_f32 v{T+1}, v{RA+2}, v{RA+3}')
            for i in range(4, 12): a(f'v_add_f32 v{T+(i&1)}, v{T+(i&1)}, v{RA+i}')
            a(f'v_add_f32 v{T}, v{T}, v{T+1}')
            allreduce(a, T, T + 1)
            a(f'v_mul_f32 v{T}, 0x{0x3ae38e39:x}, v{T}')
            for i in range(12): a(f'v_sub_f32 v{RA+i}, v{RA+i}, v{T}')
            for i in range(8, 12): a(f'v_cndmask_b32 v{RA+i}, 0, v{RA+i}, s[{S_T}:{S_T+1}]')
            a(f'v_mul_f32 v{T}, v{RA}, v{RA}'); a(f'v_mul_f32 v{T+1}, v{RA+1}, v{RA+1}')
            for i in range(2, 12): a(f'v_fmac_f32 v{T+(i&1)}, v{RA+i}, v{RA+i}')
            a(f'v_add_f32 v{T}, v{T}, v{T+1}')
            allreduce(a, T, T + 1)
            a(f'v_mov_b32 v{T+1}, 0x{0x3727c5ac:x}'); a(f'v_fmac_f32 v{T+1}, 0x{0x3ae38e39:x}, v{T}'); a(f'v_rsq_f32 v{T+1}, v{T+1}')
            for i in range(12): a(f'v_mul_f32 v{RA+i}, v{T+1}, v{RA+i}')
            for i in range(6): a(f'v_cvt_pk_bf16_f32 v{H2+i}, v{RA+2*i}, v{RA+2*i+1}')
            put(H2, XN2)
            tk(a, opt, 11)
        tfirst(a, opt, f's_cmp_lt_u32 s{S_SEG}, 4')
        a(f's_cmp_ge_u32 s{S_SEG}, 60'); a(f's_cbranch_scc1 {L}_end')
        if not red: a('s_waitcnt vmcnt(0)')
        qkv(4)
        a(f's_add_u32 s{S_SEG}, s{S_SEG}, 4')
        a(f's_branch {L}')
        a.label(L + '_end')
        finish(a, opt)

def ffn(a, opt):
    DO = 1; XA = 10; L16 = 14; PST = 15; RB = 16; OA = 17; XW = 18; T = 20
    SEL = 28; ACC = [32, 48]; XR = [64, 68, 72, 76]
    AF = 32
    DA = 64
    WG, WU, WD, OUT = S_R0, S_R1, S_R2, S_R3
    ACTL = 40960
    def GU(m, kk): return 80 + 8 * kk + 4 * m
    a.label('L_ffn')
    a(f's_load_dwordx4 s[{WG}:{WG+3}], s[0:1], 64')
    a(f's_load_dwordx4 s[{WD}:{WD+3}], s[0:1], 80')
    a(f's_mov_b32 s{S_SPIN}, 0')
    a(f's_sub_u32 s{S_M}, s{S_ROLE}, 112'); a(f's_mov_b32 s{S_G}, 0')
    for _ in range(2):
        a(f's_cmp_ge_u32 s{S_M}, 36'); a(f's_cselect_b32 s{S_T}, 36, 0'); a(f's_cselect_b32 s{S_T+1}, 1, 0')
        a(f's_sub_u32 s{S_M}, s{S_M}, s{S_T}'); a(f's_add_u32 s{S_G}, s{S_G}, s{S_T+1}')
    a(f'v_lshlrev_b32 v{L16}, 4, v0')
    a('s_waitcnt lgkmcnt(0)')
    a(f's_mov_b32 s{WU}, s{WG+2}'); a(f's_mov_b32 s{WU+1}, s{WG+3}'); a(f's_mov_b32 s{OUT}, s{WD+2}'); a(f's_mov_b32 s{OUT+1}, s{WD+3}')
    for r in (WG, WU, WD): srd_fix(a, r, 5308416)
    srd_fix(a, OUT, 2359296)
    GA = T + 4; TA = T + 5
    a(f's_mul_i32 s{S_T}, s{S_WAVE}, {16 * 9216}'); a(f's_lshl_b32 s{S_T+1}, s{S_M}, 8'); a(f's_add_u32 s{S_T}, s{S_T}, s{S_T+1}')
    a(f'''
    v_lshrrev_b32 v{T}, 4, v0
    v_mul_u32_u24 v{T}, 9216, v{T}
    v_and_b32 v{T+1}, 15, v0
    v_lshl_add_u32 v{T}, v{T+1}, 4, v{T}
    v_add_u32 v{GA}, s{S_T}, v{T}
    ''')
    a(f's_lshl_b32 s{S_B}, s{S_WAVE}, 12')
    vm = Cnt(a, 'vmcnt', 63)
    def gdma(st):
        for m in range(2):
            for u in range(4):
                a(f's_add_u32 m0, s{S_B}, {(st % 4) * 32768 + m * 16384 + u * 1024}')
                a(f's_mov_b32 s{S_P}, {(64 * st + 4 * u) * 9216}')
                a(f'buffer_load_dwordx4 v{GA}, {R(WU if m else WG)}, s{S_P} offen lds'); vm.issue(st)
    if opt.get('gate_ffn'): meet(a, T, None, [({'p': GO_P, 'c': GO_C}[opt['gate_ffn']], 1)], 'gf')
    for st in range(4): gdma(st)
    a(f's_lshl_b32 s{S_T}, s{S_WAVE}, 6')
    a(f'''
    v_lshrrev_b32 v{T}, 5, v0
    v_bfe_u32 v{T+1}, v0, 2, 2
    v_lshl_add_u32 v{T}, v{T}, 3, v{T+1}
    v_lshlrev_b32 v{T}, 8, v{T}
    v_bfe_u32 v{T+1}, v0, 4, 1
    v_lshl_add_u32 v{T}, v{T+1}, 5, v{T}
    v_and_b32 v{T+1}, 3, v0
    v_lshl_add_u32 v{T}, v{T+1}, 3, v{T}
    v_add_u32 v{TA}, s{S_T}, v{T}
    v_add_u32 v{TA+1}, 65536, v{TA}
    ''')
    x_consts(a, DO, XA, T)
    for st in range(9):
        vm.wait(st)
        a('s_barrier')
        for k4 in range(4):
            for m in range(2):
                for p in range(2):
                    a(f'ds_read_b64_tr_b16 {ur(GU(m, 4*st+k4) + 2*p, 2)}, v{TA + ((st % 4) >> 1)} offset:{(st % 2) * 32768 + m * 16384 + k4 * 4096 + p * 1024}')
        a('s_waitcnt lgkmcnt(0)')
        if st + 4 < 9:
            a('s_barrier'); gdma(st + 4)
    a('s_barrier')
    th(a, opt, 3)
    a(f's_mul_i32 s{S_B}, s{S_WAVE}, 9216'); a(f's_mul_i32 s{S_OB}, s{S_M}, 147456'); a(f's_add_u32 s{S_OB}, s{S_OB}, s{S_B}')
    for st in range(4): row_stage_dma(a, WD, L16, st, S_OB, vm, 100 + st)
    sel(a, SEL, T, 'dup')
    a(f'''
    v_and_b32 v{T}, 15, v0
    v_lshrrev_b32 v{T+1}, 4, v0
    v_lshlrev_b32 v{T+2}, 6, v{T}
    v_lshl_add_u32 v{T+2}, v{T+1}, 4, v{T+2}
    s_lshl_b32 s{S_T}, s{S_M}, 10
    v_add_u32 v{PST}, s{S_T}, v{T+2}
    v_lshlrev_b32 v{T+2}, 4, v{T}
    v_lshl_add_u32 v{T+2}, v{T+1}, 10, v{T+2}
    s_mul_i32 s{S_T}, s{S_M}, 36864
    s_lshl_b32 s{S_T+1}, s{S_WAVE}, 8
    s_add_u32 s{S_T}, s{S_T}, s{S_T+1}
    v_add_u32 v{RB}, s{S_T}, v{T+2}
    s_cmp_ge_u32 s{S_M}, 18
    s_cselect_b32 s{S_T}, {16 * 1152 - 18 * 64}, 0
    s_lshl_b32 s{S_T+1}, s{S_M}, 6
    s_add_u32 s{S_T}, s{S_T}, s{S_T+1}
    s_mul_i32 s{S_T+1}, s{S_WAVE}, 4608
    s_add_u32 s{S_T}, s{S_T}, s{S_T+1}
    v_lshrrev_b32 v{T+2}, 2, v{T}
    v_mul_u32_u24 v{T+2}, 1152, v{T+2}
    v_and_b32 v{T+3}, 3, v0
    v_lshl_add_u32 v{T+2}, v{T+3}, 4, v{T+2}
    v_lshl_add_u32 v{T+2}, v{T+1}, 3, v{T+2}
    v_add_u32 v{T+2}, s{S_T}, v{T+2}
    v_mov_b32 v{T+3}, 0x{OOB:x}
    v_cmp_gt_u32 vcc, 32, v0
    v_cndmask_b32 v{OA}, v{T+3}, v{T+2}, vcc
    v_add_u32 v{XW}, s{S_B}, v{L16}
    ''')
    a(f'''
    v_lshrrev_b32 v{T}, 5, v0
    v_bfe_u32 v{T+1}, v0, 2, 3
    v_lshl_add_u32 v{T}, v{T}, 4, v{T+1}
    v_mul_u32_u24 v{T}, 1152, v{T}
    v_and_b32 v{T+1}, 3, v0
    v_lshl_add_u32 v{TA}, v{T+1}, 4, v{T}
    v_add_u32 v{TA+1}, {2 * 36864}, v{TA}
    ''')
    for w in range(1, 4):
        a(f's_cmp_eq_u32 s{S_WAVE}, {w}'); a(f's_cbranch_scc1 L_ffn_w{w}')
    vm0 = list(vm.q)
    for w in range(4):
        tl = tiles_of(w)
        def WDF(ti, ks): return 368 + 4 * (ti * 4 + ks)
        a.label(f'L_ffn_w{w}')
        vm.q = list(vm0)
        for st in range(4):
            vm.wait(100 + st)
            a('s_barrier')
            for ti, (P, TT) in enumerate(tl):
                for p in range(2):
                    a(f'ds_read_b64_tr_b16 {ur(WDF(ti, st) + 2*p, 2)}, v{TA + (st >> 1)} offset:{(st % 2) * 36864 + p * 8 * 1152 + P * 64 + TT * 8}')
        a('s_waitcnt lgkmcnt(0)')
        th(a, opt, 4)
        a(f's_mul_i32 s{S_T}, s{S_G}, {2 * PF_SLOT}'); a(f's_mul_i32 s{S_T+1}, s{S_M}, 36864'); a(f's_add_u32 s{S_T}, s{S_T}, s{S_T+1}')
        fill(a, L16, 32, [(S_T, PF + w * 9216), (S_T, PF + PF_SLOT + w * 9216)])
        th(a, opt, 5)
        meet(a, T, (DB_FI, 108, GO_FI), [(GO_FI, 1), (GO_AI, 1)], 'fi')
        tstamp(a, opt, 0)
        a(f's_mov_b32 s{S_SEG}, s{S_G}')
        a(f's_mov_b32 s{S_N}, 0')
        AW = T + 4; HV = 26
        a(f'''
        v_bfe_u32 v{T}, v0, 4, 1
        v_lshlrev_b32 v{T}, 10, v{T}
        v_lshrrev_b32 v{T+1}, 5, v0
        v_lshl_add_u32 v{T}, v{T+1}, 8, v{T}
        v_and_b32 v{T+1}, 15, v0
        v_lshl_add_u32 v{AW}, v{T+1}, 4, v{T}
        ''')
        L = f'L_ffn_l{w}'
        a.label(L)
        a(f's_mul_i32 s{S_OB}, s{S_SEG}, 36864'); a(f's_add_u32 s{S_T+1}, s{S_OB}, {XN2}')
        a(f's_add_u32 s{S_T}, s{S_OB}, {HB + w * 9216}')
        a(f's_bfe_u32 s{S_TAG}, s{S_N}, 0x10001'); a(f's_and_b32 s{S_Q}, s{S_N}, 1')
        a(f's_lshl1_add_u32 s{S_Q}, s{S_G}, s{S_Q}'); a(f's_mul_i32 s{S_Q}, s{S_Q}, {PF_SLOT}'); a(f's_add_u32 s{S_Q}, s{S_Q}, {PF}')
        tk(a, opt, 3)
        spoll(a, None, None, [(1, f's{S_T}')], 'fh', sentinel=True)
        tk(a, opt, 4)
        XL = 32
        def xl(g0):
            for i in range(3 * g0, 9): a(f'buffer_load_dwordx4 {vr(XL+4*i,4)}, v{DO+i}, {WS}, s{S_T+1} offen sc1')
        xl(0)
        for g3 in range(3):
            LX = f'L_ffn_x{w}_{g3}'
            a.label(LX)
            z = [XL + 4 * (3 * g3 + u) for u in range(3)]
            for u in range(3):
                a(f's_waitcnt vmcnt({8 - 3 * g3 - u})')
                a(f'ds_write_b128 v{XW}, {vr(z[u],4)} offset:{1024 * (3 * g3 + u)}')
                if u == 0: a(f'v_max_u32 v{T}, v{z[u]}, v{z[u]+2}')
                else: a(f'v_max3_u32 v{T}, v{T}, v{z[u]}, v{z[u]+2}')
            a(f'v_cmp_eq_u32 vcc, -1, v{T}')
            a(f's_cbranch_vccz {LX}_x')
            retry(a, LX + '_x')
            a('s_waitcnt lgkmcnt(0)')
            xl(g3)
            a(f's_branch {LX}')
            a.label(LX + '_x')
        a('s_waitcnt lgkmcnt(0)')
        a('s_barrier')
        tk(a, opt, 5)
        if opt.get('wst'): a('s_waitcnt lgkmcnt(0)')
        lg = Cnt(a, 'lgkmcnt', 15)
        def rd(kk):
            a(f'ds_read_b128 {vr(XR[kk % 4], 4)}, v{XA + (kk & 3)} offset:{(kk >> 2) * 128}'); lg.issue(kk)
        for kk in range(3): rd(kk)
        a(f's_add_u32 s{S_T}, s{S_OB}, {HB}')
        for kk in range(36):
            lg.wait(kk)
            for m in range(2):
                a(f'{MF32} {vr(ACC[m],16)}, {ur(GU(m,kk),4)}, {vr(XR[kk%4],4)}, {"0" if kk == 0 else vr(ACC[m],16)}')
                if m == 0 and kk + 3 < 36: rd(kk + 3)
            if kk == 8: a(f'buffer_load_dwordx2 {vr(HV,2)}, v{OA}, {WS}, s{S_T} offen sc1')
        g, u = ACC
        tk(a, opt, 6)
        for r in range(16): a(f'v_max_f32 v{g+r}, 0, v{g+r}')
        for b in range(2):
            for r in range(4): a(f'v_pk_mul_f32 {vr(g+8*b+2*r,2)}, {vr(g+8*b+2*r,2)}, {vr(u+8*b+2*r,2)}')
            for d in range(4): a(f'v_cvt_pk_bf16_f32 v{g+8*b+d}, v{g+8*b+2*d}, v{g+8*b+2*d+1}')
            a(f'ds_write_b128 v{AW}, {vr(g+8*b,4)} offset:{ACTL + w * 2048 + b * 512}')
        a('s_waitcnt lgkmcnt(0)')
        a('s_barrier')
        for ks in range(4):
            for tt in range(2):
                a(f'ds_read_b128 {vr(AF+4*(2*ks+tt),4)}, v{L16} offset:{ACTL + ks * 2048 + tt * 1024}'); lg.issue((ks, tt))
        groups = [(gi, tt) for gi in range(5) for tt in range(2)]
        def fin(n):
            gi, tt = groups[n]; q = DA + 8 * (n & 1); P = tl[2 * gi][0]
            a(f's_add_u32 s{S_P}, s{S_Q}, {(tt * 18 + P) * 36864}')
            if gi < 4:
                for d in range(4): a(f'v_cvt_pk_bf16_f32 v{q+d}, v{q+2*d}, v{q+2*d+1}')
                for d in (0, 2): a(f'v_bfi_b32 v{q+d}, 1, s{S_TAG}, v{q+d}')
                a(f'buffer_store_dwordx4 {vr(q,4)}, v{PST}, {WS}, s{S_P} offen sc1')
            else:
                for d in range(2): a(f'v_cvt_pk_bf16_f32 v{q+d}, v{q+2*d}, v{q+2*d+1}')
                a(f'v_bfi_b32 v{q}, 1, s{S_TAG}, v{q}')
                a(f'buffer_store_dwordx2 {vr(q,2)}, v{PST}, {WS}, s{S_P} offen offset:{8*tl[8][1]} sc1')
        for n, (gi, tt) in enumerate(groups):
            for ks in range(4):
                if n < 2: lg.wait((ks, tt))
                for TT in range(2 if gi < 4 else 1):
                    q = DA + 8 * (n & 1) + 4 * TT
                    a(f'{MF} {vr(q,4)}, {ur(WDF(2*gi+TT,ks),4)}, {vr(AF+4*(2*ks+tt),4)}, {"0" if ks == 0 else vr(q,4)}')
                if ks == 1 and n > 0: fin(n - 1)
        fin(9)
        tk(a, opt, 7)
        RA = 68; RR = 32
        def pl(g0):
            for u9 in range(3 * g0, 9):
                a(f's_add_u32 s{S_P}, s{S_Q}, {u9 * 4096}')
                a(f'buffer_load_dwordx4 {vr(RR+4*u9,4)}, v{RB}, {WS}, s{S_P} offen sc1')
        pl(0)
        tk(a, opt, 8)
        for g3 in range(3):
            LF = f'L_ffn_f{w}_{g3}'
            a.label(LF)
            a(f's_waitcnt vmcnt({6 - 3 * g3})')
            z = [RR + 4 * (3 * g3 + u) for u in range(3)]
            for u in range(3): a(f'v_bitop3_b32 v{T+u}, v{z[u]}, v{z[u]+2}, s{S_TAG} bitop3:0x7e')
            a(f'v_or3_b32 v{T}, v{T}, v{T+1}, v{T+2}')
            a(f'v_and_b32 v{T}, 1, v{T}')
            if g3 == 0:
                a(f'v_cmp_eq_u32 vcc, -1, v{HV}'); a(f'v_cndmask_b32 v{T}, v{T}, 1, vcc')
            a(f'v_cmp_eq_u32 vcc, 1, v{T}')
            a(f's_cbranch_vccz {LF}_x')
            retry(a, LF + '_x')
            if g3 == 0: a(f'buffer_load_dwordx2 {vr(HV,2)}, v{OA}, {WS}, s{S_T} offen sc1')
            pl(g3)
            a(f's_branch {LF}')
            a.label(LF + '_x')
            if g3 == 0:
                for d in range(2): a(f'v_lshlrev_b32 v{RA+2*d}, 16, v{HV+d}'); a(f'v_and_b32 v{RA+2*d+1}, 0xffff0000, v{HV+d}')
            if g3 == 2: tk(a, opt, 9)
            for u in range(3): a(f'{MF} {vr(RA,4)}, {vr(SEL,4)}, {vr(z[u],4)}, {vr(RA,4)}')
        tk(a, opt, 10)
        for d in range(2): a(f'v_cvt_pk_bf16_f32 v{RA+d}, v{RA+2*d}, v{RA+2*d+1}')
        a(f'buffer_store_dwordx2 {vr(RA,2)}, v{OA}, {R(OUT)}, s{S_OB} offen')
        tfirst(a, opt, f's_cmp_lt_u32 s{S_SEG}, 3')
        a(f's_add_u32 s{S_SEG}, s{S_SEG}, 3'); a(f's_add_u32 s{S_N}, s{S_N}, 1')
        a(f's_cmp_lt_u32 s{S_SEG}, 64'); a(f's_cbranch_scc1 {L}')
        if opt.get('times'): a('s_waitcnt vmcnt(0)')
        finish(a, opt)

def roles(a, opt):
    a(f's_cmp_ge_u32 s{S_ROLE}, 112'); a('s_cbranch_scc1 L_ffn')
    a(f's_cmp_ge_u32 s{S_ROLE}, 48'); a('s_cbranch_scc1 L_att')
    proj(a, opt); att(a, opt); ffn(a, opt)
```

```python
import sys, json
sys.path.insert(0, 'gen')
from asm import *
from lay import *
import os, importlib, workers
chain = importlib.import_module(os.environ.get('CHAIN', 'chain3'))
NAME = 'sequential_preLN__memory_aug_recurrent_mem_tr__glu_gated_reglu__prompt'

def build(opt):
    a = Asm(); a.timed = opt.get('timed', True)
    DBG = f's[{S_DBG}:{S_DBG+3}]'; WS = f's[{S_WS}:{S_WS+3}]'
    a(f's_cmp_ge_u32 s{S_WG}, 256'); a('s_cbranch_scc1 L_exit')
    if opt.get('times', False): a('s_memrealtime s[62:63]')
    a(f's_load_dwordx4 s[{S_DBG}:{S_DBG+3}], s[0:1], 96')
    a(f's_getreg_b32 s{S_T}, hwreg(HW_REG_XCC_ID)')
    a(f'v_readfirstlane_b32 s{S_WAVE}, v0')
    a(f's_and_b32 s{S_T}, s{S_T}, 15')
    a(f's_lshr_b32 s{S_WAVE}, s{S_WAVE}, 6')
    a('v_and_b32 v0, 63, v0')
    a('s_waitcnt lgkmcnt(0)')
    a(f's_mov_b32 s{S_WS}, s{S_DBG+2}'); a(f's_and_b32 s{S_WS+1}, s{S_DBG+3}, 0xffff')
    a(f's_mov_b32 s{S_WS+2}, {WS_BYTES}'); a(f's_mov_b32 s{S_WS+3}, 0x20000')
    a(f's_and_b32 s{S_DBG+1}, s{S_DBG+1}, 0xffff'); a(f's_mov_b32 s{S_DBG+2}, 256'); a(f's_mov_b32 s{S_DBG+3}, 0x20000')
    if opt.get('force_slow'): a(f's_or_b32 s{S_T}, s{S_T}, {opt["force_slow"]}')
    a(f's_cmp_lg_u32 s{S_WAVE}, 1'); a('s_cbranch_scc1 L_nozero')
    a(f's_cmp_lt_u32 s{S_WG}, {256 - 2 * NZ}'); a('s_cbranch_scc1 L_noticket')
    a(f's_bitcmp0_b32 s{S_WG}, 0'); a('s_cbranch_scc1 L_noticket')
    a('v_mov_b64 v[4:5], 0'); a('v_mov_b64 v[6:7], 0'); a('v_lshlrev_b32 v3, 4, v0')
    a(f's_sub_u32 s{S_T+2}, s{S_WG}, {257 - 2 * NZ}'); a(f's_lshl_b32 s{S_T+2}, s{S_T+2}, 9')
    a(f'buffer_store_dwordx4 v[4:7], v3, {WS}, s{S_T+2} offen sc1')
    a('v_mov_b32 v1, 1')
    a('s_waitcnt vmcnt(0)')
    a('s_mov_b64 exec, 1')
    a(f'buffer_atomic_add v1, off, {DBG}, 0 offset:{DB_Z}')
    a('s_mov_b64 exec, -1')
    a('s_branch L_noticket')
    a.label('L_nozero')
    a(f's_cmp_lg_u32 s{S_WAVE}, 0'); a('s_cbranch_scc1 L_noticket')
    a('v_mov_b32 v2, 0')
    a('s_mov_b64 exec, 1')
    a(f's_cmp_lg_u32 s{S_T}, 0'); a('s_cbranch_scc1 L_wticket')
    a('v_mov_b32 v1, 1')
    a(f'buffer_atomic_add v1, off, {DBG}, 0 offset:{DB_CT} sc0')
    a('s_waitcnt vmcnt(0)')
    a(f'v_readfirstlane_b32 s{S_T+1}, v1')
    a('v_or_b32 v1, 0x10000, v1')
    a(f's_cmp_lt_u32 s{S_T+1}, 32'); a('s_cbranch_scc1 L_ticket')
    a.label('L_wticket')
    a('v_mov_b32 v1, 1')
    a(f'buffer_atomic_add v1, off, {DBG}, 0 offset:{DB_WT} sc0')
    a('s_waitcnt vmcnt(0)')
    a.label('L_ticket')
    a('ds_write_b32 v2, v1')
    a('s_waitcnt lgkmcnt(0)')
    a('s_mov_b64 exec, -1')
    a.label('L_noticket')
    a('s_barrier')
    a('v_mov_b32 v2, 0'); a('ds_read_b32 v1, v2'); a('s_waitcnt lgkmcnt(0)')
    a(f'v_readfirstlane_b32 s{S_T+1}, v1')
    a('s_barrier')
    a(f's_and_b32 s{S_ROLE}, s{S_T+1}, 0xffff')
    a(f's_cmp_ge_u32 s{S_T+1}, 0x10000'); a('s_cbranch_scc1 L_chain')
    NW = opt.get('nworkers', 220)
    a(f's_cmp_lt_u32 s{S_ROLE}, {NW}'); a('s_cbranch_scc1 L_roles')
    a(f's_mov_b32 s{S_T+3}, 0')
    a.label('L_spare')
    a(f'buffer_load_dword v1, off, {DBG}, 0 offset:{DB_CT} sc1')
    a(f'buffer_load_dword v2, off, {DBG}, 0 offset:{DB_WT} sc1')
    a(f's_add_u32 s{S_T+3}, s{S_T+3}, 1')
    a('s_waitcnt vmcnt(0)')
    a(f'v_readfirstlane_b32 s{S_T+2}, v1'); a(f'v_readfirstlane_b32 s{S_T+1}, v2')
    a(f's_cmp_ge_u32 s{S_T+3}, {chain.SPIN}'); a('s_cbranch_scc1 L_exit')
    a(f's_cmp_ge_u32 s{S_T+2}, 32'); a('s_cbranch_scc1 L_exit')
    a(f's_add_u32 s{S_T+1}, s{S_T+1}, s{S_T+2}')
    a(f's_cmp_lt_u32 s{S_T+1}, 256'); a('s_cbranch_scc1 L_spare')
    a(f's_sub_u32 s{S_ROLE}, s{S_ROLE}, {NW}')
    a(f's_add_u32 s{S_ROLE}, s{S_ROLE}, s{S_T+2}')
    a(f's_cmp_lt_u32 s{S_ROLE}, 32'); a('s_cbranch_scc1 L_chain')
    a.label('L_exit')
    a('s_endpgm')
    a.label('L_roles')
    if opt.get('flags'): workers.roles(a, opt)
    else: a('s_endpgm')
    chain.entry(a, opt)
    n = a.fix(verbose=opt.get('verbose', False))
    head = open('cdna_kernels/' + NAME + '.s.ref').read().split('\n')
    hdr = [l for l in head if l.startswith(';') and '@launch' not in l]
    hdr = hdr[:[i for i, l in enumerate(hdr) if 'Override launch' in l][0]]
    out = '\n'.join(hdr) + '\n; @launch grid=(256,1,1) block=(256,1,1) lds=163840\n'
    out += f'''.amdgcn_target "amdgcn-amd-amdhsa--gfx950"
.text
.globl {NAME}_kernel
.p2align 8
.type {NAME}_kernel,@function
{NAME}_kernel:
''' + a.text() + f'''.section .rodata,"a"
.p2align 6
.amdhsa_kernel {NAME}_kernel
  .amdhsa_next_free_vgpr 512
  .amdhsa_next_free_sgpr 102
  .amdhsa_accum_offset 256
  .amdhsa_group_segment_fixed_size 0
  .amdhsa_kernarg_size 112
  .amdhsa_user_sgpr_count 2
  .amdhsa_user_sgpr_kernarg_segment_ptr 1
  .amdhsa_system_sgpr_workgroup_id_x 1
.end_amdhsa_kernel
'''
    return out

if __name__ == '__main__':
    opt = json.loads(sys.argv[2]) if len(sys.argv) > 2 else {}
    open(sys.argv[1], 'w').write(build(opt))
```

```python
from asm import *
from lay import *
SPIN = 1 << 18
S_SEG = 40; S_SPIN = 50; S_P = 51; S_Q = 41; S_B = 42; S_M = 43; S_G = 44; S_OB = 45
S_C = 46
S_MK = 52
S_TM = 64
WS = f's[{S_WS}:{S_WS+3}]'; DBG = f's[{S_DBG}:{S_DBG+3}]'
MF32 = 'v_mfma_f32_32x32x16_bf16'; MF = 'v_mfma_f32_16x16x32_bf16'; MH = 'v_mfma_f32_16x16x16_bf16'
def R(i): return f's[{i}:{i+3}]'

def srd_fix(a, r, nbytes):
    a(f's_and_b32 s{r+1}, s{r+1}, 0xffff'); a(f's_mov_b32 s{r+2}, {nbytes}'); a(f's_mov_b32 s{r+3}, 0x20000')

def poll(a, vaddr, srd, soff, sval, tmp, name, imm=0):
    lab = a.newlabel('L_' + name)
    a.label(lab)
    if vaddr is None: a(f'buffer_load_dword v{tmp}, off, {srd}, {soff} offset:{imm} sc1')
    else: a(f'buffer_load_dword v{tmp}, v{vaddr}, {srd}, {soff} offen offset:{imm} sc1')
    a(f's_add_u32 s{S_SPIN}, s{S_SPIN}, 1')
    a(f's_cmp_ge_u32 s{S_SPIN}, {SPIN}')
    a('s_waitcnt vmcnt(0)')
    a(f's_cbranch_scc1 {lab}_x')
    a(f'v_cmp_ge_u32 vcc, {sval}, v{tmp}')
    a(f's_cbranch_vccnz {lab}')
    a.label(lab + '_x')

S_FP = 48; S_FC = 49; S_TAG = 60; S_SL = 61; S_FA = 92
S_N = 95; S_FV = 96
def spoll(a, cache, need, loads, name, sentinel=False):
    lab = a.newlabel('L_' + name)
    if not sentinel: a(f's_cmp_ge_u32 s{cache}, {need}'); a(f's_cbranch_scc1 {lab}_x')
    a.label(lab)
    r = S_FV; regs = []
    for n, off in loads:
        a(f's_load_dword{"" if n == 1 else "x%d" % n} {sr(r, n)}, s[{S_WS}:{S_WS+1}], {off} glc')
        regs += list(range(r, r + n)); r += n
    a(f's_add_u32 s{S_SPIN}, s{S_SPIN}, 1')
    a(f's_cmp_ge_u32 s{S_SPIN}, {SPIN}'); a(f's_cbranch_scc1 {lab}_y')
    a('s_waitcnt lgkmcnt(0)')
    if sentinel:
        a(f's_cmp_eq_u32 s{S_FV}, -1')
    else:
        if len(regs) == 1: a(f's_mov_b32 s{cache}, s{regs[0]}')
        else:
            a(f's_min_u32 s{cache}, s{regs[0]}, s{regs[1]}')
            for x in regs[2:]: a(f's_min_u32 s{cache}, s{cache}, s{x}')
        a(f's_cmp_lt_u32 s{cache}, {need}')
    a(f's_cbranch_scc1 {lab}')
    a.label(lab + '_y')
    a('s_waitcnt lgkmcnt(0)')
    a.label(lab + '_x')

def dpoll(a, T, words, name):
    for off, need in words: poll(a, None, DBG, 0, str(need - 1), T, name, off)

def count(a, T, cnt, total, go):
    lab = a.newlabel('L_cnt')
    a(f'v_mov_b32 v{T}, 1'); a('s_mov_b64 exec, 1')
    a(f'buffer_atomic_add v{T}, off, {DBG}, 0 offset:{cnt} sc0')
    a('s_waitcnt vmcnt(0)')
    a(f'v_readfirstlane_b32 s{S_P}, v{T}')
    a(f'v_mov_b32 v{T}, 1')
    a(f's_cmp_lg_u32 s{S_P}, {total - 1}'); a(f's_cbranch_scc1 {lab}')
    a(f'buffer_store_dword v{T}, off, {DBG}, 0 offset:{go} sc1')
    a.label(lab)
    a('s_mov_b64 exec, -1')

def meet(a, T, cnt, words, name):
    lab = a.newlabel('L_meet')
    if cnt:
        a('s_waitcnt vmcnt(0)')
        a('s_barrier')
    a(f's_cmp_lg_u32 s{S_WAVE}, 0'); a(f's_cbranch_scc1 {lab}')
    if cnt: count(a, T, *cnt)
    dpoll(a, T, words, name)
    a.label(lab)
    if words: a('s_barrier')

def fill(a, L16, T, sbases):
    a(f'v_mov_b64 {vr(T,2)}, -1'); a(f'v_mov_b64 {vr(T+2,2)}, -1')
    for sb, base in sbases:
        for i in range(9):
            if i % 4 == 0: a(f's_add_u32 s{S_P}, s{sb}, {base + i * 1024}')
            a(f'buffer_store_dwordx4 {vr(T,4)}, v{L16}, {WS}, s{S_P} offen offset:{(i & 3) * 1024} sc1')

def retry(a, lab_ok):
    a(f's_add_u32 s{S_SPIN}, s{S_SPIN}, 1')
    a(f's_cmp_ge_u32 s{S_SPIN}, {SPIN}'); a(f's_cbranch_scc1 {lab_ok}')

def tstamp(a, opt, i):
    if opt.get('times'): a(f's_memrealtime s[{S_TM+2*i}:{S_TM+2*i+1}]'); a('s_waitcnt lgkmcnt(0)')
def tk(a, opt, i):
    if opt.get('wst'): a(f's_memrealtime s[{S_TM+2*i}:{S_TM+2*i+1}]')
def th(a, opt, i):
    if opt.get('hst'): a(f's_memrealtime s[{S_TM+2*i}:{S_TM+2*i+1}]'); a('s_waitcnt lgkmcnt(0)')
def tfirst(a, opt, first_cond):
    if opt.get('times'):
        lab = a.newlabel('L_tf'); a(first_cond); a(f's_cbranch_scc0 {lab}'); tstamp(a, opt, 1); a.label(lab)
def finish(a, opt):
    if opt.get('times'):
        tstamp(a, opt, 2)
        a(f's_add_u32 s{S_T}, s{S_ROLE}, 32'); a(f's_lshl_b32 s{S_T}, s{S_T}, 2'); a(f's_add_u32 s{S_T}, s{S_T}, s{S_WAVE}')
        a(f's_lshl_b32 s{S_T}, s{S_T}, 6'); a(f's_add_u32 s{S_T}, s{S_T}, {TIMES}')
        for i, r in enumerate([62] + [S_TM + 2 * k for k in range(14)]):
            a(f'v_mov_b32 v1, s{r}'); a(f'buffer_store_dword v1, off, {WS}, s{S_T} offset:{4*i}')
        if opt.get('dbgt'):
            a('s_mov_b64 exec, 1')
            a('s_not_b32 s63, s62')
            for r, o in ((63, 32), (62, 48), (S_TM + 4, 44), (S_TM, 52), (S_TM + 2, 56)):
                a(f'v_mov_b32 v1, s{r}'); a(f'buffer_atomic_umax v1, off, {DBG}, 0 offset:{o}')
    a('s_endpgm')

def x_consts(a, DO, XA, T):
    a(f's_mul_i32 s{S_T}, s{S_WAVE}, 576')
    a(f's_mov_b32 s{S_T+1}, 58255')
    for i in range(9):
        a(f'''
        v_add_u32 v{T}, s{S_T}, v0
        v_add_u32 v{T}, {64*i}, v{T}
        v_mul_lo_u32 v{T+1}, v{T}, s{S_T+1}
        v_lshrrev_b32 v{T+1}, 22, v{T+1}
        v_mul_u32_u24 v{T+2}, 72, v{T+1}
        v_sub_u32 v{T+2}, v{T}, v{T+2}
        v_bfe_u32 v{T+3}, v{T+1}, 1, 3
        v_xor_b32 v{T+2}, v{T+2}, v{T+3}
        v_mul_u32_u24 v{T+1}, 1152, v{T+1}
        v_lshl_add_u32 v{DO+i}, v{T+2}, 4, v{T+1}
        ''')
    a(f'''
    v_and_b32 v{T}, 31, v0
    v_lshrrev_b32 v{T+1}, 5, v0
    v_bfe_u32 v{T+2}, v{T}, 1, 3
    v_mul_u32_u24 v{T}, 1152, v{T}
    ''')
    for m in range(4):
        a(f'v_add_u32 v{T+3}, {2*m}, v{T+1}'); a(f'v_xor_b32 v{T+3}, v{T+3}, v{T+2}'); a(f'v_lshl_add_u32 v{XA+m}, v{T+3}, 4, v{T}')
assert all((x * 58255) >> 22 == x // 72 for x in range(2304))

def x_dma(a, DO, soff, sbuf):
    for i in range(9):
        if i == 0: a(f's_mov_b32 m0, s{sbuf}')
        else: a(f's_add_u32 m0, s{sbuf}, {1024*i}')
        a(f'buffer_load_dwordx4 v{DO+i}, {WS}, s{soff} offen sc1 lds')

def sel(a, dst, T, mode):
    a(f'v_and_b32 v{T}, 15, v0')
    if mode == 'hi': a(f'v_xor_b32 v{T}, 8, v{T}')
    if mode == 'dup': a(f'v_and_b32 v{T}, 7, v{T}')
    a(f'v_and_b32 v{T+1}, 1, v{T}'); a(f'v_lshlrev_b32 v{T+1}, 4, v{T+1}')
    a(f'v_mov_b32 v{T+2}, 0x3f80'); a(f'v_lshlrev_b32 v{T+2}, v{T+1}, v{T+2}')
    a(f'v_lshrrev_b32 v{T}, 1, v{T}')
    for d in range(4):
        a(f'v_cmp_eq_u32 vcc, {d}, v{T}'); a(f'v_cndmask_b32 v{dst+d}, 0, v{T+2}, vcc')

def proj(a, opt):
    DO = 1; XA = 10; ST = 14; TA = 15; ACC = [16, 32]; XR = [48, 52, 56, 60]; T = 64; FV = 70
    def W(kk, cb): return ur(224 + 8 * kk + 4 * cb, 4)
    a.label('L_proj')
    a(f's_load_dwordx4 s[{S_R1}:{S_R1+3}], s[0:1], 16')
    a(f's_load_dwordx2 s[{S_R2}:{S_R2+1}], s[0:1], 32')
    a(f's_mov_b32 s{S_SPIN}, 0')
    a('s_waitcnt lgkmcnt(0)')
    a(f's_and_b32 s{S_T+2}, s{S_WAVE}, 1')
    a(f's_cmp_lt_u32 s{S_ROLE}, 32'); a('s_cbranch_scc1 L_proj_kv')
    a(f's_mov_b32 s{S_R0}, s{S_R1}'); a(f's_mov_b32 s{S_R0+1}, s{S_R1+1}')
    a(f's_sub_u32 s{S_T}, s{S_ROLE}, 32'); a(f's_lshl_b32 s{S_T}, s{S_T}, 1'); a(f's_lshr_b32 s{S_T+1}, s{S_WAVE}, 1'); a(f's_add_u32 s{S_T}, s{S_T}, s{S_T+1}')
    a(f's_mov_b32 s{S_OB}, {QX}'); a(f's_mov_b32 s{S_G}, 0')
    a('s_branch L_proj_j')
    a.label('L_proj_kv')
    a(f's_mov_b32 s{S_T}, s{S_ROLE}')
    a(f's_cmp_ge_u32 s{S_WAVE}, 2'); a('s_cbranch_scc1 L_proj_v')
    a(f's_mov_b32 s{S_R0}, s{S_R1+2}'); a(f's_mov_b32 s{S_R0+1}, s{S_R1+3}')
    a(f's_mov_b32 s{S_OB}, {KX}'); a(f's_mov_b32 s{S_G}, 0')
    a('s_branch L_proj_j')
    a.label('L_proj_v')
    a(f's_mov_b32 s{S_R0}, s{S_R2}'); a(f's_mov_b32 s{S_R0+1}, s{S_R2+1}')
    a(f's_mov_b32 s{S_OB}, {VX}'); a(f's_mov_b32 s{S_G}, 1')
    a.label('L_proj_j')
    srd_fix(a, S_R0, 4718592)
    a(f's_lshl_b32 s{S_T+1}, s{S_T}, 13'); a(f's_add_u32 s{S_OB}, s{S_OB}, s{S_T+1}')
    a(f's_add_u32 s{S_T+3}, s{S_G}, 11'); a(f's_lshl_b32 s{S_T+1}, s{S_T+2}, s{S_T+3}'); a(f's_add_u32 s{S_OB}, s{S_OB}, s{S_T+1}')
    a(f's_lshl_b32 s{S_T}, s{S_T}, 8'); a(f's_lshl_b32 s{S_T+2}, s{S_T+2}, 7'); a(f's_add_u32 s{S_T}, s{S_T}, s{S_T+2}')
    a(f's_lshl_b32 s{S_B}, s{S_WAVE}, 15')
    a(f'''
    v_lshrrev_b32 v{T}, 3, v0
    v_and_b32 v{T+1}, 7, v0
    v_lshlrev_b32 v{T}, 13, v{T}
    v_lshl_add_u32 v{T}, v{T+1}, 4, v{T}
    v_add_u32 v{FV+1}, s{S_T}, v{T}
    ''')
    vm = Cnt(a, 'vmcnt', 63)
    def dma(i):
        a(f's_add_u32 m0, s{S_B}, {(i % 32) * 1024}'); a(f's_mov_b32 s{S_P}, {i * 65536}')
        a(f'buffer_load_dwordx4 v{FV+1}, {R(S_R0)}, s{S_P} offen lds'); vm.issue(i)
    for i in range(32): dma(i)
    a(f'''
    v_lshrrev_b32 v{T}, 5, v0
    v_bfe_u32 v{T+1}, v0, 2, 2
    v_lshl_add_u32 v{T}, v{T}, 3, v{T+1}
    v_lshlrev_b32 v{T}, 7, v{T}
    v_bfe_u32 v{T+1}, v0, 4, 1
    v_lshl_add_u32 v{T}, v{T+1}, 5, v{T}
    v_and_b32 v{T+1}, 3, v0
    v_lshl_add_u32 v{T}, v{T+1}, 3, v{T}
    v_add_u32 v{TA}, s{S_B}, v{T}
    ''')
    x_consts(a, DO, XA, T)
    a(f's_lshl_b32 s{S_T}, s{S_G}, 1'); a(f's_sub_u32 s{S_T}, 12, s{S_T}')
    a(f'''
    v_bfe_u32 v{T}, v0, 4, 1
    v_lshlrev_b32 v{T}, s{S_T}, v{T}
    v_lshrrev_b32 v{T+1}, 5, v0
    v_lshl_add_u32 v{T}, v{T+1}, 8, v{T}
    v_and_b32 v{T+1}, 15, v0
    v_lshl_add_u32 v{ST}, v{T+1}, 4, v{T}
    ''')
    for kk in range(36):
        vm.wait(2 * kk + 1)
        for cb in range(2):
            for p in range(2):
                a(f'ds_read_b64_tr_b16 {ur(224 + 8*kk + 4*cb + 2*p, 2)}, v{TA} offset:{(kk % 16) * 2048 + p * 512 + cb * 64}')
        if kk >= 1 and 2 * (kk - 1) + 32 < 72:
            a('s_waitcnt lgkmcnt(4)')
            dma(2 * (kk - 1) + 32); dma(2 * (kk - 1) + 33)
    a('s_waitcnt lgkmcnt(0)')
    th(a, opt, 3)
    meet(a, T, (DB_P, 48, GO_P), [(DB_Z, NZ), (GO_X, 1)], 'pw')
    tstamp(a, opt, 0)
    a(f's_mul_i32 s{S_B}, s{S_WAVE}, 9216')
    a(f's_mov_b32 s{S_Q}, {XN}')
    x_dma(a, DO, S_Q, S_B)
    a(f's_mov_b32 s{S_SEG}, 0')
    a(f's_lshl_b32 s{S_M}, s{S_ROLE}, 7'); a(f's_lshl_b32 s{S_T}, s{S_WAVE}, 2'); a(f's_add_u32 s{S_M}, s{S_M}, s{S_T}'); a(f's_add_u32 s{S_M}, s{S_M}, {flag(F_PROJ)}')
    STR = 72
    a(f'v_mov_b32 v{STR}, v{ST}'); a(f'v_mov_b32 v{ST}, 0x{OOB:x}')
    a(f's_sub_u32 s{S_OB}, s{S_OB}, {32 * 8192}')
    a('s_waitcnt vmcnt(0)')
    a(f's_cmp_eq_u32 s{S_G}, 1'); a('s_cbranch_scc1 L_proj_lv')
    ACCS = [[16, 32], [80, 96]]
    for isv in range(2):
        L = 'L_proj_lv' if isv else 'L_proj_lk'
        def epi(acc, cb, b):
            q = acc[cb]
            src = [[0, 2, 8, 10], [4, 6, 12, 14]] if isv else [[0, 2, 4, 6], [8, 10, 12, 14]]
            for d in range(4): a(f'v_cvt_pk_bf16_f32 v{q+4*b+d}, v{q+src[b][d]}, v{q+src[b][d]+1}')
            a(f'buffer_store_dwordx4 {vr(q+4*b,4)}, v{ST}, {WS}, s{S_OB} offen offset:{cb * (2048 if isv else 1024) + b * 512} sc1')
        a.label(L)
        for par in range(2):
            acc = ACCS[par]
            a('s_waitcnt vmcnt(1)')
            a('s_barrier')
            lg = Cnt(a, 'lgkmcnt', 15)
            def rd(kk):
                a(f'ds_read_b128 {vr(XR[kk % 4], 4)}, v{XA + (kk & 3)} offset:{(kk >> 2) * 128}'); lg.issue(kk)
            for kk in range(3): rd(kk)
            a(f's_cmp_lt_u32 s{S_SEG}, 63'); a(f's_cselect_b32 s{S_T}, 36864, 0'); a(f's_add_u32 s{S_Q}, s{S_Q}, s{S_T}')
            a(f's_xor_b32 s{S_B}, s{S_B}, 0x10000')
            for kk in range(36):
                lg.wait(kk)
                for cb in range(2):
                    c = '0' if kk == 0 else vr(acc[cb], 16)
                    x = vr(XR[kk % 4], 4)
                    if isv: a(f'{MF32} {vr(acc[cb],16)}, {x}, {W(kk,cb)}, {c}')
                    else: a(f'{MF32} {vr(acc[cb],16)}, {W(kk,cb)}, {x}, {c}')
                    if cb == 0 and kk + 3 < 36: rd(kk + 3)
                if 1 <= kk <= 4: epi(ACCS[par ^ 1], (kk - 1) >> 1, (kk - 1) & 1)
                if 5 <= kk <= 13:
                    i = kk - 5
                    a(f's_add_u32 m0, s{S_B}, {1024*i}')
                    a(f'buffer_load_dwordx4 v{DO+i}, {WS}, s{S_Q} offen sc1 lds')
                if kk == 5 and par == 1: tfirst(a, opt, f's_cmp_eq_u32 s{S_SEG}, 1')
                if kk == opt.get('pfk', 22):
                    a('s_waitcnt vmcnt(9)')
                    a(f'v_mov_b32 v{FV}, s{S_SEG}')
                    a(f'buffer_store_dword v{FV}, off, {WS}, s{S_M} sc1')
                if kk == 33:
                    for m in range(4): a(f'v_xor_b32 v{XA+m}, 0x10000, v{XA+m}')
                if kk == 34:
                    a(f'v_mov_b32 v{ST}, v{STR}')
                    a(f's_add_u32 s{S_OB}, s{S_OB}, {32 * 8192}')
                    a(f's_add_u32 s{S_SEG}, s{S_SEG}, 1')
            if par == 1: a(f's_cmp_lt_u32 s{S_SEG}, 64'); a(f's_cbranch_scc1 {L}')
        for cb in range(2):
            for b in range(2): epi(ACCS[1], cb, b)
        if not isv: a('s_branch L_proj_end')
    a.label('L_proj_end')
    a('s_waitcnt vmcnt(0)')
    a(f'v_mov_b32 v{FV}, 64')
    a(f'buffer_store_dword v{FV}, off, {WS}, s{S_M} sc1')
    finish(a, opt)

def tiles_of(w):
    b = 9 * (w >> 1)
    if w & 1 == 0: return [(b + i, T) for i in range(4) for T in range(2)] + [(b + 4, 0)]
    return [(b + 5 + i, T) for i in range(4) for T in range(2)] + [(b + 4, 1)]

def row_stage_dma(a, srd, L16, st, sbase, vm, tag):
    for i in range(9):
        a(f's_add_u32 m0, s{S_B}, {(st % 4) * 36864 + (i & ~3) * 1024}') if i % 4 == 0 else None
        if i % 4 == 0: a(f's_add_u32 s{S_P}, s{sbase}, {st * 36864 + i * 1024}')
        a(f'buffer_load_dwordx4 v{L16}, {R(srd)}, s{S_P} offen offset:{(i & 3) * 1024} lds'); vm.issue(tag)

def allreduce(a, v, t, op='v_add_f32', lanes=64):
    for d in ('quad_perm:[1,0,3,2]', 'quad_perm:[2,3,0,1]', 'row_half_mirror', 'row_mirror')[:3 if lanes == 8 else 4]:
        a(f'{op}_dpp v{v}, v{v}, v{v} {d} row_mask:0xf bank_mask:0xf')
    if lanes == 64:
        for sw in ('v_permlane16_swap_b32', 'v_permlane32_swap_b32'):
            a(f'v_mov_b32 v{t}, v{v}'); a(f'{sw} v{v}, v{t}'); a(f'{op} v{v}, v{v}, v{t}')

def att(a, opt):
    L16, KMA, L8, PST, RB, XO, XO2, RB4, XO4, T = 1, 2, 3, 4, 5, 6, 7, 8, 9, 10
    Q = 16; K = 32; V = 64; KMF = 96; VMF = 112; SM, S0, S1 = 120, 124, 128; PX = 132; PM = 136; ONE = 140; SUM = 144
    O = 148; OF = 148; ACC = 96
    SLO, SHI = 212, 216
    RR = 128
    XX, WO_ = S_R0, S_R1
    a.label('L_att')
    a(f's_load_dwordx2 s[{XX}:{XX+1}], s[0:1], 0')
    a(f's_load_dwordx2 s[{WO_}:{WO_+1}], s[0:1], 40')
    a(f's_mov_b32 s{S_SPIN}, 0')
    a(f's_sub_u32 s{S_T}, s{S_ROLE}, 48'); a(f's_and_b32 s{S_M}, s{S_T}, 15'); a(f's_lshr_b32 s{S_G}, s{S_T}, 4')
    a(f'v_lshlrev_b32 v{L16}, 4, v0')
    a('s_waitcnt lgkmcnt(0)')
    srd_fix(a, XX, 2359296); srd_fix(a, WO_, 4718592)
    X = 16; Fp = 64
    a(f's_mul_i32 s{S_Q}, s{S_T}, 36864'); a(f's_mul_i32 s{S_B}, s{S_WAVE}, 9216'); a(f's_add_u32 s{S_Q}, s{S_Q}, s{S_B}')
    a(f'v_lshrrev_b32 v{T}, 3, v0'); a(f'v_mul_u32_u24 v{T}, 1152, v{T}'); a(f'v_and_b32 v{T+1}, 7, v0'); a(f'v_lshl_add_u32 v{T}, v{T+1}, 4, v{T}')
    vm = Cnt(a, 'vmcnt', 63)
    for i in range(9): a(f'buffer_load_dwordx4 {vr(X+4*i,4)}, v{T}, {R(XX)}, s{S_Q} offen offset:{128*i}'); vm.issue('x')
    a(f's_mul_i32 s{S_OB}, s{S_M}, {2 * 147456}'); a(f's_add_u32 s{S_OB}, s{S_OB}, s{S_B}')
    vm.wait('x')
    th(a, opt, 3)
    for i in range(36):
        a(f'v_lshlrev_b32 v{Fp+2*i}, 16, v{X+i}'); a(f'v_and_b32 v{Fp+2*i+1}, 0xffff0000, v{X+i}')
    A4 = [T + 2, T + 3, T + 4, T + 5]
    for i in range(72):
        if i < 4: a(f'v_add_f32 v{A4[i]}, v{Fp+i}, v{Fp+i+4}')
        elif i >= 8: a(f'v_add_f32 v{A4[i&3]}, v{A4[i&3]}, v{Fp+i}')
    a(f'v_add_f32 v{A4[0]}, v{A4[0]}, v{A4[1]}'); a(f'v_add_f32 v{A4[2]}, v{A4[2]}, v{A4[3]}'); a(f'v_add_f32 v{A4[0]}, v{A4[0]}, v{A4[2]}')
    allreduce(a, A4[0], T + 1, lanes=8)
    a(f'v_mul_f32 v{T+1}, 0x{0x3ae38e39:x}, v{A4[0]}')
    for i in range(72): a(f'v_sub_f32 v{Fp+i}, v{Fp+i}, v{T+1}')
    for i in range(72):
        if i < 4: a(f'v_mul_f32 v{A4[i]}, v{Fp+i}, v{Fp+i}')
        else: a(f'v_fmac_f32 v{A4[i&3]}, v{Fp+i}, v{Fp+i}')
    a(f'v_add_f32 v{A4[0]}, v{A4[0]}, v{A4[1]}'); a(f'v_add_f32 v{A4[2]}, v{A4[2]}, v{A4[3]}'); a(f'v_add_f32 v{A4[0]}, v{A4[0]}, v{A4[2]}')
    allreduce(a, A4[0], T + 1, lanes=8)
    a(f'v_mov_b32 v{T+1}, 0x{0x3727c5ac:x}')
    a(f'v_fmac_f32 v{T+1}, 0x{0x3ae38e39:x}, v{A4[0]}')
    a(f'v_rsq_f32 v{T+1}, v{T+1}')
    for i in range(72): a(f'v_mul_f32 v{Fp+i}, v{T+1}, v{Fp+i}')
    for i in range(36): a(f'v_cvt_pk_bf16_f32 v{X+i}, v{Fp+2*i}, v{Fp+2*i+1}')
    a(f's_add_u32 s{S_Q}, s{S_Q}, {XN}')
    for i in range(9): a(f'buffer_store_dwordx4 {vr(X+4*i,4)}, v{T}, {WS}, s{S_Q} offen offset:{128*i} sc1'); vm.issue('xs')
    th(a, opt, 4)
    GATE = {'p': [(GO_P, 1)], 'c': [(GO_C, 1)], None: []}
    meet(a, T + 4, (DB_X, 64, GO_X), GATE[opt.get('gate_att')], 'ga')
    vm.reset()
    th(a, opt, 5)
    for st in range(4): row_stage_dma(a, WO_, L16, st, S_OB, vm, st)
    for w in range(1, 4):
        a(f's_cmp_eq_u32 s{S_WAVE}, {w}'); a(f's_cbranch_scc1 L_att_w{w}')
    vm0 = list(vm.q)
    for w in range(4):
        hh, qt = w >> 1, w & 1
        tl = tiles_of(w)
        def WOF(ti, k8): return ur(224 + 4 * (ti * 8 + k8), 4)
        a.label(f'L_att_w{w}')
        vm.q = list(vm0)
        TA = T + 2
        a(f'v_lshrrev_b32 v{TA}, 2, v0'); a(f'v_mul_u32_u24 v{TA}, 1152, v{TA}'); a(f'v_and_b32 v{T+3}, 3, v0'); a(f'v_lshl_add_u32 v{TA}, v{T+3}, 4, v{TA}')
        a(f'v_add_u32 v{TA+1}, {2 * 36864}, v{TA}')
        for st in range(8):
            vm.wait(st)
            a('s_barrier')
            for ti, (P, TT) in enumerate(tl):
                for p in range(2):
                    off = (st % 2) * 36864 + p * 16 * 1152 + P * 64 + TT * 8
                    a(f'ds_read_b64_tr_b16 {ur(224 + 4*(ti*8+st) + 2*p, 2)}, v{TA + ((st % 4) >> 1)} offset:{off}')
            a('s_waitcnt lgkmcnt(0)')
            if st < 4:
                a('s_barrier')
                row_stage_dma(a, WO_, L16, st + 4, S_OB, vm, st + 4)
        th(a, opt, 6)
        red = qt == 0
        a(f'''
        v_and_b32 v{T}, 15, v0
        v_lshrrev_b32 v{T+1}, 4, v0
        v_lshrrev_b32 v{T+2}, 2, v{T}
        v_and_b32 v{T+3}, 1, v0
        v_lshl_add_u32 v{T+4}, v{T+2}, 1, v{T+3}
        v_lshlrev_b32 v{T+4}, 4, v{T+4}
        v_lshl_add_u32 v{KMA}, v{T+1}, 7, v{T+4}
        v_lshlrev_b32 v{L8}, 3, v0
        v_lshrrev_b32 v{T+4}, 1, v{T}
        v_mul_u32_u24 v{T+4}, 36864, v{T+4}
        v_lshl_add_u32 v{T+4}, v{T+3}, 6, v{T+4}
        v_lshl_add_u32 v{T+4}, v{T+1}, 4, v{T+4}
        s_mul_i32 s{S_T}, s{S_M}, 2304
        v_add_u32 v{PST}, s{S_T}, v{T+4}
        ''')
        if red:
            a(f'''
            v_mul_u32_u24 v{T+4}, 2304, v{T+1}
            v_and_b32 v{T+5}, 3, v0
            v_lshl_add_u32 v{T+4}, v{T+5}, 4, v{T+4}
            s_mul_i32 s{S_T}, s{S_M}, 36864
            s_add_u32 s{S_T}, s{S_T}, {64 * hh}
            v_add_u32 v{T+4}, s{S_T}, v{T+4}
            v_lshl_add_u32 v{RB}, v{T+2}, 7, v{T+4}
            v_and_b32 v{RB4}, 1, v{T+2}
            v_lshl_add_u32 v{RB4}, v{RB4}, 7, v{T+4}
            s_mul_i32 s{S_T}, s{S_M}, 2304
            s_add_u32 s{S_T}, s{S_T}, {1152 * hh}
            v_lshlrev_b32 v{T+5}, 4, v{T+5}
            v_add_u32 v{T+5}, s{S_T}, v{T+5}
            v_lshrrev_b32 v{T+4}, 1, v{T+2}
            v_mul_u32_u24 v{T+4}, 9, v{T+4}
            v_and_b32 v{T+3}, 1, v{T+2}
            v_mul_u32_u24 v{T}, 5, v{T+3}
            v_add_u32 v{T+4}, v{T+4}, v{T}
            v_lshrrev_b32 v{T}, 1, v{T+1}
            v_add_u32 v{T+4}, v{T+4}, v{T}
            v_lshl_add_u32 v{T+4}, v{T+4}, 6, v{T+5}
            v_and_b32 v{T+1}, 1, v{T+1}
            v_lshl_add_u32 v{XO}, v{T+1}, 3, v{T+4}
            v_lshl_add_u32 v{XO4}, v{T+1}, 7, v{T+4}
            v_mul_u32_u24 v{T+3}, 576, v{T+3}
            v_add_u32 v{T+3}, 256, v{T+3}
            v_add_u32 v{T+3}, v{T+3}, v{T+5}
            v_lshl_add_u32 v{T+3}, v{T+1}, 3, v{T+3}
            s_mov_b32 s{S_T}, 0x00ff00ff
            s_mov_b32 s{S_T+1}, 0
            v_mov_b32 v{T+4}, 0x{OOB:x}
            v_cndmask_b32 v{XO2}, v{T+4}, v{T+3}, s[{S_T}:{S_T+1}]
            ''')
            sel(a, SLO, T, 'lo'); sel(a, SHI, T, 'hi')
        a(f'''
        s_lshl_b32 s{S_T}, s{S_M}, 8
        s_add_u32 s{S_FA}, s{S_T}, {flag(F_PROJ + hh)}
        s_add_u32 s{S_FA+2}, s{S_T}, {flag(F_CHAIN + hh)}
        s_lshl_b32 s{S_T}, s{S_M}, 7
        s_add_u32 s{S_FA+1}, s{S_T}, {flag(F_PROJ + 32) + 8 * hh}
        s_mov_b32 s{S_FP}, 0
        s_mov_b32 s{S_FC}, 0
        ''')
        for r in range(4):
            mk = sum(1 << l for l in range(64) if 4 * (l >> 4) + r <= (l & 15))
            a(f's_mov_b32 s{S_MK+2*r}, 0x{mk & 0xffffffff:x}'); a(f's_mov_b32 s{S_MK+2*r+1}, 0x{mk >> 32:x}')
        a(f's_mov_b32 s{S_C}, 0x3e0293ee'); a(f's_mov_b32 s{S_C+1}, 0xbe0293ee')
        a(f's_mul_i32 s{S_T}, s{S_G}, {2 * PA_SLOT}'); a(f's_mul_i32 s{S_T+1}, s{S_M}, 36864'); a(f's_add_u32 s{S_T}, s{S_T}, s{S_T+1}')
        a(f's_sub_u32 s{S_T+1}, s{S_ROLE}, 48'); a(f's_mul_i32 s{S_T+1}, s{S_T+1}, 36864')
        fill(a, L16, 16, [(S_T, PA + w * 9216), (S_T, PA + PA_SLOT + w * 9216), (S_T + 1, HB + w * 9216), (S_T + 1, XN2 + w * 9216)])
        th(a, opt, 7)
        meet(a, T, (DB_AI, 64, GO_AI), [(DB_Z, NZ), (GO_AI, 1)], 'ai')
        tstamp(a, opt, 0)
        a(f's_mov_b32 s{S_SEG}, s{S_G}')
        a(f's_mov_b32 s{S_B}, 0')
        def qkv(step):
            a(f's_add_u32 s{S_N}, s{S_SEG}, {step + 1}')
            spoll(a, S_FP, f's{S_N}', [(4, f's{S_FA}'), (2, f's{S_FA+1}')], 'ap')
            a(f's_lshl_b32 s{S_T}, s{S_SEG}, 5'); a(f's_lshl1_add_u32 s{S_T}, s{S_M}, s{S_T}'); a(f's_add_u32 s{S_T}, s{S_T}, {32 * step + hh}')
            a(f's_lshl_b32 s{S_T}, s{S_T}, 13')
            a(f's_add_u32 s{S_P}, s{S_T}, {QX + qt * 4096}')
            for ks in range(4): a(f'buffer_load_dwordx4 {vr(Q+4*ks,4)}, v{L16}, {WS}, s{S_P} offen offset:{1024*ks} sc1')
            for kt in range(qt + 1):
                a(f's_add_u32 s{S_P}, s{S_T}, {KX + kt * 4096}')
                for ks in range(4): a(f'buffer_load_dwordx4 {vr(K+16*kt+4*ks,4)}, v{L16}, {WS}, s{S_P} offen offset:{1024*ks} sc1')
            for hf in range(2):
                a(f's_add_u32 s{S_P}, s{S_T}, {VX + hf * 4096}')
                for u in range(4): a(f'buffer_load_dwordx4 {vr(V+16*hf+4*u,4)}, v{L16}, {WS}, s{S_P} offen offset:{1024*u} sc1')
        qkv(0)
        L = f'L_att_l{w}'
        a.label(L)
        vm.reset()
        a(f's_lshl_b32 s{S_Q}, s{S_SEG}, 5'); a(f's_lshl1_add_u32 s{S_Q}, s{S_M}, s{S_Q}'); a(f's_add_u32 s{S_Q}, s{S_Q}, {hh}')
        a(f's_lshl_b32 s{S_Q}, s{S_Q}, 11')
        a(f's_lshr_b32 s{S_T}, s{S_SEG}, 2'); a(f's_bfe_u32 s{S_TAG}, s{S_T}, 0x10001'); a(f's_and_b32 s{S_T}, s{S_T}, 1')
        a(f's_lshl1_add_u32 s{S_T}, s{S_G}, s{S_T}'); a(f's_mul_i32 s{S_OB}, s{S_T}, {PA_SLOT}'); a(f's_add_u32 s{S_OB}, s{S_OB}, {PA}')
        a(f'v_mov_b32 v{ONE}, 0x3f803f80'); a(f'v_mov_b32 v{ONE+1}, 0x3f803f80'); a(f'v_mov_b64 {vr(ONE+2,2)}, {vr(ONE,2)}')
        a(f'v_mov_b64 {vr(PM,2)}, 0'); a(f'v_mov_b64 {vr(PM+2,2)}, 0')
        if qt == 0: a(f'v_mov_b64 {vr(PX+2,2)}, 0')
        a('s_waitcnt vmcnt(0)')
        tk(a, opt, 3)
        for ks in range(4):
            for kt in range(qt + 1):
                S = S1 if kt else S0
                a(f'{MF} {vr(S,4)}, {vr(K+16*kt+4*ks,4)}, {vr(Q+4*ks,4)}, {"0" if ks == 0 else vr(S,4)}')
        SD = S1 if qt else S0
        a(f'v_mov_b32 v{T}, 0xff800000')
        for r in range(4): a(f'v_cndmask_b32 v{SD+r}, v{T}, v{SD+r}, s[{S_MK+2*r}:{S_MK+2*r+1}]')
        M, M2 = T + 2, T + 3
        a(f'v_max3_f32 v{M}, v{S0}, v{S0+1}, v{S0+2}')
        if qt:
            a(f'v_max3_f32 v{M}, v{M}, v{S0+3}, v{S1}'); a(f'v_max3_f32 v{M}, v{M}, v{S1+1}, v{S1+2}'); a(f'v_max_f32 v{M}, v{M}, v{S1+3}')
        else: a(f'v_max_f32 v{M}, v{M}, v{S0+3}')
        a(f's_add_u32 s{S_N}, s{S_SEG}, 1'); a(f's_cmp_eq_u32 s{S_SEG}, 63'); a(f's_cselect_b32 s{S_N}, 0, s{S_N}')
        spoll(a, S_FC, f's{S_N}', [(1, f's{S_FA+2}')], 'ac')
        tk(a, opt, 4)
        LK = f'L_att_k{w}'
        a.label(LK)
        a(f's_add_u32 s{S_P}, s{S_Q}, {KM}')
        for ks in range(4): a(f'buffer_load_dwordx4 {vr(KMF+4*ks,4)}, v{KMA}, {WS}, s{S_P} offen offset:{512*ks} sc1'); vm.issue(('km', ks))
        a(f's_add_u32 s{S_P}, s{S_Q}, {VM}')
        for u in range(4): a(f'buffer_load_dwordx2 {vr(VMF+2*u,2)}, v{L8}, {WS}, s{S_P} offen offset:{512*u} sc1'); vm.issue(('vm', u))
        for ks in range(4):
            vm.wait(('km', ks))
            a(f'{MF} {vr(SM,4)}, {vr(KMF+4*ks,4)}, {vr(Q+4*ks,4)}, {"0" if ks == 0 else vr(SM,4)}')
        a(f'v_max3_u32 v{T}, v{KMF}, v{KMF+4}, v{KMF+8}')
        vm.wait(('vm', 3))
        a(f'v_max3_u32 v{T}, v{T}, v{KMF+12}, v{VMF}')
        a(f'v_max3_u32 v{T}, v{T}, v{VMF+2}, v{VMF+4}')
        a(f'v_max_u32 v{T}, v{T}, v{VMF+6}')
        a(f'v_cmp_eq_u32 vcc, -1, v{T}')
        a(f's_cbranch_vccz {LK}_x')
        retry(a, LK + '_x')
        a(f's_branch {LK}')
        a.label(LK + '_x')
        a(f'v_max3_f32 v{M}, v{M}, v{SM}, v{SM+1}')
        tk(a, opt, 5)
        for sw in ('v_permlane32_swap_b32', 'v_permlane16_swap_b32'):
            a(f'v_mov_b32 v{M2}, v{M}'); a(f'{sw} v{M}, v{M2}'); a(f'v_max_f32 v{M}, v{M}, v{M2}')
        a(f'v_mul_f32 v{M}, s{S_C+1}, v{M}')
        vals = [SM, SM + 1, S0, S0 + 1, S0 + 2, S0 + 3] + ([S1, S1 + 1, S1 + 2, S1 + 3] if qt else [])
        for r in vals: a(f'v_fma_f32 v{r}, v{r}, s{S_C}, v{M}')
        for r in vals: a(f'v_exp_f32 v{r}, v{r}')
        a(f'v_cvt_pk_bf16_f32 v{PX}, v{S0}, v{S0+1}'); a(f'v_cvt_pk_bf16_f32 v{PX+1}, v{S0+2}, v{S0+3}')
        if qt: a(f'v_cvt_pk_bf16_f32 v{PX+2}, v{S1}, v{S1+1}'); a(f'v_cvt_pk_bf16_f32 v{PX+3}, v{S1+2}, v{S1+3}')
        a(f'v_cvt_pk_bf16_f32 v{PM}, v{SM}, v{SM+1}'); a(f'v_cvt_pk_bf16_f32 v{PM+3}, v{SM}, v{SM+1}')
        a(f'{MF} {vr(SUM,4)}, {vr(ONE,4)}, {vr(PX,4)}, 0')
        for u in range(4): a(f'{MF} {vr(O+4*u,4)}, {vr(V+4*u,4)}, {vr(PX,4)}, 0')
        a(f'{MH} {vr(SUM,4)}, {vr(ONE,2)}, {vr(PM,2)}, {vr(SUM,4)}')
        for u in range(4, 8): a(f'{MF} {vr(O+4*u,4)}, {vr(V+4*u,4)}, {vr(PX,4)}, 0')
        a(f'v_add_u32 v{T+1}, s{S_B}, v{L16}')
        for u in range(8):
            a(f'{MH} {vr(O+4*u,4)}, {vr(VMF+2*(u>>1),2)}, {vr(PM+2*(u&1),2)}, {vr(O+4*u,4)}')
            if u == 0: a(f'v_rcp_f32 v{T+2}, v{SUM}')
        for w4 in range(4):
            q = O + 8 * w4
            for r in range(4): a(f'v_pk_mul_f32 {vr(q+2*r,2)}, {vr(q+2*r,2)}, {vr(T+2,2)} op_sel_hi:[1,0]')
            for d in range(4): a(f'v_cvt_pk_bf16_f32 v{q+d}, v{q+2*d}, v{q+2*d+1}')
            a(f'ds_write_b128 v{T+1}, {vr(q,4)} offset:{(w * 4 + w4) * 1024}')
        a('s_waitcnt lgkmcnt(0)')
        a('s_barrier')
        tk(a, opt, 6)
        if opt.get('wst'): a('s_waitcnt lgkmcnt(0)')
        lg = Cnt(a, 'lgkmcnt', 15)
        for k8 in range(8):
            for tt in range(2):
                a(f'ds_read_b128 {vr(OF+4*(2*k8+tt),4)}, v{T+1} offset:{(((k8 >> 2) * 2 + tt) * 4 + (k8 & 3)) * 1024}'); lg.issue((k8, tt))
        a(f's_xor_b32 s{S_B}, s{S_B}, 0x4000')
        a(f's_add_u32 s{S_P}, s{S_OB}, 294912')
        XV = 48
        if red: a(f's_mul_i32 s{S_Q}, s{S_SEG}, 36864')
        def fin(gi):
            base = ACC + 16 * (gi & 1)
            for tt in range(2):
                so = S_P if tt else S_OB
                q = base + 8 * tt
                if gi < 4:
                    for d in range(4): a(f'v_cvt_pk_bf16_f32 v{q+d}, v{q+2*d}, v{q+2*d+1}')
                    for d in (0, 2): a(f'v_bfi_b32 v{q+d}, 1, s{S_TAG}, v{q+d}')
                    a(f'buffer_store_dwordx4 {vr(q,4)}, v{PST}, {WS}, s{so} offen offset:{(4 * gi + w) * 128} sc1')
                else:
                    for d in range(2): a(f'v_cvt_pk_bf16_f32 v{q+d}, v{q+2*d}, v{q+2*d+1}')
                    a(f'v_bfi_b32 v{q}, 1, s{S_TAG}, v{q}')
                    a(f'buffer_store_dwordx2 {vr(q,2)}, v{PST}, {WS}, s{so} offen offset:{(16 + hh) * 128 + 8*tl[8][1]} sc1')
        for gi in range(5):
            base = ACC + 16 * (gi & 1)
            for k8 in range(8):
                for tt in range(2):
                    if gi == 0: lg.wait((k8, tt))
                    for TT in range(2 if gi < 4 else 1):
                        q = base + 8 * tt + 4 * TT
                        a(f'{MF} {vr(q,4)}, {WOF(2*gi+TT,k8)}, {vr(OF+4*(2*k8+tt),4)}, {"0" if k8 == 0 else vr(q,4)}')
                if k8 == 1 and gi > 0: fin(gi - 1)
                if red and gi == 0 and 2 <= k8 <= 4:
                    q3 = k8 - 2
                    a(f'buffer_load_dwordx2 {vr(XV+2*q3,2)}, v{XO2 if q3 == 2 else XO}, {R(XX)}, s{S_Q} offen offset:{128*q3 if q3 < 2 else 0}')
        fin(4)
        tk(a, opt, 7)
        if red:
            RA = 96; H = 108; H2 = 116
            def rl(t0):
                for t5 in range(t0, 5):
                    for u in range(4):
                        a(f's_add_u32 s{S_P}, s{S_OB}, {u * 9216}')
                        a(f'buffer_load_dwordx4 {vr(RR+4*(4*t5+u),4)}, v{RB4 if t5 == 4 else RB}, {WS}, s{S_P} offen offset:{512*t5} sc1')
            rl(0)
            tk(a, opt, 8)
            for t5 in range(5):
                LR = f'L_att_r{w}_{t5}'
                a.label(LR)
                a(f's_waitcnt vmcnt({4 * (4 - t5)})')
                z = [RR + 4 * (4 * t5 + u) for u in range(4)]
                for u in range(4): a(f'v_bitop3_b32 v{T+u}, v{z[u]}, v{z[u]+2}, s{S_TAG} bitop3:0x7e')
                a(f'v_or3_b32 v{T}, v{T}, v{T+1}, v{T+2}')
                a(f'v_bitop3_b32 v{T}, v{T}, v{T+3}, 1 bitop3:0xa8')
                a(f'v_cmp_eq_u32 vcc, 1, v{T}')
                a(f's_cbranch_vccz {LR}_x')
                retry(a, LR + '_x')
                rl(t5)
                a(f's_branch {LR}')
                a.label(LR + '_x')
                if t5 == 0:
                    for q in range(3):
                        for d in range(2):
                            a(f'v_lshlrev_b32 v{RA+4*q+2*d}, 16, v{XV+2*q+d}'); a(f'v_and_b32 v{RA+4*q+2*d+1}, 0xffff0000, v{XV+2*q+d}')
                if t5 == 4: tk(a, opt, 9)
                q = RA + 4 * (t5 >> 1)
                for u in range(4): a(f'{MF} {vr(q,4)}, {vr(SHI if t5 & 1 else SLO,4)}, {vr(z[u],4)}, {vr(q,4)}')
            tk(a, opt, 10)
            a(f's_mov_b32 s{S_T}, 0x00ff00ff'); a(f's_mov_b32 s{S_T+1}, 0')
            for i in range(6): a(f'v_cvt_pk_bf16_f32 v{H+i}, v{RA+2*i}, v{RA+2*i+1}')
            for i in (4, 5): a(f'v_cndmask_b32 v{H+i}, 0, v{H+i}, s[{S_T}:{S_T+1}]')
            for i in range(6): a(f'v_lshlrev_b32 v{RA+2*i}, 16, v{H+i}'); a(f'v_and_b32 v{RA+2*i+1}, 0xffff0000, v{H+i}')
            def put(r, base):
                a(f's_add_u32 s{S_P}, s{S_Q}, {base}')
                for d in range(2): a(f'v_permlane16_swap_b32 v{r+d}, v{r+2+d}')
                a(f'buffer_store_dwordx4 {vr(r,4)}, v{XO4}, {WS}, s{S_P} offen sc1')
                a(f'buffer_store_dwordx2 {vr(r+4,2)}, v{XO2}, {WS}, s{S_P} offen sc1')
            put(H, HB)
            a(f'v_add_f32 v{T}, v{RA}, v{RA+1}'); a(f'v_add_f32 v{T+1}, v{RA+2}, v{RA+3}')
            for i in range(4, 12): a(f'v_add_f32 v{T+(i&1)}, v{T+(i&1)}, v{RA+i}')
            a(f'v_add_f32 v{T}, v{T}, v{T+1}')
            allreduce(a, T, T + 1)
            a(f'v_mul_f32 v{T}, 0x{0x3ae38e39:x}, v{T}')
            for i in range(12): a(f'v_sub_f32 v{RA+i}, v{RA+i}, v{T}')
            for i in range(8, 12): a(f'v_cndmask_b32 v{RA+i}, 0, v{RA+i}, s[{S_T}:{S_T+1}]')
            a(f'v_mul_f32 v{T}, v{RA}, v{RA}'); a(f'v_mul_f32 v{T+1}, v{RA+1}, v{RA+1}')
            for i in range(2, 12): a(f'v_fmac_f32 v{T+(i&1)}, v{RA+i}, v{RA+i}')
            a(f'v_add_f32 v{T}, v{T}, v{T+1}')
            allreduce(a, T, T + 1)
            a(f'v_mov_b32 v{T+1}, 0x{0x3727c5ac:x}'); a(f'v_fmac_f32 v{T+1}, 0x{0x3ae38e39:x}, v{T}'); a(f'v_rsq_f32 v{T+1}, v{T+1}')
            for i in range(12): a(f'v_mul_f32 v{RA+i}, v{T+1}, v{RA+i}')
            for i in range(6): a(f'v_cvt_pk_bf16_f32 v{H2+i}, v{RA+2*i}, v{RA+2*i+1}')
            put(H2, XN2)
            tk(a, opt, 11)
        tfirst(a, opt, f's_cmp_lt_u32 s{S_SEG}, 4')
        a(f's_cmp_ge_u32 s{S_SEG}, 60'); a(f's_cbranch_scc1 {L}_end')
        if not red: a('s_waitcnt vmcnt(0)')
        qkv(4)
        a(f's_add_u32 s{S_SEG}, s{S_SEG}, 4')
        a(f's_branch {L}')
        a.label(L + '_end')
        finish(a, opt)

def ffn(a, opt):
    DO = 1; XA = 10; L16 = 14; PST = 15; RB = 16; OA = 17; XW = 18; T = 20
    SEL = 28; ACC = [32, 48]; XR = [64, 68, 72, 76]
    AF = 32
    DA = 64
    WG, WU, WD, OUT = S_R0, S_R1, S_R2, S_R3
    ACTL = 40960
    def GU(m, kk): return 80 + 8 * kk + 4 * m
    a.label('L_ffn')
    a(f's_load_dwordx4 s[{WG}:{WG+3}], s[0:1], 64')
    a(f's_load_dwordx4 s[{WD}:{WD+3}], s[0:1], 80')
    a(f's_mov_b32 s{S_SPIN}, 0')
    a(f's_sub_u32 s{S_M}, s{S_ROLE}, 112'); a(f's_mov_b32 s{S_G}, 0')
    for _ in range(2):
        a(f's_cmp_ge_u32 s{S_M}, 36'); a(f's_cselect_b32 s{S_T}, 36, 0'); a(f's_cselect_b32 s{S_T+1}, 1, 0')
        a(f's_sub_u32 s{S_M}, s{S_M}, s{S_T}'); a(f's_add_u32 s{S_G}, s{S_G}, s{S_T+1}')
    a(f'v_lshlrev_b32 v{L16}, 4, v0')
    a('s_waitcnt lgkmcnt(0)')
    a(f's_mov_b32 s{WU}, s{WG+2}'); a(f's_mov_b32 s{WU+1}, s{WG+3}'); a(f's_mov_b32 s{OUT}, s{WD+2}'); a(f's_mov_b32 s{OUT+1}, s{WD+3}')
    for r in (WG, WU, WD): srd_fix(a, r, 5308416)
    srd_fix(a, OUT, 2359296)
    GA = T + 4; TA = T + 5
    a(f's_mul_i32 s{S_T}, s{S_WAVE}, {16 * 9216}'); a(f's_lshl_b32 s{S_T+1}, s{S_M}, 8'); a(f's_add_u32 s{S_T}, s{S_T}, s{S_T+1}')
    a(f'''
    v_lshrrev_b32 v{T}, 4, v0
    v_mul_u32_u24 v{T}, 9216, v{T}
    v_and_b32 v{T+1}, 15, v0
    v_lshl_add_u32 v{T}, v{T+1}, 4, v{T}
    v_add_u32 v{GA}, s{S_T}, v{T}
    ''')
    a(f's_lshl_b32 s{S_B}, s{S_WAVE}, 12')
    vm = Cnt(a, 'vmcnt', 63)
    def gdma(st):
        for m in range(2):
            for u in range(4):
                a(f's_add_u32 m0, s{S_B}, {(st % 4) * 32768 + m * 16384 + u * 1024}')
                a(f's_mov_b32 s{S_P}, {(64 * st + 4 * u) * 9216}')
                a(f'buffer_load_dwordx4 v{GA}, {R(WU if m else WG)}, s{S_P} offen lds'); vm.issue(st)
    if opt.get('gate_ffn'): meet(a, T, None, [({'p': GO_P, 'c': GO_C}[opt['gate_ffn']], 1)], 'gf')
    for st in range(4): gdma(st)
    a(f's_lshl_b32 s{S_T}, s{S_WAVE}, 6')
    a(f'''
    v_lshrrev_b32 v{T}, 5, v0
    v_bfe_u32 v{T+1}, v0, 2, 2
    v_lshl_add_u32 v{T}, v{T}, 3, v{T+1}
    v_lshlrev_b32 v{T}, 8, v{T}
    v_bfe_u32 v{T+1}, v0, 4, 1
    v_lshl_add_u32 v{T}, v{T+1}, 5, v{T}
    v_and_b32 v{T+1}, 3, v0
    v_lshl_add_u32 v{T}, v{T+1}, 3, v{T}
    v_add_u32 v{TA}, s{S_T}, v{T}
    v_add_u32 v{TA+1}, 65536, v{TA}
    ''')
    x_consts(a, DO, XA, T)
    for st in range(9):
        vm.wait(st)
        a('s_barrier')
        for k4 in range(4):
            for m in range(2):
                for p in range(2):
                    a(f'ds_read_b64_tr_b16 {ur(GU(m, 4*st+k4) + 2*p, 2)}, v{TA + ((st % 4) >> 1)} offset:{(st % 2) * 32768 + m * 16384 + k4 * 4096 + p * 1024}')
        a('s_waitcnt lgkmcnt(0)')
        if st + 4 < 9:
            a('s_barrier'); gdma(st + 4)
    a('s_barrier')
    th(a, opt, 3)
    a(f's_mul_i32 s{S_B}, s{S_WAVE}, 9216'); a(f's_mul_i32 s{S_OB}, s{S_M}, 147456'); a(f's_add_u32 s{S_OB}, s{S_OB}, s{S_B}')
    for st in range(4): row_stage_dma(a, WD, L16, st, S_OB, vm, 100 + st)
    sel(a, SEL, T, 'dup')
    a(f'''
    v_and_b32 v{T}, 15, v0
    v_lshrrev_b32 v{T+1}, 4, v0
    v_lshlrev_b32 v{T+2}, 6, v{T}
    v_lshl_add_u32 v{T+2}, v{T+1}, 4, v{T+2}
    s_lshl_b32 s{S_T}, s{S_M}, 10
    v_add_u32 v{PST}, s{S_T}, v{T+2}
    v_lshlrev_b32 v{T+2}, 4, v{T}
    v_lshl_add_u32 v{T+2}, v{T+1}, 10, v{T+2}
    s_mul_i32 s{S_T}, s{S_M}, 36864
    s_lshl_b32 s{S_T+1}, s{S_WAVE}, 8
    s_add_u32 s{S_T}, s{S_T}, s{S_T+1}
    v_add_u32 v{RB}, s{S_T}, v{T+2}
    s_cmp_ge_u32 s{S_M}, 18
    s_cselect_b32 s{S_T}, {16 * 1152 - 18 * 64}, 0
    s_lshl_b32 s{S_T+1}, s{S_M}, 6
    s_add_u32 s{S_T}, s{S_T}, s{S_T+1}
    s_mul_i32 s{S_T+1}, s{S_WAVE}, 4608
    s_add_u32 s{S_T}, s{S_T}, s{S_T+1}
    v_lshrrev_b32 v{T+2}, 2, v{T}
    v_mul_u32_u24 v{T+2}, 1152, v{T+2}
    v_and_b32 v{T+3}, 3, v0
    v_lshl_add_u32 v{T+2}, v{T+3}, 4, v{T+2}
    v_lshl_add_u32 v{T+2}, v{T+1}, 3, v{T+2}
    v_add_u32 v{T+2}, s{S_T}, v{T+2}
    v_mov_b32 v{T+3}, 0x{OOB:x}
    v_cmp_gt_u32 vcc, 32, v0
    v_cndmask_b32 v{OA}, v{T+3}, v{T+2}, vcc
    v_add_u32 v{XW}, s{S_B}, v{L16}
    ''')
    a(f'''
    v_lshrrev_b32 v{T}, 5, v0
    v_bfe_u32 v{T+1}, v0, 2, 3
    v_lshl_add_u32 v{T}, v{T}, 4, v{T+1}
    v_mul_u32_u24 v{T}, 1152, v{T}
    v_and_b32 v{T+1}, 3, v0
    v_lshl_add_u32 v{TA}, v{T+1}, 4, v{T}
    v_add_u32 v{TA+1}, {2 * 36864}, v{TA}
    ''')
    for w in range(1, 4):
        a(f's_cmp_eq_u32 s{S_WAVE}, {w}'); a(f's_cbranch_scc1 L_ffn_w{w}')
    vm0 = list(vm.q)
    for w in range(4):
        tl = tiles_of(w)
        def WDF(ti, ks): return 368 + 4 * (ti * 4 + ks)
        a.label(f'L_ffn_w{w}')
        vm.q = list(vm0)
        for st in range(4):
            vm.wait(100 + st)
            a('s_barrier')
            for ti, (P, TT) in enumerate(tl):
                for p in range(2):
                    a(f'ds_read_b64_tr_b16 {ur(WDF(ti, st) + 2*p, 2)}, v{TA + (st >> 1)} offset:{(st % 2) * 36864 + p * 8 * 1152 + P * 64 + TT * 8}')
        a('s_waitcnt lgkmcnt(0)')
        th(a, opt, 4)
        a(f's_mul_i32 s{S_T}, s{S_G}, {2 * PF_SLOT}'); a(f's_mul_i32 s{S_T+1}, s{S_M}, 36864'); a(f's_add_u32 s{S_T}, s{S_T}, s{S_T+1}')
        fill(a, L16, 32, [(S_T, PF + w * 9216), (S_T, PF + PF_SLOT + w * 9216)])
        th(a, opt, 5)
        meet(a, T, (DB_FI, 108, GO_FI), [(GO_FI, 1), (GO_AI, 1)], 'fi')
        tstamp(a, opt, 0)
        a(f's_mov_b32 s{S_SEG}, s{S_G}')
        a(f's_mov_b32 s{S_N}, 0')
        AW = T + 4; HV = 26
        a(f'''
        v_bfe_u32 v{T}, v0, 4, 1
        v_lshlrev_b32 v{T}, 10, v{T}
        v_lshrrev_b32 v{T+1}, 5, v0
        v_lshl_add_u32 v{T}, v{T+1}, 8, v{T}
        v_and_b32 v{T+1}, 15, v0
        v_lshl_add_u32 v{AW}, v{T+1}, 4, v{T}
        ''')
        L = f'L_ffn_l{w}'
        a.label(L)
        a(f's_mul_i32 s{S_OB}, s{S_SEG}, 36864'); a(f's_add_u32 s{S_T+1}, s{S_OB}, {XN2}')
        a(f's_add_u32 s{S_T}, s{S_OB}, {HB + w * 9216}')
        a(f's_bfe_u32 s{S_TAG}, s{S_N}, 0x10001'); a(f's_and_b32 s{S_Q}, s{S_N}, 1')
        a(f's_lshl1_add_u32 s{S_Q}, s{S_G}, s{S_Q}'); a(f's_mul_i32 s{S_Q}, s{S_Q}, {PF_SLOT}'); a(f's_add_u32 s{S_Q}, s{S_Q}, {PF}')
        tk(a, opt, 3)
        spoll(a, None, None, [(1, f's{S_T}')], 'fh', sentinel=True)
        tk(a, opt, 4)
        XL = 32
        def xl(g0):
            for i in range(3 * g0, 9): a(f'buffer_load_dwordx4 {vr(XL+4*i,4)}, v{DO+i}, {WS}, s{S_T+1} offen sc1')
        xl(0)
        for g3 in range(3):
            LX = f'L_ffn_x{w}_{g3}'
            a.label(LX)
            z = [XL + 4 * (3 * g3 + u) for u in range(3)]
            for u in range(3):
                a(f's_waitcnt vmcnt({8 - 3 * g3 - u})')
                a(f'ds_write_b128 v{XW}, {vr(z[u],4)} offset:{1024 * (3 * g3 + u)}')
                if u == 0: a(f'v_max_u32 v{T}, v{z[u]}, v{z[u]+2}')
                else: a(f'v_max3_u32 v{T}, v{T}, v{z[u]}, v{z[u]+2}')
            a(f'v_cmp_eq_u32 vcc, -1, v{T}')
            a(f's_cbranch_vccz {LX}_x')
            retry(a, LX + '_x')
            a('s_waitcnt lgkmcnt(0)')
            xl(g3)
            a(f's_branch {LX}')
            a.label(LX + '_x')
        a('s_waitcnt lgkmcnt(0)')
        a('s_barrier')
        tk(a, opt, 5)
        if opt.get('wst'): a('s_waitcnt lgkmcnt(0)')
        lg = Cnt(a, 'lgkmcnt', 15)
        def rd(kk):
            a(f'ds_read_b128 {vr(XR[kk % 4], 4)}, v{XA + (kk & 3)} offset:{(kk >> 2) * 128}'); lg.issue(kk)
        for kk in range(3): rd(kk)
        a(f's_add_u32 s{S_T}, s{S_OB}, {HB}')
        for kk in range(36):
            lg.wait(kk)
            for m in range(2):
                a(f'{MF32} {vr(ACC[m],16)}, {ur(GU(m,kk),4)}, {vr(XR[kk%4],4)}, {"0" if kk == 0 else vr(ACC[m],16)}')
                if m == 0 and kk + 3 < 36: rd(kk + 3)
            if kk == 8: a(f'buffer_load_dwordx2 {vr(HV,2)}, v{OA}, {WS}, s{S_T} offen sc1')
        g, u = ACC
        tk(a, opt, 6)
        for r in range(16): a(f'v_max_f32 v{g+r}, 0, v{g+r}')
        for b in range(2):
            for r in range(4): a(f'v_pk_mul_f32 {vr(g+8*b+2*r,2)}, {vr(g+8*b+2*r,2)}, {vr(u+8*b+2*r,2)}')
            for d in range(4): a(f'v_cvt_pk_bf16_f32 v{g+8*b+d}, v{g+8*b+2*d}, v{g+8*b+2*d+1}')
            a(f'ds_write_b128 v{AW}, {vr(g+8*b,4)} offset:{ACTL + w * 2048 + b * 512}')
        a('s_waitcnt lgkmcnt(0)')
        a('s_barrier')
        for ks in range(4):
            for tt in range(2):
                a(f'ds_read_b128 {vr(AF+4*(2*ks+tt),4)}, v{L16} offset:{ACTL + ks * 2048 + tt * 1024}'); lg.issue((ks, tt))
        groups = [(gi, tt) for gi in range(5) for tt in range(2)]
        def fin(n):
            gi, tt = groups[n]; q = DA + 8 * (n & 1); P = tl[2 * gi][0]
            a(f's_add_u32 s{S_P}, s{S_Q}, {(tt * 18 + P) * 36864}')
            if gi < 4:
                for d in range(4): a(f'v_cvt_pk_bf16_f32 v{q+d}, v{q+2*d}, v{q+2*d+1}')
                for d in (0, 2): a(f'v_bfi_b32 v{q+d}, 1, s{S_TAG}, v{q+d}')
                a(f'buffer_store_dwordx4 {vr(q,4)}, v{PST}, {WS}, s{S_P} offen sc1')
            else:
                for d in range(2): a(f'v_cvt_pk_bf16_f32 v{q+d}, v{q+2*d}, v{q+2*d+1}')
                a(f'v_bfi_b32 v{q}, 1, s{S_TAG}, v{q}')
                a(f'buffer_store_dwordx2 {vr(q,2)}, v{PST}, {WS}, s{S_P} offen offset:{8*tl[8][1]} sc1')
        for n, (gi, tt) in enumerate(groups):
            for ks in range(4):
                if n < 2: lg.wait((ks, tt))
                for TT in range(2 if gi < 4 else 1):
                    q = DA + 8 * (n & 1) + 4 * TT
                    a(f'{MF} {vr(q,4)}, {ur(WDF(2*gi+TT,ks),4)}, {vr(AF+4*(2*ks+tt),4)}, {"0" if ks == 0 else vr(q,4)}')
                if ks == 1 and n > 0: fin(n - 1)
        fin(9)
        tk(a, opt, 7)
        RA = 68; RR = 32
        def pl(g0):
            for u9 in range(3 * g0, 9):
                a(f's_add_u32 s{S_P}, s{S_Q}, {u9 * 4096}')
                a(f'buffer_load_dwordx4 {vr(RR+4*u9,4)}, v{RB}, {WS}, s{S_P} offen sc1')
        pl(0)
        tk(a, opt, 8)
        for g3 in range(3):
            LF = f'L_ffn_f{w}_{g3}'
            a.label(LF)
            a(f's_waitcnt vmcnt({6 - 3 * g3})')
            z = [RR + 4 * (3 * g3 + u) for u in range(3)]
            for u in range(3): a(f'v_bitop3_b32 v{T+u}, v{z[u]}, v{z[u]+2}, s{S_TAG} bitop3:0x7e')
            a(f'v_or3_b32 v{T}, v{T}, v{T+1}, v{T+2}')
            a(f'v_and_b32 v{T}, 1, v{T}')
            if g3 == 0:
                a(f'v_cmp_eq_u32 vcc, -1, v{HV}'); a(f'v_cndmask_b32 v{T}, v{T}, 1, vcc')
            a(f'v_cmp_eq_u32 vcc, 1, v{T}')
            a(f's_cbranch_vccz {LF}_x')
            retry(a, LF + '_x')
            if g3 == 0: a(f'buffer_load_dwordx2 {vr(HV,2)}, v{OA}, {WS}, s{S_T} offen sc1')
            pl(g3)
            a(f's_branch {LF}')
            a.label(LF + '_x')
            if g3 == 0:
                for d in range(2): a(f'v_lshlrev_b32 v{RA+2*d}, 16, v{HV+d}'); a(f'v_and_b32 v{RA+2*d+1}, 0xffff0000, v{HV+d}')
            if g3 == 2: tk(a, opt, 9)
            for u in range(3): a(f'{MF} {vr(RA,4)}, {vr(SEL,4)}, {vr(z[u],4)}, {vr(RA,4)}')
        tk(a, opt, 10)
        for d in range(2): a(f'v_cvt_pk_bf16_f32 v{RA+d}, v{RA+2*d}, v{RA+2*d+1}')
        a(f'buffer_store_dwordx2 {vr(RA,2)}, v{OA}, {R(OUT)}, s{S_OB} offen')
        tfirst(a, opt, f's_cmp_lt_u32 s{S_SEG}, 3')
        a(f's_add_u32 s{S_SEG}, s{S_SEG}, 3'); a(f's_add_u32 s{S_N}, s{S_N}, 1')
        a(f's_cmp_lt_u32 s{S_SEG}, 64'); a(f's_cbranch_scc1 {L}')
        if opt.get('times'): a('s_waitcnt vmcnt(0)')
        finish(a, opt)

def roles(a, opt):
    a(f's_cmp_ge_u32 s{S_ROLE}, 112'); a('s_cbranch_scc1 L_ffn')
    a(f's_cmp_ge_u32 s{S_ROLE}, 48'); a('s_cbranch_scc1 L_att')
    proj(a, opt); att(a, opt); ffn(a, opt)
```

```python
from asm import *
from lay import *
SPIN = 1 << 18
S_SEG = 40; S_SPIN = 50; S_P = 51; S_Q = 41; S_B = 42; S_M = 43; S_G = 44; S_OB = 45
S_C = 46
S_MK = 52
S_TM = 64
WS = f's[{S_WS}:{S_WS+3}]'; DBG = f's[{S_DBG}:{S_DBG+3}]'
MF32 = 'v_mfma_f32_32x32x16_bf16'; MF = 'v_mfma_f32_16x16x32_bf16'; MH = 'v_mfma_f32_16x16x16_bf16'
def R(i): return f's[{i}:{i+3}]'

def srd_fix(a, r, nbytes):
    a(f's_and_b32 s{r+1}, s{r+1}, 0xffff'); a(f's_mov_b32 s{r+2}, {nbytes}'); a(f's_mov_b32 s{r+3}, 0x20000')

def poll(a, vaddr, srd, soff, sval, tmp, name, imm=0):
    lab = a.newlabel('L_' + name)
    a.label(lab)
    if vaddr is None: a(f'buffer_load_dword v{tmp}, off, {srd}, {soff} offset:{imm} sc1')
    else: a(f'buffer_load_dword v{tmp}, v{vaddr}, {srd}, {soff} offen offset:{imm} sc1')
    a(f's_add_u32 s{S_SPIN}, s{S_SPIN}, 1')
    a(f's_cmp_ge_u32 s{S_SPIN}, {SPIN}')
    a('s_waitcnt vmcnt(0)')
    a(f's_cbranch_scc1 {lab}_x')
    a(f'v_cmp_ge_u32 vcc, {sval}, v{tmp}')
    a(f's_cbranch_vccnz {lab}')
    a.label(lab + '_x')

S_FP = 48; S_FC = 49; S_TAG = 60; S_SL = 61; S_FA = 92
S_N = 95; S_FV = 96
def spoll(a, cache, need, loads, name, sentinel=False):
    lab = a.newlabel('L_' + name)
    if not sentinel: a(f's_cmp_ge_u32 s{cache}, {need}'); a(f's_cbranch_scc1 {lab}_x')
    a.label(lab)
    r = S_FV; regs = []
    for n, off in loads:
        a(f's_load_dword{"" if n == 1 else "x%d" % n} {sr(r, n)}, s[{S_WS}:{S_WS+1}], {off} glc')
        regs += list(range(r, r + n)); r += n
    a(f's_add_u32 s{S_SPIN}, s{S_SPIN}, 1')
    a(f's_cmp_ge_u32 s{S_SPIN}, {SPIN}'); a(f's_cbranch_scc1 {lab}_y')
    a('s_waitcnt lgkmcnt(0)')
    if sentinel:
        a(f's_cmp_eq_u32 s{S_FV}, -1')
    else:
        if len(regs) == 1: a(f's_mov_b32 s{cache}, s{regs[0]}')
        else:
            a(f's_min_u32 s{cache}, s{regs[0]}, s{regs[1]}')
            for x in regs[2:]: a(f's_min_u32 s{cache}, s{cache}, s{x}')
        a(f's_cmp_lt_u32 s{cache}, {need}')
    a(f's_cbranch_scc1 {lab}')
    a.label(lab + '_y')
    a('s_waitcnt lgkmcnt(0)')
    a.label(lab + '_x')

def dpoll(a, T, words, name):
    for off, need in words: poll(a, None, DBG, 0, str(need - 1), T, name, off)

def count(a, T, cnt, total, go):
    lab = a.newlabel('L_cnt')
    a(f'v_mov_b32 v{T}, 1'); a('s_mov_b64 exec, 1')
    a(f'buffer_atomic_add v{T}, off, {DBG}, 0 offset:{cnt} sc0')
    a('s_waitcnt vmcnt(0)')
    a(f'v_readfirstlane_b32 s{S_P}, v{T}')
    a(f'v_mov_b32 v{T}, 1')
    a(f's_cmp_lg_u32 s{S_P}, {total - 1}'); a(f's_cbranch_scc1 {lab}')
    a(f'buffer_store_dword v{T}, off, {DBG}, 0 offset:{go} sc1')
    a.label(lab)
    a('s_mov_b64 exec, -1')

def meet(a, T, cnt, words, name):
    lab = a.newlabel('L_meet')
    if cnt:
        a('s_waitcnt vmcnt(0)')
        a('s_barrier')
    a(f's_cmp_lg_u32 s{S_WAVE}, 0'); a(f's_cbranch_scc1 {lab}')
    if cnt: count(a, T, *cnt)
    dpoll(a, T, words, name)
    a.label(lab)
    if words: a('s_barrier')

def fill(a, L16, T, sbases):
    a(f'v_mov_b64 {vr(T,2)}, -1'); a(f'v_mov_b64 {vr(T+2,2)}, -1')
    for sb, base in sbases:
        for i in range(9):
            if i % 4 == 0: a(f's_add_u32 s{S_P}, s{sb}, {base + i * 1024}')
            a(f'buffer_store_dwordx4 {vr(T,4)}, v{L16}, {WS}, s{S_P} offen offset:{(i & 3) * 1024} sc1')

def retry(a, lab_ok):
    a(f's_add_u32 s{S_SPIN}, s{S_SPIN}, 1')
    a(f's_cmp_ge_u32 s{S_SPIN}, {SPIN}'); a(f's_cbranch_scc1 {lab_ok}')

def tstamp(a, opt, i):
    if opt.get('times'): a(f's_memrealtime s[{S_TM+2*i}:{S_TM+2*i+1}]'); a('s_waitcnt lgkmcnt(0)')
def tk(a, opt, i):
    if opt.get('wst'): a(f's_memrealtime s[{S_TM+2*i}:{S_TM+2*i+1}]')
def th(a, opt, i):
    if opt.get('hst'): a(f's_memrealtime s[{S_TM+2*i}:{S_TM+2*i+1}]'); a('s_waitcnt lgkmcnt(0)')
def tfirst(a, opt, first_cond):
    if opt.get('times'):
        lab = a.newlabel('L_tf'); a(first_cond); a(f's_cbranch_scc0 {lab}'); tstamp(a, opt, 1); a.label(lab)
def finish(a, opt):
    if opt.get('times'):
        tstamp(a, opt, 2)
        a(f's_add_u32 s{S_T}, s{S_ROLE}, 32'); a(f's_lshl_b32 s{S_T}, s{S_T}, 2'); a(f's_add_u32 s{S_T}, s{S_T}, s{S_WAVE}')
        a(f's_lshl_b32 s{S_T}, s{S_T}, 6'); a(f's_add_u32 s{S_T}, s{S_T}, {TIMES}')
        for i, r in enumerate([62] + [S_TM + 2 * k for k in range(14)]):
            a(f'v_mov_b32 v1, s{r}'); a(f'buffer_store_dword v1, off, {WS}, s{S_T} offset:{4*i}')
        if opt.get('dbgt'):
            a('s_mov_b64 exec, 1')
            a('s_not_b32 s63, s62')
            for r, o in ((63, 32), (62, 48), (S_TM + 4, 44), (S_TM, 52), (S_TM + 2, 56)):
                a(f'v_mov_b32 v1, s{r}'); a(f'buffer_atomic_umax v1, off, {DBG}, 0 offset:{o}')
    a('s_endpgm')

def x_consts(a, DO, XA, T):
    a(f's_mul_i32 s{S_T}, s{S_WAVE}, 576')
    a(f's_mov_b32 s{S_T+1}, 58255')
    for i in range(9):
        a(f'''
        v_add_u32 v{T}, s{S_T}, v0
        v_add_u32 v{T}, {64*i}, v{T}
        v_mul_lo_u32 v{T+1}, v{T}, s{S_T+1}
        v_lshrrev_b32 v{T+1}, 22, v{T+1}
        v_mul_u32_u24 v{T+2}, 72, v{T+1}
        v_sub_u32 v{T+2}, v{T}, v{T+2}
        v_bfe_u32 v{T+3}, v{T+1}, 1, 3
        v_xor_b32 v{T+2}, v{T+2}, v{T+3}
        v_mul_u32_u24 v{T+1}, 1152, v{T+1}
        v_lshl_add_u32 v{DO+i}, v{T+2}, 4, v{T+1}
        ''')
    a(f'''
    v_and_b32 v{T}, 31, v0
    v_lshrrev_b32 v{T+1}, 5, v0
    v_bfe_u32 v{T+2}, v{T}, 1, 3
    v_mul_u32_u24 v{T}, 1152, v{T}
    ''')
    for m in range(4):
        a(f'v_add_u32 v{T+3}, {2*m}, v{T+1}'); a(f'v_xor_b32 v{T+3}, v{T+3}, v{T+2}'); a(f'v_lshl_add_u32 v{XA+m}, v{T+3}, 4, v{T}')
assert all((x * 58255) >> 22 == x // 72 for x in range(2304))

def x_dma(a, DO, soff, sbuf):
    for i in range(9):
        if i == 0: a(f's_mov_b32 m0, s{sbuf}')
        else: a(f's_add_u32 m0, s{sbuf}, {1024*i}')
        a(f'buffer_load_dwordx4 v{DO+i}, {WS}, s{soff} offen sc1 lds')

def sel(a, dst, T, mode):
    a(f'v_and_b32 v{T}, 15, v0')
    if mode == 'hi': a(f'v_xor_b32 v{T}, 8, v{T}')
    if mode == 'dup': a(f'v_and_b32 v{T}, 7, v{T}')
    a(f'v_and_b32 v{T+1}, 1, v{T}'); a(f'v_lshlrev_b32 v{T+1}, 4, v{T+1}')
    a(f'v_mov_b32 v{T+2}, 0x3f80'); a(f'v_lshlrev_b32 v{T+2}, v{T+1}, v{T+2}')
    a(f'v_lshrrev_b32 v{T}, 1, v{T}')
    for d in range(4):
        a(f'v_cmp_eq_u32 vcc, {d}, v{T}'); a(f'v_cndmask_b32 v{dst+d}, 0, v{T+2}, vcc')

def proj(a, opt):
    DO = 1; XA = 10; ST = 14; TA = 15; ACC = [16, 32]; XR = [48, 52, 56, 60]; T = 64; FV = 70
    def W(kk, cb): return ur(224 + 8 * kk + 4 * cb, 4)
    a.label('L_proj')
    a(f's_load_dwordx4 s[{S_R1}:{S_R1+3}], s[0:1], 16')
    a(f's_load_dwordx2 s[{S_R2}:{S_R2+1}], s[0:1], 32')
    a(f's_mov_b32 s{S_SPIN}, 0')
    a('s_waitcnt lgkmcnt(0)')
    a(f's_and_b32 s{S_T+2}, s{S_WAVE}, 1')
    a(f's_cmp_lt_u32 s{S_ROLE}, 32'); a('s_cbranch_scc1 L_proj_kv')
    a(f's_mov_b32 s{S_R0}, s{S_R1}'); a(f's_mov_b32 s{S_R0+1}, s{S_R1+1}')
    a(f's_sub_u32 s{S_T}, s{S_ROLE}, 32'); a(f's_lshl_b32 s{S_T}, s{S_T}, 1'); a(f's_lshr_b32 s{S_T+1}, s{S_WAVE}, 1'); a(f's_add_u32 s{S_T}, s{S_T}, s{S_T+1}')
    a(f's_mov_b32 s{S_OB}, {QX}'); a(f's_mov_b32 s{S_G}, 0')
    a('s_branch L_proj_j')
    a.label('L_proj_kv')
    a(f's_mov_b32 s{S_T}, s{S_ROLE}')
    a(f's_cmp_ge_u32 s{S_WAVE}, 2'); a('s_cbranch_scc1 L_proj_v')
    a(f's_mov_b32 s{S_R0}, s{S_R1+2}'); a(f's_mov_b32 s{S_R0+1}, s{S_R1+3}')
    a(f's_mov_b32 s{S_OB}, {KX}'); a(f's_mov_b32 s{S_G}, 0')
    a('s_branch L_proj_j')
    a.label('L_proj_v')
    a(f's_mov_b32 s{S_R0}, s{S_R2}'); a(f's_mov_b32 s{S_R0+1}, s{S_R2+1}')
    a(f's_mov_b32 s{S_OB}, {VX}'); a(f's_mov_b32 s{S_G}, 1')
    a.label('L_proj_j')
    srd_fix(a, S_R0, 4718592)
    a(f's_lshl_b32 s{S_T+1}, s{S_T}, 13'); a(f's_add_u32 s{S_OB}, s{S_OB}, s{S_T+1}')
    a(f's_add_u32 s{S_T+3}, s{S_G}, 11'); a(f's_lshl_b32 s{S_T+1}, s{S_T+2}, s{S_T+3}'); a(f's_add_u32 s{S_OB}, s{S_OB}, s{S_T+1}')
    a(f's_lshl_b32 s{S_T}, s{S_T}, 8'); a(f's_lshl_b32 s{S_T+2}, s{S_T+2}, 7'); a(f's_add_u32 s{S_T}, s{S_T}, s{S_T+2}')
    a(f's_lshl_b32 s{S_B}, s{S_WAVE}, 15')
    a(f'''
    v_lshrrev_b32 v{T}, 3, v0
    v_and_b32 v{T+1}, 7, v0
    v_lshlrev_b32 v{T}, 13, v{T}
    v_lshl_add_u32 v{T}, v{T+1}, 4, v{T}
    v_add_u32 v{FV+1}, s{S_T}, v{T}
    ''')
    vm = Cnt(a, 'vmcnt', 63)
    def dma(i):
        a(f's_add_u32 m0, s{S_B}, {(i % 32) * 1024}'); a(f's_mov_b32 s{S_P}, {i * 65536}')
        a(f'buffer_load_dwordx4 v{FV+1}, {R(S_R0)}, s{S_P} offen lds'); vm.issue(i)
    for i in range(32): dma(i)
    a(f'''
    v_lshrrev_b32 v{T}, 5, v0
    v_bfe_u32 v{T+1}, v0, 2, 2
    v_lshl_add_u32 v{T}, v{T}, 3, v{T+1}
    v_lshlrev_b32 v{T}, 7, v{T}
    v_bfe_u32 v{T+1}, v0, 4, 1
    v_lshl_add_u32 v{T}, v{T+1}, 5, v{T}
    v_and_b32 v{T+1}, 3, v0
    v_lshl_add_u32 v{T}, v{T+1}, 3, v{T}
    v_add_u32 v{TA}, s{S_B}, v{T}
    ''')
    x_consts(a, DO, XA, T)
    a(f's_lshl_b32 s{S_T}, s{S_G}, 1'); a(f's_sub_u32 s{S_T}, 12, s{S_T}')
    a(f'''
    v_bfe_u32 v{T}, v0, 4, 1
    v_lshlrev_b32 v{T}, s{S_T}, v{T}
    v_lshrrev_b32 v{T+1}, 5, v0
    v_lshl_add_u32 v{T}, v{T+1}, 8, v{T}
    v_and_b32 v{T+1}, 15, v0
    v_lshl_add_u32 v{ST}, v{T+1}, 4, v{T}
    ''')
    for kk in range(36):
        vm.wait(2 * kk + 1)
        for cb in range(2):
            for p in range(2):
                a(f'ds_read_b64_tr_b16 {ur(224 + 8*kk + 4*cb + 2*p, 2)}, v{TA} offset:{(kk % 16) * 2048 + p * 512 + cb * 64}')
        if kk >= 1 and 2 * (kk - 1) + 32 < 72:
            a('s_waitcnt lgkmcnt(4)')
            dma(2 * (kk - 1) + 32); dma(2 * (kk - 1) + 33)
    a('s_waitcnt lgkmcnt(0)')
    th(a, opt, 3)
    meet(a, T, (DB_P, 48, GO_P), [(DB_Z, NZ), (GO_X, 1)], 'pw')
    tstamp(a, opt, 0)
    a(f's_mul_i32 s{S_B}, s{S_WAVE}, 9216')
    a(f's_mov_b32 s{S_Q}, {XN}')
    x_dma(a, DO, S_Q, S_B)
    a(f's_mov_b32 s{S_SEG}, 0')
    a(f's_lshl_b32 s{S_M}, s{S_ROLE}, 7'); a(f's_lshl_b32 s{S_T}, s{S_WAVE}, 2'); a(f's_add_u32 s{S_M}, s{S_M}, s{S_T}'); a(f's_add_u32 s{S_M}, s{S_M}, {flag(F_PROJ)}')
    STR = 72
    a(f'v_mov_b32 v{STR}, v{ST}'); a(f'v_mov_b32 v{ST}, 0x{OOB:x}')
    a(f's_sub_u32 s{S_OB}, s{S_OB}, {32 * 8192}')
    a('s_waitcnt vmcnt(0)')
    a(f's_cmp_eq_u32 s{S_G}, 1'); a('s_cbranch_scc1 L_proj_lv')
    ACCS = [[16, 32], [80, 96]]
    for isv in range(2):
        L = 'L_proj_lv' if isv else 'L_proj_lk'
        def epi(acc, cb, b):
            q = acc[cb]
            src = [[0, 2, 8, 10], [4, 6, 12, 14]] if isv else [[0, 2, 4, 6], [8, 10, 12, 14]]
            for d in range(4): a(f'v_cvt_pk_bf16_f32 v{q+4*b+d}, v{q+src[b][d]}, v{q+src[b][d]+1}')
            a(f'buffer_store_dwordx4 {vr(q+4*b,4)}, v{ST}, {WS}, s{S_OB} offen offset:{cb * (2048 if isv else 1024) + b * 512} sc1')
        a.label(L)
        for par in range(2):
            acc = ACCS[par]
            a('s_waitcnt vmcnt(1)')
            a('s_barrier')
            lg = Cnt(a, 'lgkmcnt', 15)
            def rd(kk):
                a(f'ds_read_b128 {vr(XR[kk % 4], 4)}, v{XA + (kk & 3)} offset:{(kk >> 2) * 128}'); lg.issue(kk)
            for kk in range(3): rd(kk)
            a(f's_cmp_lt_u32 s{S_SEG}, 63'); a(f's_cselect_b32 s{S_T}, 36864, 0'); a(f's_add_u32 s{S_Q}, s{S_Q}, s{S_T}')
            a(f's_xor_b32 s{S_B}, s{S_B}, 0x10000')
            for kk in range(36):
                lg.wait(kk)
                for cb in range(2):
                    c = '0' if kk == 0 else vr(acc[cb], 16)
                    x = vr(XR[kk % 4], 4)
                    if opt.get('pj_nomf') and kk >= opt['pj_nomf']: a('s_nop 6')
                    elif isv: a(f'{MF32} {vr(acc[cb],16)}, {x}, {W(kk,cb)}, {c}')
                    else: a(f'{MF32} {vr(acc[cb],16)}, {W(kk,cb)}, {x}, {c}')
                    if cb == 0 and kk + 3 < 36: rd(kk + 3)
                if 1 <= kk <= 4: epi(ACCS[par ^ 1], (kk - 1) >> 1, (kk - 1) & 1)
                if 5 <= kk <= 13:
                    i = kk - 5
                    a(f's_add_u32 m0, s{S_B}, {1024*i}')
                    a(f'buffer_load_dwordx4 v{DO+i}, {WS}, s{S_Q} offen sc1 lds')
                if kk == 5 and par == 1: tfirst(a, opt, f's_cmp_eq_u32 s{S_SEG}, 1')
                if kk == opt.get('pfk', 22):
                    a('s_waitcnt vmcnt(9)')
                    a(f'v_mov_b32 v{FV}, s{S_SEG}')
                    a(f'buffer_store_dword v{FV}, off, {WS}, s{S_M} sc1')
                if kk == 33:
                    for m in range(4): a(f'v_xor_b32 v{XA+m}, 0x10000, v{XA+m}')
                if kk == 34:
                    if not opt.get('pj_nost'): a(f'v_mov_b32 v{ST}, v{STR}')
                    a(f's_add_u32 s{S_OB}, s{S_OB}, {32 * 8192}')
                    a(f's_add_u32 s{S_SEG}, s{S_SEG}, 1')
            if par == 1: a(f's_cmp_lt_u32 s{S_SEG}, 64'); a(f's_cbranch_scc1 {L}')
        for cb in range(2):
            for b in range(2): epi(ACCS[1], cb, b)
        if not isv: a('s_branch L_proj_end')
    a.label('L_proj_end')
    a('s_waitcnt vmcnt(0)')
    a(f'v_mov_b32 v{FV}, 64')
    a(f'buffer_store_dword v{FV}, off, {WS}, s{S_M} sc1')
    finish(a, opt)

def tiles_of(w):
    b = 9 * (w >> 1)
    if w & 1 == 0: return [(b + i, T) for i in range(4) for T in range(2)] + [(b + 4, 0)]
    return [(b + 5 + i, T) for i in range(4) for T in range(2)] + [(b + 4, 1)]

def row_stage_dma(a, srd, L16, st, sbase, vm, tag):
    for i in range(9):
        a(f's_add_u32 m0, s{S_B}, {(st % 4) * 36864 + (i & ~3) * 1024}') if i % 4 == 0 else None
        if i % 4 == 0: a(f's_add_u32 s{S_P}, s{sbase}, {st * 36864 + i * 1024}')
        a(f'buffer_load_dwordx4 v{L16}, {R(srd)}, s{S_P} offen offset:{(i & 3) * 1024} lds'); vm.issue(tag)

def allreduce(a, v, t, op='v_add_f32', lanes=64):
    for d in ('quad_perm:[1,0,3,2]', 'quad_perm:[2,3,0,1]', 'row_half_mirror', 'row_mirror')[:3 if lanes == 8 else 4]:
        a(f'{op}_dpp v{v}, v{v}, v{v} {d} row_mask:0xf bank_mask:0xf')
    if lanes == 64:
        for sw in ('v_permlane16_swap_b32', 'v_permlane32_swap_b32'):
            a(f'v_mov_b32 v{t}, v{v}'); a(f'{sw} v{v}, v{t}'); a(f'{op} v{v}, v{v}, v{t}')

def att(a, opt):
    L16, KMA, L8, PST, RB, XO, XO2, RB4, XO4, T = 1, 2, 3, 4, 5, 6, 7, 8, 9, 10
    Q = 16; K = 32; V = 64; KMF = 96; VMF = 112; SM, S0, S1 = 120, 124, 128; PX = 132; PM = 136; ONE = 140; SUM = 144
    O = 148; OF = 148; ACC = 96
    SLO, SHI = 212, 216
    RR = 128
    XX, WO_ = S_R0, S_R1
    a.label('L_att')
    a(f's_load_dwordx2 s[{XX}:{XX+1}], s[0:1], 0')
    a(f's_load_dwordx2 s[{WO_}:{WO_+1}], s[0:1], 40')
    a(f's_mov_b32 s{S_SPIN}, 0')
    a(f's_sub_u32 s{S_T}, s{S_ROLE}, 48'); a(f's_and_b32 s{S_M}, s{S_T}, 15'); a(f's_lshr_b32 s{S_G}, s{S_T}, 4')
    a(f'v_lshlrev_b32 v{L16}, 4, v0')
    a('s_waitcnt lgkmcnt(0)')
    srd_fix(a, XX, 2359296); srd_fix(a, WO_, 4718592)
    X = 16; Fp = 64
    a(f's_mul_i32 s{S_Q}, s{S_T}, 36864'); a(f's_mul_i32 s{S_B}, s{S_WAVE}, 9216'); a(f's_add_u32 s{S_Q}, s{S_Q}, s{S_B}')
    a(f'v_lshrrev_b32 v{T}, 3, v0'); a(f'v_mul_u32_u24 v{T}, 1152, v{T}'); a(f'v_and_b32 v{T+1}, 7, v0'); a(f'v_lshl_add_u32 v{T}, v{T+1}, 4, v{T}')
    vm = Cnt(a, 'vmcnt', 63)
    for i in range(9): a(f'buffer_load_dwordx4 {vr(X+4*i,4)}, v{T}, {R(XX)}, s{S_Q} offen offset:{128*i}'); vm.issue('x')
    a(f's_mul_i32 s{S_OB}, s{S_M}, {2 * 147456}'); a(f's_add_u32 s{S_OB}, s{S_OB}, s{S_B}')
    vm.wait('x')
    th(a, opt, 3)
    for i in range(36):
        a(f'v_lshlrev_b32 v{Fp+2*i}, 16, v{X+i}'); a(f'v_and_b32 v{Fp+2*i+1}, 0xffff0000, v{X+i}')
    A4 = [T + 2, T + 3, T + 4, T + 5]
    for i in range(72):
        if i < 4: a(f'v_add_f32 v{A4[i]}, v{Fp+i}, v{Fp+i+4}')
        elif i >= 8: a(f'v_add_f32 v{A4[i&3]}, v{A4[i&3]}, v{Fp+i}')
    a(f'v_add_f32 v{A4[0]}, v{A4[0]}, v{A4[1]}'); a(f'v_add_f32 v{A4[2]}, v{A4[2]}, v{A4[3]}'); a(f'v_add_f32 v{A4[0]}, v{A4[0]}, v{A4[2]}')
    allreduce(a, A4[0], T + 1, lanes=8)
    a(f'v_mul_f32 v{T+1}, 0x{0x3ae38e39:x}, v{A4[0]}')
    for i in range(72): a(f'v_sub_f32 v{Fp+i}, v{Fp+i}, v{T+1}')
    for i in range(72):
        if i < 4: a(f'v_mul_f32 v{A4[i]}, v{Fp+i}, v{Fp+i}')
        else: a(f'v_fmac_f32 v{A4[i&3]}, v{Fp+i}, v{Fp+i}')
    a(f'v_add_f32 v{A4[0]}, v{A4[0]}, v{A4[1]}'); a(f'v_add_f32 v{A4[2]}, v{A4[2]}, v{A4[3]}'); a(f'v_add_f32 v{A4[0]}, v{A4[0]}, v{A4[2]}')
    allreduce(a, A4[0], T + 1, lanes=8)
    a(f'v_mov_b32 v{T+1}, 0x{0x3727c5ac:x}')
    a(f'v_fmac_f32 v{T+1}, 0x{0x3ae38e39:x}, v{A4[0]}')
    a(f'v_rsq_f32 v{T+1}, v{T+1}')
    for i in range(72): a(f'v_mul_f32 v{Fp+i}, v{T+1}, v{Fp+i}')
    for i in range(36): a(f'v_cvt_pk_bf16_f32 v{X+i}, v{Fp+2*i}, v{Fp+2*i+1}')
    a(f's_add_u32 s{S_Q}, s{S_Q}, {XN}')
    for i in range(9): a(f'buffer_store_dwordx4 {vr(X+4*i,4)}, v{T}, {WS}, s{S_Q} offen offset:{128*i} sc1'); vm.issue('xs')
    th(a, opt, 4)
    GATE = {'p': [(GO_P, 1)], 'c': [(GO_C, 1)], None: []}
    NG = opt.get('ng', 4)
    if NG == 3:
        a(f's_cmp_lg_u32 s{S_G}, 3'); a('s_cbranch_scc1 L_att_full')
        meet(a, T + 4, (DB_X, 64, GO_X), [], 'gl')
        a(f's_sub_u32 s{S_T+1}, s{S_ROLE}, 48'); a(f's_mul_i32 s{S_T+1}, s{S_T+1}, 36864'); a(f's_add_u32 s{S_T+1}, s{S_T+1}, s{S_B}')
        fill(a, L16, 16, [(S_T + 1, HB), (S_T + 1, XN2)])
        meet(a, T, (DB_AI, 64, GO_AI), [], 'al')
        for i in range(2): tstamp(a, opt, i)
        finish(a, opt)
        a.label('L_att_full')
    meet(a, T + 4, (DB_X, 64, GO_X), GATE[opt.get('gate_att')], 'ga')
    vm.reset()
    th(a, opt, 5)
    for st in range(4): row_stage_dma(a, WO_, L16, st, S_OB, vm, st)
    for w in range(1, 4):
        a(f's_cmp_eq_u32 s{S_WAVE}, {w}'); a(f's_cbranch_scc1 L_att_w{w}')
    vm0 = list(vm.q)
    for w in range(4):
        hh, qt = w >> 1, w & 1
        tl = tiles_of(w)
        def WOF(ti, k8): return ur(224 + 4 * (ti * 8 + k8), 4)
        a.label(f'L_att_w{w}')
        vm.q = list(vm0)
        TA = T + 2
        a(f'v_lshrrev_b32 v{TA}, 2, v0'); a(f'v_mul_u32_u24 v{TA}, 1152, v{TA}'); a(f'v_and_b32 v{T+3}, 3, v0'); a(f'v_lshl_add_u32 v{TA}, v{T+3}, 4, v{TA}')
        a(f'v_add_u32 v{TA+1}, {2 * 36864}, v{TA}')
        for st in range(8):
            vm.wait(st)
            a('s_barrier')
            for ti, (P, TT) in enumerate(tl):
                for p in range(2):
                    off = (st % 2) * 36864 + p * 16 * 1152 + P * 64 + TT * 8
                    a(f'ds_read_b64_tr_b16 {ur(224 + 4*(ti*8+st) + 2*p, 2)}, v{TA + ((st % 4) >> 1)} offset:{off}')
            a('s_waitcnt lgkmcnt(0)')
            if st < 4:
                a('s_barrier')
                row_stage_dma(a, WO_, L16, st + 4, S_OB, vm, st + 4)
        th(a, opt, 6)
        red = qt == 0
        a(f'''
        v_and_b32 v{T}, 15, v0
        v_lshrrev_b32 v{T+1}, 4, v0
        v_lshrrev_b32 v{T+2}, 2, v{T}
        v_and_b32 v{T+3}, 1, v0
        v_lshl_add_u32 v{T+4}, v{T+2}, 1, v{T+3}
        v_lshlrev_b32 v{T+4}, 4, v{T+4}
        v_lshl_add_u32 v{KMA}, v{T+1}, 7, v{T+4}
        v_lshlrev_b32 v{L8}, 3, v0
        v_lshrrev_b32 v{T+4}, 1, v{T}
        v_mul_u32_u24 v{T+4}, 36864, v{T+4}
        v_lshl_add_u32 v{T+4}, v{T+3}, 6, v{T+4}
        v_lshl_add_u32 v{T+4}, v{T+1}, 4, v{T+4}
        s_mul_i32 s{S_T}, s{S_M}, 2304
        v_add_u32 v{PST}, s{S_T}, v{T+4}
        ''')
        if red:
            a(f'''
            v_mul_u32_u24 v{T+4}, 2304, v{T+1}
            v_and_b32 v{T+5}, 3, v0
            v_lshl_add_u32 v{T+4}, v{T+5}, 4, v{T+4}
            s_mul_i32 s{S_T}, s{S_M}, 36864
            s_add_u32 s{S_T}, s{S_T}, {64 * hh}
            v_add_u32 v{T+4}, s{S_T}, v{T+4}
            v_lshl_add_u32 v{RB}, v{T+2}, 7, v{T+4}
            v_and_b32 v{RB4}, 1, v{T+2}
            v_lshl_add_u32 v{RB4}, v{RB4}, 7, v{T+4}
            s_mul_i32 s{S_T}, s{S_M}, 2304
            s_add_u32 s{S_T}, s{S_T}, {1152 * hh}
            v_lshlrev_b32 v{T+5}, 4, v{T+5}
            v_add_u32 v{T+5}, s{S_T}, v{T+5}
            v_lshrrev_b32 v{T+4}, 1, v{T+2}
            v_mul_u32_u24 v{T+4}, 9, v{T+4}
            v_and_b32 v{T+3}, 1, v{T+2}
            v_mul_u32_u24 v{T}, 5, v{T+3}
            v_add_u32 v{T+4}, v{T+4}, v{T}
            v_lshrrev_b32 v{T}, 1, v{T+1}
            v_add_u32 v{T+4}, v{T+4}, v{T}
            v_lshl_add_u32 v{T+4}, v{T+4}, 6, v{T+5}
            v_and_b32 v{T+1}, 1, v{T+1}
            v_lshl_add_u32 v{XO}, v{T+1}, 3, v{T+4}
            v_lshl_add_u32 v{XO4}, v{T+1}, 7, v{T+4}
            v_mul_u32_u24 v{T+3}, 576, v{T+3}
            v_add_u32 v{T+3}, 256, v{T+3}
            v_add_u32 v{T+3}, v{T+3}, v{T+5}
            v_lshl_add_u32 v{T+3}, v{T+1}, 3, v{T+3}
            s_mov_b32 s{S_T}, 0x00ff00ff
            s_mov_b32 s{S_T+1}, 0
            v_mov_b32 v{T+4}, 0x{OOB:x}
            v_cndmask_b32 v{XO2}, v{T+4}, v{T+3}, s[{S_T}:{S_T+1}]
            ''')
            sel(a, SLO, T, 'lo'); sel(a, SHI, T, 'hi')
        a(f'''
        s_lshl_b32 s{S_T}, s{S_M}, 8
        s_add_u32 s{S_FA}, s{S_T}, {flag(F_PROJ + hh)}
        s_add_u32 s{S_FA+2}, s{S_T}, {flag(F_CHAIN + hh)}
        s_lshl_b32 s{S_T}, s{S_M}, 7
        s_add_u32 s{S_FA+1}, s{S_T}, {flag(F_PROJ + 32) + 8 * hh}
        s_mov_b32 s{S_FP}, 0
        s_mov_b32 s{S_FC}, 0
        ''')
        for r in range(4):
            mk = sum(1 << l for l in range(64) if 4 * (l >> 4) + r <= (l & 15))
            a(f's_mov_b32 s{S_MK+2*r}, 0x{mk & 0xffffffff:x}'); a(f's_mov_b32 s{S_MK+2*r+1}, 0x{mk >> 32:x}')
        a(f's_mov_b32 s{S_C}, 0x3e0293ee'); a(f's_mov_b32 s{S_C+1}, 0xbe0293ee')
        a(f's_mul_i32 s{S_T}, s{S_G}, {2 * PA_SLOT}'); a(f's_mul_i32 s{S_T+1}, s{S_M}, 36864'); a(f's_add_u32 s{S_T}, s{S_T}, s{S_T+1}')
        a(f's_sub_u32 s{S_T+1}, s{S_ROLE}, 48'); a(f's_mul_i32 s{S_T+1}, s{S_T+1}, 36864')
        fill(a, L16, 16, [(S_T, PA + w * 9216), (S_T, PA + PA_SLOT + w * 9216), (S_T + 1, HB + w * 9216), (S_T + 1, XN2 + w * 9216)])
        th(a, opt, 7)
        meet(a, T, (DB_AI, 64, GO_AI), [(DB_Z, NZ), (GO_AI, 1)], 'ai')
        tstamp(a, opt, 0)
        a(f's_mov_b32 s{S_SEG}, s{S_G}')
        a(f's_mov_b32 s{S_B}, 0')
        a(f's_mov_b32 s{S_SL}, 0')
        def qkv(step):
            a(f's_add_u32 s{S_N}, s{S_SEG}, {step + 1}')
            spoll(a, S_FP, f's{S_N}', [(4, f's{S_FA}'), (2, f's{S_FA+1}')], 'ap')
            a(f's_lshl_b32 s{S_T}, s{S_SEG}, 5'); a(f's_lshl1_add_u32 s{S_T}, s{S_M}, s{S_T}'); a(f's_add_u32 s{S_T}, s{S_T}, {32 * step + hh}')
            a(f's_lshl_b32 s{S_T}, s{S_T}, 13')
            a(f's_add_u32 s{S_P}, s{S_T}, {QX + qt * 4096}')
            for ks in range(4): a(f'buffer_load_dwordx4 {vr(Q+4*ks,4)}, v{L16}, {WS}, s{S_P} offen offset:{1024*ks} sc1')
            for kt in range(qt + 1):
                a(f's_add_u32 s{S_P}, s{S_T}, {KX + kt * 4096}')
                for ks in range(4): a(f'buffer_load_dwordx4 {vr(K+16*kt+4*ks,4)}, v{L16}, {WS}, s{S_P} offen offset:{1024*ks} sc1')
            for hf in range(2):
                a(f's_add_u32 s{S_P}, s{S_T}, {VX + hf * 4096}')
                for u in range(4): a(f'buffer_load_dwordx4 {vr(V+16*hf+4*u,4)}, v{L16}, {WS}, s{S_P} offen offset:{1024*u} sc1')
        qkv(0)
        L = f'L_att_l{w}'
        a.label(L)
        vm.reset()
        a(f's_lshl_b32 s{S_Q}, s{S_SEG}, 5'); a(f's_lshl1_add_u32 s{S_Q}, s{S_M}, s{S_Q}'); a(f's_add_u32 s{S_Q}, s{S_Q}, {hh}')
        a(f's_lshl_b32 s{S_Q}, s{S_Q}, 11')
        a(f's_bfe_u32 s{S_TAG}, s{S_SL}, 0x10001'); a(f's_and_b32 s{S_T}, s{S_SL}, 1'); a(f's_add_u32 s{S_SL}, s{S_SL}, 1')
        a(f's_lshl1_add_u32 s{S_T}, s{S_G}, s{S_T}'); a(f's_mul_i32 s{S_OB}, s{S_T}, {PA_SLOT}'); a(f's_add_u32 s{S_OB}, s{S_OB}, {PA}')
        a(f'v_mov_b32 v{ONE}, 0x3f803f80'); a(f'v_mov_b32 v{ONE+1}, 0x3f803f80'); a(f'v_mov_b64 {vr(ONE+2,2)}, {vr(ONE,2)}')
        a(f'v_mov_b64 {vr(PM,2)}, 0'); a(f'v_mov_b64 {vr(PM+2,2)}, 0')
        if qt == 0: a(f'v_mov_b64 {vr(PX+2,2)}, 0')
        a('s_waitcnt vmcnt(0)')
        tk(a, opt, 3)
        for ks in range(4):
            for kt in range(qt + 1):
                S = S1 if kt else S0
                a(f'{MF} {vr(S,4)}, {vr(K+16*kt+4*ks,4)}, {vr(Q+4*ks,4)}, {"0" if ks == 0 else vr(S,4)}')
        SD = S1 if qt else S0
        a(f'v_mov_b32 v{T}, 0xff800000')
        for r in range(4): a(f'v_cndmask_b32 v{SD+r}, v{T}, v{SD+r}, s[{S_MK+2*r}:{S_MK+2*r+1}]')
        M, M2 = T + 2, T + 3
        a(f'v_max3_f32 v{M}, v{S0}, v{S0+1}, v{S0+2}')
        if qt:
            a(f'v_max3_f32 v{M}, v{M}, v{S0+3}, v{S1}'); a(f'v_max3_f32 v{M}, v{M}, v{S1+1}, v{S1+2}'); a(f'v_max_f32 v{M}, v{M}, v{S1+3}')
        else: a(f'v_max_f32 v{M}, v{M}, v{S0+3}')
        a(f's_add_u32 s{S_N}, s{S_SEG}, 1'); a(f's_cmp_eq_u32 s{S_SEG}, 63'); a(f's_cselect_b32 s{S_N}, 0, s{S_N}')
        spoll(a, S_FC, f's{S_N}', [(1, f's{S_FA+2}')], 'ac')
        tk(a, opt, 4)
        LK = f'L_att_k{w}'
        a.label(LK)
        a(f's_add_u32 s{S_P}, s{S_Q}, {KM}')
        for ks in range(4): a(f'buffer_load_dwordx4 {vr(KMF+4*ks,4)}, v{KMA}, {WS}, s{S_P} offen offset:{512*ks} sc1'); vm.issue(('km', ks))
        a(f's_add_u32 s{S_P}, s{S_Q}, {VM}')
        for u in range(4): a(f'buffer_load_dwordx2 {vr(VMF+2*u,2)}, v{L8}, {WS}, s{S_P} offen offset:{512*u} sc1'); vm.issue(('vm', u))
        for ks in range(4):
            vm.wait(('km', ks))
            a(f'{MF} {vr(SM,4)}, {vr(KMF+4*ks,4)}, {vr(Q+4*ks,4)}, {"0" if ks == 0 else vr(SM,4)}')
        a(f'v_max3_u32 v{T}, v{KMF}, v{KMF+4}, v{KMF+8}')
        vm.wait(('vm', 3))
        a(f'v_max3_u32 v{T}, v{T}, v{KMF+12}, v{VMF}')
        a(f'v_max3_u32 v{T}, v{T}, v{VMF+2}, v{VMF+4}')
        a(f'v_max_u32 v{T}, v{T}, v{VMF+6}')
        a(f'v_cmp_eq_u32 vcc, -1, v{T}')
        a(f's_cbranch_vccz {LK}_x')
        retry(a, LK + '_x')
        a(f's_branch {LK}')
        a.label(LK + '_x')
        a(f'v_max3_f32 v{M}, v{M}, v{SM}, v{SM+1}')
        tk(a, opt, 5)
        for sw in ('v_permlane32_swap_b32', 'v_permlane16_swap_b32'):
            a(f'v_mov_b32 v{M2}, v{M}'); a(f'{sw} v{M}, v{M2}'); a(f'v_max_f32 v{M}, v{M}, v{M2}')
        a(f'v_mul_f32 v{M}, s{S_C+1}, v{M}')
        vals = [SM, SM + 1, S0, S0 + 1, S0 + 2, S0 + 3] + ([S1, S1 + 1, S1 + 2, S1 + 3] if qt else [])
        for r in vals: a(f'v_fma_f32 v{r}, v{r}, s{S_C}, v{M}')
        for r in vals: a(f'v_exp_f32 v{r}, v{r}')
        a(f'v_cvt_pk_bf16_f32 v{PX}, v{S0}, v{S0+1}'); a(f'v_cvt_pk_bf16_f32 v{PX+1}, v{S0+2}, v{S0+3}')
        if qt: a(f'v_cvt_pk_bf16_f32 v{PX+2}, v{S1}, v{S1+1}'); a(f'v_cvt_pk_bf16_f32 v{PX+3}, v{S1+2}, v{S1+3}')
        a(f'v_cvt_pk_bf16_f32 v{PM}, v{SM}, v{SM+1}'); a(f'v_cvt_pk_bf16_f32 v{PM+3}, v{SM}, v{SM+1}')
        a(f'{MF} {vr(SUM,4)}, {vr(ONE,4)}, {vr(PX,4)}, 0')
        for u in range(4): a(f'{MF} {vr(O+4*u,4)}, {vr(V+4*u,4)}, {vr(PX,4)}, 0')
        a(f'{MH} {vr(SUM,4)}, {vr(ONE,2)}, {vr(PM,2)}, {vr(SUM,4)}')
        for u in range(4, 8): a(f'{MF} {vr(O+4*u,4)}, {vr(V+4*u,4)}, {vr(PX,4)}, 0')
        a(f'v_add_u32 v{T+1}, s{S_B}, v{L16}')
        for u in range(8):
            a(f'{MH} {vr(O+4*u,4)}, {vr(VMF+2*(u>>1),2)}, {vr(PM+2*(u&1),2)}, {vr(O+4*u,4)}')
            if u == 0: a(f'v_rcp_f32 v{T+2}, v{SUM}')
        for w4 in range(4):
            q = O + 8 * w4
            for r in range(4): a(f'v_pk_mul_f32 {vr(q+2*r,2)}, {vr(q+2*r,2)}, {vr(T+2,2)} op_sel_hi:[1,0]')
            for d in range(4): a(f'v_cvt_pk_bf16_f32 v{q+d}, v{q+2*d}, v{q+2*d+1}')
            a(f'ds_write_b128 v{T+1}, {vr(q,4)} offset:{(w * 4 + w4) * 1024}')
        a('s_waitcnt lgkmcnt(0)')
        a('s_barrier')
        tk(a, opt, 6)
        if opt.get('wst'): a('s_waitcnt lgkmcnt(0)')
        lg = Cnt(a, 'lgkmcnt', 15)
        for k8 in range(8):
            for tt in range(2):
                a(f'ds_read_b128 {vr(OF+4*(2*k8+tt),4)}, v{T+1} offset:{(((k8 >> 2) * 2 + tt) * 4 + (k8 & 3)) * 1024}'); lg.issue((k8, tt))
        a(f's_xor_b32 s{S_B}, s{S_B}, 0x4000')
        a(f's_add_u32 s{S_P}, s{S_OB}, 294912')
        XV = 48
        if red: a(f's_mul_i32 s{S_Q}, s{S_SEG}, 36864')
        def fin(gi):
            base = ACC + 16 * (gi & 1)
            for tt in range(2):
                so = S_P if tt else S_OB
                q = base + 8 * tt
                if gi < 4:
                    for d in range(4): a(f'v_cvt_pk_bf16_f32 v{q+d}, v{q+2*d}, v{q+2*d+1}')
                    for d in (0, 2): a(f'v_bfi_b32 v{q+d}, 1, s{S_TAG}, v{q+d}')
                    a(f'buffer_store_dwordx4 {vr(q,4)}, v{PST}, {WS}, s{so} offen offset:{(4 * gi + w) * 128} sc1')
                else:
                    for d in range(2): a(f'v_cvt_pk_bf16_f32 v{q+d}, v{q+2*d}, v{q+2*d+1}')
                    a(f'v_bfi_b32 v{q}, 1, s{S_TAG}, v{q}')
                    a(f'buffer_store_dwordx2 {vr(q,2)}, v{PST}, {WS}, s{so} offen offset:{(16 + hh) * 128 + 8*tl[8][1]} sc1')
        for gi in range(5):
            base = ACC + 16 * (gi & 1)
            for k8 in range(8):
                for tt in range(2):
                    if gi == 0: lg.wait((k8, tt))
                    for TT in range(2 if gi < 4 else 1):
                        q = base + 8 * tt + 4 * TT
                        a(f'{MF} {vr(q,4)}, {WOF(2*gi+TT,k8)}, {vr(OF+4*(2*k8+tt),4)}, {"0" if k8 == 0 else vr(q,4)}')
                if k8 == 1 and gi > 0: fin(gi - 1)
                if red and gi == 0 and 2 <= k8 <= 4:
                    q3 = k8 - 2
                    a(f'buffer_load_dwordx2 {vr(XV+2*q3,2)}, v{XO2 if q3 == 2 else XO}, {R(XX)}, s{S_Q} offen offset:{128*q3 if q3 < 2 else 0}')
        fin(4)
        tk(a, opt, 7)
        if red:
            RA = 96; H = 108; H2 = 116
            def rl(t0):
                for t5 in range(t0, 5):
                    for u in range(4):
                        a(f's_add_u32 s{S_P}, s{S_OB}, {u * 9216}')
                        a(f'buffer_load_dwordx4 {vr(RR+4*(4*t5+u),4)}, v{RB4 if t5 == 4 else RB}, {WS}, s{S_P} offen offset:{512*t5} sc1')
            rl(0)
            tk(a, opt, 8)
            for t5 in range(5):
                LR = f'L_att_r{w}_{t5}'
                a.label(LR)
                a(f's_waitcnt vmcnt({4 * (4 - t5)})')
                z = [RR + 4 * (4 * t5 + u) for u in range(4)]
                for u in range(4): a(f'v_bitop3_b32 v{T+u}, v{z[u]}, v{z[u]+2}, s{S_TAG} bitop3:0x7e')
                a(f'v_or3_b32 v{T}, v{T}, v{T+1}, v{T+2}')
                a(f'v_bitop3_b32 v{T}, v{T}, v{T+3}, 1 bitop3:0xa8')
                a(f'v_cmp_eq_u32 vcc, 1, v{T}')
                a(f's_cbranch_vccz {LR}_x')
                retry(a, LR + '_x')
                rl(t5)
                a(f's_branch {LR}')
                a.label(LR + '_x')
                if t5 == 0:
                    for q in range(3):
                        for d in range(2):
                            a(f'v_lshlrev_b32 v{RA+4*q+2*d}, 16, v{XV+2*q+d}'); a(f'v_and_b32 v{RA+4*q+2*d+1}, 0xffff0000, v{XV+2*q+d}')
                if t5 == 4: tk(a, opt, 9)
                q = RA + 4 * (t5 >> 1)
                for u in range(4): a(f'{MF} {vr(q,4)}, {vr(SHI if t5 & 1 else SLO,4)}, {vr(z[u],4)}, {vr(q,4)}')
            tk(a, opt, 10)
            a(f's_mov_b32 s{S_T}, 0x00ff00ff'); a(f's_mov_b32 s{S_T+1}, 0')
            for i in range(6): a(f'v_cvt_pk_bf16_f32 v{H+i}, v{RA+2*i}, v{RA+2*i+1}')
            for i in (4, 5): a(f'v_cndmask_b32 v{H+i}, 0, v{H+i}, s[{S_T}:{S_T+1}]')
            for i in range(6): a(f'v_lshlrev_b32 v{RA+2*i}, 16, v{H+i}'); a(f'v_and_b32 v{RA+2*i+1}, 0xffff0000, v{H+i}')
            def put(r, base):
                a(f's_add_u32 s{S_P}, s{S_Q}, {base}')
                for d in range(2): a(f'v_permlane16_swap_b32 v{r+d}, v{r+2+d}')
                a(f'buffer_store_dwordx4 {vr(r,4)}, v{XO4}, {WS}, s{S_P} offen sc1')
                a(f'buffer_store_dwordx2 {vr(r+4,2)}, v{XO2}, {WS}, s{S_P} offen sc1')
            put(H, HB)
            a(f'v_add_f32 v{T}, v{RA}, v{RA+1}'); a(f'v_add_f32 v{T+1}, v{RA+2}, v{RA+3}')
            for i in range(4, 12): a(f'v_add_f32 v{T+(i&1)}, v{T+(i&1)}, v{RA+i}')
            a(f'v_add_f32 v{T}, v{T}, v{T+1}')
            allreduce(a, T, T + 1)
            a(f'v_mul_f32 v{T}, 0x{0x3ae38e39:x}, v{T}')
            for i in range(12): a(f'v_sub_f32 v{RA+i}, v{RA+i}, v{T}')
            for i in range(8, 12): a(f'v_cndmask_b32 v{RA+i}, 0, v{RA+i}, s[{S_T}:{S_T+1}]')
            a(f'v_mul_f32 v{T}, v{RA}, v{RA}'); a(f'v_mul_f32 v{T+1}, v{RA+1}, v{RA+1}')
            for i in range(2, 12): a(f'v_fmac_f32 v{T+(i&1)}, v{RA+i}, v{RA+i}')
            a(f'v_add_f32 v{T}, v{T}, v{T+1}')
            allreduce(a, T, T + 1)
            a(f'v_mov_b32 v{T+1}, 0x{0x3727c5ac:x}'); a(f'v_fmac_f32 v{T+1}, 0x{0x3ae38e39:x}, v{T}'); a(f'v_rsq_f32 v{T+1}, v{T+1}')
            for i in range(12): a(f'v_mul_f32 v{RA+i}, v{T+1}, v{RA+i}')
            for i in range(6): a(f'v_cvt_pk_bf16_f32 v{H2+i}, v{RA+2*i}, v{RA+2*i+1}')
            put(H2, XN2)
            tk(a, opt, 11)
        tfirst(a, opt, f's_cmp_lt_u32 s{S_SEG}, {NG}')
        a(f's_cmp_ge_u32 s{S_SEG}, {64 - NG}'); a(f's_cbranch_scc1 {L}_end')
        if not red: a('s_waitcnt vmcnt(0)')
        qkv(NG)
        a(f's_add_u32 s{S_SEG}, s{S_SEG}, {NG}')
        a(f's_branch {L}')
        a.label(L + '_end')
        finish(a, opt)

def ffn(a, opt):
    DO = 1; XA = 10; L16 = 14; PST = 15; RB = 16; OA = 17; XW = 18; T = 20
    SEL = 28; ACC = [32, 48]; XR = [64, 68, 72, 76]
    AF = 32
    DA = 64
    WG, WU, WD, OUT = S_R0, S_R1, S_R2, S_R3
    ACTL = 40960
    def GU(m, kk): return 80 + 8 * kk + 4 * m
    a.label('L_ffn')
    a(f's_load_dwordx4 s[{WG}:{WG+3}], s[0:1], 64')
    a(f's_load_dwordx4 s[{WD}:{WD+3}], s[0:1], 80')
    a(f's_mov_b32 s{S_SPIN}, 0')
    a(f's_sub_u32 s{S_M}, s{S_ROLE}, 112'); a(f's_mov_b32 s{S_G}, 0')
    for _ in range(2):
        a(f's_cmp_ge_u32 s{S_M}, 36'); a(f's_cselect_b32 s{S_T}, 36, 0'); a(f's_cselect_b32 s{S_T+1}, 1, 0')
        a(f's_sub_u32 s{S_M}, s{S_M}, s{S_T}'); a(f's_add_u32 s{S_G}, s{S_G}, s{S_T+1}')
    a(f'v_lshlrev_b32 v{L16}, 4, v0')
    a('s_waitcnt lgkmcnt(0)')
    a(f's_mov_b32 s{WU}, s{WG+2}'); a(f's_mov_b32 s{WU+1}, s{WG+3}'); a(f's_mov_b32 s{OUT}, s{WD+2}'); a(f's_mov_b32 s{OUT+1}, s{WD+3}')
    for r in (WG, WU, WD): srd_fix(a, r, 5308416)
    srd_fix(a, OUT, 2359296)
    GA = T + 4; TA = T + 5
    a(f's_mul_i32 s{S_T}, s{S_WAVE}, {16 * 9216}'); a(f's_lshl_b32 s{S_T+1}, s{S_M}, 8'); a(f's_add_u32 s{S_T}, s{S_T}, s{S_T+1}')
    a(f'''
    v_lshrrev_b32 v{T}, 4, v0
    v_mul_u32_u24 v{T}, 9216, v{T}
    v_and_b32 v{T+1}, 15, v0
    v_lshl_add_u32 v{T}, v{T+1}, 4, v{T}
    v_add_u32 v{GA}, s{S_T}, v{T}
    ''')
    a(f's_lshl_b32 s{S_B}, s{S_WAVE}, 12')
    vm = Cnt(a, 'vmcnt', 63)
    def gdma(st):
        for m in range(2):
            for u in range(4):
                a(f's_add_u32 m0, s{S_B}, {(st % 4) * 32768 + m * 16384 + u * 1024}')
                a(f's_mov_b32 s{S_P}, {(64 * st + 4 * u) * 9216}')
                a(f'buffer_load_dwordx4 v{GA}, {R(WU if m else WG)}, s{S_P} offen lds'); vm.issue(st)
    if opt.get('gate_ffn'): meet(a, T, None, [({'p': GO_P, 'c': GO_C}[opt['gate_ffn']], 1)], 'gf')
    for st in range(4): gdma(st)
    a(f's_lshl_b32 s{S_T}, s{S_WAVE}, 6')
    a(f'''
    v_lshrrev_b32 v{T}, 5, v0
    v_bfe_u32 v{T+1}, v0, 2, 2
    v_lshl_add_u32 v{T}, v{T}, 3, v{T+1}
    v_lshlrev_b32 v{T}, 8, v{T}
    v_bfe_u32 v{T+1}, v0, 4, 1
    v_lshl_add_u32 v{T}, v{T+1}, 5, v{T}
    v_and_b32 v{T+1}, 3, v0
    v_lshl_add_u32 v{T}, v{T+1}, 3, v{T}
    v_add_u32 v{TA}, s{S_T}, v{T}
    v_add_u32 v{TA+1}, 65536, v{TA}
    ''')
    x_consts(a, DO, XA, T)
    for st in range(9):
        vm.wait(st)
        a('s_barrier')
        for k4 in range(4):
            for m in range(2):
                for p in range(2):
                    a(f'ds_read_b64_tr_b16 {ur(GU(m, 4*st+k4) + 2*p, 2)}, v{TA + ((st % 4) >> 1)} offset:{(st % 2) * 32768 + m * 16384 + k4 * 4096 + p * 1024}')
        a('s_waitcnt lgkmcnt(0)')
        if st + 4 < 9:
            a('s_barrier'); gdma(st + 4)
    a('s_barrier')
    th(a, opt, 3)
    a(f's_mul_i32 s{S_B}, s{S_WAVE}, 9216'); a(f's_mul_i32 s{S_OB}, s{S_M}, 147456'); a(f's_add_u32 s{S_OB}, s{S_OB}, s{S_B}')
    for st in range(4): row_stage_dma(a, WD, L16, st, S_OB, vm, 100 + st)
    sel(a, SEL, T, 'dup')
    a(f'''
    v_and_b32 v{T}, 15, v0
    v_lshrrev_b32 v{T+1}, 4, v0
    v_lshlrev_b32 v{T+2}, 6, v{T}
    v_lshl_add_u32 v{T+2}, v{T+1}, 4, v{T+2}
    s_lshl_b32 s{S_T}, s{S_M}, 10
    v_add_u32 v{PST}, s{S_T}, v{T+2}
    v_lshlrev_b32 v{T+2}, 4, v{T}
    v_lshl_add_u32 v{T+2}, v{T+1}, 10, v{T+2}
    s_mul_i32 s{S_T}, s{S_M}, 36864
    s_lshl_b32 s{S_T+1}, s{S_WAVE}, 8
    s_add_u32 s{S_T}, s{S_T}, s{S_T+1}
    v_add_u32 v{RB}, s{S_T}, v{T+2}
    s_cmp_ge_u32 s{S_M}, 18
    s_cselect_b32 s{S_T}, {16 * 1152 - 18 * 64}, 0
    s_lshl_b32 s{S_T+1}, s{S_M}, 6
    s_add_u32 s{S_T}, s{S_T}, s{S_T+1}
    s_mul_i32 s{S_T+1}, s{S_WAVE}, 4608
    s_add_u32 s{S_T}, s{S_T}, s{S_T+1}
    v_lshrrev_b32 v{T+2}, 2, v{T}
    v_mul_u32_u24 v{T+2}, 1152, v{T+2}
    v_and_b32 v{T+3}, 3, v0
    v_lshl_add_u32 v{T+2}, v{T+3}, 4, v{T+2}
    v_lshl_add_u32 v{T+2}, v{T+1}, 3, v{T+2}
    v_add_u32 v{T+2}, s{S_T}, v{T+2}
    v_mov_b32 v{T+3}, 0x{OOB:x}
    v_cmp_gt_u32 vcc, 32, v0
    v_cndmask_b32 v{OA}, v{T+3}, v{T+2}, vcc
    v_add_u32 v{XW}, s{S_B}, v{L16}
    ''')
    a(f'''
    v_lshrrev_b32 v{T}, 5, v0
    v_bfe_u32 v{T+1}, v0, 2, 3
    v_lshl_add_u32 v{T}, v{T}, 4, v{T+1}
    v_mul_u32_u24 v{T}, 1152, v{T}
    v_and_b32 v{T+1}, 3, v0
    v_lshl_add_u32 v{TA}, v{T+1}, 4, v{T}
    v_add_u32 v{TA+1}, {2 * 36864}, v{TA}
    ''')
    for w in range(1, 4):
        a(f's_cmp_eq_u32 s{S_WAVE}, {w}'); a(f's_cbranch_scc1 L_ffn_w{w}')
    vm0 = list(vm.q)
    for w in range(4):
        tl = tiles_of(w)
        def WDF(ti, ks): return 368 + 4 * (ti * 4 + ks)
        a.label(f'L_ffn_w{w}')
        vm.q = list(vm0)
        for st in range(4):
            vm.wait(100 + st)
            a('s_barrier')
            for ti, (P, TT) in enumerate(tl):
                for p in range(2):
                    a(f'ds_read_b64_tr_b16 {ur(WDF(ti, st) + 2*p, 2)}, v{TA + (st >> 1)} offset:{(st % 2) * 36864 + p * 8 * 1152 + P * 64 + TT * 8}')
        a('s_waitcnt lgkmcnt(0)')
        th(a, opt, 4)
        a(f's_mul_i32 s{S_T}, s{S_G}, {2 * PF_SLOT}'); a(f's_mul_i32 s{S_T+1}, s{S_M}, 36864'); a(f's_add_u32 s{S_T}, s{S_T}, s{S_T+1}')
        fill(a, L16, 32, [(S_T, PF + w * 9216), (S_T, PF + PF_SLOT + w * 9216)])
        th(a, opt, 5)
        meet(a, T, (DB_FI, 108, GO_FI), [(GO_FI, 1), (GO_AI, 1)], 'fi')
        tstamp(a, opt, 0)
        a(f's_mov_b32 s{S_SEG}, s{S_G}')
        a(f's_mov_b32 s{S_N}, 0')
        AW = T + 4; HV = 26
        a(f'''
        v_bfe_u32 v{T}, v0, 4, 1
        v_lshlrev_b32 v{T}, 10, v{T}
        v_lshrrev_b32 v{T+1}, 5, v0
        v_lshl_add_u32 v{T}, v{T+1}, 8, v{T}
        v_and_b32 v{T+1}, 15, v0
        v_lshl_add_u32 v{AW}, v{T+1}, 4, v{T}
        ''')
        L = f'L_ffn_l{w}'
        a.label(L)
        a(f's_mul_i32 s{S_OB}, s{S_SEG}, 36864'); a(f's_add_u32 s{S_T+1}, s{S_OB}, {XN2}')
        a(f's_add_u32 s{S_T}, s{S_OB}, {HB + w * 9216}')
        a(f's_bfe_u32 s{S_TAG}, s{S_N}, 0x10001'); a(f's_and_b32 s{S_Q}, s{S_N}, 1')
        a(f's_lshl1_add_u32 s{S_Q}, s{S_G}, s{S_Q}'); a(f's_mul_i32 s{S_Q}, s{S_Q}, {PF_SLOT}'); a(f's_add_u32 s{S_Q}, s{S_Q}, {PF}')
        tk(a, opt, 3)
        spoll(a, None, None, [(1, f's{S_T}')], 'fh', sentinel=True)
        tk(a, opt, 4)
        XL = 32
        def xl(g0):
            for i in range(3 * g0, 9): a(f'buffer_load_dwordx4 {vr(XL+4*i,4)}, v{DO+i}, {WS}, s{S_T+1} offen sc1')
        xl(0)
        for g3 in range(3):
            LX = f'L_ffn_x{w}_{g3}'
            a.label(LX)
            z = [XL + 4 * (3 * g3 + u) for u in range(3)]
            for u in range(3):
                a(f's_waitcnt vmcnt({8 - 3 * g3 - u})')
                a(f'ds_write_b128 v{XW}, {vr(z[u],4)} offset:{1024 * (3 * g3 + u)}')
                if u == 0: a(f'v_max_u32 v{T}, v{z[u]}, v{z[u]+2}')
                else: a(f'v_max3_u32 v{T}, v{T}, v{z[u]}, v{z[u]+2}')
            a(f'v_cmp_eq_u32 vcc, -1, v{T}')
            a(f's_cbranch_vccz {LX}_x')
            retry(a, LX + '_x')
            a('s_waitcnt lgkmcnt(0)')
            xl(g3)
            a(f's_branch {LX}')
            a.label(LX + '_x')
        a('s_waitcnt lgkmcnt(0)')
        a('s_barrier')
        tk(a, opt, 5)
        if opt.get('wst'): a('s_waitcnt lgkmcnt(0)')
        lg = Cnt(a, 'lgkmcnt', 15)
        def rd(kk):
            a(f'ds_read_b128 {vr(XR[kk % 4], 4)}, v{XA + (kk & 3)} offset:{(kk >> 2) * 128}'); lg.issue(kk)
        for kk in range(3): rd(kk)
        a(f's_add_u32 s{S_T}, s{S_OB}, {HB}')
        for kk in range(36):
            lg.wait(kk)
            for m in range(2):
                a(f'{MF32} {vr(ACC[m],16)}, {ur(GU(m,kk),4)}, {vr(XR[kk%4],4)}, {"0" if kk == 0 else vr(ACC[m],16)}')
                if m == 0 and kk + 3 < 36: rd(kk + 3)
            if kk == 8: a(f'buffer_load_dwordx2 {vr(HV,2)}, v{OA}, {WS}, s{S_T} offen sc1')
        g, u = ACC
        tk(a, opt, 6)
        for r in range(16): a(f'v_max_f32 v{g+r}, 0, v{g+r}')
        for b in range(2):
            for r in range(4): a(f'v_pk_mul_f32 {vr(g+8*b+2*r,2)}, {vr(g+8*b+2*r,2)}, {vr(u+8*b+2*r,2)}')
            for d in range(4): a(f'v_cvt_pk_bf16_f32 v{g+8*b+d}, v{g+8*b+2*d}, v{g+8*b+2*d+1}')
            a(f'ds_write_b128 v{AW}, {vr(g+8*b,4)} offset:{ACTL + w * 2048 + b * 512}')
        a('s_waitcnt lgkmcnt(0)')
        a('s_barrier')
        for ks in range(4):
            for tt in range(2):
                a(f'ds_read_b128 {vr(AF+4*(2*ks+tt),4)}, v{L16} offset:{ACTL + ks * 2048 + tt * 1024}'); lg.issue((ks, tt))
        groups = [(gi, tt) for gi in range(5) for tt in range(2)]
        def fin(n):
            gi, tt = groups[n]; q = DA + 8 * (n & 1); P = tl[2 * gi][0]
            a(f's_add_u32 s{S_P}, s{S_Q}, {(tt * 18 + P) * 36864}')
            if gi < 4:
                for d in range(4): a(f'v_cvt_pk_bf16_f32 v{q+d}, v{q+2*d}, v{q+2*d+1}')
                for d in (0, 2): a(f'v_bfi_b32 v{q+d}, 1, s{S_TAG}, v{q+d}')
                a(f'buffer_store_dwordx4 {vr(q,4)}, v{PST}, {WS}, s{S_P} offen sc1')
            else:
                for d in range(2): a(f'v_cvt_pk_bf16_f32 v{q+d}, v{q+2*d}, v{q+2*d+1}')
                a(f'v_bfi_b32 v{q}, 1, s{S_TAG}, v{q}')
                a(f'buffer_store_dwordx2 {vr(q,2)}, v{PST}, {WS}, s{S_P} offen offset:{8*tl[8][1]} sc1')
        for n, (gi, tt) in enumerate(groups):
            for ks in range(4):
                if n < 2: lg.wait((ks, tt))
                for TT in range(2 if gi < 4 else 1):
                    q = DA + 8 * (n & 1) + 4 * TT
                    a(f'{MF} {vr(q,4)}, {ur(WDF(2*gi+TT,ks),4)}, {vr(AF+4*(2*ks+tt),4)}, {"0" if ks == 0 else vr(q,4)}')
                if ks == 1 and n > 0: fin(n - 1)
        fin(9)
        tk(a, opt, 7)
        RA = 68; RR = 32
        def pl(g0):
            for u9 in range(3 * g0, 9):
                a(f's_add_u32 s{S_P}, s{S_Q}, {u9 * 4096}')
                a(f'buffer_load_dwordx4 {vr(RR+4*u9,4)}, v{RB}, {WS}, s{S_P} offen sc1')
        pl(0)
        tk(a, opt, 8)
        for g3 in range(3):
            LF = f'L_ffn_f{w}_{g3}'
            a.label(LF)
            a(f's_waitcnt vmcnt({6 - 3 * g3})')
            z = [RR + 4 * (3 * g3 + u) for u in range(3)]
            for u in range(3): a(f'v_bitop3_b32 v{T+u}, v{z[u]}, v{z[u]+2}, s{S_TAG} bitop3:0x7e')
            a(f'v_or3_b32 v{T}, v{T}, v{T+1}, v{T+2}')
            a(f'v_and_b32 v{T}, 1, v{T}')
            if g3 == 0:
                a(f'v_cmp_eq_u32 vcc, -1, v{HV}'); a(f'v_cndmask_b32 v{T}, v{T}, 1, vcc')
            a(f'v_cmp_eq_u32 vcc, 1, v{T}')
            a(f's_cbranch_vccz {LF}_x')
            retry(a, LF + '_x')
            if g3 == 0: a(f'buffer_load_dwordx2 {vr(HV,2)}, v{OA}, {WS}, s{S_T} offen sc1')
            pl(g3)
            a(f's_branch {LF}')
            a.label(LF + '_x')
            if g3 == 0:
                for d in range(2): a(f'v_lshlrev_b32 v{RA+2*d}, 16, v{HV+d}'); a(f'v_and_b32 v{RA+2*d+1}, 0xffff0000, v{HV+d}')
            if g3 == 2: tk(a, opt, 9)
            for u in range(3): a(f'{MF} {vr(RA,4)}, {vr(SEL,4)}, {vr(z[u],4)}, {vr(RA,4)}')
        tk(a, opt, 10)
        for d in range(2): a(f'v_cvt_pk_bf16_f32 v{RA+d}, v{RA+2*d}, v{RA+2*d+1}')
        a(f'buffer_store_dwordx2 {vr(RA,2)}, v{OA}, {R(OUT)}, s{S_OB} offen')
        tfirst(a, opt, f's_cmp_lt_u32 s{S_SEG}, 3')
        a(f's_add_u32 s{S_SEG}, s{S_SEG}, 3'); a(f's_add_u32 s{S_N}, s{S_N}, 1')
        a(f's_cmp_lt_u32 s{S_SEG}, 64'); a(f's_cbranch_scc1 {L}')
        if opt.get('times'): a('s_waitcnt vmcnt(0)')
        finish(a, opt)

def roles(a, opt):
    a(f's_cmp_ge_u32 s{S_ROLE}, 112'); a('s_cbranch_scc1 L_ffn')
    a(f's_cmp_ge_u32 s{S_ROLE}, 48'); a('s_cbranch_scc1 L_att')
    proj(a, opt); att(a, opt); ffn(a, opt)
```

```python
import sys, json
sys.path.insert(0, 'gen')
from asm import *
from lay import *
import os, importlib, workers
chain = importlib.import_module(os.environ.get('CHAIN', 'chain3'))
NAME = 'sequential_preLN__memory_aug_recurrent_mem_tr__glu_gated_reglu__prompt'

def build(opt):
    a = Asm(); a.timed = opt.get('timed', True)
    DBG = f's[{S_DBG}:{S_DBG+3}]'; WS = f's[{S_WS}:{S_WS+3}]'
    a(f's_cmp_ge_u32 s{S_WG}, 256'); a('s_cbranch_scc1 L_exit')
    if opt.get('times', False): a('s_memrealtime s[62:63]')
    a(f's_load_dwordx4 s[{S_DBG}:{S_DBG+3}], s[0:1], 96')
    a(f's_getreg_b32 s{S_T}, hwreg(HW_REG_XCC_ID)')
    a(f'v_readfirstlane_b32 s{S_WAVE}, v0')
    a(f's_and_b32 s{S_T}, s{S_T}, 15')
    a(f's_lshr_b32 s{S_WAVE}, s{S_WAVE}, 6')
    a('v_and_b32 v0, 63, v0')
    a('s_waitcnt lgkmcnt(0)')
    a(f's_mov_b32 s{S_WS}, s{S_DBG+2}'); a(f's_and_b32 s{S_WS+1}, s{S_DBG+3}, 0xffff')
    a(f's_mov_b32 s{S_WS+2}, {WS_BYTES}'); a(f's_mov_b32 s{S_WS+3}, 0x20000')
    a(f's_and_b32 s{S_DBG+1}, s{S_DBG+1}, 0xffff'); a(f's_mov_b32 s{S_DBG+2}, 256'); a(f's_mov_b32 s{S_DBG+3}, 0x20000')
    if opt.get('force_slow'): a(f's_or_b32 s{S_T}, s{S_T}, {opt["force_slow"]}')
    a(f's_cmp_lg_u32 s{S_WAVE}, 1'); a('s_cbranch_scc1 L_nozero')
    a(f's_cmp_lt_u32 s{S_WG}, {256 - 2 * NZ}'); a('s_cbranch_scc1 L_noticket')
    a(f's_bitcmp0_b32 s{S_WG}, 0'); a('s_cbranch_scc1 L_noticket')
    a('v_mov_b64 v[4:5], 0'); a('v_mov_b64 v[6:7], 0'); a('v_lshlrev_b32 v3, 4, v0')
    a(f's_sub_u32 s{S_T+2}, s{S_WG}, {257 - 2 * NZ}'); a(f's_lshl_b32 s{S_T+2}, s{S_T+2}, 9')
    a(f'buffer_store_dwordx4 v[4:7], v3, {WS}, s{S_T+2} offen sc1')
    a('v_mov_b32 v1, 1')
    a('s_waitcnt vmcnt(0)')
    a('s_mov_b64 exec, 1')
    a(f'buffer_atomic_add v1, off, {DBG}, 0 offset:{DB_Z}')
    a('s_mov_b64 exec, -1')
    a('s_branch L_noticket')
    a.label('L_nozero')
    x1 = opt.get('x1', 'att')
    a(f's_cmp_lg_u32 s{S_WAVE}, 0'); a('s_cbranch_scc1 L_noticket')
    a('v_mov_b32 v2, 0')
    a('s_mov_b64 exec, 1')
    a(f's_cmp_gt_u32 s{S_T}, {1 if x1 else 0}'); a('s_cbranch_scc1 L_wticket')
    a('v_mov_b32 v1, 1')
    a(f's_mul_i32 s{S_T+2}, s{S_T}, {DB_C1 - DB_CT}')
    a(f'buffer_atomic_add v1, off, {DBG}, s{S_T+2} offset:{DB_CT} sc0')
    a(f's_add_u32 s{S_T+2}, s{S_T}, 1'); a(f's_lshl_b32 s{S_T+2}, s{S_T+2}, 16')
    a('s_waitcnt vmcnt(0)')
    a(f'v_readfirstlane_b32 s{S_T+1}, v1')
    a(f'v_or_b32 v1, s{S_T+2}, v1')
    a(f's_cmp_lt_u32 s{S_T+1}, 32'); a('s_cbranch_scc1 L_ticket')
    a.label('L_wticket')
    a('v_mov_b32 v1, 1')
    a(f'buffer_atomic_add v1, off, {DBG}, 0 offset:{DB_WT} sc0')
    a('s_waitcnt vmcnt(0)')
    a.label('L_ticket')
    a('ds_write_b32 v2, v1')
    a('s_waitcnt lgkmcnt(0)')
    a('s_mov_b64 exec, -1')
    a.label('L_noticket')
    a('s_barrier')
    a('v_mov_b32 v2, 0'); a('ds_read_b32 v1, v2'); a('s_waitcnt lgkmcnt(0)')
    a(f'v_readfirstlane_b32 s{S_T+1}, v1')
    a('s_barrier')
    a(f's_and_b32 s{S_ROLE}, s{S_T+1}, 0xffff')
    a(f's_bitcmp1_b32 s{S_T+1}, 16'); a('s_cbranch_scc1 L_chain')
    a(f's_bitcmp0_b32 s{S_T+1}, 17'); a('s_cbranch_scc1 L_front')
    a(f's_sub_u32 s{S_ROLE}, 223, s{S_ROLE}')
    a('s_branch L_list')
    a.label('L_front')
    a(f's_cmp_lt_u32 s{S_ROLE}, {192 if x1 else 220}'); a('s_cbranch_scc1 L_list')
    a(f's_mov_b32 s{S_T+3}, 0')
    a.label('L_spare')
    a(f'buffer_load_dword v1, off, {DBG}, 0 offset:{DB_CT} sc1')
    a(f'buffer_load_dword v2, off, {DBG}, 0 offset:{DB_WT} sc1')
    a(f'buffer_load_dword v3, off, {DBG}, 0 offset:{DB_C1} sc1')
    a(f's_add_u32 s{S_T+3}, s{S_T+3}, 1')
    a('s_waitcnt vmcnt(0)')
    a(f'v_readfirstlane_b32 s{S_T+2}, v1'); a(f'v_readfirstlane_b32 s{S_T+1}, v2'); a(f'v_readfirstlane_b32 s{S_T}, v3')
    a(f's_cmp_ge_u32 s{S_T+3}, {chain.SPIN}'); a('s_cbranch_scc1 L_exit')
    a(f's_min_u32 s{S_T+2}, s{S_T+2}, 32'); a(f's_min_u32 s{S_T}, s{S_T}, 32')
    a(f's_add_u32 s{S_T+1}, s{S_T+1}, s{S_T+2}'); a(f's_add_u32 s{S_T+1}, s{S_T+1}, s{S_T}')
    a(f's_cmp_lt_u32 s{S_T+1}, 256'); a('s_cbranch_scc1 L_spare')
    a(f's_sub_u32 s{S_T}, 224, s{S_T}')
    a(f's_cmp_lt_u32 s{S_ROLE}, s{S_T}'); a('s_cbranch_scc1 L_list')
    a(f's_sub_u32 s{S_ROLE}, s{S_ROLE}, s{S_T}')
    a(f's_add_u32 s{S_ROLE}, s{S_ROLE}, s{S_T+2}')
    a(f's_cmp_lt_u32 s{S_ROLE}, 32'); a('s_cbranch_scc1 L_chain')
    a('s_branch L_exit')
    a.label('L_list')
    a(f's_cmp_ge_u32 s{S_ROLE}, 220'); a('s_cbranch_scc1 L_exit')
    if x1 == 'att':
        a(f's_cmp_lt_u32 s{S_ROLE}, 84'); a('s_cbranch_scc1 L_roles')
        a(f's_cmp_lt_u32 s{S_ROLE}, 192'); a(f's_cselect_b32 s{S_T}, 28, -108')
        a(f's_add_u32 s{S_ROLE}, s{S_ROLE}, s{S_T}')
    a('s_branch L_roles')
    a.label('L_exit')
    a('s_endpgm')
    a.label('L_roles')
    if opt.get('flags'): workers.roles(a, opt)
    else: a('s_endpgm')
    chain.entry(a, opt)
    n = a.fix(verbose=opt.get('verbose', False))
    head = open('cdna_kernels/' + NAME + '.s.ref').read().split('\n')
    hdr = [l for l in head if l.startswith(';') and '@launch' not in l]
    hdr = hdr[:[i for i, l in enumerate(hdr) if 'Override launch' in l][0]]
    out = '\n'.join(hdr) + '\n; @launch grid=(256,1,1) block=(256,1,1) lds=163840\n'
    out += f'''.amdgcn_target "amdgcn-amd-amdhsa--gfx950"
.text
.globl {NAME}_kernel
.p2align 8
.type {NAME}_kernel,@function
{NAME}_kernel:
''' + a.text() + f'''.section .rodata,"a"
.p2align 6
.amdhsa_kernel {NAME}_kernel
  .amdhsa_next_free_vgpr 512
  .amdhsa_next_free_sgpr 102
  .amdhsa_accum_offset 256
  .amdhsa_group_segment_fixed_size 0
  .amdhsa_kernarg_size 112
  .amdhsa_user_sgpr_count 2
  .amdhsa_user_sgpr_kernarg_segment_ptr 1
  .amdhsa_system_sgpr_workgroup_id_x 1
.end_amdhsa_kernel
'''
    return out

if __name__ == '__main__':
    opt = json.loads(sys.argv[2]) if len(sys.argv) > 2 else {}
    open(sys.argv[1], 'w').write(build(opt))
```

```python
from asm import *
from lay import *
SPIN = 1 << 18
S_SEG = 40; S_SPIN = 50; S_P = 51; S_Q = 41; S_B = 42; S_M = 43; S_G = 44; S_OB = 45
S_C = 46
S_MK = 52
S_TM = 64
WS = f's[{S_WS}:{S_WS+3}]'; DBG = f's[{S_DBG}:{S_DBG+3}]'
MF32 = 'v_mfma_f32_32x32x16_bf16'; MF = 'v_mfma_f32_16x16x32_bf16'; MH = 'v_mfma_f32_16x16x16_bf16'
def R(i): return f's[{i}:{i+3}]'

def srd_fix(a, r, nbytes):
    a(f's_and_b32 s{r+1}, s{r+1}, 0xffff'); a(f's_mov_b32 s{r+2}, {nbytes}'); a(f's_mov_b32 s{r+3}, 0x20000')

def poll(a, vaddr, srd, soff, sval, tmp, name, imm=0):
    lab = a.newlabel('L_' + name)
    a.label(lab)
    if vaddr is None: a(f'buffer_load_dword v{tmp}, off, {srd}, {soff} offset:{imm} sc1')
    else: a(f'buffer_load_dword v{tmp}, v{vaddr}, {srd}, {soff} offen offset:{imm} sc1')
    a(f's_add_u32 s{S_SPIN}, s{S_SPIN}, 1')
    a(f's_cmp_ge_u32 s{S_SPIN}, {SPIN}')
    a('s_waitcnt vmcnt(0)')
    a(f's_cbranch_scc1 {lab}_x')
    a(f'v_cmp_ge_u32 vcc, {sval}, v{tmp}')
    a(f's_cbranch_vccnz {lab}')
    a.label(lab + '_x')

S_FP = 48; S_FC = 49; S_TAG = 60; S_SL = 61; S_FA = 92
S_N = 95; S_FV = 96
def spoll(a, cache, need, loads, name, sentinel=False):
    lab = a.newlabel('L_' + name)
    if not sentinel: a(f's_cmp_ge_u32 s{cache}, {need}'); a(f's_cbranch_scc1 {lab}_x')
    a.label(lab)
    r = S_FV; regs = []
    for n, off in loads:
        a(f's_load_dword{"" if n == 1 else "x%d" % n} {sr(r, n)}, s[{S_WS}:{S_WS+1}], {off} glc')
        regs += list(range(r, r + n)); r += n
    a(f's_add_u32 s{S_SPIN}, s{S_SPIN}, 1')
    a(f's_cmp_ge_u32 s{S_SPIN}, {SPIN}'); a(f's_cbranch_scc1 {lab}_y')
    a('s_waitcnt lgkmcnt(0)')
    if sentinel:
        a(f's_cmp_eq_u32 s{S_FV}, -1')
    else:
        if len(regs) == 1: a(f's_mov_b32 s{cache}, s{regs[0]}')
        else:
            a(f's_min_u32 s{cache}, s{regs[0]}, s{regs[1]}')
            for x in regs[2:]: a(f's_min_u32 s{cache}, s{cache}, s{x}')
        a(f's_cmp_lt_u32 s{cache}, {need}')
    a(f's_cbranch_scc1 {lab}')
    a.label(lab + '_y')
    a('s_waitcnt lgkmcnt(0)')
    a.label(lab + '_x')

def dpoll(a, T, words, name):
    for off, need in words: poll(a, None, DBG, 0, str(need - 1), T, name, off)

def count(a, T, cnt, total, go):
    lab = a.newlabel('L_cnt')
    a(f'v_mov_b32 v{T}, 1'); a('s_mov_b64 exec, 1')
    a(f'buffer_atomic_add v{T}, off, {DBG}, 0 offset:{cnt} sc0')
    a('s_waitcnt vmcnt(0)')
    a(f'v_readfirstlane_b32 s{S_P}, v{T}')
    a(f'v_mov_b32 v{T}, 1')
    a(f's_cmp_lg_u32 s{S_P}, {total - 1}'); a(f's_cbranch_scc1 {lab}')
    a(f'buffer_store_dword v{T}, off, {DBG}, 0 offset:{go} sc1')
    a.label(lab)
    a('s_mov_b64 exec, -1')

def meet(a, T, cnt, words, name):
    lab = a.newlabel('L_meet')
    if cnt:
        a('s_waitcnt vmcnt(0)')
        a('s_barrier')
    a(f's_cmp_lg_u32 s{S_WAVE}, 0'); a(f's_cbranch_scc1 {lab}')
    if cnt: count(a, T, *cnt)
    dpoll(a, T, words, name)
    a.label(lab)
    if words: a('s_barrier')

def fill(a, L16, T, sbases):
    a(f'v_mov_b64 {vr(T,2)}, -1'); a(f'v_mov_b64 {vr(T+2,2)}, -1')
    for sb, base in sbases:
        for i in range(9):
            if i % 4 == 0: a(f's_add_u32 s{S_P}, s{sb}, {base + i * 1024}')
            a(f'buffer_store_dwordx4 {vr(T,4)}, v{L16}, {WS}, s{S_P} offen offset:{(i & 3) * 1024} sc1')

def retry(a, lab_ok):
    a(f's_add_u32 s{S_SPIN}, s{S_SPIN}, 1')
    a(f's_cmp_ge_u32 s{S_SPIN}, {SPIN}'); a(f's_cbranch_scc1 {lab_ok}')

def tstamp(a, opt, i):
    if opt.get('times'): a(f's_memrealtime s[{S_TM+2*i}:{S_TM+2*i+1}]'); a('s_waitcnt lgkmcnt(0)')
def tk(a, opt, i):
    if opt.get('wst'): a(f's_memrealtime s[{S_TM+2*i}:{S_TM+2*i+1}]')
def tacc(a, opt, i, j, k):
    if opt.get('wacc'):
        a('s_waitcnt lgkmcnt(0)'); a(f's_sub_u32 s{S_TM+2*i+1}, s{S_TM+2*j}, s{S_TM+2*i}'); a(f's_add_u32 s{S_TM+2*k}, s{S_TM+2*k}, s{S_TM+2*i+1}')
        a(f's_cmp_gt_u32 s{S_TM+2*i+1}, {opt["wacc"]}'); a(f's_addc_u32 s{S_TM+2*k+2}, s{S_TM+2*k+2}, 0')
def th(a, opt, i):
    if opt.get('hst'): a(f's_memrealtime s[{S_TM+2*i}:{S_TM+2*i+1}]'); a('s_waitcnt lgkmcnt(0)')
def tfirst(a, opt, first_cond):
    if opt.get('times'):
        lab = a.newlabel('L_tf'); a(first_cond); a(f's_cbranch_scc0 {lab}'); tstamp(a, opt, 1); a.label(lab)
def finish(a, opt):
    if opt.get('times'):
        tstamp(a, opt, 2)
        a(f's_add_u32 s{S_T}, s{S_ROLE}, 32'); a(f's_lshl_b32 s{S_T}, s{S_T}, 2'); a(f's_add_u32 s{S_T}, s{S_T}, s{S_WAVE}')
        a(f's_lshl_b32 s{S_T}, s{S_T}, 6'); a(f's_add_u32 s{S_T}, s{S_T}, {TIMES}')
        for i, r in enumerate([62] + [S_TM + 2 * k for k in range(14)]):
            a(f'v_mov_b32 v1, s{r}'); a(f'buffer_store_dword v1, off, {WS}, s{S_T} offset:{4*i}')
        if opt.get('dbgt'):
            a('s_mov_b64 exec, 1')
            a('s_not_b32 s63, s62')
            for r, o in ((63, 32), (62, 48), (S_TM + 4, 44), (S_TM, 52), (S_TM + 2, 56)):
                a(f'v_mov_b32 v1, s{r}'); a(f'buffer_atomic_umax v1, off, {DBG}, 0 offset:{o}')
    a('s_endpgm')

def x_consts(a, DO, XA, T):
    a(f's_mul_i32 s{S_T}, s{S_WAVE}, 576')
    a(f's_mov_b32 s{S_T+1}, 58255')
    for i in range(9):
        a(f'''
        v_add_u32 v{T}, s{S_T}, v0
        v_add_u32 v{T}, {64*i}, v{T}
        v_mul_lo_u32 v{T+1}, v{T}, s{S_T+1}
        v_lshrrev_b32 v{T+1}, 22, v{T+1}
        v_mul_u32_u24 v{T+2}, 72, v{T+1}
        v_sub_u32 v{T+2}, v{T}, v{T+2}
        v_bfe_u32 v{T+3}, v{T+1}, 1, 3
        v_xor_b32 v{T+2}, v{T+2}, v{T+3}
        v_mul_u32_u24 v{T+1}, 1152, v{T+1}
        v_lshl_add_u32 v{DO+i}, v{T+2}, 4, v{T+1}
        ''')
    a(f'''
    v_and_b32 v{T}, 31, v0
    v_lshrrev_b32 v{T+1}, 5, v0
    v_bfe_u32 v{T+2}, v{T}, 1, 3
    v_mul_u32_u24 v{T}, 1152, v{T}
    ''')
    for m in range(4):
        a(f'v_add_u32 v{T+3}, {2*m}, v{T+1}'); a(f'v_xor_b32 v{T+3}, v{T+3}, v{T+2}'); a(f'v_lshl_add_u32 v{XA+m}, v{T+3}, 4, v{T}')
assert all((x * 58255) >> 22 == x // 72 for x in range(2304))

def x_dma(a, DO, soff, sbuf):
    for i in range(9):
        if i == 0: a(f's_mov_b32 m0, s{sbuf}')
        else: a(f's_add_u32 m0, s{sbuf}, {1024*i}')
        a(f'buffer_load_dwordx4 v{DO+i}, {WS}, s{soff} offen sc1 lds')

def sel(a, dst, T, mode):
    a(f'v_and_b32 v{T}, 15, v0')
    if mode == 'hi': a(f'v_xor_b32 v{T}, 8, v{T}')
    if mode == 'dup': a(f'v_and_b32 v{T}, 7, v{T}')
    a(f'v_and_b32 v{T+1}, 1, v{T}'); a(f'v_lshlrev_b32 v{T+1}, 4, v{T+1}')
    a(f'v_mov_b32 v{T+2}, 0x3f80'); a(f'v_lshlrev_b32 v{T+2}, v{T+1}, v{T+2}')
    a(f'v_lshrrev_b32 v{T}, 1, v{T}')
    for d in range(4):
        a(f'v_cmp_eq_u32 vcc, {d}, v{T}'); a(f'v_cndmask_b32 v{dst+d}, 0, v{T+2}, vcc')

def proj(a, opt):
    DO = 1; XA = 10; ST = 14; TA = 15; ACC = [16, 32]; XR = [48, 52, 56, 60]; T = 64; FV = 70
    def W(kk, cb): return ur(224 + 8 * kk + 4 * cb, 4)
    a.label('L_proj')
    a(f's_load_dwordx4 s[{S_R1}:{S_R1+3}], s[0:1], 16')
    a(f's_load_dwordx2 s[{S_R2}:{S_R2+1}], s[0:1], 32')
    a(f's_mov_b32 s{S_SPIN}, 0')
    a('s_waitcnt lgkmcnt(0)')
    a(f's_and_b32 s{S_T+2}, s{S_WAVE}, 1')
    a(f's_cmp_lt_u32 s{S_ROLE}, 32'); a('s_cbranch_scc1 L_proj_kv')
    a(f's_mov_b32 s{S_R0}, s{S_R1}'); a(f's_mov_b32 s{S_R0+1}, s{S_R1+1}')
    a(f's_sub_u32 s{S_T}, s{S_ROLE}, 32'); a(f's_lshl_b32 s{S_T}, s{S_T}, 1'); a(f's_lshr_b32 s{S_T+1}, s{S_WAVE}, 1'); a(f's_add_u32 s{S_T}, s{S_T}, s{S_T+1}')
    a(f's_mov_b32 s{S_OB}, {QX}'); a(f's_mov_b32 s{S_G}, 0')
    a('s_branch L_proj_j')
    a.label('L_proj_kv')
    a(f's_mov_b32 s{S_T}, s{S_ROLE}')
    a(f's_cmp_ge_u32 s{S_WAVE}, 2'); a('s_cbranch_scc1 L_proj_v')
    a(f's_mov_b32 s{S_R0}, s{S_R1+2}'); a(f's_mov_b32 s{S_R0+1}, s{S_R1+3}')
    a(f's_mov_b32 s{S_OB}, {KX}'); a(f's_mov_b32 s{S_G}, 0')
    a('s_branch L_proj_j')
    a.label('L_proj_v')
    a(f's_mov_b32 s{S_R0}, s{S_R2}'); a(f's_mov_b32 s{S_R0+1}, s{S_R2+1}')
    a(f's_mov_b32 s{S_OB}, {VX}'); a(f's_mov_b32 s{S_G}, 1')
    a.label('L_proj_j')
    srd_fix(a, S_R0, 4718592)
    a(f's_lshl_b32 s{S_T+1}, s{S_T}, 13'); a(f's_add_u32 s{S_OB}, s{S_OB}, s{S_T+1}')
    a(f's_add_u32 s{S_T+3}, s{S_G}, 11'); a(f's_lshl_b32 s{S_T+1}, s{S_T+2}, s{S_T+3}'); a(f's_add_u32 s{S_OB}, s{S_OB}, s{S_T+1}')
    a(f's_lshl_b32 s{S_T}, s{S_T}, 8'); a(f's_lshl_b32 s{S_T+2}, s{S_T+2}, 7'); a(f's_add_u32 s{S_T}, s{S_T}, s{S_T+2}')
    a(f's_lshl_b32 s{S_B}, s{S_WAVE}, 15')
    a(f'''
    v_lshrrev_b32 v{T}, 3, v0
    v_and_b32 v{T+1}, 7, v0
    v_lshlrev_b32 v{T}, 13, v{T}
    v_lshl_add_u32 v{T}, v{T+1}, 4, v{T}
    v_add_u32 v{FV+1}, s{S_T}, v{T}
    ''')
    vm = Cnt(a, 'vmcnt', 63)
    def dma(i):
        a(f's_add_u32 m0, s{S_B}, {(i % 32) * 1024}'); a(f's_mov_b32 s{S_P}, {i * 65536}')
        a(f'buffer_load_dwordx4 v{FV+1}, {R(S_R0)}, s{S_P} offen lds'); vm.issue(i)
    for i in range(32): dma(i)
    a(f'''
    v_lshrrev_b32 v{T}, 5, v0
    v_bfe_u32 v{T+1}, v0, 2, 2
    v_lshl_add_u32 v{T}, v{T}, 3, v{T+1}
    v_lshlrev_b32 v{T}, 7, v{T}
    v_bfe_u32 v{T+1}, v0, 4, 1
    v_lshl_add_u32 v{T}, v{T+1}, 5, v{T}
    v_and_b32 v{T+1}, 3, v0
    v_lshl_add_u32 v{T}, v{T+1}, 3, v{T}
    v_add_u32 v{TA}, s{S_B}, v{T}
    ''')
    x_consts(a, DO, XA, T)
    a(f's_lshl_b32 s{S_T}, s{S_G}, 1'); a(f's_sub_u32 s{S_T}, 12, s{S_T}')
    a(f'''
    v_bfe_u32 v{T}, v0, 4, 1
    v_lshlrev_b32 v{T}, s{S_T}, v{T}
    v_lshrrev_b32 v{T+1}, 5, v0
    v_lshl_add_u32 v{T}, v{T+1}, 8, v{T}
    v_and_b32 v{T+1}, 15, v0
    v_lshl_add_u32 v{ST}, v{T+1}, 4, v{T}
    ''')
    for kk in range(36):
        vm.wait(2 * kk + 1)
        for cb in range(2):
            for p in range(2):
                a(f'ds_read_b64_tr_b16 {ur(224 + 8*kk + 4*cb + 2*p, 2)}, v{TA} offset:{(kk % 16) * 2048 + p * 512 + cb * 64}')
        if kk >= 1 and 2 * (kk - 1) + 32 < 72:
            a('s_waitcnt lgkmcnt(4)')
            dma(2 * (kk - 1) + 32); dma(2 * (kk - 1) + 33)
    a('s_waitcnt lgkmcnt(0)')
    th(a, opt, 3)
    meet(a, T, (DB_P, 48, GO_P), [(DB_Z, NZ), (GO_X, 1)], 'pw')
    tstamp(a, opt, 0)
    a(f's_mul_i32 s{S_B}, s{S_WAVE}, 9216')
    a(f's_mov_b32 s{S_Q}, {XN}')
    x_dma(a, DO, S_Q, S_B)
    a(f's_mov_b32 s{S_SEG}, 0')
    a(f's_lshl_b32 s{S_M}, s{S_ROLE}, 7'); a(f's_lshl_b32 s{S_T}, s{S_WAVE}, 2'); a(f's_add_u32 s{S_M}, s{S_M}, s{S_T}'); a(f's_add_u32 s{S_M}, s{S_M}, {flag(F_PROJ)}')
    STR = 72
    a(f'v_mov_b32 v{STR}, v{ST}'); a(f'v_mov_b32 v{ST}, 0x{OOB:x}')
    a(f's_sub_u32 s{S_OB}, s{S_OB}, {32 * 8192}')
    a('s_waitcnt vmcnt(0)')
    a(f's_cmp_eq_u32 s{S_G}, 1'); a('s_cbranch_scc1 L_proj_lv')
    ACCS = [[16, 32], [80, 96]]
    for isv in range(2):
        L = 'L_proj_lv' if isv else 'L_proj_lk'
        def epi(acc, cb, b):
            q = acc[cb]
            src = [[0, 2, 8, 10], [4, 6, 12, 14]] if isv else [[0, 2, 4, 6], [8, 10, 12, 14]]
            for d in range(4): a(f'v_cvt_pk_bf16_f32 v{q+4*b+d}, v{q+src[b][d]}, v{q+src[b][d]+1}')
            a(f'buffer_store_dwordx4 {vr(q+4*b,4)}, v{ST}, {WS}, s{S_OB} offen offset:{cb * (2048 if isv else 1024) + b * 512} sc1')
        a.label(L)
        for par in range(2):
            acc = ACCS[par]
            a('s_waitcnt vmcnt(1)')
            a('s_barrier')
            lg = Cnt(a, 'lgkmcnt', 15)
            def rd(kk):
                a(f'ds_read_b128 {vr(XR[kk % 4], 4)}, v{XA + (kk & 3)} offset:{(kk >> 2) * 128}'); lg.issue(kk)
            for kk in range(3): rd(kk)
            a(f's_cmp_lt_u32 s{S_SEG}, 63'); a(f's_cselect_b32 s{S_T}, 36864, 0'); a(f's_add_u32 s{S_Q}, s{S_Q}, s{S_T}')
            a(f's_xor_b32 s{S_B}, s{S_B}, 0x10000')
            for kk in range(36):
                lg.wait(kk)
                for cb in range(2):
                    c = '0' if kk == 0 else vr(acc[cb], 16)
                    x = vr(XR[kk % 4], 4)
                    if opt.get('pj_nomf') and kk >= opt['pj_nomf']: a('s_nop 6')
                    elif isv: a(f'{MF32} {vr(acc[cb],16)}, {x}, {W(kk,cb)}, {c}')
                    else: a(f'{MF32} {vr(acc[cb],16)}, {W(kk,cb)}, {x}, {c}')
                    if cb == 0 and kk + 3 < 36: rd(kk + 3)
                if 1 <= kk <= 4: epi(ACCS[par ^ 1], (kk - 1) >> 1, (kk - 1) & 1)
                if 5 <= kk <= 13:
                    i = kk - 5
                    a(f's_add_u32 m0, s{S_B}, {1024*i}')
                    a(f'buffer_load_dwordx4 v{DO+i}, {WS}, s{S_Q} offen sc1 lds')
                if kk == 5 and par == 1: tfirst(a, opt, f's_cmp_eq_u32 s{S_SEG}, 1')
                if kk == opt.get('pfk', 22):
                    a('s_waitcnt vmcnt(9)')
                    a(f'v_mov_b32 v{FV}, s{S_SEG}')
                    a(f'buffer_store_dword v{FV}, off, {WS}, s{S_M} sc1')
                if kk == 33:
                    for m in range(4): a(f'v_xor_b32 v{XA+m}, 0x10000, v{XA+m}')
                if kk == 34:
                    if not opt.get('pj_nost'): a(f'v_mov_b32 v{ST}, v{STR}')
                    a(f's_add_u32 s{S_OB}, s{S_OB}, {32 * 8192}')
                    a(f's_add_u32 s{S_SEG}, s{S_SEG}, 1')
            if par == 1: a(f's_cmp_lt_u32 s{S_SEG}, 64'); a(f's_cbranch_scc1 {L}')
        for cb in range(2):
            for b in range(2): epi(ACCS[1], cb, b)
        if not isv: a('s_branch L_proj_end')
    a.label('L_proj_end')
    a('s_waitcnt vmcnt(0)')
    a(f'v_mov_b32 v{FV}, 64')
    a(f'buffer_store_dword v{FV}, off, {WS}, s{S_M} sc1')
    finish(a, opt)

def tiles_of(w):
    b = 9 * (w >> 1)
    if w & 1 == 0: return [(b + i, T) for i in range(4) for T in range(2)] + [(b + 4, 0)]
    return [(b + 5 + i, T) for i in range(4) for T in range(2)] + [(b + 4, 1)]

def row_stage_dma(a, srd, L16, st, sbase, vm, tag):
    for i in range(9):
        a(f's_add_u32 m0, s{S_B}, {(st % 4) * 36864 + (i & ~3) * 1024}') if i % 4 == 0 else None
        if i % 4 == 0: a(f's_add_u32 s{S_P}, s{sbase}, {st * 36864 + i * 1024}')
        a(f'buffer_load_dwordx4 v{L16}, {R(srd)}, s{S_P} offen offset:{(i & 3) * 1024} lds'); vm.issue(tag)

def allreduce(a, v, t, op='v_add_f32', lanes=64):
    for d in ('quad_perm:[1,0,3,2]', 'quad_perm:[2,3,0,1]', 'row_half_mirror', 'row_mirror')[:3 if lanes == 8 else 4]:
        a(f'{op}_dpp v{v}, v{v}, v{v} {d} row_mask:0xf bank_mask:0xf')
    if lanes == 64:
        for sw in ('v_permlane16_swap_b32', 'v_permlane32_swap_b32'):
            a(f'v_mov_b32 v{t}, v{v}'); a(f'{sw} v{v}, v{t}'); a(f'{op} v{v}, v{v}, v{t}')

def att(a, opt):
    L16, KMA, L8, PST, RB, XO, XO2, RB4, XO4, T = 1, 2, 3, 4, 5, 6, 7, 8, 9, 10
    Q = 16; K = 32; V = 64; KMF = 96; VMF = 112; SM, S0, S1 = 120, 124, 128; PX = 132; PM = 136; ONE = 140; SUM = 144
    O = 148; OF = 148; ACC = 96
    SLO, SHI = 212, 216
    RR = 128
    XX, WO_ = S_R0, S_R1
    a.label('L_att')
    a(f's_load_dwordx2 s[{XX}:{XX+1}], s[0:1], 0')
    a(f's_load_dwordx2 s[{WO_}:{WO_+1}], s[0:1], 40')
    a(f's_mov_b32 s{S_SPIN}, 0')
    a(f's_sub_u32 s{S_T}, s{S_ROLE}, 48'); a(f's_and_b32 s{S_M}, s{S_T}, 15'); a(f's_lshr_b32 s{S_G}, s{S_T}, 4')
    a(f'v_lshlrev_b32 v{L16}, 4, v0')
    a('s_waitcnt lgkmcnt(0)')
    srd_fix(a, XX, 2359296); srd_fix(a, WO_, 4718592)
    X = 16; Fp = 64
    a(f's_mul_i32 s{S_Q}, s{S_T}, 36864'); a(f's_mul_i32 s{S_B}, s{S_WAVE}, 9216'); a(f's_add_u32 s{S_Q}, s{S_Q}, s{S_B}')
    a(f'v_lshrrev_b32 v{T}, 3, v0'); a(f'v_mul_u32_u24 v{T}, 1152, v{T}'); a(f'v_and_b32 v{T+1}, 7, v0'); a(f'v_lshl_add_u32 v{T}, v{T+1}, 4, v{T}')
    vm = Cnt(a, 'vmcnt', 63)
    for i in range(9): a(f'buffer_load_dwordx4 {vr(X+4*i,4)}, v{T}, {R(XX)}, s{S_Q} offen offset:{128*i}'); vm.issue('x')
    a(f's_mul_i32 s{S_OB}, s{S_M}, {2 * 147456}'); a(f's_add_u32 s{S_OB}, s{S_OB}, s{S_B}')
    ns = opt.get('nsent', 4); assert ns % 4 == 0
    a(f's_lshl2_add_u32 s{S_T}, s{S_T}, s{S_WAVE}'); a(f's_mul_i32 s{S_T}, s{S_T}, {ns * 256}')
    a(f'v_mov_b64 {vr(Fp,2)}, -1'); a(f'v_mov_b64 {vr(Fp+2,2)}, -1')
    for base in (KM, VM):
        a(f's_add_u32 s{S_P}, s{S_T}, {base + (64 - ns) * 65536}')
        for i in range(ns // 4): a(f'buffer_store_dwordx4 {vr(Fp,4)}, v{L16}, {WS}, s{S_P} offen offset:{1024 * i} sc1'); vm.issue('sf')
    vm.wait('x')
    th(a, opt, 3)
    for i in range(36):
        a(f'v_lshlrev_b32 v{Fp+2*i}, 16, v{X+i}'); a(f'v_and_b32 v{Fp+2*i+1}, 0xffff0000, v{X+i}')
    A4 = [T + 2, T + 3, T + 4, T + 5]
    for i in range(72):
        if i < 4: a(f'v_add_f32 v{A4[i]}, v{Fp+i}, v{Fp+i+4}')
        elif i >= 8: a(f'v_add_f32 v{A4[i&3]}, v{A4[i&3]}, v{Fp+i}')
    a(f'v_add_f32 v{A4[0]}, v{A4[0]}, v{A4[1]}'); a(f'v_add_f32 v{A4[2]}, v{A4[2]}, v{A4[3]}'); a(f'v_add_f32 v{A4[0]}, v{A4[0]}, v{A4[2]}')
    allreduce(a, A4[0], T + 1, lanes=8)
    a(f'v_mul_f32 v{T+1}, 0x{0x3ae38e39:x}, v{A4[0]}')
    for i in range(72): a(f'v_sub_f32 v{Fp+i}, v{Fp+i}, v{T+1}')
    for i in range(72):
        if i < 4: a(f'v_mul_f32 v{A4[i]}, v{Fp+i}, v{Fp+i}')
        else: a(f'v_fmac_f32 v{A4[i&3]}, v{Fp+i}, v{Fp+i}')
    a(f'v_add_f32 v{A4[0]}, v{A4[0]}, v{A4[1]}'); a(f'v_add_f32 v{A4[2]}, v{A4[2]}, v{A4[3]}'); a(f'v_add_f32 v{A4[0]}, v{A4[0]}, v{A4[2]}')
    allreduce(a, A4[0], T + 1, lanes=8)
    a(f'v_mov_b32 v{T+1}, 0x{0x3727c5ac:x}')
    a(f'v_fmac_f32 v{T+1}, 0x{0x3ae38e39:x}, v{A4[0]}')
    a(f'v_rsq_f32 v{T+1}, v{T+1}')
    for i in range(72): a(f'v_mul_f32 v{Fp+i}, v{T+1}, v{Fp+i}')
    for i in range(36): a(f'v_cvt_pk_bf16_f32 v{X+i}, v{Fp+2*i}, v{Fp+2*i+1}')
    a(f's_add_u32 s{S_Q}, s{S_Q}, {XN}')
    for i in range(9): a(f'buffer_store_dwordx4 {vr(X+4*i,4)}, v{T}, {WS}, s{S_Q} offen offset:{128*i} sc1'); vm.issue('xs')
    th(a, opt, 4)
    GATE = {'p': [(GO_P, 1)], 'c': [(GO_C, 1)], None: []}
    NG = opt.get('ng', 4)
    if NG == 3:
        a(f's_cmp_lg_u32 s{S_G}, 3'); a('s_cbranch_scc1 L_att_full')
        meet(a, T + 4, (DB_X, 64, GO_X), [], 'gl')
        a(f's_sub_u32 s{S_T+1}, s{S_ROLE}, 48'); a(f's_mul_i32 s{S_T+1}, s{S_T+1}, 36864'); a(f's_add_u32 s{S_T+1}, s{S_T+1}, s{S_B}')
        fill(a, L16, 16, [(S_T + 1, HB), (S_T + 1, XN2)])
        meet(a, T, (DB_AI, 64, GO_AI), [], 'al')
        for i in range(2): tstamp(a, opt, i)
        finish(a, opt)
        a.label('L_att_full')
    if opt.get('fe_att'):
        meet(a, T + 4, (DB_X, 64, GO_X), [], 'gx')
        a(f's_mul_i32 s{S_T}, s{S_G}, {2 * PA_SLOT}'); a(f's_mul_i32 s{S_T+1}, s{S_M}, 36864'); a(f's_add_u32 s{S_T}, s{S_T}, s{S_T+1}')
        a(f's_sub_u32 s{S_T+1}, s{S_ROLE}, 48'); a(f's_mul_i32 s{S_T+1}, s{S_T+1}, 36864')
        a(f's_add_u32 s{S_T}, s{S_T}, s{S_B}'); a(f's_add_u32 s{S_T+1}, s{S_T+1}, s{S_B}')
        fill(a, L16, 60, [(S_T, PA), (S_T, PA + PA_SLOT), (S_T + 1, HB), (S_T + 1, XN2)])
        meet(a, T + 4, None, GATE[opt.get('gate_att')], 'ga')
        a('s_waitcnt vmcnt(0)')
    else: meet(a, T + 4, (DB_X, 64, GO_X), GATE[opt.get('gate_att')], 'ga')
    vm.reset()
    th(a, opt, 5)
    for st in range(4): row_stage_dma(a, WO_, L16, st, S_OB, vm, st)
    for w in range(1, 4):
        a(f's_cmp_eq_u32 s{S_WAVE}, {w}'); a(f's_cbranch_scc1 L_att_w{w}')
    vm0 = list(vm.q)
    for w in range(4):
        hh, qt = w >> 1, w & 1
        tl = tiles_of(w)
        def WOF(ti, k8): return ur(224 + 4 * (ti * 8 + k8), 4)
        a.label(f'L_att_w{w}')
        vm.q = list(vm0)
        TA = T + 2
        a(f'v_lshrrev_b32 v{TA}, 2, v0'); a(f'v_mul_u32_u24 v{TA}, 1152, v{TA}'); a(f'v_and_b32 v{T+3}, 3, v0'); a(f'v_lshl_add_u32 v{TA}, v{T+3}, 4, v{TA}')
        a(f'v_add_u32 v{TA+1}, {2 * 36864}, v{TA}')
        for st in range(8):
            vm.wait(st)
            a('s_barrier')
            for ti, (P, TT) in enumerate(tl):
                for p in range(2):
                    off = (st % 2) * 36864 + p * 16 * 1152 + P * 64 + TT * 8
                    a(f'ds_read_b64_tr_b16 {ur(224 + 4*(ti*8+st) + 2*p, 2)}, v{TA + ((st % 4) >> 1)} offset:{off}')
            a('s_waitcnt lgkmcnt(0)')
            if st < 4:
                a('s_barrier')
                row_stage_dma(a, WO_, L16, st + 4, S_OB, vm, st + 4)
        th(a, opt, 6)
        red = qt == 0
        a(f'''
        v_and_b32 v{T}, 15, v0
        v_lshrrev_b32 v{T+1}, 4, v0
        v_lshrrev_b32 v{T+2}, 2, v{T}
        v_and_b32 v{T+3}, 1, v0
        v_lshl_add_u32 v{T+4}, v{T+2}, 1, v{T+3}
        v_lshlrev_b32 v{T+4}, 4, v{T+4}
        v_lshl_add_u32 v{KMA}, v{T+1}, 7, v{T+4}
        v_lshlrev_b32 v{L8}, 3, v0
        v_lshrrev_b32 v{T+4}, 1, v{T}
        v_mul_u32_u24 v{T+4}, 36864, v{T+4}
        v_lshl_add_u32 v{T+4}, v{T+3}, 6, v{T+4}
        v_lshl_add_u32 v{T+4}, v{T+1}, 4, v{T+4}
        s_mul_i32 s{S_T}, s{S_M}, 2304
        v_add_u32 v{PST}, s{S_T}, v{T+4}
        ''')
        if red:
            a(f'''
            v_mul_u32_u24 v{T+4}, 2304, v{T+1}
            v_and_b32 v{T+5}, 3, v0
            v_lshl_add_u32 v{T+4}, v{T+5}, 4, v{T+4}
            s_mul_i32 s{S_T}, s{S_M}, 36864
            s_add_u32 s{S_T}, s{S_T}, {64 * hh}
            v_add_u32 v{T+4}, s{S_T}, v{T+4}
            v_lshl_add_u32 v{RB}, v{T+2}, 7, v{T+4}
            v_and_b32 v{RB4}, 1, v{T+2}
            v_lshl_add_u32 v{RB4}, v{RB4}, 7, v{T+4}
            s_mul_i32 s{S_T}, s{S_M}, 2304
            s_add_u32 s{S_T}, s{S_T}, {1152 * hh}
            v_lshlrev_b32 v{T+5}, 4, v{T+5}
            v_add_u32 v{T+5}, s{S_T}, v{T+5}
            v_lshrrev_b32 v{T+4}, 1, v{T+2}
            v_mul_u32_u24 v{T+4}, 9, v{T+4}
            v_and_b32 v{T+3}, 1, v{T+2}
            v_mul_u32_u24 v{T}, 5, v{T+3}
            v_add_u32 v{T+4}, v{T+4}, v{T}
            v_lshrrev_b32 v{T}, 1, v{T+1}
            v_add_u32 v{T+4}, v{T+4}, v{T}
            v_lshl_add_u32 v{T+4}, v{T+4}, 6, v{T+5}
            v_and_b32 v{T+1}, 1, v{T+1}
            v_lshl_add_u32 v{XO}, v{T+1}, 3, v{T+4}
            v_lshl_add_u32 v{XO4}, v{T+1}, 7, v{T+4}
            v_mul_u32_u24 v{T+3}, 576, v{T+3}
            v_add_u32 v{T+3}, 256, v{T+3}
            v_add_u32 v{T+3}, v{T+3}, v{T+5}
            v_lshl_add_u32 v{T+3}, v{T+1}, 3, v{T+3}
            s_mov_b32 s{S_T}, 0x00ff00ff
            s_mov_b32 s{S_T+1}, 0
            v_mov_b32 v{T+4}, 0x{OOB:x}
            v_cndmask_b32 v{XO2}, v{T+4}, v{T+3}, s[{S_T}:{S_T+1}]
            ''')
            sel(a, SLO, T, 'lo'); sel(a, SHI, T, 'hi')
        a(f'''
        s_lshl_b32 s{S_T}, s{S_M}, 8
        s_add_u32 s{S_FA}, s{S_T}, {flag(F_PROJ + hh)}
        s_add_u32 s{S_FA+2}, s{S_T}, {flag(F_CHAIN + hh)}
        s_lshl_b32 s{S_T}, s{S_M}, 7
        s_add_u32 s{S_FA+1}, s{S_T}, {flag(F_PROJ + 32) + 8 * hh}
        s_mov_b32 s{S_FP}, 0
        s_mov_b32 s{S_FC}, 0
        ''')
        for r in range(4):
            mk = sum(1 << l for l in range(64) if 4 * (l >> 4) + r <= (l & 15))
            a(f's_mov_b32 s{S_MK+2*r}, 0x{mk & 0xffffffff:x}'); a(f's_mov_b32 s{S_MK+2*r+1}, 0x{mk >> 32:x}')
        a(f's_mov_b32 s{S_C}, 0x3e0293ee'); a(f's_mov_b32 s{S_C+1}, 0xbe0293ee')
        a(f's_mul_i32 s{S_T}, s{S_G}, {2 * PA_SLOT}'); a(f's_mul_i32 s{S_T+1}, s{S_M}, 36864'); a(f's_add_u32 s{S_T}, s{S_T}, s{S_T+1}')
        a(f's_sub_u32 s{S_T+1}, s{S_ROLE}, 48'); a(f's_mul_i32 s{S_T+1}, s{S_T+1}, 36864')
        if not opt.get('fe_att'): fill(a, L16, 16, [(S_T, PA + w * 9216), (S_T, PA + PA_SLOT + w * 9216), (S_T + 1, HB + w * 9216), (S_T + 1, XN2 + w * 9216)])
        th(a, opt, 7)
        meet(a, T, (DB_AI, 64, GO_AI), [(DB_Z, NZ), (GO_AI, 1)], 'ai')
        tstamp(a, opt, 0)
        a(f's_mov_b32 s{S_SEG}, s{S_G}')
        a(f's_mov_b32 s{S_B}, 0')
        a(f's_mov_b32 s{S_SL}, 0')
        def qkv(step):
            a(f's_add_u32 s{S_N}, s{S_SEG}, {step + 1}')
            spoll(a, S_FP, f's{S_N}', [(4, f's{S_FA}'), (2, f's{S_FA+1}')], 'ap')
            a(f's_lshl_b32 s{S_T}, s{S_SEG}, 5'); a(f's_lshl1_add_u32 s{S_T}, s{S_M}, s{S_T}'); a(f's_add_u32 s{S_T}, s{S_T}, {32 * step + hh}')
            a(f's_lshl_b32 s{S_T}, s{S_T}, 13')
            a(f's_add_u32 s{S_P}, s{S_T}, {QX + qt * 4096}')
            for ks in range(4): a(f'buffer_load_dwordx4 {vr(Q+4*ks,4)}, v{L16}, {WS}, s{S_P} offen offset:{1024*ks} sc1')
            for kt in range(qt + 1):
                a(f's_add_u32 s{S_P}, s{S_T}, {KX + kt * 4096}')
                for ks in range(4): a(f'buffer_load_dwordx4 {vr(K+16*kt+4*ks,4)}, v{L16}, {WS}, s{S_P} offen offset:{1024*ks} sc1')
            for hf in range(2):
                a(f's_add_u32 s{S_P}, s{S_T}, {VX + hf * 4096}')
                for u in range(4): a(f'buffer_load_dwordx4 {vr(V+16*hf+4*u,4)}, v{L16}, {WS}, s{S_P} offen offset:{1024*u} sc1')
        qkv(0)
        L = f'L_att_l{w}'
        a.label(L)
        vm.reset()
        a(f's_lshl_b32 s{S_Q}, s{S_SEG}, 5'); a(f's_lshl1_add_u32 s{S_Q}, s{S_M}, s{S_Q}'); a(f's_add_u32 s{S_Q}, s{S_Q}, {hh}')
        a(f's_lshl_b32 s{S_Q}, s{S_Q}, 11')
        a(f's_bfe_u32 s{S_TAG}, s{S_SL}, 0x10001'); a(f's_and_b32 s{S_T}, s{S_SL}, 1'); a(f's_add_u32 s{S_SL}, s{S_SL}, 1')
        a(f's_lshl1_add_u32 s{S_T}, s{S_G}, s{S_T}'); a(f's_mul_i32 s{S_OB}, s{S_T}, {PA_SLOT}'); a(f's_add_u32 s{S_OB}, s{S_OB}, {PA}')
        a(f'v_mov_b32 v{ONE}, 0x3f803f80'); a(f'v_mov_b32 v{ONE+1}, 0x3f803f80'); a(f'v_mov_b64 {vr(ONE+2,2)}, {vr(ONE,2)}')
        a(f'v_mov_b64 {vr(PM,2)}, 0'); a(f'v_mov_b64 {vr(PM+2,2)}, 0')
        if qt == 0: a(f'v_mov_b64 {vr(PX+2,2)}, 0')
        a('s_waitcnt vmcnt(0)')
        tk(a, opt, 3)
        for ks in range(4):
            for kt in range(qt + 1):
                S = S1 if kt else S0
                a(f'{MF} {vr(S,4)}, {vr(K+16*kt+4*ks,4)}, {vr(Q+4*ks,4)}, {"0" if ks == 0 else vr(S,4)}')
        SD = S1 if qt else S0
        a(f'v_mov_b32 v{T}, 0xff800000')
        for r in range(4): a(f'v_cndmask_b32 v{SD+r}, v{T}, v{SD+r}, s[{S_MK+2*r}:{S_MK+2*r+1}]')
        M, M2 = T + 2, T + 3
        a(f'v_max3_f32 v{M}, v{S0}, v{S0+1}, v{S0+2}')
        if qt:
            a(f'v_max3_f32 v{M}, v{M}, v{S0+3}, v{S1}'); a(f'v_max3_f32 v{M}, v{M}, v{S1+1}, v{S1+2}'); a(f'v_max_f32 v{M}, v{M}, v{S1+3}')
        else: a(f'v_max_f32 v{M}, v{M}, v{S0+3}')
        a(f's_cmp_lt_u32 s{S_SEG}, {64 - opt.get("nuse", opt.get("nsent", 4))}'); a(f's_addc_u32 s{S_N}, s{S_SEG}, 0'); a(f's_cmp_eq_u32 s{S_SEG}, 63'); a(f's_cselect_b32 s{S_N}, {opt.get("nmax", 62)}, s{S_N}')
        spoll(a, S_FC, f's{S_N}', [(1, f's{S_FA+2}')], 'ac')
        tk(a, opt, 4)
        tacc(a, opt, 3, 4, 12)
        LK = f'L_att_k{w}'
        a.label(LK)
        a(f's_add_u32 s{S_P}, s{S_Q}, {KM}')
        for ks in range(4): a(f'buffer_load_dwordx4 {vr(KMF+4*ks,4)}, v{KMA}, {WS}, s{S_P} offen offset:{512*ks} sc1'); vm.issue(('km', ks))
        a(f's_add_u32 s{S_P}, s{S_Q}, {VM}')
        for u in range(4): a(f'buffer_load_dwordx2 {vr(VMF+2*u,2)}, v{L8}, {WS}, s{S_P} offen offset:{512*u} sc1'); vm.issue(('vm', u))
        for ks in range(4):
            vm.wait(('km', ks))
            a(f'{MF} {vr(SM,4)}, {vr(KMF+4*ks,4)}, {vr(Q+4*ks,4)}, {"0" if ks == 0 else vr(SM,4)}')
        a(f'v_max3_u32 v{T}, v{KMF}, v{KMF+4}, v{KMF+8}')
        vm.wait(('vm', 3))
        a(f'v_max3_u32 v{T}, v{T}, v{KMF+12}, v{VMF}')
        a(f'v_max3_u32 v{T}, v{T}, v{VMF+2}, v{VMF+4}')
        a(f'v_max_u32 v{T}, v{T}, v{VMF+6}')
        a(f'v_cmp_eq_u32 vcc, -1, v{T}')
        a(f's_cbranch_vccz {LK}_x')
        retry(a, LK + '_x')
        a(f's_branch {LK}')
        a.label(LK + '_x')
        a(f'v_max3_f32 v{M}, v{M}, v{SM}, v{SM+1}')
        tk(a, opt, 5)
        for sw in ('v_permlane32_swap_b32', 'v_permlane16_swap_b32'):
            a(f'v_mov_b32 v{M2}, v{M}'); a(f'{sw} v{M}, v{M2}'); a(f'v_max_f32 v{M}, v{M}, v{M2}')
        a(f'v_mul_f32 v{M}, s{S_C+1}, v{M}')
        vals = [SM, SM + 1, S0, S0 + 1, S0 + 2, S0 + 3] + ([S1, S1 + 1, S1 + 2, S1 + 3] if qt else [])
        for r in vals: a(f'v_fma_f32 v{r}, v{r}, s{S_C}, v{M}')
        for r in vals: a(f'v_exp_f32 v{r}, v{r}')
        a(f'v_cvt_pk_bf16_f32 v{PX}, v{S0}, v{S0+1}'); a(f'v_cvt_pk_bf16_f32 v{PX+1}, v{S0+2}, v{S0+3}')
        if qt: a(f'v_cvt_pk_bf16_f32 v{PX+2}, v{S1}, v{S1+1}'); a(f'v_cvt_pk_bf16_f32 v{PX+3}, v{S1+2}, v{S1+3}')
        a(f'v_cvt_pk_bf16_f32 v{PM}, v{SM}, v{SM+1}'); a(f'v_cvt_pk_bf16_f32 v{PM+3}, v{SM}, v{SM+1}')
        a(f'{MF} {vr(SUM,4)}, {vr(ONE,4)}, {vr(PX,4)}, 0')
        for u in range(4): a(f'{MF} {vr(O+4*u,4)}, {vr(V+4*u,4)}, {vr(PX,4)}, 0')
        a(f'{MH} {vr(SUM,4)}, {vr(ONE,2)}, {vr(PM,2)}, {vr(SUM,4)}')
        for u in range(4, 8): a(f'{MF} {vr(O+4*u,4)}, {vr(V+4*u,4)}, {vr(PX,4)}, 0')
        a(f'v_add_u32 v{T+1}, s{S_B}, v{L16}')
        for u in range(8):
            a(f'{MH} {vr(O+4*u,4)}, {vr(VMF+2*(u>>1),2)}, {vr(PM+2*(u&1),2)}, {vr(O+4*u,4)}')
            if u == 0: a(f'v_rcp_f32 v{T+2}, v{SUM}')
        for w4 in range(4):
            q = O + 8 * w4
            for r in range(4): a(f'v_pk_mul_f32 {vr(q+2*r,2)}, {vr(q+2*r,2)}, {vr(T+2,2)} op_sel_hi:[1,0]')
            for d in range(4): a(f'v_cvt_pk_bf16_f32 v{q+d}, v{q+2*d}, v{q+2*d+1}')
            a(f'ds_write_b128 v{T+1}, {vr(q,4)} offset:{(w * 4 + w4) * 1024}')
        a('s_waitcnt lgkmcnt(0)')
        a('s_barrier')
        tk(a, opt, 6)
        if opt.get('wst'): a('s_waitcnt lgkmcnt(0)')
        lg = Cnt(a, 'lgkmcnt', 15)
        for k8 in range(8):
            for tt in range(2):
                a(f'ds_read_b128 {vr(OF+4*(2*k8+tt),4)}, v{T+1} offset:{(((k8 >> 2) * 2 + tt) * 4 + (k8 & 3)) * 1024}'); lg.issue((k8, tt))
        a(f's_xor_b32 s{S_B}, s{S_B}, 0x4000')
        a(f's_add_u32 s{S_P}, s{S_OB}, 294912')
        XV = 48
        if red: a(f's_mul_i32 s{S_Q}, s{S_SEG}, 36864')
        def fin(gi):
            base = ACC + 16 * (gi & 1)
            for tt in range(2):
                so = S_P if tt else S_OB
                q = base + 8 * tt
                if gi < 4:
                    for d in range(4): a(f'v_cvt_pk_bf16_f32 v{q+d}, v{q+2*d}, v{q+2*d+1}')
                    for d in (0, 2): a(f'v_bfi_b32 v{q+d}, 1, s{S_TAG}, v{q+d}')
                    a(f'buffer_store_dwordx4 {vr(q,4)}, v{PST}, {WS}, s{so} offen offset:{(4 * gi + w) * 128} sc1')
                else:
                    for d in range(2): a(f'v_cvt_pk_bf16_f32 v{q+d}, v{q+2*d}, v{q+2*d+1}')
                    a(f'v_bfi_b32 v{q}, 1, s{S_TAG}, v{q}')
                    a(f'buffer_store_dwordx2 {vr(q,2)}, v{PST}, {WS}, s{so} offen offset:{(16 + hh) * 128 + 8*tl[8][1]} sc1')
        for gi in range(5):
            base = ACC + 16 * (gi & 1)
            for k8 in range(8):
                for tt in range(2):
                    if gi == 0: lg.wait((k8, tt))
                    for TT in range(2 if gi < 4 else 1):
                        q = base + 8 * tt + 4 * TT
                        a(f'{MF} {vr(q,4)}, {WOF(2*gi+TT,k8)}, {vr(OF+4*(2*k8+tt),4)}, {"0" if k8 == 0 else vr(q,4)}')
                if k8 == 1 and gi > 0: fin(gi - 1)
                if red and gi == 0 and 2 <= k8 <= 4:
                    q3 = k8 - 2
                    a(f'buffer_load_dwordx2 {vr(XV+2*q3,2)}, v{XO2 if q3 == 2 else XO}, {R(XX)}, s{S_Q} offen offset:{128*q3 if q3 < 2 else 0}')
        fin(4)
        tk(a, opt, 7)
        if red:
            RA = 96; H = 108; H2 = 116
            def rl(t0):
                for t5 in range(t0, 5):
                    for u in range(4):
                        a(f's_add_u32 s{S_P}, s{S_OB}, {u * 9216}')
                        a(f'buffer_load_dwordx4 {vr(RR+4*(4*t5+u),4)}, v{RB4 if t5 == 4 else RB}, {WS}, s{S_P} offen offset:{512*t5} sc1')
            rl(0)
            tk(a, opt, 8)
            for t5 in range(5):
                LR = f'L_att_r{w}_{t5}'
                a.label(LR)
                a(f's_waitcnt vmcnt({4 * (4 - t5)})')
                z = [RR + 4 * (4 * t5 + u) for u in range(4)]
                for u in range(4): a(f'v_bitop3_b32 v{T+u}, v{z[u]}, v{z[u]+2}, s{S_TAG} bitop3:0x7e')
                a(f'v_or3_b32 v{T}, v{T}, v{T+1}, v{T+2}')
                a(f'v_bitop3_b32 v{T}, v{T}, v{T+3}, 1 bitop3:0xa8')
                a(f'v_cmp_eq_u32 vcc, 1, v{T}')
                a(f's_cbranch_vccz {LR}_x')
                retry(a, LR + '_x')
                rl(t5)
                a(f's_branch {LR}')
                a.label(LR + '_x')
                if t5 == 0:
                    for q in range(3):
                        for d in range(2):
                            a(f'v_lshlrev_b32 v{RA+4*q+2*d}, 16, v{XV+2*q+d}'); a(f'v_and_b32 v{RA+4*q+2*d+1}, 0xffff0000, v{XV+2*q+d}')
                if t5 == 4: tk(a, opt, 9)
                q = RA + 4 * (t5 >> 1)
                for u in range(4): a(f'{MF} {vr(q,4)}, {vr(SHI if t5 & 1 else SLO,4)}, {vr(z[u],4)}, {vr(q,4)}')
            tk(a, opt, 10)
            a(f's_mov_b32 s{S_T}, 0x00ff00ff'); a(f's_mov_b32 s{S_T+1}, 0')
            for i in range(6): a(f'v_cvt_pk_bf16_f32 v{H+i}, v{RA+2*i}, v{RA+2*i+1}')
            for i in (4, 5): a(f'v_cndmask_b32 v{H+i}, 0, v{H+i}, s[{S_T}:{S_T+1}]')
            for i in range(6): a(f'v_lshlrev_b32 v{RA+2*i}, 16, v{H+i}'); a(f'v_and_b32 v{RA+2*i+1}, 0xffff0000, v{H+i}')
            def put(r, base):
                a(f's_add_u32 s{S_P}, s{S_Q}, {base}')
                for d in range(2): a(f'v_permlane16_swap_b32 v{r+d}, v{r+2+d}')
                a(f'buffer_store_dwordx4 {vr(r,4)}, v{XO4}, {WS}, s{S_P} offen sc1')
                a(f'buffer_store_dwordx2 {vr(r+4,2)}, v{XO2}, {WS}, s{S_P} offen sc1')
            put(H, HB)
            a(f'v_add_f32 v{T}, v{RA}, v{RA+1}'); a(f'v_add_f32 v{T+1}, v{RA+2}, v{RA+3}')
            for i in range(4, 12): a(f'v_add_f32 v{T+(i&1)}, v{T+(i&1)}, v{RA+i}')
            a(f'v_add_f32 v{T}, v{T}, v{T+1}')
            allreduce(a, T, T + 1)
            a(f'v_mul_f32 v{T}, 0x{0x3ae38e39:x}, v{T}')
            for i in range(12): a(f'v_sub_f32 v{RA+i}, v{RA+i}, v{T}')
            for i in range(8, 12): a(f'v_cndmask_b32 v{RA+i}, 0, v{RA+i}, s[{S_T}:{S_T+1}]')
            a(f'v_mul_f32 v{T}, v{RA}, v{RA}'); a(f'v_mul_f32 v{T+1}, v{RA+1}, v{RA+1}')
            for i in range(2, 12): a(f'v_fmac_f32 v{T+(i&1)}, v{RA+i}, v{RA+i}')
            a(f'v_add_f32 v{T}, v{T}, v{T+1}')
            allreduce(a, T, T + 1)
            a(f'v_mov_b32 v{T+1}, 0x{0x3727c5ac:x}'); a(f'v_fmac_f32 v{T+1}, 0x{0x3ae38e39:x}, v{T}'); a(f'v_rsq_f32 v{T+1}, v{T+1}')
            for i in range(12): a(f'v_mul_f32 v{RA+i}, v{T+1}, v{RA+i}')
            for i in range(6): a(f'v_cvt_pk_bf16_f32 v{H2+i}, v{RA+2*i}, v{RA+2*i+1}')
            put(H2, XN2)
            tk(a, opt, 11)
        tfirst(a, opt, f's_cmp_lt_u32 s{S_SEG}, {NG}')
        a(f's_cmp_ge_u32 s{S_SEG}, {64 - NG}'); a(f's_cbranch_scc1 {L}_end')
        if not red: a('s_waitcnt vmcnt(0)')
        qkv(NG)
        a(f's_add_u32 s{S_SEG}, s{S_SEG}, {NG}')
        a(f's_branch {L}')
        a.label(L + '_end')
        finish(a, opt)

def ffn(a, opt):
    DO = 1; XA = 10; L16 = 14; PST = 15; RB = 16; OA = 17; XW = 18; T = 20
    SEL = 28; ACC = [32, 48]; XR = [64, 68, 72, 76]
    AF = 32
    DA = 64
    WG, WU, WD, OUT = S_R0, S_R1, S_R2, S_R3
    ACTL = 40960
    def GU(m, kk): return 80 + 8 * kk + 4 * m
    a.label('L_ffn')
    a(f's_load_dwordx4 s[{WG}:{WG+3}], s[0:1], 64')
    a(f's_load_dwordx4 s[{WD}:{WD+3}], s[0:1], 80')
    a(f's_mov_b32 s{S_SPIN}, 0')
    a(f's_sub_u32 s{S_M}, s{S_ROLE}, 112'); a(f's_mov_b32 s{S_G}, 0')
    for _ in range(2):
        a(f's_cmp_ge_u32 s{S_M}, 36'); a(f's_cselect_b32 s{S_T}, 36, 0'); a(f's_cselect_b32 s{S_T+1}, 1, 0')
        a(f's_sub_u32 s{S_M}, s{S_M}, s{S_T}'); a(f's_add_u32 s{S_G}, s{S_G}, s{S_T+1}')
    a(f'v_lshlrev_b32 v{L16}, 4, v0')
    a('s_waitcnt lgkmcnt(0)')
    a(f's_mov_b32 s{WU}, s{WG+2}'); a(f's_mov_b32 s{WU+1}, s{WG+3}'); a(f's_mov_b32 s{OUT}, s{WD+2}'); a(f's_mov_b32 s{OUT+1}, s{WD+3}')
    for r in (WG, WU, WD): srd_fix(a, r, 5308416)
    srd_fix(a, OUT, 2359296)
    GA = T + 4; TA = T + 5
    a(f's_mul_i32 s{S_T}, s{S_WAVE}, {16 * 9216}'); a(f's_lshl_b32 s{S_T+1}, s{S_M}, 8'); a(f's_add_u32 s{S_T}, s{S_T}, s{S_T+1}')
    a(f'''
    v_lshrrev_b32 v{T}, 4, v0
    v_mul_u32_u24 v{T}, 9216, v{T}
    v_and_b32 v{T+1}, 15, v0
    v_lshl_add_u32 v{T}, v{T+1}, 4, v{T}
    v_add_u32 v{GA}, s{S_T}, v{T}
    ''')
    a(f's_lshl_b32 s{S_B}, s{S_WAVE}, 12')
    vm = Cnt(a, 'vmcnt', 63)
    def gdma(st):
        for m in range(2):
            for u in range(4):
                a(f's_add_u32 m0, s{S_B}, {(st % 4) * 32768 + m * 16384 + u * 1024}')
                a(f's_mov_b32 s{S_P}, {(64 * st + 4 * u) * 9216}')
                a(f'buffer_load_dwordx4 v{GA}, {R(WU if m else WG)}, s{S_P} offen lds'); vm.issue(st)
    if opt.get('fe_ffn'):
        if opt['fe_ffn'] == 'x': meet(a, T, None, [(GO_X, 1)], 'gx')
        a(f's_mul_i32 s{S_T}, s{S_G}, {2 * PF_SLOT}'); a(f's_mul_i32 s{S_T+1}, s{S_M}, 36864'); a(f's_add_u32 s{S_T}, s{S_T}, s{S_T+1}')
        a(f's_mul_i32 s{S_T+1}, s{S_WAVE}, 9216'); a(f's_add_u32 s{S_T}, s{S_T}, s{S_T+1}')
        fill(a, L16, 32, [(S_T, PF), (S_T, PF + PF_SLOT)])
    if opt.get('gate_ffn'): meet(a, T, None, [({'p': GO_P, 'c': GO_C}[opt['gate_ffn']], 1)], 'gf')
    if opt.get('fe_ffn'): a('s_waitcnt vmcnt(0)')
    for st in range(4): gdma(st)
    a(f's_lshl_b32 s{S_T}, s{S_WAVE}, 6')
    a(f'''
    v_lshrrev_b32 v{T}, 5, v0
    v_bfe_u32 v{T+1}, v0, 2, 2
    v_lshl_add_u32 v{T}, v{T}, 3, v{T+1}
    v_lshlrev_b32 v{T}, 8, v{T}
    v_bfe_u32 v{T+1}, v0, 4, 1
    v_lshl_add_u32 v{T}, v{T+1}, 5, v{T}
    v_and_b32 v{T+1}, 3, v0
    v_lshl_add_u32 v{T}, v{T+1}, 3, v{T}
    v_add_u32 v{TA}, s{S_T}, v{T}
    v_add_u32 v{TA+1}, 65536, v{TA}
    ''')
    x_consts(a, DO, XA, T)
    for st in range(9):
        vm.wait(st)
        a('s_barrier')
        for k4 in range(4):
            for m in range(2):
                for p in range(2):
                    a(f'ds_read_b64_tr_b16 {ur(GU(m, 4*st+k4) + 2*p, 2)}, v{TA + ((st % 4) >> 1)} offset:{(st % 2) * 32768 + m * 16384 + k4 * 4096 + p * 1024}')
        a('s_waitcnt lgkmcnt(0)')
        if st + 4 < 9:
            a('s_barrier'); gdma(st + 4)
    a('s_barrier')
    th(a, opt, 3)
    a(f's_mul_i32 s{S_B}, s{S_WAVE}, 9216'); a(f's_mul_i32 s{S_OB}, s{S_M}, 147456'); a(f's_add_u32 s{S_OB}, s{S_OB}, s{S_B}')
    for st in range(4): row_stage_dma(a, WD, L16, st, S_OB, vm, 100 + st)
    sel(a, SEL, T, 'dup')
    a(f'''
    v_and_b32 v{T}, 15, v0
    v_lshrrev_b32 v{T+1}, 4, v0
    v_lshlrev_b32 v{T+2}, 6, v{T}
    v_lshl_add_u32 v{T+2}, v{T+1}, 4, v{T+2}
    s_lshl_b32 s{S_T}, s{S_M}, 10
    v_add_u32 v{PST}, s{S_T}, v{T+2}
    v_lshlrev_b32 v{T+2}, 4, v{T}
    v_lshl_add_u32 v{T+2}, v{T+1}, 10, v{T+2}
    s_mul_i32 s{S_T}, s{S_M}, 36864
    s_lshl_b32 s{S_T+1}, s{S_WAVE}, 8
    s_add_u32 s{S_T}, s{S_T}, s{S_T+1}
    v_add_u32 v{RB}, s{S_T}, v{T+2}
    s_cmp_ge_u32 s{S_M}, 18
    s_cselect_b32 s{S_T}, {16 * 1152 - 18 * 64}, 0
    s_lshl_b32 s{S_T+1}, s{S_M}, 6
    s_add_u32 s{S_T}, s{S_T}, s{S_T+1}
    s_mul_i32 s{S_T+1}, s{S_WAVE}, 4608
    s_add_u32 s{S_T}, s{S_T}, s{S_T+1}
    v_lshrrev_b32 v{T+2}, 2, v{T}
    v_mul_u32_u24 v{T+2}, 1152, v{T+2}
    v_and_b32 v{T+3}, 3, v0
    v_lshl_add_u32 v{T+2}, v{T+3}, 4, v{T+2}
    v_lshl_add_u32 v{T+2}, v{T+1}, 3, v{T+2}
    v_add_u32 v{T+2}, s{S_T}, v{T+2}
    v_mov_b32 v{T+3}, 0x{OOB:x}
    v_cmp_gt_u32 vcc, 32, v0
    v_cndmask_b32 v{OA}, v{T+3}, v{T+2}, vcc
    v_add_u32 v{XW}, s{S_B}, v{L16}
    ''')
    a(f'''
    v_lshrrev_b32 v{T}, 5, v0
    v_bfe_u32 v{T+1}, v0, 2, 3
    v_lshl_add_u32 v{T}, v{T}, 4, v{T+1}
    v_mul_u32_u24 v{T}, 1152, v{T}
    v_and_b32 v{T+1}, 3, v0
    v_lshl_add_u32 v{TA}, v{T+1}, 4, v{T}
    v_add_u32 v{TA+1}, {2 * 36864}, v{TA}
    ''')
    for w in range(1, 4):
        a(f's_cmp_eq_u32 s{S_WAVE}, {w}'); a(f's_cbranch_scc1 L_ffn_w{w}')
    vm0 = list(vm.q)
    for w in range(4):
        tl = tiles_of(w)
        def WDF(ti, ks): return 368 + 4 * (ti * 4 + ks)
        a.label(f'L_ffn_w{w}')
        vm.q = list(vm0)
        for st in range(4):
            vm.wait(100 + st)
            a('s_barrier')
            for ti, (P, TT) in enumerate(tl):
                for p in range(2):
                    a(f'ds_read_b64_tr_b16 {ur(WDF(ti, st) + 2*p, 2)}, v{TA + (st >> 1)} offset:{(st % 2) * 36864 + p * 8 * 1152 + P * 64 + TT * 8}')
        a('s_waitcnt lgkmcnt(0)')
        th(a, opt, 4)
        a(f's_mul_i32 s{S_T}, s{S_G}, {2 * PF_SLOT}'); a(f's_mul_i32 s{S_T+1}, s{S_M}, 36864'); a(f's_add_u32 s{S_T}, s{S_T}, s{S_T+1}')
        if not opt.get('fe_ffn'): fill(a, L16, 32, [(S_T, PF + w * 9216), (S_T, PF + PF_SLOT + w * 9216)])
        th(a, opt, 5)
        meet(a, T, (DB_FI, 108, GO_FI), [(GO_FI, 1), (GO_AI, 1)], 'fi')
        tstamp(a, opt, 0)
        a(f's_mov_b32 s{S_SEG}, s{S_G}')
        a(f's_mov_b32 s{S_N}, 0')
        S_SP = S_FP; PB = 19
        a(f's_mov_b32 s{S_SP}, 0')
        a(f'v_min_u32 v{PB}, 7, v0'); a(f'v_mul_u32_u24 v{PB}, 1152, v{PB}')
        if opt.get('vprobe') == 'x': a(f'v_add_u32 v{PB}, {w * 9216}, v{PB}')
        AW = T + 4; HV = 26
        a(f'''
        v_bfe_u32 v{T}, v0, 4, 1
        v_lshlrev_b32 v{T}, 10, v{T}
        v_lshrrev_b32 v{T+1}, 5, v0
        v_lshl_add_u32 v{T}, v{T+1}, 8, v{T}
        v_and_b32 v{T+1}, 15, v0
        v_lshl_add_u32 v{AW}, v{T+1}, 4, v{T}
        ''')
        L = f'L_ffn_l{w}'
        a.label(L)
        a(f's_mul_i32 s{S_OB}, s{S_SEG}, 36864'); a(f's_add_u32 s{S_T+1}, s{S_OB}, {XN2}')
        a(f's_add_u32 s{S_T}, s{S_OB}, {HB + w * 9216}')
        a(f's_bfe_u32 s{S_TAG}, s{S_N}, 0x10001'); a(f's_and_b32 s{S_Q}, s{S_N}, 1')
        a(f's_lshl1_add_u32 s{S_Q}, s{S_G}, s{S_Q}'); a(f's_mul_i32 s{S_Q}, s{S_Q}, {PF_SLOT}'); a(f's_add_u32 s{S_Q}, s{S_Q}, {PF}')
        tk(a, opt, 3)
        XL = 32
        spec = opt.get('fspec')
        if spec:
            a(f's_cmp_eq_u32 s{S_SP}, 0'); a(f's_cbranch_scc1 {L}_reg')
            a('s_waitcnt vmcnt(1)')
            for i in range(9): a(f'ds_read_b128 {vr(XL+4*i,4)}, v{XW} offset:{1024 * i}')
            for i in range(9):
                a(f's_waitcnt lgkmcnt({8 - i})')
                if i == 0: a(f'v_max_u32 v{T}, v{XL}, v{XL+2}')
                else: a(f'v_max3_u32 v{T}, v{T}, v{XL+4*i}, v{XL+4*i+2}')
            a(f'v_cmp_eq_u32 vcc, -1, v{T}')
            tk(a, opt, 4)
            a(f's_cbranch_vccz {L}_xok')
            if opt.get('wacc'): a(f's_add_u32 s{S_TM+26}, s{S_TM+26}, 0x10000')
            a.label(L + '_reg')
        if opt.get('vprobe'):
            LP = L + '_p'
            a.label(LP)
            a(f'buffer_load_dword v{T}, v{PB}, {WS}, s{S_T + (1 if opt["vprobe"] == "x" else 0)} offen sc1')
            a(f's_add_u32 s{S_SPIN}, s{S_SPIN}, 1')
            a(f's_cmp_ge_u32 s{S_SPIN}, {SPIN}')
            a('s_waitcnt vmcnt(0)')
            a(f's_cbranch_scc1 {LP}_x')
            a(f'v_cmp_eq_u32 vcc, -1, v{T}')
            a(f's_cbranch_vccnz {LP}')
            a.label(LP + '_x')
        else: spoll(a, None, None, [(1, f's{S_T}')], 'fh', sentinel=True)
        tk(a, opt, 4)
        tacc(a, opt, 3, 4, 12)
        def xl(g0):
            for i in range(3 * g0, 9): a(f'buffer_load_dwordx4 {vr(XL+4*i,4)}, v{DO+i}, {WS}, s{S_T+1} offen sc1')
        xl(0)
        for g3 in range(3):
            LX = f'L_ffn_x{w}_{g3}'
            a.label(LX)
            z = [XL + 4 * (3 * g3 + u) for u in range(3)]
            for u in range(3):
                a(f's_waitcnt vmcnt({8 - 3 * g3 - u})')
                a(f'ds_write_b128 v{XW}, {vr(z[u],4)} offset:{1024 * (3 * g3 + u)}')
                if u == 0: a(f'v_max_u32 v{T}, v{z[u]}, v{z[u]+2}')
                else: a(f'v_max3_u32 v{T}, v{T}, v{z[u]}, v{z[u]+2}')
            a(f'v_cmp_eq_u32 vcc, -1, v{T}')
            a(f's_cbranch_vccz {LX}_x')
            retry(a, LX + '_x')
            a('s_waitcnt lgkmcnt(0)')
            xl(g3)
            a(f's_branch {LX}')
            a.label(LX + '_x')
        a('s_waitcnt lgkmcnt(0)')
        a.label(L + '_xok')
        a('s_barrier')
        tk(a, opt, 5)
        if opt.get('wst'): a('s_waitcnt lgkmcnt(0)')
        lg = Cnt(a, 'lgkmcnt', 15)
        def rd(kk):
            a(f'ds_read_b128 {vr(XR[kk % 4], 4)}, v{XA + (kk & 3)} offset:{(kk >> 2) * 128}'); lg.issue(kk)
        for kk in range(3): rd(kk)
        a(f's_add_u32 s{S_T}, s{S_OB}, {HB}')
        for kk in range(36):
            lg.wait(kk)
            for m in range(2):
                a(f'{MF32} {vr(ACC[m],16)}, {ur(GU(m,kk),4)}, {vr(XR[kk%4],4)}, {"0" if kk == 0 else vr(ACC[m],16)}')
                if m == 0 and kk + 3 < 36: rd(kk + 3)
            if kk == 8: a(f'buffer_load_dwordx2 {vr(HV,2)}, v{OA}, {WS}, s{S_T} offen sc1')
        g, u = ACC
        tk(a, opt, 6)
        for r in range(16): a(f'v_max_f32 v{g+r}, 0, v{g+r}')
        for b in range(2):
            for r in range(4): a(f'v_pk_mul_f32 {vr(g+8*b+2*r,2)}, {vr(g+8*b+2*r,2)}, {vr(u+8*b+2*r,2)}')
            for d in range(4): a(f'v_cvt_pk_bf16_f32 v{g+8*b+d}, v{g+8*b+2*d}, v{g+8*b+2*d+1}')
            a(f'ds_write_b128 v{AW}, {vr(g+8*b,4)} offset:{ACTL + w * 2048 + b * 512}')
        a('s_waitcnt lgkmcnt(0)')
        a('s_barrier')
        for ks in range(4):
            for tt in range(2):
                a(f'ds_read_b128 {vr(AF+4*(2*ks+tt),4)}, v{L16} offset:{ACTL + ks * 2048 + tt * 1024}'); lg.issue((ks, tt))
        groups = [(gi, tt) for gi in range(5) for tt in range(2)]
        def fin(n):
            gi, tt = groups[n]; q = DA + 8 * (n & 1); P = tl[2 * gi][0]
            a(f's_add_u32 s{S_P}, s{S_Q}, {(tt * 18 + P) * 36864}')
            if gi < 4:
                for d in range(4): a(f'v_cvt_pk_bf16_f32 v{q+d}, v{q+2*d}, v{q+2*d+1}')
                for d in (0, 2): a(f'v_bfi_b32 v{q+d}, 1, s{S_TAG}, v{q+d}')
                a(f'buffer_store_dwordx4 {vr(q,4)}, v{PST}, {WS}, s{S_P} offen sc1')
            else:
                for d in range(2): a(f'v_cvt_pk_bf16_f32 v{q+d}, v{q+2*d}, v{q+2*d+1}')
                a(f'v_bfi_b32 v{q}, 1, s{S_TAG}, v{q}')
                a(f'buffer_store_dwordx2 {vr(q,2)}, v{PST}, {WS}, s{S_P} offen offset:{8*tl[8][1]} sc1')
        for n, (gi, tt) in enumerate(groups):
            for ks in range(4):
                if n < 2: lg.wait((ks, tt))
                for TT in range(2 if gi < 4 else 1):
                    q = DA + 8 * (n & 1) + 4 * TT
                    a(f'{MF} {vr(q,4)}, {ur(WDF(2*gi+TT,ks),4)}, {vr(AF+4*(2*ks+tt),4)}, {"0" if ks == 0 else vr(q,4)}')
                if ks == 1 and n > 0: fin(n - 1)
                if spec and ks == 3 and n == opt.get('spn', 7):
                    a(f's_add_u32 s{S_T+1}, s{S_T+1}, {3 * 36864}')
                    for r in range(8): a(f's_load_dword s{S_MK+r}, s[{S_WS}:{S_WS+1}], s{S_T+1} offset:{w * 9216 + r * 1152} glc')
        fin(9)
        tk(a, opt, 7)
        RA = 68; RR = 32
        def pl(g0):
            for u9 in range(3 * g0, 9):
                a(f's_add_u32 s{S_P}, s{S_Q}, {u9 * 4096}')
                a(f'buffer_load_dwordx4 {vr(RR+4*u9,4)}, v{RB}, {WS}, s{S_P} offen sc1')
        pl(0)
        tk(a, opt, 8)
        def red(extra):
            for g3 in range(3):
                LF = f'L_ffn_f{w}_{g3}'
                if not extra: a.label(LF)
                a(f's_waitcnt vmcnt({6 - 3 * g3 + extra})')
                z = [RR + 4 * (3 * g3 + u) for u in range(3)]
                for u in range(3): a(f'v_bitop3_b32 v{T+u}, v{z[u]}, v{z[u]+2}, s{S_TAG} bitop3:0x7e')
                a(f'v_or3_b32 v{T}, v{T}, v{T+1}, v{T+2}')
                a(f'v_and_b32 v{T}, 1, v{T}')
                if g3 == 0:
                    a(f'v_cmp_eq_u32 vcc, -1, v{HV}'); a(f'v_cndmask_b32 v{T}, v{T}, 1, vcc')
                a(f'v_cmp_eq_u32 vcc, 1, v{T}')
                if extra: a(f's_cbranch_vccnz {LF}_r')
                else:
                    a(f's_cbranch_vccz {LF}_x')
                    a.label(LF + '_r')
                    retry(a, LF + '_x')
                    if g3 == 0: a(f'buffer_load_dwordx2 {vr(HV,2)}, v{OA}, {WS}, s{S_T} offen sc1')
                    pl(g3)
                    a(f's_branch {LF}')
                    a.label(LF + '_x')
                if g3 == 0:
                    for d in range(2): a(f'v_lshlrev_b32 v{RA+2*d}, 16, v{HV+d}'); a(f'v_and_b32 v{RA+2*d+1}, 0xffff0000, v{HV+d}')
                if g3 == 2: tk(a, opt, 9)
                for u in range(3): a(f'{MF} {vr(RA,4)}, {vr(SEL,4)}, {vr(z[u],4)}, {vr(RA,4)}')
        if spec:
            a('s_waitcnt lgkmcnt(0)')
            for r in range(1, 8): a(f's_max_u32 s{S_MK}, s{S_MK}, s{S_MK+r}')
            a(f's_cmp_lt_u32 s{S_SEG}, 61'); a(f's_cselect_b32 s{S_MK}, s{S_MK}, -1')
            a(f's_cmp_lg_u32 s{S_MK}, -1'); a(f's_cselect_b32 s{S_SP}, 1, 0')
            a(f's_cbranch_scc0 L_ffn_f{w}_0')
            x_dma(a, DO, S_T + 1, S_B)
            red(9)
            a(f's_branch {L}_out')
        red(0)
        a.label(L + '_out')
        tk(a, opt, 10)
        for d in range(2): a(f'v_cvt_pk_bf16_f32 v{RA+d}, v{RA+2*d}, v{RA+2*d+1}')
        a(f'buffer_store_dwordx2 {vr(RA,2)}, v{OA}, {R(OUT)}, s{S_OB} offen')
        tfirst(a, opt, f's_cmp_lt_u32 s{S_SEG}, 3')
        a(f's_add_u32 s{S_SEG}, s{S_SEG}, 3'); a(f's_add_u32 s{S_N}, s{S_N}, 1')
        a(f's_cmp_lt_u32 s{S_SEG}, 64'); a(f's_cbranch_scc1 {L}')
        if opt.get('times'): a('s_waitcnt vmcnt(0)')
        finish(a, opt)

def roles(a, opt):
    if opt.get('wacc'): a(f's_mov_b32 s{S_TM+24}, 0'); a(f's_mov_b32 s{S_TM+26}, 0')
    a(f's_cmp_ge_u32 s{S_ROLE}, 112'); a('s_cbranch_scc1 L_ffn')
    a(f's_cmp_ge_u32 s{S_ROLE}, 48'); a('s_cbranch_scc1 L_att')
    proj(a, opt); att(a, opt); ffn(a, opt)
```

```python
import sys, json
sys.path.insert(0, 'gen')
from asm import *
from lay import *
import os, importlib, workers
chain = importlib.import_module(os.environ.get('CHAIN', 'chain3'))
NAME = 'sequential_preLN__memory_aug_recurrent_mem_tr__glu_gated_reglu__prompt'

def build(opt):
    a = Asm(); a.timed = opt.get('timed', True)
    DBG = f's[{S_DBG}:{S_DBG+3}]'; WS = f's[{S_WS}:{S_WS+3}]'
    a(f's_cmp_ge_u32 s{S_WG}, 256'); a('s_cbranch_scc1 L_exit')
    if opt.get('times', False): a('s_memrealtime s[62:63]')
    a(f's_load_dwordx4 s[{S_DBG}:{S_DBG+3}], s[0:1], 96')
    a(f's_getreg_b32 s{S_T}, hwreg(HW_REG_XCC_ID)')
    a(f'v_readfirstlane_b32 s{S_WAVE}, v0')
    a(f's_and_b32 s{S_T}, s{S_T}, 15')
    a(f's_lshr_b32 s{S_WAVE}, s{S_WAVE}, 6')
    a('v_and_b32 v0, 63, v0')
    a('s_waitcnt lgkmcnt(0)')
    a(f's_mov_b32 s{S_WS}, s{S_DBG+2}'); a(f's_and_b32 s{S_WS+1}, s{S_DBG+3}, 0xffff')
    a(f's_mov_b32 s{S_WS+2}, {WS_BYTES}'); a(f's_mov_b32 s{S_WS+3}, 0x20000')
    a(f's_and_b32 s{S_DBG+1}, s{S_DBG+1}, 0xffff'); a(f's_mov_b32 s{S_DBG+2}, 256'); a(f's_mov_b32 s{S_DBG+3}, 0x20000')
    if opt.get('force_slow'): a(f's_or_b32 s{S_T}, s{S_T}, {opt["force_slow"]}')
    if opt.get('cpf'):
        nsh = opt['cpf']; per = 1024 // nsh // 2
        a(f's_cmp_lt_u32 s{S_WAVE}, 2'); a('s_cbranch_scc1 L_nocpf')
        a(f's_getpc_b64 s[{S_T+2}:{S_T+3}]')
        a.label('L_pc')
        a(f's_lshr_b32 s{S_T+1}, s{S_WG}, 3'); a(f's_and_b32 s{S_T+1}, s{S_T+1}, {nsh - 1}')
        a(f's_lshl1_add_u32 s{S_T+1}, s{S_T+1}, s{S_WAVE}'); a(f's_sub_u32 s{S_T+1}, s{S_T+1}, 2')
        a(f's_mul_i32 s{S_T+1}, s{S_T+1}, {per * 128}')
        a('v_lshlrev_b32 v1, 7, v0'); a(f'v_add_u32 v1, s{S_T+1}, v1')
        a(f's_mov_b32 s{S_T+1}, L_code_end-L_pc-4')
        for i in range(per // 64):
            a(f'v_min_u32 v2, s{S_T+1}, v1')
            a(f'v_mov_b32 v3, s{S_T+3}')
            a(f'v_add_co_u32 v2, vcc, s{S_T+2}, v2'); a('v_addc_co_u32 v3, vcc, 0, v3, vcc')
            a(f'global_load_dword v{4 + i}, v[2:3], off')
            a('v_add_u32 v1, 8192, v1')
        a('s_waitcnt vmcnt(0)')
        a('s_branch L_noticket')
        a.label('L_nocpf')
    a(f's_cmp_lg_u32 s{S_WAVE}, 1'); a('s_cbranch_scc1 L_nozero')
    a(f's_cmp_lt_u32 s{S_WG}, {256 - 2 * NZ}'); a('s_cbranch_scc1 L_noticket')
    a(f's_bitcmp0_b32 s{S_WG}, 0'); a('s_cbranch_scc1 L_noticket')
    a('v_mov_b64 v[4:5], 0'); a('v_mov_b64 v[6:7], 0'); a('v_lshlrev_b32 v3, 4, v0')
    a(f's_sub_u32 s{S_T+2}, s{S_WG}, {257 - 2 * NZ}'); a(f's_lshl_b32 s{S_T+2}, s{S_T+2}, 9')
    a(f'buffer_store_dwordx4 v[4:7], v3, {WS}, s{S_T+2} offen sc1')
    a('v_mov_b32 v1, 1')
    a('s_waitcnt vmcnt(0)')
    a('s_mov_b64 exec, 1')
    a(f'buffer_atomic_add v1, off, {DBG}, 0 offset:{DB_Z}')
    a('s_mov_b64 exec, -1')
    a('s_branch L_noticket')
    a.label('L_nozero')
    x1 = opt.get('x1', 'att')
    a(f's_cmp_lg_u32 s{S_WAVE}, 0'); a('s_cbranch_scc1 L_noticket')
    a('v_mov_b32 v2, 0')
    a('s_mov_b64 exec, 1')
    a(f's_cmp_gt_u32 s{S_T}, {1 if x1 else 0}'); a('s_cbranch_scc1 L_wticket')
    a('v_mov_b32 v1, 1')
    a(f's_mul_i32 s{S_T+2}, s{S_T}, {DB_C1 - DB_CT}')
    a(f'buffer_atomic_add v1, off, {DBG}, s{S_T+2} offset:{DB_CT} sc0')
    a(f's_add_u32 s{S_T+2}, s{S_T}, 1'); a(f's_lshl_b32 s{S_T+2}, s{S_T+2}, 16')
    a('s_waitcnt vmcnt(0)')
    a(f'v_readfirstlane_b32 s{S_T+1}, v1')
    a(f'v_or_b32 v1, s{S_T+2}, v1')
    a(f's_cmp_lt_u32 s{S_T+1}, 32'); a('s_cbranch_scc1 L_ticket')
    a.label('L_wticket')
    a('v_mov_b32 v1, 1')
    a(f'buffer_atomic_add v1, off, {DBG}, 0 offset:{DB_WT} sc0')
    a('s_waitcnt vmcnt(0)')
    a.label('L_ticket')
    a('ds_write_b32 v2, v1')
    a('s_waitcnt lgkmcnt(0)')
    a('s_mov_b64 exec, -1')
    a.label('L_noticket')
    a('s_barrier')
    a('v_mov_b32 v2, 0'); a('ds_read_b32 v1, v2'); a('s_waitcnt lgkmcnt(0)')
    a(f'v_readfirstlane_b32 s{S_T+1}, v1')
    a('s_barrier')
    a(f's_and_b32 s{S_ROLE}, s{S_T+1}, 0xffff')
    a(f's_bitcmp1_b32 s{S_T+1}, 16'); a('s_cbranch_scc1 L_chain')
    a(f's_bitcmp0_b32 s{S_T+1}, 17'); a('s_cbranch_scc1 L_front')
    a(f's_sub_u32 s{S_ROLE}, 223, s{S_ROLE}')
    a('s_branch L_list')
    a.label('L_front')
    a(f's_cmp_lt_u32 s{S_ROLE}, {192 if x1 else 220}'); a('s_cbranch_scc1 L_list')
    a(f's_mov_b32 s{S_T+3}, 0')
    a.label('L_spare')
    a(f'buffer_load_dword v1, off, {DBG}, 0 offset:{DB_CT} sc1')
    a(f'buffer_load_dword v2, off, {DBG}, 0 offset:{DB_WT} sc1')
    a(f'buffer_load_dword v3, off, {DBG}, 0 offset:{DB_C1} sc1')
    a(f's_add_u32 s{S_T+3}, s{S_T+3}, 1')
    a('s_waitcnt vmcnt(0)')
    a(f'v_readfirstlane_b32 s{S_T+2}, v1'); a(f'v_readfirstlane_b32 s{S_T+1}, v2'); a(f'v_readfirstlane_b32 s{S_T}, v3')
    a(f's_cmp_ge_u32 s{S_T+3}, {chain.SPIN}'); a('s_cbranch_scc1 L_exit')
    a(f's_min_u32 s{S_T+2}, s{S_T+2}, 32'); a(f's_min_u32 s{S_T}, s{S_T}, 32')
    a(f's_add_u32 s{S_T+1}, s{S_T+1}, s{S_T+2}'); a(f's_add_u32 s{S_T+1}, s{S_T+1}, s{S_T}')
    a(f's_cmp_lt_u32 s{S_T+1}, 256'); a('s_cbranch_scc1 L_spare')
    a(f's_sub_u32 s{S_T}, 224, s{S_T}')
    a(f's_cmp_lt_u32 s{S_ROLE}, s{S_T}'); a('s_cbranch_scc1 L_list')
    a(f's_sub_u32 s{S_ROLE}, s{S_ROLE}, s{S_T}')
    a(f's_add_u32 s{S_ROLE}, s{S_ROLE}, s{S_T+2}')
    a(f's_cmp_lt_u32 s{S_ROLE}, 32'); a('s_cbranch_scc1 L_chain')
    a('s_branch L_exit')
    a.label('L_list')
    a(f's_cmp_ge_u32 s{S_ROLE}, 220'); a('s_cbranch_scc1 L_exit')
    if x1 == 'att':
        a(f's_cmp_lt_u32 s{S_ROLE}, 84'); a('s_cbranch_scc1 L_roles')
        a(f's_cmp_lt_u32 s{S_ROLE}, 192'); a(f's_cselect_b32 s{S_T}, 28, -108')
        a(f's_add_u32 s{S_ROLE}, s{S_ROLE}, s{S_T}')
    a('s_branch L_roles')
    a.label('L_exit')
    a('s_endpgm')
    a.label('L_roles')
    for _ in range(opt.get('pad', 0)): a('s_nop 0')
    if opt.get('flags'): workers.roles(a, opt)
    else: a('s_endpgm')
    chain.entry(a, opt)
    a.label('L_code_end')
    n = a.fix(verbose=opt.get('verbose', False))
    head = open('cdna_kernels/' + NAME + '.s.ref').read().split('\n')
    hdr = [l for l in head if l.startswith(';') and '@launch' not in l]
    hdr = hdr[:[i for i, l in enumerate(hdr) if 'Override launch' in l][0]]
    out = '\n'.join(hdr) + '\n; @launch grid=(256,1,1) block=(256,1,1) lds=163840\n'
    out += f'''.amdgcn_target "amdgcn-amd-amdhsa--gfx950"
.text
.globl {NAME}_kernel
.p2align 8
.type {NAME}_kernel,@function
{NAME}_kernel:
''' + a.text() + f'''.section .rodata,"a"
.p2align 6
.amdhsa_kernel {NAME}_kernel
  .amdhsa_next_free_vgpr 512
  .amdhsa_next_free_sgpr 102
  .amdhsa_accum_offset 256
  .amdhsa_group_segment_fixed_size 0
  .amdhsa_kernarg_size 112
  .amdhsa_user_sgpr_count 2
  .amdhsa_user_sgpr_kernarg_segment_ptr 1
  .amdhsa_system_sgpr_workgroup_id_x 1
.end_amdhsa_kernel
'''
    return out

if __name__ == '__main__':
    opt = json.loads(sys.argv[2]) if len(sys.argv) > 2 else {}
    open(sys.argv[1], 'w').write(build(opt))
```

```python
from asm import *
from lay import *
SPIN = 1 << 18
S_SEG = 40; S_SPIN = 50; S_P = 51; S_Q = 41; S_B = 42; S_M = 43; S_G = 44; S_OB = 45
S_C = 46
S_MK = 52
S_TM = 64
WS = f's[{S_WS}:{S_WS+3}]'; DBG = f's[{S_DBG}:{S_DBG+3}]'
MF32 = 'v_mfma_f32_32x32x16_bf16'; MF = 'v_mfma_f32_16x16x32_bf16'; MH = 'v_mfma_f32_16x16x16_bf16'
def R(i): return f's[{i}:{i+3}]'

def srd_fix(a, r, nbytes):
    a(f's_and_b32 s{r+1}, s{r+1}, 0xffff'); a(f's_mov_b32 s{r+2}, {nbytes}'); a(f's_mov_b32 s{r+3}, 0x20000')

def poll(a, vaddr, srd, soff, sval, tmp, name, imm=0):
    lab = a.newlabel('L_' + name)
    a.label(lab)
    if vaddr is None: a(f'buffer_load_dword v{tmp}, off, {srd}, {soff} offset:{imm} sc1')
    else: a(f'buffer_load_dword v{tmp}, v{vaddr}, {srd}, {soff} offen offset:{imm} sc1')
    a(f's_add_u32 s{S_SPIN}, s{S_SPIN}, 1')
    a(f's_cmp_ge_u32 s{S_SPIN}, {SPIN}')
    a('s_waitcnt vmcnt(0)')
    a(f's_cbranch_scc1 {lab}_x')
    a(f'v_cmp_ge_u32 vcc, {sval}, v{tmp}')
    a(f's_cbranch_vccnz {lab}')
    a.label(lab + '_x')

S_FP = 48; S_FC = 49; S_TAG = 60; S_SL = 61; S_FA = 92
S_LOC = 39; S_SPL = 38; S_N = 95; S_FV = 96
def spoll(a, cache, need, loads, name, sentinel=False):
    lab = a.newlabel('L_' + name)
    if not sentinel: a(f's_cmp_ge_u32 s{cache}, {need}'); a(f's_cbranch_scc1 {lab}_x')
    a.label(lab)
    r = S_FV; regs = []
    for n, off in loads:
        a(f's_load_dword{"" if n == 1 else "x%d" % n} {sr(r, n)}, s[{S_WS}:{S_WS+1}], {off} glc')
        regs += list(range(r, r + n)); r += n
    a(f's_add_u32 s{S_SPIN}, s{S_SPIN}, 1')
    a(f's_cmp_ge_u32 s{S_SPIN}, {SPIN}'); a(f's_cbranch_scc1 {lab}_y')
    a('s_waitcnt lgkmcnt(0)')
    if sentinel:
        a(f's_cmp_eq_u32 s{S_FV}, -1')
    else:
        if len(regs) == 1: a(f's_mov_b32 s{cache}, s{regs[0]}')
        else:
            a(f's_min_u32 s{cache}, s{regs[0]}, s{regs[1]}')
            for x in regs[2:]: a(f's_min_u32 s{cache}, s{cache}, s{x}')
        a(f's_cmp_lt_u32 s{cache}, {need}')
    a(f's_cbranch_scc1 {lab}')
    a.label(lab + '_y')
    a('s_waitcnt lgkmcnt(0)')
    a.label(lab + '_x')

def dpoll(a, T, words, name):
    for off, need in words: poll(a, None, DBG, 0, str(need - 1), T, name, off)

def count(a, T, cnt, total, go):
    lab = a.newlabel('L_cnt')
    a(f'v_mov_b32 v{T}, 1'); a('s_mov_b64 exec, 1')
    a(f'buffer_atomic_add v{T}, off, {DBG}, 0 offset:{cnt} sc0')
    a('s_waitcnt vmcnt(0)')
    a(f'v_readfirstlane_b32 s{S_P}, v{T}')
    a(f'v_mov_b32 v{T}, 1')
    a(f's_cmp_lg_u32 s{S_P}, {total - 1}'); a(f's_cbranch_scc1 {lab}')
    a(f'buffer_store_dword v{T}, off, {DBG}, 0 offset:{go} sc1')
    a.label(lab)
    a('s_mov_b64 exec, -1')

def meet(a, T, cnt, words, name):
    lab = a.newlabel('L_meet')
    if cnt:
        a('s_waitcnt vmcnt(0)')
        a('s_barrier')
    a(f's_cmp_lg_u32 s{S_WAVE}, 0'); a(f's_cbranch_scc1 {lab}')
    if cnt: count(a, T, *cnt)
    dpoll(a, T, words, name)
    a.label(lab)
    if words: a('s_barrier')

def fill(a, L16, T, sbases):
    a(f'v_mov_b64 {vr(T,2)}, -1'); a(f'v_mov_b64 {vr(T+2,2)}, -1')
    for sb, base in sbases:
        for i in range(9):
            if i % 4 == 0: a(f's_add_u32 s{S_P}, s{sb}, {base + i * 1024}')
            a(f'buffer_store_dwordx4 {vr(T,4)}, v{L16}, {WS}, s{S_P} offen offset:{(i & 3) * 1024} sc1')

def retry(a, lab_ok):
    a(f's_add_u32 s{S_SPIN}, s{S_SPIN}, 1')
    a(f's_cmp_ge_u32 s{S_SPIN}, {SPIN}'); a(f's_cbranch_scc1 {lab_ok}')

def tstamp(a, opt, i):
    if opt.get('times'): a(f's_memrealtime s[{S_TM+2*i}:{S_TM+2*i+1}]'); a('s_waitcnt lgkmcnt(0)')
def tk(a, opt, i):
    if opt.get('wst'): a(f's_memrealtime s[{S_TM+2*i}:{S_TM+2*i+1}]')
def tacc(a, opt, i, j, k):
    if opt.get('wacc'):
        a('s_waitcnt lgkmcnt(0)'); a(f's_sub_u32 s{S_TM+2*i+1}, s{S_TM+2*j}, s{S_TM+2*i}'); a(f's_add_u32 s{S_TM+2*k}, s{S_TM+2*k}, s{S_TM+2*i+1}')
        a(f's_cmp_gt_u32 s{S_TM+2*i+1}, {opt["wacc"]}'); a(f's_addc_u32 s{S_TM+2*k+2}, s{S_TM+2*k+2}, 0')
def th(a, opt, i):
    if opt.get('hst'): a(f's_memrealtime s[{S_TM+2*i}:{S_TM+2*i+1}]'); a('s_waitcnt lgkmcnt(0)')
def tfirst(a, opt, first_cond):
    if opt.get('times'):
        lab = a.newlabel('L_tf'); a(first_cond); a(f's_cbranch_scc0 {lab}'); tstamp(a, opt, 1); a.label(lab)
def finish(a, opt):
    if opt.get('times'):
        tstamp(a, opt, 2)
        a(f's_add_u32 s{S_T}, s{S_ROLE}, 32'); a(f's_lshl_b32 s{S_T}, s{S_T}, 2'); a(f's_add_u32 s{S_T}, s{S_T}, s{S_WAVE}')
        a(f's_lshl_b32 s{S_T}, s{S_T}, 6'); a(f's_add_u32 s{S_T}, s{S_T}, {TIMES}')
        for i, r in enumerate([62] + [S_TM + 2 * k for k in range(14)]):
            a(f'v_mov_b32 v1, s{r}'); a(f'buffer_store_dword v1, off, {WS}, s{S_T} offset:{4*i}')
        if opt.get('dbgt'):
            a('s_mov_b64 exec, 1')
            a('s_not_b32 s63, s62')
            for r, o in ((63, 32), (62, 48), (S_TM + 4, 44), (S_TM, 52), (S_TM + 2, 56)):
                a(f'v_mov_b32 v1, s{r}'); a(f'buffer_atomic_umax v1, off, {DBG}, 0 offset:{o}')
    a('s_endpgm')

def x_consts(a, DO, XA, T):
    a(f's_mul_i32 s{S_T}, s{S_WAVE}, 576')
    a(f's_mov_b32 s{S_T+1}, 58255')
    for i in range(9):
        a(f'''
        v_add_u32 v{T}, s{S_T}, v0
        v_add_u32 v{T}, {64*i}, v{T}
        v_mul_lo_u32 v{T+1}, v{T}, s{S_T+1}
        v_lshrrev_b32 v{T+1}, 22, v{T+1}
        v_mul_u32_u24 v{T+2}, 72, v{T+1}
        v_sub_u32 v{T+2}, v{T}, v{T+2}
        v_bfe_u32 v{T+3}, v{T+1}, 1, 3
        v_xor_b32 v{T+2}, v{T+2}, v{T+3}
        v_mul_u32_u24 v{T+1}, 1152, v{T+1}
        v_lshl_add_u32 v{DO+i}, v{T+2}, 4, v{T+1}
        ''')
    a(f'''
    v_and_b32 v{T}, 31, v0
    v_lshrrev_b32 v{T+1}, 5, v0
    v_bfe_u32 v{T+2}, v{T}, 1, 3
    v_mul_u32_u24 v{T}, 1152, v{T}
    ''')
    for m in range(4):
        a(f'v_add_u32 v{T+3}, {2*m}, v{T+1}'); a(f'v_xor_b32 v{T+3}, v{T+3}, v{T+2}'); a(f'v_lshl_add_u32 v{XA+m}, v{T+3}, 4, v{T}')
assert all((x * 58255) >> 22 == x // 72 for x in range(2304))

def x_dma(a, DO, soff, sbuf):
    for i in range(9):
        if i == 0: a(f's_mov_b32 m0, s{sbuf}')
        else: a(f's_add_u32 m0, s{sbuf}, {1024*i}')
        a(f'buffer_load_dwordx4 v{DO+i}, {WS}, s{soff} offen sc1 lds')

def sel(a, dst, T, mode):
    a(f'v_and_b32 v{T}, 15, v0')
    if mode == 'hi': a(f'v_xor_b32 v{T}, 8, v{T}')
    if mode == 'dup': a(f'v_and_b32 v{T}, 7, v{T}')
    a(f'v_and_b32 v{T+1}, 1, v{T}'); a(f'v_lshlrev_b32 v{T+1}, 4, v{T+1}')
    a(f'v_mov_b32 v{T+2}, 0x3f80'); a(f'v_lshlrev_b32 v{T+2}, v{T+1}, v{T+2}')
    a(f'v_lshrrev_b32 v{T}, 1, v{T}')
    for d in range(4):
        a(f'v_cmp_eq_u32 vcc, {d}, v{T}'); a(f'v_cndmask_b32 v{dst+d}, 0, v{T+2}, vcc')

def proj(a, opt):
    DO = 1; XA = 10; ST = 14; TA = 15; ACC = [16, 32]; XR = [48, 52, 56, 60]; T = 64; FV = 70
    def W(kk, cb): return ur(224 + 8 * kk + 4 * cb, 4)
    a.label('L_proj')
    a(f's_load_dwordx4 s[{S_R1}:{S_R1+3}], s[0:1], 16')
    a(f's_load_dwordx2 s[{S_R2}:{S_R2+1}], s[0:1], 32')
    a(f's_mov_b32 s{S_SPIN}, 0')
    a('s_waitcnt lgkmcnt(0)')
    a(f's_and_b32 s{S_T+2}, s{S_WAVE}, 1')
    a(f's_cmp_lt_u32 s{S_ROLE}, 32'); a('s_cbranch_scc1 L_proj_kv')
    a(f's_mov_b32 s{S_R0}, s{S_R1}'); a(f's_mov_b32 s{S_R0+1}, s{S_R1+1}')
    a(f's_sub_u32 s{S_T}, s{S_ROLE}, 32'); a(f's_lshl_b32 s{S_T}, s{S_T}, 1'); a(f's_lshr_b32 s{S_T+1}, s{S_WAVE}, 1'); a(f's_add_u32 s{S_T}, s{S_T}, s{S_T+1}')
    a(f's_mov_b32 s{S_OB}, {QX}'); a(f's_mov_b32 s{S_G}, 0')
    a('s_branch L_proj_j')
    a.label('L_proj_kv')
    a(f's_mov_b32 s{S_T}, s{S_ROLE}')
    a(f's_cmp_ge_u32 s{S_WAVE}, 2'); a('s_cbranch_scc1 L_proj_v')
    a(f's_mov_b32 s{S_R0}, s{S_R1+2}'); a(f's_mov_b32 s{S_R0+1}, s{S_R1+3}')
    a(f's_mov_b32 s{S_OB}, {KX}'); a(f's_mov_b32 s{S_G}, 0')
    a('s_branch L_proj_j')
    a.label('L_proj_v')
    a(f's_mov_b32 s{S_R0}, s{S_R2}'); a(f's_mov_b32 s{S_R0+1}, s{S_R2+1}')
    a(f's_mov_b32 s{S_OB}, {VX}'); a(f's_mov_b32 s{S_G}, 1')
    a.label('L_proj_j')
    srd_fix(a, S_R0, 4718592)
    a(f's_lshl_b32 s{S_T+1}, s{S_T}, 13'); a(f's_add_u32 s{S_OB}, s{S_OB}, s{S_T+1}')
    a(f's_add_u32 s{S_T+3}, s{S_G}, 11'); a(f's_lshl_b32 s{S_T+1}, s{S_T+2}, s{S_T+3}'); a(f's_add_u32 s{S_OB}, s{S_OB}, s{S_T+1}')
    a(f's_lshl_b32 s{S_T}, s{S_T}, 8'); a(f's_lshl_b32 s{S_T+2}, s{S_T+2}, 7'); a(f's_add_u32 s{S_T}, s{S_T}, s{S_T+2}')
    a(f's_lshl_b32 s{S_B}, s{S_WAVE}, 15')
    a(f'''
    v_lshrrev_b32 v{T}, 3, v0
    v_and_b32 v{T+1}, 7, v0
    v_lshlrev_b32 v{T}, 13, v{T}
    v_lshl_add_u32 v{T}, v{T+1}, 4, v{T}
    v_add_u32 v{FV+1}, s{S_T}, v{T}
    ''')
    vm = Cnt(a, 'vmcnt', 63)
    def dma(i):
        a(f's_add_u32 m0, s{S_B}, {(i % 32) * 1024}'); a(f's_mov_b32 s{S_P}, {i * 65536}')
        a(f'buffer_load_dwordx4 v{FV+1}, {R(S_R0)}, s{S_P} offen lds'); vm.issue(i)
    for i in range(32): dma(i)
    a(f'''
    v_lshrrev_b32 v{T}, 5, v0
    v_bfe_u32 v{T+1}, v0, 2, 2
    v_lshl_add_u32 v{T}, v{T}, 3, v{T+1}
    v_lshlrev_b32 v{T}, 7, v{T}
    v_bfe_u32 v{T+1}, v0, 4, 1
    v_lshl_add_u32 v{T}, v{T+1}, 5, v{T}
    v_and_b32 v{T+1}, 3, v0
    v_lshl_add_u32 v{T}, v{T+1}, 3, v{T}
    v_add_u32 v{TA}, s{S_B}, v{T}
    ''')
    x_consts(a, DO, XA, T)
    a(f's_lshl_b32 s{S_T}, s{S_G}, 1'); a(f's_sub_u32 s{S_T}, 12, s{S_T}')
    a(f'''
    v_bfe_u32 v{T}, v0, 4, 1
    v_lshlrev_b32 v{T}, s{S_T}, v{T}
    v_lshrrev_b32 v{T+1}, 5, v0
    v_lshl_add_u32 v{T}, v{T+1}, 8, v{T}
    v_and_b32 v{T+1}, 15, v0
    v_lshl_add_u32 v{ST}, v{T+1}, 4, v{T}
    ''')
    for kk in range(36):
        vm.wait(2 * kk + 1)
        for cb in range(2):
            for p in range(2):
                a(f'ds_read_b64_tr_b16 {ur(224 + 8*kk + 4*cb + 2*p, 2)}, v{TA} offset:{(kk % 16) * 2048 + p * 512 + cb * 64}')
        if kk >= 1 and 2 * (kk - 1) + 32 < 72:
            a('s_waitcnt lgkmcnt(4)')
            dma(2 * (kk - 1) + 32); dma(2 * (kk - 1) + 33)
    a('s_waitcnt lgkmcnt(0)')
    th(a, opt, 3)
    meet(a, T, (DB_P, 48, GO_P), [(DB_Z, NZ), (GO_X, 1)], 'pw')
    tstamp(a, opt, 0)
    a(f's_mul_i32 s{S_B}, s{S_WAVE}, 9216')
    a(f's_mov_b32 s{S_Q}, {XN}')
    x_dma(a, DO, S_Q, S_B)
    a(f's_mov_b32 s{S_SEG}, 0')
    a(f's_lshl_b32 s{S_M}, s{S_ROLE}, 7'); a(f's_lshl_b32 s{S_T}, s{S_WAVE}, 2'); a(f's_add_u32 s{S_M}, s{S_M}, s{S_T}'); a(f's_add_u32 s{S_M}, s{S_M}, {flag(F_PROJ)}')
    STR = 72
    a(f'v_mov_b32 v{STR}, v{ST}'); a(f'v_mov_b32 v{ST}, 0x{OOB:x}')
    a(f's_sub_u32 s{S_OB}, s{S_OB}, {32 * 8192}')
    a('s_waitcnt vmcnt(0)')
    a(f's_cmp_eq_u32 s{S_G}, 1'); a('s_cbranch_scc1 L_proj_lv')
    ACCS = [[16, 32], [80, 96]]
    for isv in range(2):
        L = 'L_proj_lv' if isv else 'L_proj_lk'
        def epi(acc, cb, b):
            q = acc[cb]
            src = [[0, 2, 8, 10], [4, 6, 12, 14]] if isv else [[0, 2, 4, 6], [8, 10, 12, 14]]
            for d in range(4): a(f'v_cvt_pk_bf16_f32 v{q+4*b+d}, v{q+src[b][d]}, v{q+src[b][d]+1}')
            a(f'buffer_store_dwordx4 {vr(q+4*b,4)}, v{ST}, {WS}, s{S_OB} offen offset:{cb * (2048 if isv else 1024) + b * 512} sc1')
        a.label(L)
        for par in range(2):
            acc = ACCS[par]
            a('s_waitcnt vmcnt(1)')
            a('s_barrier')
            lg = Cnt(a, 'lgkmcnt', 15)
            def rd(kk):
                a(f'ds_read_b128 {vr(XR[kk % 4], 4)}, v{XA + (kk & 3)} offset:{(kk >> 2) * 128}'); lg.issue(kk)
            for kk in range(3): rd(kk)
            a(f's_cmp_lt_u32 s{S_SEG}, 63'); a(f's_cselect_b32 s{S_T}, 36864, 0'); a(f's_add_u32 s{S_Q}, s{S_Q}, s{S_T}')
            a(f's_xor_b32 s{S_B}, s{S_B}, 0x10000')
            for kk in range(36):
                lg.wait(kk)
                for cb in range(2):
                    c = '0' if kk == 0 else vr(acc[cb], 16)
                    x = vr(XR[kk % 4], 4)
                    if opt.get('pj_nomf') and kk >= opt['pj_nomf']: a('s_nop 6')
                    elif isv: a(f'{MF32} {vr(acc[cb],16)}, {x}, {W(kk,cb)}, {c}')
                    else: a(f'{MF32} {vr(acc[cb],16)}, {W(kk,cb)}, {x}, {c}')
                    if cb == 0 and kk + 3 < 36: rd(kk + 3)
                if 1 <= kk <= 4: epi(ACCS[par ^ 1], (kk - 1) >> 1, (kk - 1) & 1)
                if 5 <= kk <= 13:
                    i = kk - 5
                    a(f's_add_u32 m0, s{S_B}, {1024*i}')
                    a(f'buffer_load_dwordx4 v{DO+i}, {WS}, s{S_Q} offen sc1 lds')
                if kk == 5 and par == 1: tfirst(a, opt, f's_cmp_eq_u32 s{S_SEG}, 1')
                if kk == opt.get('pfk', 22):
                    a('s_waitcnt vmcnt(9)')
                    a(f'v_mov_b32 v{FV}, s{S_SEG}')
                    a(f'buffer_store_dword v{FV}, off, {WS}, s{S_M} sc1')
                if kk == 33:
                    for m in range(4): a(f'v_xor_b32 v{XA+m}, 0x10000, v{XA+m}')
                if kk == 34:
                    if not opt.get('pj_nost'): a(f'v_mov_b32 v{ST}, v{STR}')
                    a(f's_add_u32 s{S_OB}, s{S_OB}, {32 * 8192}')
                    a(f's_add_u32 s{S_SEG}, s{S_SEG}, 1')
            if par == 1: a(f's_cmp_lt_u32 s{S_SEG}, 64'); a(f's_cbranch_scc1 {L}')
        for cb in range(2):
            for b in range(2): epi(ACCS[1], cb, b)
        if not isv: a('s_branch L_proj_end')
    a.label('L_proj_end')
    a('s_waitcnt vmcnt(0)')
    a(f'v_mov_b32 v{FV}, 64')
    a(f'buffer_store_dword v{FV}, off, {WS}, s{S_M} sc1')
    if opt.get('f4'):
        a('s_barrier')
        a(f's_cmp_lt_u32 s{S_ROLE}, 36'); a('s_cbranch_scc1 L_ffn')
    finish(a, opt)

def tiles_of(w):
    b = 9 * (w >> 1)
    if w & 1 == 0: return [(b + i, T) for i in range(4) for T in range(2)] + [(b + 4, 0)]
    return [(b + 5 + i, T) for i in range(4) for T in range(2)] + [(b + 4, 1)]

def row_stage_dma(a, srd, L16, st, sbase, vm, tag):
    for i in range(9):
        a(f's_add_u32 m0, s{S_B}, {(st % 4) * 36864 + (i & ~3) * 1024}') if i % 4 == 0 else None
        if i % 4 == 0: a(f's_add_u32 s{S_P}, s{sbase}, {st * 36864 + i * 1024}')
        a(f'buffer_load_dwordx4 v{L16}, {R(srd)}, s{S_P} offen offset:{(i & 3) * 1024} lds'); vm.issue(tag)

def allreduce(a, v, t, op='v_add_f32', lanes=64):
    for d in ('quad_perm:[1,0,3,2]', 'quad_perm:[2,3,0,1]', 'row_half_mirror', 'row_mirror')[:3 if lanes == 8 else 4]:
        a(f'{op}_dpp v{v}, v{v}, v{v} {d} row_mask:0xf bank_mask:0xf')
    if lanes == 64:
        for sw in ('v_permlane16_swap_b32', 'v_permlane32_swap_b32'):
            a(f'v_mov_b32 v{t}, v{v}'); a(f'{sw} v{v}, v{t}'); a(f'{op} v{v}, v{v}, v{t}')

def att(a, opt):
    L16, KMA, L8, PST, RB, XO, XO2, RB4, XO4, T = 1, 2, 3, 4, 5, 6, 7, 8, 9, 10
    Q = 16; K = 32; V = 64; KMF = 96; VMF = 112; SM, S0, S1 = 120, 124, 128; PX = 132; PM = 136; ONE = 140; SUM = 144
    O = 148; OF = 148; ACC = 96
    SLO, SHI = 212, 216
    RR = 128
    XX, WO_ = S_R0, S_R1
    a.label('L_att')
    a(f's_load_dwordx2 s[{XX}:{XX+1}], s[0:1], 0')
    a(f's_load_dwordx2 s[{WO_}:{WO_+1}], s[0:1], 40')
    a(f's_mov_b32 s{S_SPIN}, 0')
    a(f's_sub_u32 s{S_T}, s{S_ROLE}, 48'); a(f's_and_b32 s{S_M}, s{S_T}, 15'); a(f's_lshr_b32 s{S_G}, s{S_T}, 4')
    a(f'v_lshlrev_b32 v{L16}, 4, v0')
    a('s_waitcnt lgkmcnt(0)')
    srd_fix(a, XX, 2359296); srd_fix(a, WO_, 4718592)
    X = 16; Fp = 64
    a(f's_mul_i32 s{S_Q}, s{S_T}, 36864'); a(f's_mul_i32 s{S_B}, s{S_WAVE}, 9216'); a(f's_add_u32 s{S_Q}, s{S_Q}, s{S_B}')
    a(f'v_lshrrev_b32 v{T}, 3, v0'); a(f'v_mul_u32_u24 v{T}, 1152, v{T}'); a(f'v_and_b32 v{T+1}, 7, v0'); a(f'v_lshl_add_u32 v{T}, v{T+1}, 4, v{T}')
    vm = Cnt(a, 'vmcnt', 63)
    for i in range(9): a(f'buffer_load_dwordx4 {vr(X+4*i,4)}, v{T}, {R(XX)}, s{S_Q} offen offset:{128*i}'); vm.issue('x')
    a(f's_mul_i32 s{S_OB}, s{S_M}, {2 * 147456}'); a(f's_add_u32 s{S_OB}, s{S_OB}, s{S_B}')
    ns = opt.get('nsent', 4); assert ns % 4 == 0
    a(f's_lshl2_add_u32 s{S_T}, s{S_T}, s{S_WAVE}'); a(f's_mul_i32 s{S_T}, s{S_T}, {ns * 256}')
    a(f'v_mov_b64 {vr(Fp,2)}, -1'); a(f'v_mov_b64 {vr(Fp+2,2)}, -1')
    for base in (KM, VM):
        a(f's_add_u32 s{S_P}, s{S_T}, {base + (64 - ns) * 65536}')
        for i in range(ns // 4): a(f'buffer_store_dwordx4 {vr(Fp,4)}, v{L16}, {WS}, s{S_P} offen offset:{1024 * i} sc1'); vm.issue('sf')
    vm.wait('x')
    th(a, opt, 3)
    for i in range(36):
        a(f'v_lshlrev_b32 v{Fp+2*i}, 16, v{X+i}'); a(f'v_and_b32 v{Fp+2*i+1}, 0xffff0000, v{X+i}')
    A4 = [T + 2, T + 3, T + 4, T + 5]
    for i in range(72):
        if i < 4: a(f'v_add_f32 v{A4[i]}, v{Fp+i}, v{Fp+i+4}')
        elif i >= 8: a(f'v_add_f32 v{A4[i&3]}, v{A4[i&3]}, v{Fp+i}')
    a(f'v_add_f32 v{A4[0]}, v{A4[0]}, v{A4[1]}'); a(f'v_add_f32 v{A4[2]}, v{A4[2]}, v{A4[3]}'); a(f'v_add_f32 v{A4[0]}, v{A4[0]}, v{A4[2]}')
    allreduce(a, A4[0], T + 1, lanes=8)
    a(f'v_mul_f32 v{T+1}, 0x{0x3ae38e39:x}, v{A4[0]}')
    for i in range(72): a(f'v_sub_f32 v{Fp+i}, v{Fp+i}, v{T+1}')
    for i in range(72):
        if i < 4: a(f'v_mul_f32 v{A4[i]}, v{Fp+i}, v{Fp+i}')
        else: a(f'v_fmac_f32 v{A4[i&3]}, v{Fp+i}, v{Fp+i}')
    a(f'v_add_f32 v{A4[0]}, v{A4[0]}, v{A4[1]}'); a(f'v_add_f32 v{A4[2]}, v{A4[2]}, v{A4[3]}'); a(f'v_add_f32 v{A4[0]}, v{A4[0]}, v{A4[2]}')
    allreduce(a, A4[0], T + 1, lanes=8)
    a(f'v_mov_b32 v{T+1}, 0x{0x3727c5ac:x}')
    a(f'v_fmac_f32 v{T+1}, 0x{0x3ae38e39:x}, v{A4[0]}')
    a(f'v_rsq_f32 v{T+1}, v{T+1}')
    for i in range(72): a(f'v_mul_f32 v{Fp+i}, v{T+1}, v{Fp+i}')
    for i in range(36): a(f'v_cvt_pk_bf16_f32 v{X+i}, v{Fp+2*i}, v{Fp+2*i+1}')
    a(f's_add_u32 s{S_Q}, s{S_Q}, {XN}')
    for i in range(9): a(f'buffer_store_dwordx4 {vr(X+4*i,4)}, v{T}, {WS}, s{S_Q} offen offset:{128*i} sc1'); vm.issue('xs')
    th(a, opt, 4)
    GATE = {'p': [(GO_P, 1)], 'c': [(GO_C, 1)], None: []}
    NG = opt.get('ng', 4)
    if NG == 3:
        a(f's_cmp_lg_u32 s{S_G}, 3'); a('s_cbranch_scc1 L_att_full')
        meet(a, T + 4, (DB_X, 64, GO_X), [], 'gl')
        a(f's_sub_u32 s{S_T+1}, s{S_ROLE}, 48'); a(f's_mul_i32 s{S_T+1}, s{S_T+1}, 36864'); a(f's_add_u32 s{S_T+1}, s{S_T+1}, s{S_B}')
        fill(a, L16, 16, [(S_T + 1, HB), (S_T + 1, XN2)])
        meet(a, T, (DB_AI, 64, GO_AI), [], 'al')
        for i in range(2): tstamp(a, opt, i)
        finish(a, opt)
        a.label('L_att_full')
    if opt.get('fe_att'):
        meet(a, T + 4, (DB_X, 64, GO_X), [], 'gx')
        a(f's_mul_i32 s{S_T}, s{S_G}, {2 * PA_SLOT}'); a(f's_mul_i32 s{S_T+1}, s{S_M}, 36864'); a(f's_add_u32 s{S_T}, s{S_T}, s{S_T+1}')
        a(f's_sub_u32 s{S_T+1}, s{S_ROLE}, 48'); a(f's_mul_i32 s{S_T+1}, s{S_T+1}, 36864')
        a(f's_add_u32 s{S_T}, s{S_T}, s{S_B}'); a(f's_add_u32 s{S_T+1}, s{S_T+1}, s{S_B}')
        fill(a, L16, 60, [(S_T, PA), (S_T, PA + PA_SLOT), (S_T + 1, HB), (S_T + 1, XN2)])
        meet(a, T + 4, None, GATE[opt.get('gate_att')], 'ga')
        a('s_waitcnt vmcnt(0)')
    else: meet(a, T + 4, (DB_X, 64, GO_X), GATE[opt.get('gate_att')], 'ga')
    vm.reset()
    th(a, opt, 5)
    for st in range(4): row_stage_dma(a, WO_, L16, st, S_OB, vm, st)
    for w in range(1, 4):
        a(f's_cmp_eq_u32 s{S_WAVE}, {w}'); a(f's_cbranch_scc1 L_att_w{w}')
    vm0 = list(vm.q)
    for w in range(4):
        hh, qt = w >> 1, w & 1
        tl = tiles_of(w)
        def WOF(ti, k8): return ur(224 + 4 * (ti * 8 + k8), 4)
        a.label(f'L_att_w{w}')
        vm.q = list(vm0)
        TA = T + 2
        a(f'v_lshrrev_b32 v{TA}, 2, v0'); a(f'v_mul_u32_u24 v{TA}, 1152, v{TA}'); a(f'v_and_b32 v{T+3}, 3, v0'); a(f'v_lshl_add_u32 v{TA}, v{T+3}, 4, v{TA}')
        a(f'v_add_u32 v{TA+1}, {2 * 36864}, v{TA}')
        for st in range(8):
            vm.wait(st)
            a('s_barrier')
            for ti, (P, TT) in enumerate(tl):
                for p in range(2):
                    off = (st % 2) * 36864 + p * 16 * 1152 + P * 64 + TT * 8
                    a(f'ds_read_b64_tr_b16 {ur(224 + 4*(ti*8+st) + 2*p, 2)}, v{TA + ((st % 4) >> 1)} offset:{off}')
            a('s_waitcnt lgkmcnt(0)')
            if st < 4:
                a('s_barrier')
                row_stage_dma(a, WO_, L16, st + 4, S_OB, vm, st + 4)
        th(a, opt, 6)
        red = qt == 0
        a(f'''
        v_and_b32 v{T}, 15, v0
        v_lshrrev_b32 v{T+1}, 4, v0
        v_lshrrev_b32 v{T+2}, 2, v{T}
        v_and_b32 v{T+3}, 1, v0
        v_lshl_add_u32 v{T+4}, v{T+2}, 1, v{T+3}
        v_lshlrev_b32 v{T+4}, 4, v{T+4}
        v_lshl_add_u32 v{KMA}, v{T+1}, 7, v{T+4}
        v_lshlrev_b32 v{L8}, 3, v0
        v_lshrrev_b32 v{T+4}, 1, v{T}
        v_mul_u32_u24 v{T+4}, 36864, v{T+4}
        v_lshl_add_u32 v{T+4}, v{T+3}, 6, v{T+4}
        v_lshl_add_u32 v{T+4}, v{T+1}, 4, v{T+4}
        s_mul_i32 s{S_T}, s{S_M}, 2304
        v_add_u32 v{PST}, s{S_T}, v{T+4}
        ''')
        if red:
            a(f'''
            v_mul_u32_u24 v{T+4}, 2304, v{T+1}
            v_and_b32 v{T+5}, 3, v0
            v_lshl_add_u32 v{T+4}, v{T+5}, 4, v{T+4}
            s_mul_i32 s{S_T}, s{S_M}, 36864
            s_add_u32 s{S_T}, s{S_T}, {64 * hh}
            v_add_u32 v{T+4}, s{S_T}, v{T+4}
            v_lshl_add_u32 v{RB}, v{T+2}, 7, v{T+4}
            v_and_b32 v{RB4}, 1, v{T+2}
            v_lshl_add_u32 v{RB4}, v{RB4}, 7, v{T+4}
            s_mul_i32 s{S_T}, s{S_M}, 2304
            s_add_u32 s{S_T}, s{S_T}, {1152 * hh}
            v_lshlrev_b32 v{T+5}, 4, v{T+5}
            v_add_u32 v{T+5}, s{S_T}, v{T+5}
            v_lshrrev_b32 v{T+4}, 1, v{T+2}
            v_mul_u32_u24 v{T+4}, 9, v{T+4}
            v_and_b32 v{T+3}, 1, v{T+2}
            v_mul_u32_u24 v{T}, 5, v{T+3}
            v_add_u32 v{T+4}, v{T+4}, v{T}
            v_lshrrev_b32 v{T}, 1, v{T+1}
            v_add_u32 v{T+4}, v{T+4}, v{T}
            v_lshl_add_u32 v{T+4}, v{T+4}, 6, v{T+5}
            v_and_b32 v{T+1}, 1, v{T+1}
            v_lshl_add_u32 v{XO}, v{T+1}, 3, v{T+4}
            v_lshl_add_u32 v{XO4}, v{T+1}, 7, v{T+4}
            v_mul_u32_u24 v{T+3}, 576, v{T+3}
            v_add_u32 v{T+3}, 256, v{T+3}
            v_add_u32 v{T+3}, v{T+3}, v{T+5}
            v_lshl_add_u32 v{T+3}, v{T+1}, 3, v{T+3}
            s_mov_b32 s{S_T}, 0x00ff00ff
            s_mov_b32 s{S_T+1}, 0
            v_mov_b32 v{T+4}, 0x{OOB:x}
            v_cndmask_b32 v{XO2}, v{T+4}, v{T+3}, s[{S_T}:{S_T+1}]
            ''')
            sel(a, SLO, T, 'lo'); sel(a, SHI, T, 'hi')
        a(f'''
        s_lshl_b32 s{S_T}, s{S_M}, 8
        s_add_u32 s{S_FA}, s{S_T}, {flag(F_PROJ + hh)}
        s_add_u32 s{S_FA+2}, s{S_T}, {flag(F_CHAIN + hh)}
        s_lshl_b32 s{S_T}, s{S_M}, 7
        s_add_u32 s{S_FA+1}, s{S_T}, {flag(F_PROJ + 32) + 8 * hh}
        s_mov_b32 s{S_FP}, 0
        s_mov_b32 s{S_FC}, 0
        ''')
        for r in range(4):
            mk = sum(1 << l for l in range(64) if 4 * (l >> 4) + r <= (l & 15))
            a(f's_mov_b32 s{S_MK+2*r}, 0x{mk & 0xffffffff:x}'); a(f's_mov_b32 s{S_MK+2*r+1}, 0x{mk >> 32:x}')
        a(f's_mov_b32 s{S_C}, 0x3e0293ee'); a(f's_mov_b32 s{S_C+1}, 0xbe0293ee')
        a(f's_mul_i32 s{S_T}, s{S_G}, {2 * PA_SLOT}'); a(f's_mul_i32 s{S_T+1}, s{S_M}, 36864'); a(f's_add_u32 s{S_T}, s{S_T}, s{S_T+1}')
        a(f's_sub_u32 s{S_T+1}, s{S_ROLE}, 48'); a(f's_mul_i32 s{S_T+1}, s{S_T+1}, 36864')
        if not opt.get('fe_att'): fill(a, L16, 16, [(S_T, PA + w * 9216), (S_T, PA + PA_SLOT + w * 9216), (S_T + 1, HB + w * 9216), (S_T + 1, XN2 + w * 9216)])
        afast = opt.get('afast') and not opt.get('force_slow') == 1
        split = afast and opt.get('split')
        if split:
            lab = a.newlabel('L_nof')
            a(f's_cmp_lt_u32 s{S_ROLE}, 104'); a(f's_cbranch_scc1 {lab}')
            a(f's_mul_i32 s{S_T}, s{S_M}, 36864')
            fill(a, L16, 16, [(S_T, PA + 8 * PA_SLOT + w * 9216)])
            a.label(lab)
        th(a, opt, 7)
        meet(a, T, (DB_AI, 64, GO_AI), [(DB_Z, NZ), (GO_AI, 1)], 'ai')
        tstamp(a, opt, 0)
        if afast:
            th3, th0 = {'att': (20, 999), 'att2': (16, 32)}[opt.get('x1', 'att')]
            a(f'buffer_load_dword v{T}, off, {DBG}, 0 offset:{DB_C1} sc1')
            a(f's_cmp_eq_u32 s{S_G}, 0'); a(f's_cselect_b32 s{S_LOC}, {th0}, -1')
            a(f's_cmp_eq_u32 s{S_G}, 3'); a(f's_cselect_b32 s{S_LOC}, {th3}, s{S_LOC}')
            a('s_waitcnt vmcnt(0)')
            a(f'v_readfirstlane_b32 s{S_T}, v{T}')
            a(f's_cmp_ge_u32 s{S_T}, s{S_LOC}'); a(f's_cselect_b32 s{S_LOC}, 1, 0')
            if split: a(f's_cmp_ge_u32 s{S_T}, {th0}'); a(f's_cselect_b32 s{S_SPL}, s{S_LOC}, 0')
        a(f's_mov_b32 s{S_SEG}, s{S_G}')
        a(f's_mov_b32 s{S_B}, 0')
        a(f's_mov_b32 s{S_SL}, 0')
        def qkv(step):
            a(f's_add_u32 s{S_N}, s{S_SEG}, {step + 1}')
            spoll(a, S_FP, f's{S_N}', [(4, f's{S_FA}'), (2, f's{S_FA+1}')], 'ap')
            a(f's_lshl_b32 s{S_T}, s{S_SEG}, 5'); a(f's_lshl1_add_u32 s{S_T}, s{S_M}, s{S_T}'); a(f's_add_u32 s{S_T}, s{S_T}, {32 * step + hh}')
            a(f's_lshl_b32 s{S_T}, s{S_T}, 13')
            a(f's_add_u32 s{S_P}, s{S_T}, {QX + qt * 4096}')
            for ks in range(4): a(f'buffer_load_dwordx4 {vr(Q+4*ks,4)}, v{L16}, {WS}, s{S_P} offen offset:{1024*ks} sc1')
            for kt in range(qt + 1):
                a(f's_add_u32 s{S_P}, s{S_T}, {KX + kt * 4096}')
                for ks in range(4): a(f'buffer_load_dwordx4 {vr(K+16*kt+4*ks,4)}, v{L16}, {WS}, s{S_P} offen offset:{1024*ks} sc1')
            for hf in range(2):
                a(f's_add_u32 s{S_P}, s{S_T}, {VX + hf * 4096}')
                for u in range(4): a(f'buffer_load_dwordx4 {vr(V+16*hf+4*u,4)}, v{L16}, {WS}, s{S_P} offen offset:{1024*u} sc1')
        qkv(0)
        L = f'L_att_l{w}'
        a.label(L)
        vm.reset()
        a(f's_lshl_b32 s{S_Q}, s{S_SEG}, 5'); a(f's_lshl1_add_u32 s{S_Q}, s{S_M}, s{S_Q}'); a(f's_add_u32 s{S_Q}, s{S_Q}, {hh}')
        a(f's_lshl_b32 s{S_Q}, s{S_Q}, 11')
        a(f's_bfe_u32 s{S_TAG}, s{S_SL}, 0x10001'); a(f's_and_b32 s{S_T}, s{S_SL}, 1'); a(f's_add_u32 s{S_SL}, s{S_SL}, 1')
        a(f's_lshl1_add_u32 s{S_T}, s{S_G}, s{S_T}'); a(f's_mul_i32 s{S_OB}, s{S_T}, {PA_SLOT}'); a(f's_add_u32 s{S_OB}, s{S_OB}, {PA}')
        a(f'v_mov_b32 v{ONE}, 0x3f803f80'); a(f'v_mov_b32 v{ONE+1}, 0x3f803f80'); a(f'v_mov_b64 {vr(ONE+2,2)}, {vr(ONE,2)}')
        a(f'v_mov_b64 {vr(PM,2)}, 0'); a(f'v_mov_b64 {vr(PM+2,2)}, 0')
        if qt == 0: a(f'v_mov_b64 {vr(PX+2,2)}, 0')
        a('s_waitcnt vmcnt(0)')
        tk(a, opt, 3)
        for ks in range(4):
            for kt in range(qt + 1):
                S = S1 if kt else S0
                a(f'{MF} {vr(S,4)}, {vr(K+16*kt+4*ks,4)}, {vr(Q+4*ks,4)}, {"0" if ks == 0 else vr(S,4)}')
        SD = S1 if qt else S0
        a(f'v_mov_b32 v{T}, 0xff800000')
        for r in range(4): a(f'v_cndmask_b32 v{SD+r}, v{T}, v{SD+r}, s[{S_MK+2*r}:{S_MK+2*r+1}]')
        M, M2 = T + 2, T + 3
        a(f'v_max3_f32 v{M}, v{S0}, v{S0+1}, v{S0+2}')
        if qt:
            a(f'v_max3_f32 v{M}, v{M}, v{S0+3}, v{S1}'); a(f'v_max3_f32 v{M}, v{M}, v{S1+1}, v{S1+2}'); a(f'v_max_f32 v{M}, v{M}, v{S1+3}')
        else: a(f'v_max_f32 v{M}, v{M}, v{S0+3}')
        a(f's_cmp_lt_u32 s{S_SEG}, {64 - opt.get("nuse", opt.get("nsent", 4))}'); a(f's_addc_u32 s{S_N}, s{S_SEG}, 0'); a(f's_cmp_eq_u32 s{S_SEG}, 63'); a(f's_cselect_b32 s{S_N}, {opt.get("nmax", 62)}, s{S_N}')
        spoll(a, S_FC, f's{S_N}', [(1, f's{S_FA+2}')], 'ac')
        tk(a, opt, 4)
        tacc(a, opt, 3, 4, 12)
        LK = f'L_att_k{w}'
        a.label(LK)
        a(f's_add_u32 s{S_P}, s{S_Q}, {KM}')
        for ks in range(4): a(f'buffer_load_dwordx4 {vr(KMF+4*ks,4)}, v{KMA}, {WS}, s{S_P} offen offset:{512*ks} sc1'); vm.issue(('km', ks))
        a(f's_add_u32 s{S_P}, s{S_Q}, {VM}')
        for u in range(4): a(f'buffer_load_dwordx2 {vr(VMF+2*u,2)}, v{L8}, {WS}, s{S_P} offen offset:{512*u} sc1'); vm.issue(('vm', u))
        for ks in range(4):
            vm.wait(('km', ks))
            a(f'{MF} {vr(SM,4)}, {vr(KMF+4*ks,4)}, {vr(Q+4*ks,4)}, {"0" if ks == 0 else vr(SM,4)}')
        a(f'v_max3_u32 v{T}, v{KMF}, v{KMF+4}, v{KMF+8}')
        vm.wait(('vm', 3))
        a(f'v_max3_u32 v{T}, v{T}, v{KMF+12}, v{VMF}')
        a(f'v_max3_u32 v{T}, v{T}, v{VMF+2}, v{VMF+4}')
        a(f'v_max_u32 v{T}, v{T}, v{VMF+6}')
        a(f'v_cmp_eq_u32 vcc, -1, v{T}')
        a(f's_cbranch_vccz {LK}_x')
        retry(a, LK + '_x')
        a(f's_branch {LK}')
        a.label(LK + '_x')
        a(f'v_max3_f32 v{M}, v{M}, v{SM}, v{SM+1}')
        tk(a, opt, 5)
        for sw in ('v_permlane32_swap_b32', 'v_permlane16_swap_b32'):
            a(f'v_mov_b32 v{M2}, v{M}'); a(f'{sw} v{M}, v{M2}'); a(f'v_max_f32 v{M}, v{M}, v{M2}')
        a(f'v_mul_f32 v{M}, s{S_C+1}, v{M}')
        vals = [SM, SM + 1, S0, S0 + 1, S0 + 2, S0 + 3] + ([S1, S1 + 1, S1 + 2, S1 + 3] if qt else [])
        for r in vals: a(f'v_fma_f32 v{r}, v{r}, s{S_C}, v{M}')
        for r in vals: a(f'v_exp_f32 v{r}, v{r}')
        a(f'v_cvt_pk_bf16_f32 v{PX}, v{S0}, v{S0+1}'); a(f'v_cvt_pk_bf16_f32 v{PX+1}, v{S0+2}, v{S0+3}')
        if qt: a(f'v_cvt_pk_bf16_f32 v{PX+2}, v{S1}, v{S1+1}'); a(f'v_cvt_pk_bf16_f32 v{PX+3}, v{S1+2}, v{S1+3}')
        a(f'v_cvt_pk_bf16_f32 v{PM}, v{SM}, v{SM+1}'); a(f'v_cvt_pk_bf16_f32 v{PM+3}, v{SM}, v{SM+1}')
        a(f'{MF} {vr(SUM,4)}, {vr(ONE,4)}, {vr(PX,4)}, 0')
        for u in range(4): a(f'{MF} {vr(O+4*u,4)}, {vr(V+4*u,4)}, {vr(PX,4)}, 0')
        a(f'{MH} {vr(SUM,4)}, {vr(ONE,2)}, {vr(PM,2)}, {vr(SUM,4)}')
        for u in range(4, 8): a(f'{MF} {vr(O+4*u,4)}, {vr(V+4*u,4)}, {vr(PX,4)}, 0')
        a(f'v_add_u32 v{T+1}, s{S_B}, v{L16}')
        for u in range(8):
            a(f'{MH} {vr(O+4*u,4)}, {vr(VMF+2*(u>>1),2)}, {vr(PM+2*(u&1),2)}, {vr(O+4*u,4)}')
            if u == 0: a(f'v_rcp_f32 v{T+2}, v{SUM}')
        for w4 in range(4):
            q = O + 8 * w4
            for r in range(4): a(f'v_pk_mul_f32 {vr(q+2*r,2)}, {vr(q+2*r,2)}, {vr(T+2,2)} op_sel_hi:[1,0]')
            for d in range(4): a(f'v_cvt_pk_bf16_f32 v{q+d}, v{q+2*d}, v{q+2*d+1}')
            a(f'ds_write_b128 v{T+1}, {vr(q,4)} offset:{(w * 4 + w4) * 1024}')
        a('s_waitcnt lgkmcnt(0)')
        a('s_barrier')
        tk(a, opt, 6)
        if opt.get('wst'): a('s_waitcnt lgkmcnt(0)')
        XV = 48
        def wo_block(sc, tts):
            lg = Cnt(a, 'lgkmcnt', 15)
            for k8 in range(8):
                for tt in tts:
                    a(f'ds_read_b128 {vr(OF+4*(2*k8+tt),4)}, v{T+1} offset:{(((k8 >> 2) * 2 + tt) * 4 + (k8 & 3)) * 1024}'); lg.issue((k8, tt))
            a(f's_xor_b32 s{S_B}, s{S_B}, 0x4000')
            a(f's_add_u32 s{S_P}, s{S_OB}, 294912')
            if red: a(f's_mul_i32 s{S_Q}, s{S_SEG}, 36864')
            def fin(gi):
                base = ACC + 16 * (gi & 1); ops = []
                for tt in tts:
                    so = S_P if tt else S_OB
                    q = base + 8 * tt
                    if gi < 4:
                        ops += [f'v_cvt_pk_bf16_f32 v{q+d}, v{q+2*d}, v{q+2*d+1}' for d in range(4)] + [f'v_bfi_b32 v{q+d}, 1, s{S_TAG}, v{q+d}' for d in (0, 2)]
                        ops[-1] += f'\nbuffer_store_dwordx4 {vr(q,4)}, v{PST}, {WS}, s{so} offen offset:{(4 * gi + w) * 128}{sc}'
                    else:
                        ops += [f'v_cvt_pk_bf16_f32 v{q+d}, v{q+2*d}, v{q+2*d+1}' for d in range(2)] + [f'v_bfi_b32 v{q}, 1, s{S_TAG}, v{q}']
                        ops[-1] += f'\nbuffer_store_dwordx2 {vr(q,2)}, v{PST}, {WS}, s{so} offen offset:{(16 + hh) * 128 + 8*tl[8][1]}{sc}'
                return ops
            fq = []; afs = opt.get('afs', 99)
            for gi in range(5):
                base = ACC + 16 * (gi & 1); n = 0
                for k8 in range(8):
                    for tt in tts:
                        if gi == 0: lg.wait((k8, tt))
                        for TT in range(2 if gi < 4 else 1):
                            q = base + 8 * tt + 4 * TT
                            a(f'{MF} {vr(q,4)}, {WOF(2*gi+TT,k8)}, {vr(OF+4*(2*k8+tt),4)}, {"0" if k8 == 0 else vr(q,4)}')
                            n += 1
                            if n == 3 and gi > 0: fq += fin(gi - 1)
                            for _ in range(afs):
                                if fq: a(fq.pop(0))
                    if red and gi == 0 and 2 <= k8 <= 4 and 0 in tts:
                        q3 = k8 - 2
                        a(f'buffer_load_dwordx2 {vr(XV+2*q3,2)}, v{XO2 if q3 == 2 else XO}, {R(XX)}, s{S_Q} offen offset:{128*q3 if q3 < 2 else 0}')
                assert not fq
            for x in fin(4): a(x)
        if afast:
            a(f's_cmp_eq_u32 s{S_LOC}, 0'); a(f's_cbranch_scc1 {L}_ws')
            if split:
                a(f's_cmp_eq_u32 s{S_SEG}, 63'); a(f's_cselect_b32 s{S_T}, s{S_SPL}, 0')
                a(f's_cmp_eq_u32 s{S_T}, 0'); a(f's_cbranch_scc1 {L}_wf')
                a(f's_cmp_eq_u32 s{S_G}, 0'); a(f's_cbranch_scc1 {L}_wh')
                wo_block('', [0])
                if red:
                    a(f's_cmp_ge_u32 s{S_M}, 8'); a(f's_cselect_b32 s{S_OB}, {PA + 8 * PA_SLOT}, s{S_OB}'); a(f's_cselect_b32 s{S_TAG}, 0, s{S_TAG}')
                a(f's_branch {L}_wx')
                a.label(L + '_wh')
                a(f's_mov_b32 s{S_OB}, {PA + 8 * PA_SLOT}'); a(f's_mov_b32 s{S_TAG}, 0')
                wo_block('', [1])
                a(f's_branch {L}_end')
                a.label(L + '_wf')
            wo_block('', [0, 1])
            a(f's_branch {L}_wx')
            a.label(L + '_ws')
        wo_block(' sc1', [0, 1])
        a.label(L + '_wx')
        tk(a, opt, 7)
        if red:
            RA = 96; H = 108; H2 = 116
            def rl(t0):
                for t5 in range(t0, 5):
                    for u in range(4):
                        a(f's_add_u32 s{S_P}, s{S_OB}, {u * 9216}')
                        a(f'buffer_load_dwordx4 {vr(RR+4*(4*t5+u),4)}, v{RB4 if t5 == 4 else RB}, {WS}, s{S_P} offen offset:{512*t5} sc1')
            rl(0)
            tk(a, opt, 8)
            for t5 in range(5):
                LR = f'L_att_r{w}_{t5}'
                a.label(LR)
                a(f's_waitcnt vmcnt({4 * (4 - t5)})')
                z = [RR + 4 * (4 * t5 + u) for u in range(4)]
                for u in range(4): a(f'v_bitop3_b32 v{T+u}, v{z[u]}, v{z[u]+2}, s{S_TAG} bitop3:0x7e')
                a(f'v_or3_b32 v{T}, v{T}, v{T+1}, v{T+2}')
                a(f'v_bitop3_b32 v{T}, v{T}, v{T+3}, 1 bitop3:0xa8')
                a(f'v_cmp_eq_u32 vcc, 1, v{T}')
                a(f's_cbranch_vccz {LR}_x')
                retry(a, LR + '_x')
                rl(t5)
                a(f's_branch {LR}')
                a.label(LR + '_x')
                if t5 == 0:
                    for q in range(3):
                        for d in range(2):
                            a(f'v_lshlrev_b32 v{RA+4*q+2*d}, 16, v{XV+2*q+d}'); a(f'v_and_b32 v{RA+4*q+2*d+1}, 0xffff0000, v{XV+2*q+d}')
                if t5 == 4: tk(a, opt, 9)
                q = RA + 4 * (t5 >> 1)
                for u in range(4): a(f'{MF} {vr(q,4)}, {vr(SHI if t5 & 1 else SLO,4)}, {vr(z[u],4)}, {vr(q,4)}')
            tk(a, opt, 10)
            a(f's_mov_b32 s{S_T}, 0x00ff00ff'); a(f's_mov_b32 s{S_T+1}, 0')
            for i in range(6): a(f'v_cvt_pk_bf16_f32 v{H+i}, v{RA+2*i}, v{RA+2*i+1}')
            for i in (4, 5): a(f'v_cndmask_b32 v{H+i}, 0, v{H+i}, s[{S_T}:{S_T+1}]')
            for i in range(6): a(f'v_lshlrev_b32 v{RA+2*i}, 16, v{H+i}'); a(f'v_and_b32 v{RA+2*i+1}, 0xffff0000, v{H+i}')
            def put(r, base):
                a(f's_add_u32 s{S_P}, s{S_Q}, {base}')
                for d in range(2): a(f'v_permlane16_swap_b32 v{r+d}, v{r+2+d}')
                a(f'buffer_store_dwordx4 {vr(r,4)}, v{XO4}, {WS}, s{S_P} offen sc1')
                a(f'buffer_store_dwordx2 {vr(r+4,2)}, v{XO2}, {WS}, s{S_P} offen sc1')
            put(H, HB)
            a(f'v_add_f32 v{T}, v{RA}, v{RA+1}'); a(f'v_add_f32 v{T+1}, v{RA+2}, v{RA+3}')
            for i in range(4, 12): a(f'v_add_f32 v{T+(i&1)}, v{T+(i&1)}, v{RA+i}')
            a(f'v_add_f32 v{T}, v{T}, v{T+1}')
            allreduce(a, T, T + 1)
            a(f'v_mul_f32 v{T}, 0x{0x3ae38e39:x}, v{T}')
            for i in range(12): a(f'v_sub_f32 v{RA+i}, v{RA+i}, v{T}')
            for i in range(8, 12): a(f'v_cndmask_b32 v{RA+i}, 0, v{RA+i}, s[{S_T}:{S_T+1}]')
            a(f'v_mul_f32 v{T}, v{RA}, v{RA}'); a(f'v_mul_f32 v{T+1}, v{RA+1}, v{RA+1}')
            for i in range(2, 12): a(f'v_fmac_f32 v{T+(i&1)}, v{RA+i}, v{RA+i}')
            a(f'v_add_f32 v{T}, v{T}, v{T+1}')
            allreduce(a, T, T + 1)
            a(f'v_mov_b32 v{T+1}, 0x{0x3727c5ac:x}'); a(f'v_fmac_f32 v{T+1}, 0x{0x3ae38e39:x}, v{T}'); a(f'v_rsq_f32 v{T+1}, v{T+1}')
            for i in range(12): a(f'v_mul_f32 v{RA+i}, v{T+1}, v{RA+i}')
            for i in range(6): a(f'v_cvt_pk_bf16_f32 v{H2+i}, v{RA+2*i}, v{RA+2*i+1}')
            put(H2, XN2)
            tk(a, opt, 11)
        tfirst(a, opt, f's_cmp_lt_u32 s{S_SEG}, {NG}')
        if split:
            a(f's_cmp_eq_u32 s{S_SEG}, 60'); a(f's_cselect_b32 s{S_T}, s{S_SPL}, 0'); a(f's_sub_u32 s{S_SEG}, s{S_SEG}, s{S_T}')
        a(f's_cmp_ge_u32 s{S_SEG}, {64 - NG}'); a(f's_cbranch_scc1 {L}_end')
        if not red: a('s_waitcnt vmcnt(0)')
        qkv(NG)
        a(f's_add_u32 s{S_SEG}, s{S_SEG}, {NG}')
        a(f's_branch {L}')
        a.label(L + '_end')
        finish(a, opt)

def ffn(a, opt):
    DO = 1; XA = 10; L16 = 14; PST = 15; RB = 16; OA = 17; XW = 18; T = 20
    SEL = 28; ACC = [32, 48]; XR = [64, 68, 72, 76]
    AF = 32
    DA = 64
    WG, WU, WD, OUT = S_R0, S_R1, S_R2, S_R3
    ACTL = 40960
    def GU(m, kk): return 80 + 8 * kk + 4 * m
    a.label('L_ffn')
    a(f's_load_dwordx4 s[{WG}:{WG+3}], s[0:1], 64')
    a(f's_load_dwordx4 s[{WD}:{WD+3}], s[0:1], 80')
    a(f's_mov_b32 s{S_SPIN}, 0')
    a(f's_sub_u32 s{S_M}, s{S_ROLE}, 112'); a(f's_mov_b32 s{S_G}, 0')
    for _ in range(2):
        a(f's_cmp_ge_u32 s{S_M}, 36'); a(f's_cselect_b32 s{S_T}, 36, 0'); a(f's_cselect_b32 s{S_T+1}, 1, 0')
        a(f's_sub_u32 s{S_M}, s{S_M}, s{S_T}'); a(f's_add_u32 s{S_G}, s{S_G}, s{S_T+1}')
    F4 = opt.get('f4')
    if F4:
        assert F4 % 3 == 0
        a(f's_cmp_lt_u32 s{S_ROLE}, 36'); a(f's_cselect_b32 s{S_M}, s{S_ROLE}, s{S_M}'); a(f's_cselect_b32 s{S_G}, 3, s{S_G}')
    a(f'v_lshlrev_b32 v{L16}, 4, v0')
    a('s_waitcnt lgkmcnt(0)')
    a(f's_mov_b32 s{WU}, s{WG+2}'); a(f's_mov_b32 s{WU+1}, s{WG+3}'); a(f's_mov_b32 s{OUT}, s{WD+2}'); a(f's_mov_b32 s{OUT+1}, s{WD+3}')
    for r in (WG, WU, WD): srd_fix(a, r, 5308416)
    srd_fix(a, OUT, 2359296)
    if opt.get('wpf'):
        lab = a.newlabel('L_wpf')
        a(f's_cmp_ge_u32 s{S_G}, 3'); a(f's_cbranch_scc1 {lab}')
        a(f's_lshl_b32 s{S_T}, s{S_G}, 3')
        a(f's_load_dwordx2 s[{S_R4}:{S_R4+1}], s[0:1], s{S_T} offset:16')
        a(f's_lshl2_add_u32 s{S_T}, s{S_M}, s{S_WAVE}'); a(f's_lshl_b32 s{S_T}, s{S_T}, 15')
        a(f'v_lshlrev_b32 v{T}, {6 if opt["wpf"] == 64 else 7}, v0')
        a('s_waitcnt lgkmcnt(0)')
        srd_fix(a, S_R4, 4718592)
        for i in range(8 if opt['wpf'] == 64 else 4):
            a(f'buffer_load_dword v70, v{T}, {R(S_R4)}, s{S_T} offen')
            a(f's_add_u32 s{S_T}, s{S_T}, {64 * opt["wpf"]}')
        a.label(lab)
    GA = T + 4; TA = T + 5
    a(f's_mul_i32 s{S_T}, s{S_WAVE}, {16 * 9216}'); a(f's_lshl_b32 s{S_T+1}, s{S_M}, 8'); a(f's_add_u32 s{S_T}, s{S_T}, s{S_T+1}')
    a(f'''
    v_lshrrev_b32 v{T}, 4, v0
    v_mul_u32_u24 v{T}, 9216, v{T}
    v_and_b32 v{T+1}, 15, v0
    v_lshl_add_u32 v{T}, v{T+1}, 4, v{T}
    v_add_u32 v{GA}, s{S_T}, v{T}
    ''')
    a(f's_lshl_b32 s{S_B}, s{S_WAVE}, 12')
    vm = Cnt(a, 'vmcnt', 63)
    def gdma(st):
        for m in range(2):
            for u in range(4):
                a(f's_add_u32 m0, s{S_B}, {(st % 4) * 32768 + m * 16384 + u * 1024}')
                a(f's_mov_b32 s{S_P}, {(64 * st + 4 * u) * 9216}')
                a(f'buffer_load_dwordx4 v{GA}, {R(WU if m else WG)}, s{S_P} offen lds'); vm.issue(st)
    if opt.get('fe_ffn'):
        if opt['fe_ffn'] == 'x': meet(a, T, None, [(GO_X, 1)], 'gx')
        a(f's_mul_i32 s{S_T}, s{S_G}, {2 * PF_SLOT}'); a(f's_mul_i32 s{S_T+1}, s{S_M}, 36864'); a(f's_add_u32 s{S_T}, s{S_T}, s{S_T+1}')
        a(f's_mul_i32 s{S_T+1}, s{S_WAVE}, 9216'); a(f's_add_u32 s{S_T}, s{S_T}, s{S_T+1}')
        fill(a, L16, 32, [(S_T, PF), (S_T, PF + PF_SLOT)])
    if opt.get('gate_ffn'): meet(a, T, None, [({'p': GO_P, 'c': GO_C, 'a': GO_AI}[opt['gate_ffn']], 1)], 'gf')
    if opt.get('fe_ffn'): a('s_waitcnt vmcnt(0)')
    for st in range(4): gdma(st)
    a(f's_lshl_b32 s{S_T}, s{S_WAVE}, 6')
    a(f'''
    v_lshrrev_b32 v{T}, 5, v0
    v_bfe_u32 v{T+1}, v0, 2, 2
    v_lshl_add_u32 v{T}, v{T}, 3, v{T+1}
    v_lshlrev_b32 v{T}, 8, v{T}
    v_bfe_u32 v{T+1}, v0, 4, 1
    v_lshl_add_u32 v{T}, v{T+1}, 5, v{T}
    v_and_b32 v{T+1}, 3, v0
    v_lshl_add_u32 v{T}, v{T+1}, 3, v{T}
    v_add_u32 v{TA}, s{S_T}, v{T}
    v_add_u32 v{TA+1}, 65536, v{TA}
    ''')
    x_consts(a, DO, XA, T)
    for st in range(9):
        vm.wait(st)
        a('s_barrier')
        for k4 in range(4):
            for m in range(2):
                for p in range(2):
                    a(f'ds_read_b64_tr_b16 {ur(GU(m, 4*st+k4) + 2*p, 2)}, v{TA + ((st % 4) >> 1)} offset:{(st % 2) * 32768 + m * 16384 + k4 * 4096 + p * 1024}')
        a('s_waitcnt lgkmcnt(0)')
        if st + 4 < 9:
            a('s_barrier'); gdma(st + 4)
    a('s_barrier')
    th(a, opt, 3)
    a(f's_mul_i32 s{S_B}, s{S_WAVE}, 9216'); a(f's_mul_i32 s{S_OB}, s{S_M}, 147456'); a(f's_add_u32 s{S_OB}, s{S_OB}, s{S_B}')
    for st in range(4): row_stage_dma(a, WD, L16, st, S_OB, vm, 100 + st)
    sel(a, SEL, T, 'dup')
    a(f'''
    v_and_b32 v{T}, 15, v0
    v_lshrrev_b32 v{T+1}, 4, v0
    v_lshlrev_b32 v{T+2}, 6, v{T}
    v_lshl_add_u32 v{T+2}, v{T+1}, 4, v{T+2}
    s_lshl_b32 s{S_T}, s{S_M}, 10
    v_add_u32 v{PST}, s{S_T}, v{T+2}
    v_lshlrev_b32 v{T+2}, 4, v{T}
    v_lshl_add_u32 v{T+2}, v{T+1}, 10, v{T+2}
    s_mul_i32 s{S_T}, s{S_M}, 36864
    s_lshl_b32 s{S_T+1}, s{S_WAVE}, 8
    s_add_u32 s{S_T}, s{S_T}, s{S_T+1}
    v_add_u32 v{RB}, s{S_T}, v{T+2}
    s_cmp_ge_u32 s{S_M}, 18
    s_cselect_b32 s{S_T}, {16 * 1152 - 18 * 64}, 0
    s_lshl_b32 s{S_T+1}, s{S_M}, 6
    s_add_u32 s{S_T}, s{S_T}, s{S_T+1}
    s_mul_i32 s{S_T+1}, s{S_WAVE}, 4608
    s_add_u32 s{S_T}, s{S_T}, s{S_T+1}
    v_lshrrev_b32 v{T+2}, 2, v{T}
    v_mul_u32_u24 v{T+2}, 1152, v{T+2}
    v_and_b32 v{T+3}, 3, v0
    v_lshl_add_u32 v{T+2}, v{T+3}, 4, v{T+2}
    v_lshl_add_u32 v{T+2}, v{T+1}, 3, v{T+2}
    v_add_u32 v{T+2}, s{S_T}, v{T+2}
    v_mov_b32 v{T+3}, 0x{OOB:x}
    v_cmp_gt_u32 vcc, 32, v0
    v_cndmask_b32 v{OA}, v{T+3}, v{T+2}, vcc
    v_add_u32 v{XW}, s{S_B}, v{L16}
    ''')
    a(f'''
    v_lshrrev_b32 v{T}, 5, v0
    v_bfe_u32 v{T+1}, v0, 2, 3
    v_lshl_add_u32 v{T}, v{T}, 4, v{T+1}
    v_mul_u32_u24 v{T}, 1152, v{T}
    v_and_b32 v{T+1}, 3, v0
    v_lshl_add_u32 v{TA}, v{T+1}, 4, v{T}
    v_add_u32 v{TA+1}, {2 * 36864}, v{TA}
    ''')
    for w in range(1, 4):
        a(f's_cmp_eq_u32 s{S_WAVE}, {w}'); a(f's_cbranch_scc1 L_ffn_w{w}')
    vm0 = list(vm.q)
    for w in range(4):
        tl = tiles_of(w)
        def WDF(ti, ks): return 368 + 4 * (ti * 4 + ks)
        a.label(f'L_ffn_w{w}')
        vm.q = list(vm0)
        for st in range(4):
            vm.wait(100 + st)
            a('s_barrier')
            for ti, (P, TT) in enumerate(tl):
                for p in range(2):
                    a(f'ds_read_b64_tr_b16 {ur(WDF(ti, st) + 2*p, 2)}, v{TA + (st >> 1)} offset:{(st % 2) * 36864 + p * 8 * 1152 + P * 64 + TT * 8}')
        a('s_waitcnt lgkmcnt(0)')
        th(a, opt, 4)
        a(f's_mul_i32 s{S_T}, s{S_G}, {2 * PF_SLOT}'); a(f's_mul_i32 s{S_T+1}, s{S_M}, 36864'); a(f's_add_u32 s{S_T}, s{S_T}, s{S_T+1}')
        if not opt.get('fe_ffn'): fill(a, L16, 32, [(S_T, PF + w * 9216), (S_T, PF + PF_SLOT + w * 9216)])
        th(a, opt, 5)
        if F4:
            lab = a.newlabel('L_f4')
            a(f's_cmp_lg_u32 s{S_G}, 3'); a(f's_cbranch_scc1 {lab}')
            meet(a, T, (DB_F4, 36, GO_F4), [(GO_F4, 1), (GO_AI, 1)], 'f4')
            a(f's_mov_b32 s{S_SEG}, {F4 + 3}')
            a(f's_branch {lab}_x')
            a.label(lab)
        meet(a, T, (DB_FI, 108, GO_FI), [(GO_FI, 1), (GO_AI, 1)], 'fi')
        a(f's_mov_b32 s{S_SEG}, s{S_G}')
        if F4: a.label(lab + '_x')
        tstamp(a, opt, 0)
        a(f's_mov_b32 s{S_N}, 0')
        S_SP = S_FP; PB = 19
        a(f's_mov_b32 s{S_SP}, 0')
        a(f'v_min_u32 v{PB}, 7, v0'); a(f'v_mul_u32_u24 v{PB}, 1152, v{PB}')
        if opt.get('vprobe') == 'x': a(f'v_add_u32 v{PB}, {w * 9216}, v{PB}')
        AW = T + 4; HV = 26
        a(f'''
        v_bfe_u32 v{T}, v0, 4, 1
        v_lshlrev_b32 v{T}, 10, v{T}
        v_lshrrev_b32 v{T+1}, 5, v0
        v_lshl_add_u32 v{T}, v{T+1}, 8, v{T}
        v_and_b32 v{T+1}, 15, v0
        v_lshl_add_u32 v{AW}, v{T+1}, 4, v{T}
        ''')
        L = f'L_ffn_l{w}'
        a.label(L)
        a(f's_mul_i32 s{S_OB}, s{S_SEG}, 36864'); a(f's_add_u32 s{S_T+1}, s{S_OB}, {XN2}')
        a(f's_add_u32 s{S_T}, s{S_OB}, {HB + w * 9216}')
        a(f's_bfe_u32 s{S_TAG}, s{S_N}, 0x10001'); a(f's_and_b32 s{S_Q}, s{S_N}, 1')
        a(f's_lshl1_add_u32 s{S_Q}, s{S_G}, s{S_Q}'); a(f's_mul_i32 s{S_Q}, s{S_Q}, {PF_SLOT}'); a(f's_add_u32 s{S_Q}, s{S_Q}, {PF}')
        S_NX = S_FC
        a(f's_cmp_ge_u32 s{S_SEG}, {F4 or 64}'); a(f's_addc_u32 s{S_NX}, s{S_SEG}, 3')
        tk(a, opt, 3)
        XL = 32
        spec = opt.get('fspec')
        if spec:
            a(f's_cmp_eq_u32 s{S_SP}, 0'); a(f's_cbranch_scc1 {L}_reg')
            a('s_waitcnt vmcnt(1)')
            for i in range(9): a(f'ds_read_b128 {vr(XL+4*i,4)}, v{XW} offset:{1024 * i}')
            for i in range(9):
                a(f's_waitcnt lgkmcnt({8 - i})')
                if i == 0: a(f'v_max_u32 v{T}, v{XL}, v{XL+2}')
                else: a(f'v_max3_u32 v{T}, v{T}, v{XL+4*i}, v{XL+4*i+2}')
            a(f'v_cmp_eq_u32 vcc, -1, v{T}')
            tk(a, opt, 4)
            a(f's_cbranch_vccz {L}_xok')
            if opt.get('wacc'): a(f's_add_u32 s{S_TM+26}, s{S_TM+26}, 0x10000')
            a.label(L + '_reg')
        if opt.get('vprobe'):
            LP = L + '_p'
            a.label(LP)
            a(f'buffer_load_dword v{T}, v{PB}, {WS}, s{S_T + (1 if opt["vprobe"] == "x" else 0)} offen sc1')
            a(f's_add_u32 s{S_SPIN}, s{S_SPIN}, 1')
            a(f's_cmp_ge_u32 s{S_SPIN}, {SPIN}')
            a('s_waitcnt vmcnt(0)')
            a(f's_cbranch_scc1 {LP}_x')
            a(f'v_cmp_eq_u32 vcc, -1, v{T}')
            a(f's_cbranch_vccnz {LP}')
            a.label(LP + '_x')
        else: spoll(a, None, None, [(1, f's{S_T}')], 'fh', sentinel=True)
        tk(a, opt, 4)
        tacc(a, opt, 3, 4, 12)
        def xl(g0):
            for i in range(3 * g0, 9): a(f'buffer_load_dwordx4 {vr(XL+4*i,4)}, v{DO+i}, {WS}, s{S_T+1} offen sc1')
        xl(0)
        for g3 in range(3):
            LX = f'L_ffn_x{w}_{g3}'
            a.label(LX)
            z = [XL + 4 * (3 * g3 + u) for u in range(3)]
            for u in range(3):
                a(f's_waitcnt vmcnt({8 - 3 * g3 - u})')
                a(f'ds_write_b128 v{XW}, {vr(z[u],4)} offset:{1024 * (3 * g3 + u)}')
                if u == 0: a(f'v_max_u32 v{T}, v{z[u]}, v{z[u]+2}')
                else: a(f'v_max3_u32 v{T}, v{T}, v{z[u]}, v{z[u]+2}')
            a(f'v_cmp_eq_u32 vcc, -1, v{T}')
            a(f's_cbranch_vccz {LX}_x')
            retry(a, LX + '_x')
            a('s_waitcnt lgkmcnt(0)')
            xl(g3)
            a(f's_branch {LX}')
            a.label(LX + '_x')
        a('s_waitcnt lgkmcnt(0)')
        a.label(L + '_xok')
        a('s_barrier')
        tk(a, opt, 5)
        if opt.get('wst'): a('s_waitcnt lgkmcnt(0)')
        lg = Cnt(a, 'lgkmcnt', 15)
        def rd(kk):
            a(f'ds_read_b128 {vr(XR[kk % 4], 4)}, v{XA + (kk & 3)} offset:{(kk >> 2) * 128}'); lg.issue(kk)
        for kk in range(3): rd(kk)
        a(f's_add_u32 s{S_T}, s{S_OB}, {HB}')
        for kk in range(36):
            lg.wait(kk)
            for m in range(2):
                a(f'{MF32} {vr(ACC[m],16)}, {ur(GU(m,kk),4)}, {vr(XR[kk%4],4)}, {"0" if kk == 0 else vr(ACC[m],16)}')
                if m == 0 and kk + 3 < 36: rd(kk + 3)
            if kk == 8: a(f'buffer_load_dwordx2 {vr(HV,2)}, v{OA}, {WS}, s{S_T} offen sc1')
        g, u = ACC
        tk(a, opt, 6)
        for r in range(16): a(f'v_max_f32 v{g+r}, 0, v{g+r}')
        for b in range(2):
            for r in range(4): a(f'v_pk_mul_f32 {vr(g+8*b+2*r,2)}, {vr(g+8*b+2*r,2)}, {vr(u+8*b+2*r,2)}')
            for d in range(4): a(f'v_cvt_pk_bf16_f32 v{g+8*b+d}, v{g+8*b+2*d}, v{g+8*b+2*d+1}')
            a(f'ds_write_b128 v{AW}, {vr(g+8*b,4)} offset:{ACTL + w * 2048 + b * 512}')
        a('s_waitcnt lgkmcnt(0)')
        a('s_barrier')
        for ks in range(4):
            for tt in range(2):
                a(f'ds_read_b128 {vr(AF+4*(2*ks+tt),4)}, v{L16} offset:{ACTL + ks * 2048 + tt * 1024}'); lg.issue((ks, tt))
        groups = [(gi, tt) for gi in range(5) for tt in range(2)]
        def fin(n):
            gi, tt = groups[n]; q = DA + 8 * (n & 1); P = tl[2 * gi][0]
            a(f's_add_u32 s{S_P}, s{S_Q}, {(tt * 18 + P) * 36864}')
            if gi < 4:
                for d in range(4): a(f'v_cvt_pk_bf16_f32 v{q+d}, v{q+2*d}, v{q+2*d+1}')
                for d in (0, 2): a(f'v_bfi_b32 v{q+d}, 1, s{S_TAG}, v{q+d}')
                a(f'buffer_store_dwordx4 {vr(q,4)}, v{PST}, {WS}, s{S_P} offen {opt.get("fsc", "sc1")}')
            else:
                for d in range(2): a(f'v_cvt_pk_bf16_f32 v{q+d}, v{q+2*d}, v{q+2*d+1}')
                a(f'v_bfi_b32 v{q}, 1, s{S_TAG}, v{q}')
                a(f'buffer_store_dwordx2 {vr(q,2)}, v{PST}, {WS}, s{S_P} offen offset:{8*tl[8][1]} {opt.get("fsc", "sc1")}')
        for n, (gi, tt) in enumerate(groups):
            for ks in range(4):
                if n < 2: lg.wait((ks, tt))
                for TT in range(2 if gi < 4 else 1):
                    q = DA + 8 * (n & 1) + 4 * TT
                    a(f'{MF} {vr(q,4)}, {ur(WDF(2*gi+TT,ks),4)}, {vr(AF+4*(2*ks+tt),4)}, {"0" if ks == 0 else vr(q,4)}')
                if ks == 1 and n > 0: fin(n - 1)
                if spec and ks == 3 and n == opt.get('spn', 7):
                    a(f's_mul_i32 s{S_T+1}, s{S_NX}, 36864'); a(f's_add_u32 s{S_T+1}, s{S_T+1}, {XN2}')
                    for r in range(8): a(f's_load_dword s{S_MK+r}, s[{S_WS}:{S_WS+1}], s{S_T+1} offset:{w * 9216 + r * 1152} glc')
        fin(9)
        tk(a, opt, 7)
        RA = 68; RR = 32
        def pl(g0):
            for u9 in range(3 * g0, 9):
                a(f's_add_u32 s{S_P}, s{S_Q}, {u9 * 4096}')
                a(f'buffer_load_dwordx4 {vr(RR+4*u9,4)}, v{RB}, {WS}, s{S_P} offen sc1')
        if opt.get('fwait') is not None:
            a(f's_waitcnt vmcnt({opt["fwait"]})'); tk(a, opt, 11)
        pl(0)
        tk(a, opt, 8)
        def red(extra):
            for g3 in range(3):
                LF = f'L_ffn_f{w}_{g3}'
                if not extra: a.label(LF)
                a(f's_waitcnt vmcnt({6 - 3 * g3 + extra})')
                z = [RR + 4 * (3 * g3 + u) for u in range(3)]
                for u in range(3): a(f'v_bitop3_b32 v{T+u}, v{z[u]}, v{z[u]+2}, s{S_TAG} bitop3:0x7e')
                a(f'v_or3_b32 v{T}, v{T}, v{T+1}, v{T+2}')
                a(f'v_and_b32 v{T}, 1, v{T}')
                if g3 == 0:
                    a(f'v_cmp_eq_u32 vcc, -1, v{HV}'); a(f'v_cndmask_b32 v{T}, v{T}, 1, vcc')
                a(f'v_cmp_eq_u32 vcc, 1, v{T}')
                if extra: a(f's_cbranch_vccnz {LF}_r')
                else:
                    a(f's_cbranch_vccz {LF}_x')
                    a.label(LF + '_r')
                    if opt.get('wacc'): a(f's_add_u32 s{S_TM+26}, s{S_TM+26}, 0x10000')
                    retry(a, LF + '_x')
                    if g3 == 0: a(f'buffer_load_dwordx2 {vr(HV,2)}, v{OA}, {WS}, s{S_T} offen sc1')
                    pl(g3)
                    a(f's_branch {LF}')
                    a.label(LF + '_x')
                if g3 == 0:
                    for d in range(2): a(f'v_lshlrev_b32 v{RA+2*d}, 16, v{HV+d}'); a(f'v_and_b32 v{RA+2*d+1}, 0xffff0000, v{HV+d}')
                if g3 == 2: tk(a, opt, 9)
                for u in range(3): a(f'{MF} {vr(RA,4)}, {vr(SEL,4)}, {vr(z[u],4)}, {vr(RA,4)}')
        if spec:
            a('s_waitcnt lgkmcnt(0)')
            for r in range(1, 8): a(f's_max_u32 s{S_MK}, s{S_MK}, s{S_MK+r}')
            a(f's_cmp_lt_u32 s{S_NX}, 64'); a(f's_cselect_b32 s{S_MK}, s{S_MK}, -1')
            a(f's_cmp_lg_u32 s{S_MK}, -1'); a(f's_cselect_b32 s{S_SP}, 1, 0')
            a(f's_cbranch_scc0 L_ffn_f{w}_0')
            x_dma(a, DO, S_T + 1, S_B)
            red(9)
            a(f's_branch {L}_out')
        red(0)
        a.label(L + '_out')
        tk(a, opt, 10)
        for d in range(2): a(f'v_cvt_pk_bf16_f32 v{RA+d}, v{RA+2*d}, v{RA+2*d+1}')
        a(f'buffer_store_dwordx2 {vr(RA,2)}, v{OA}, {R(OUT)}, s{S_OB} offen')
        tfirst(a, opt, f's_cmp_lt_u32 s{S_SEG}, 3')
        a(f's_mov_b32 s{S_SEG}, s{S_NX}'); a(f's_add_u32 s{S_N}, s{S_N}, 1')
        a(f's_cmp_lt_u32 s{S_SEG}, 64'); a(f's_cbranch_scc1 {L}')
        if opt.get('times'): a('s_waitcnt vmcnt(0)')
        finish(a, opt)

def roles(a, opt):
    if opt.get('xcc'): a(f's_getreg_b32 s{S_TM+24}, hwreg(HW_REG_XCC_ID)'); a(f's_getreg_b32 s{S_TM+26}, hwreg(HW_REG_HW_ID)')
    if opt.get('wacc'): a(f's_mov_b32 s{S_TM+24}, 0'); a(f's_mov_b32 s{S_TM+26}, 0')
    a(f's_cmp_ge_u32 s{S_ROLE}, 112'); a('s_cbranch_scc1 L_ffn')
    a(f's_cmp_ge_u32 s{S_ROLE}, 48'); a('s_cbranch_scc1 L_att')
    proj(a, opt); att(a, opt); ffn(a, opt)
```

```python
import sys, json
sys.path.insert(0, 'gen')
from asm import *
from lay import *
import os, importlib, workers
chain = importlib.import_module(os.environ.get('CHAIN', 'chain3'))
NAME = 'sequential_preLN__memory_aug_recurrent_mem_tr__glu_gated_reglu__prompt'

def build(opt):
    a = Asm(); a.timed = opt.get('timed', True)
    DBG = f's[{S_DBG}:{S_DBG+3}]'; WS = f's[{S_WS}:{S_WS+3}]'
    a(f's_cmp_ge_u32 s{S_WG}, 256'); a('s_cbranch_scc1 L_exit')
    if opt.get('times', False) or 'dly' in opt: a('s_memrealtime s[62:63]')
    a(f's_load_dwordx4 s[{S_DBG}:{S_DBG+3}], s[0:1], 96')
    a(f's_getreg_b32 s{S_T}, hwreg(HW_REG_XCC_ID)')
    a(f'v_readfirstlane_b32 s{S_WAVE}, v0')
    a(f's_and_b32 s{S_T}, s{S_T}, 15')
    a(f's_lshr_b32 s{S_WAVE}, s{S_WAVE}, 6')
    a('v_and_b32 v0, 63, v0')
    a('s_waitcnt lgkmcnt(0)')
    a(f's_mov_b32 s{S_WS}, s{S_DBG+2}'); a(f's_and_b32 s{S_WS+1}, s{S_DBG+3}, 0xffff')
    a(f's_mov_b32 s{S_WS+2}, {WS_BYTES}'); a(f's_mov_b32 s{S_WS+3}, 0x20000')
    a(f's_and_b32 s{S_DBG+1}, s{S_DBG+1}, 0xffff'); a(f's_mov_b32 s{S_DBG+2}, 256'); a(f's_mov_b32 s{S_DBG+3}, 0x20000')
    if opt.get('force_slow'): a(f's_or_b32 s{S_T}, s{S_T}, {opt["force_slow"]}')
    if opt.get('cpf'):
        nsh = opt['cpf']; per = 1024 // nsh // 2
        a(f's_cmp_lt_u32 s{S_WAVE}, 2'); a('s_cbranch_scc1 L_nocpf')
        a(f's_getpc_b64 s[{S_T+2}:{S_T+3}]')
        a.label('L_pc')
        a(f's_lshr_b32 s{S_T+1}, s{S_WG}, 3'); a(f's_and_b32 s{S_T+1}, s{S_T+1}, {nsh - 1}')
        a(f's_lshl1_add_u32 s{S_T+1}, s{S_T+1}, s{S_WAVE}'); a(f's_sub_u32 s{S_T+1}, s{S_T+1}, 2')
        a(f's_mul_i32 s{S_T+1}, s{S_T+1}, {per * 128}')
        a('v_lshlrev_b32 v1, 7, v0'); a(f'v_add_u32 v1, s{S_T+1}, v1')
        a(f's_mov_b32 s{S_T+1}, L_code_end-L_pc-4')
        for i in range(per // 64):
            a(f'v_min_u32 v2, s{S_T+1}, v1')
            a(f'v_mov_b32 v3, s{S_T+3}')
            a(f'v_add_co_u32 v2, vcc, s{S_T+2}, v2'); a('v_addc_co_u32 v3, vcc, 0, v3, vcc')
            a(f'global_load_dword v{4 + i}, v[2:3], off')
            a('v_add_u32 v1, 8192, v1')
        a('s_waitcnt vmcnt(0)')
        a('s_branch L_noticket')
        a.label('L_nocpf')
    a(f's_cmp_lg_u32 s{S_WAVE}, 1'); a('s_cbranch_scc1 L_nozero')
    a(f's_cmp_lt_u32 s{S_WG}, {256 - 2 * NZ}'); a('s_cbranch_scc1 L_noticket')
    a(f's_bitcmp0_b32 s{S_WG}, 0'); a('s_cbranch_scc1 L_noticket')
    a('v_mov_b64 v[4:5], 0'); a('v_mov_b64 v[6:7], 0'); a('v_lshlrev_b32 v3, 4, v0')
    a(f's_sub_u32 s{S_T+2}, s{S_WG}, {257 - 2 * NZ}'); a(f's_lshl_b32 s{S_T+2}, s{S_T+2}, 9')
    a(f'buffer_store_dwordx4 v[4:7], v3, {WS}, s{S_T+2} offen sc1')
    a('v_mov_b32 v1, 1')
    a('s_waitcnt vmcnt(0)')
    a('s_mov_b64 exec, 1')
    a(f'buffer_atomic_add v1, off, {DBG}, 0 offset:{DB_Z}')
    a('s_mov_b64 exec, -1')
    a('s_branch L_noticket')
    a.label('L_nozero')
    if opt.get('even', True):
        x1 = opt.get('x1', 'att')
        a(f's_cmp_lg_u32 s{S_WAVE}, 0'); a('s_cbranch_scc1 L_noticket')
        a('v_mov_b32 v2, 0')
        a('s_mov_b64 exec, 1')
        a('v_mov_b32 v1, 1')
        a(f's_and_b32 s{S_T}, s{S_T}, 7')
        a(f's_lshl_b32 s{S_T+2}, s{S_T}, 2'); a(f's_add_u32 s{S_T+2}, s{S_T+2}, {DB_CX - 8}')
        a(f's_cmp_eq_u32 s{S_T}, 1'); a(f's_cselect_b32 s{S_T+2}, {DB_C1}, s{S_T+2}')
        a(f's_cmp_eq_u32 s{S_T}, 0'); a(f's_cselect_b32 s{S_T+2}, {DB_CT}, s{S_T+2}')
        a(f'buffer_atomic_add v1, off, {DBG}, s{S_T+2} sc0')
        a(f's_lshl_b32 s{S_T+2}, s{S_T}, 16')
        a('s_waitcnt vmcnt(0)')
        a(f'v_readfirstlane_b32 s{S_T+1}, v1')
        a(f'v_or_b32 v1, s{S_T+2}, v1')
        a(f's_cmp_lt_u32 s{S_T+1}, 32'); a('s_cbranch_scc1 L_ticket')
        a('v_mov_b32 v1, 1')
        a(f'buffer_atomic_add v1, off, {DBG}, 0 offset:{DB_WT} sc0')
        a('s_waitcnt vmcnt(0)')
        a('v_or_b32 v1, 0x80000, v1')
        a.label('L_ticket')
        a('ds_write_b32 v2, v1')
        a('s_waitcnt lgkmcnt(0)')
        a('s_mov_b64 exec, -1')
        a.label('L_noticket')
        a('s_barrier')
        a('v_mov_b32 v2, 0'); a('ds_read_b32 v1, v2'); a('s_waitcnt lgkmcnt(0)')
        a(f'v_readfirstlane_b32 s{S_T+1}, v1')
        a('s_barrier')
        a(f's_and_b32 s{S_ROLE}, s{S_T+1}, 0xffff')
        a(f's_lshr_b32 s{S_T}, s{S_T+1}, 16')
        a(f's_cmp_lt_u32 s{S_T}, 8'); a('s_cbranch_scc1 L_drawn')
        a(f's_mov_b32 s{S_T+3}, 0')
        a('v_lshlrev_b32 v2, 2, v0'); a(f'v_add_u32 v2, {DB_CX - 8}, v2')
        a(f'v_mov_b32 v3, {DB_CT}'); a('v_cmp_eq_u32 vcc, 0, v0'); a('v_cndmask_b32 v2, v2, v3, vcc')
        a(f'v_mov_b32 v3, {DB_C1}'); a('v_cmp_eq_u32 vcc, 1, v0'); a('v_cndmask_b32 v2, v2, v3, vcc')
        a(f'v_mov_b32 v3, {DB_WT}'); a('v_cmp_lt_u32 vcc, 7, v0'); a('v_cndmask_b32 v2, v2, v3, vcc')
        a.label('L_spare')
        a(f'buffer_load_dword v1, v2, {DBG}, 0 offen sc1')
        a(f's_add_u32 s{S_T+3}, s{S_T+3}, 1')
        a('s_waitcnt vmcnt(0)')
        a(f'v_readlane_b32 s{S_T+1}, v1, 8')
        a('v_min_u32 v1, 32, v1')
        a(f's_cmp_ge_u32 s{S_T+3}, {chain.SPIN}'); a('s_cbranch_scc1 L_exit')
        for k in range(8): a(f'v_readlane_b32 s{S_T+2}, v1, {k}'); a(f's_add_u32 s{S_T+1}, s{S_T+1}, s{S_T+2}')
        a(f's_cmp_lt_u32 s{S_T+1}, 256'); a('s_cbranch_scc1 L_spare')
        for k in range(8):
            a(f'v_readlane_b32 s{S_T+2}, v1, {k}')
            a(f's_mov_b32 s{S_T}, {k}')
            a(f's_add_u32 s{S_ROLE}, s{S_ROLE}, s{S_T+2}')
            a(f's_cmp_lt_u32 s{S_ROLE}, 32'); a('s_cbranch_scc1 L_drawn')
            a(f's_sub_u32 s{S_ROLE}, s{S_ROLE}, 32')
        a('s_branch L_exit')
        a.label('L_drawn')
        a(f's_cmp_eq_u32 s{S_T}, 0'); a('s_cbranch_scc1 L_chain')
        a(f's_mul_i32 s{S_T+1}, s{S_ROLE}, 6'); a(f's_add_u32 s{S_T+1}, s{S_T+1}, s{S_T}'); a(f's_sub_u32 s{S_T+1}, s{S_T+1}, 2')
        a(f's_sub_u32 s{S_ROLE}, 223, s{S_ROLE}')
        a(f's_cmp_eq_u32 s{S_T}, 1'); a(f's_cselect_b32 s{S_ROLE}, s{S_ROLE}, s{S_T+1}')
    else:
        x1 = opt.get('x1', 'att')
        a(f's_cmp_lg_u32 s{S_WAVE}, 0'); a('s_cbranch_scc1 L_noticket')
        a('v_mov_b32 v2, 0')
        a('s_mov_b64 exec, 1')
        a(f's_cmp_gt_u32 s{S_T}, {1 if x1 else 0}'); a('s_cbranch_scc1 L_wticket')
        a('v_mov_b32 v1, 1')
        a(f's_mul_i32 s{S_T+2}, s{S_T}, {DB_C1 - DB_CT}')
        a(f'buffer_atomic_add v1, off, {DBG}, s{S_T+2} offset:{DB_CT} sc0')
        a(f's_add_u32 s{S_T+2}, s{S_T}, 1'); a(f's_lshl_b32 s{S_T+2}, s{S_T+2}, 16')
        a('s_waitcnt vmcnt(0)')
        a(f'v_readfirstlane_b32 s{S_T+1}, v1')
        a(f'v_or_b32 v1, s{S_T+2}, v1')
        a(f's_cmp_lt_u32 s{S_T+1}, 32'); a('s_cbranch_scc1 L_ticket')
        a.label('L_wticket')
        a('v_mov_b32 v1, 1')
        a(f'buffer_atomic_add v1, off, {DBG}, 0 offset:{DB_WT} sc0')
        a('s_waitcnt vmcnt(0)')
        a.label('L_ticket')
        a('ds_write_b32 v2, v1')
        a('s_waitcnt lgkmcnt(0)')
        a('s_mov_b64 exec, -1')
        a.label('L_noticket')
        a('s_barrier')
        a('v_mov_b32 v2, 0'); a('ds_read_b32 v1, v2'); a('s_waitcnt lgkmcnt(0)')
        a(f'v_readfirstlane_b32 s{S_T+1}, v1')
        a('s_barrier')
        a(f's_and_b32 s{S_ROLE}, s{S_T+1}, 0xffff')
        a(f's_bitcmp1_b32 s{S_T+1}, 16'); a('s_cbranch_scc1 L_chain')
        a(f's_bitcmp0_b32 s{S_T+1}, 17'); a('s_cbranch_scc1 L_front')
        a(f's_sub_u32 s{S_ROLE}, 223, s{S_ROLE}')
        a('s_branch L_list')
        a.label('L_front')
        a(f's_cmp_lt_u32 s{S_ROLE}, {192 if x1 else 220}'); a('s_cbranch_scc1 L_list')
        a(f's_mov_b32 s{S_T+3}, 0')
        a.label('L_spare')
        a(f'buffer_load_dword v1, off, {DBG}, 0 offset:{DB_CT} sc1')
        a(f'buffer_load_dword v2, off, {DBG}, 0 offset:{DB_WT} sc1')
        a(f'buffer_load_dword v3, off, {DBG}, 0 offset:{DB_C1} sc1')
        a(f's_add_u32 s{S_T+3}, s{S_T+3}, 1')
        a('s_waitcnt vmcnt(0)')
        a(f'v_readfirstlane_b32 s{S_T+2}, v1'); a(f'v_readfirstlane_b32 s{S_T+1}, v2'); a(f'v_readfirstlane_b32 s{S_T}, v3')
        a(f's_cmp_ge_u32 s{S_T+3}, {chain.SPIN}'); a('s_cbranch_scc1 L_exit')
        a(f's_min_u32 s{S_T+2}, s{S_T+2}, 32'); a(f's_min_u32 s{S_T}, s{S_T}, 32')
        a(f's_add_u32 s{S_T+1}, s{S_T+1}, s{S_T+2}'); a(f's_add_u32 s{S_T+1}, s{S_T+1}, s{S_T}')
        a(f's_cmp_lt_u32 s{S_T+1}, 256'); a('s_cbranch_scc1 L_spare')
        a(f's_sub_u32 s{S_T}, 224, s{S_T}')
        a(f's_cmp_lt_u32 s{S_ROLE}, s{S_T}'); a('s_cbranch_scc1 L_list')
        a(f's_sub_u32 s{S_ROLE}, s{S_ROLE}, s{S_T}')
        a(f's_add_u32 s{S_ROLE}, s{S_ROLE}, s{S_T+2}')
        a(f's_cmp_lt_u32 s{S_ROLE}, 32'); a('s_cbranch_scc1 L_chain')
        a('s_branch L_exit')
    a.label('L_list')
    if x1 == 'att2':
        a(f's_cmp_lt_u32 s{S_ROLE}, 48'); a('s_cbranch_scc1 L_roles')
        a(f's_cmp_lt_u32 s{S_ROLE}, 80'); a(f's_cselect_b32 s{S_T}, 16, 32')
        a(f's_cmp_lt_u32 s{S_ROLE}, 192'); a(f's_cselect_b32 s{S_T}, s{S_T}, -144')
        a(f's_cmp_lt_u32 s{S_ROLE}, 208'); a(f's_cselect_b32 s{S_T}, s{S_T}, -112')
        a(f's_add_u32 s{S_ROLE}, s{S_ROLE}, s{S_T}')
    a(f's_cmp_ge_u32 s{S_ROLE}, 220'); a('s_cbranch_scc1 L_exit')
    if x1 == 'att':
        a(f's_cmp_lt_u32 s{S_ROLE}, 84'); a('s_cbranch_scc1 L_roles')
        a(f's_cmp_lt_u32 s{S_ROLE}, 192'); a(f's_cselect_b32 s{S_T}, 28, -108')
        a(f's_add_u32 s{S_ROLE}, s{S_ROLE}, s{S_T}')
    a('s_branch L_roles')
    a.label('L_exit')
    a('s_endpgm')
    a.label('L_roles')
    for _ in range(opt.get('pad', 0)): a('s_nop 0')
    if opt.get('flags'): workers.roles(a, opt)
    else: a('s_endpgm')
    chain.entry(a, opt)
    a.label('L_code_end')
    n = a.fix(verbose=opt.get('verbose', False))
    head = open('cdna_kernels/' + NAME + '.s.ref').read().split('\n')
    hdr = [l for l in head if l.startswith(';') and '@launch' not in l]
    hdr = hdr[:[i for i, l in enumerate(hdr) if 'Override launch' in l][0]]
    out = '\n'.join(hdr) + '\n; @launch grid=(256,1,1) block=(256,1,1) lds=163840\n'
    out += f'''.amdgcn_target "amdgcn-amd-amdhsa--gfx950"
.text
.globl {NAME}_kernel
.p2align 8
.type {NAME}_kernel,@function
{NAME}_kernel:
''' + a.text() + f'''.section .rodata,"a"
.p2align 6
.amdhsa_kernel {NAME}_kernel
  .amdhsa_next_free_vgpr 512
  .amdhsa_next_free_sgpr 102
  .amdhsa_accum_offset 256
  .amdhsa_group_segment_fixed_size 0
  .amdhsa_kernarg_size 112
  .amdhsa_user_sgpr_count 2
  .amdhsa_user_sgpr_kernarg_segment_ptr 1
  .amdhsa_system_sgpr_workgroup_id_x 1
.end_amdhsa_kernel
'''
    return out

if __name__ == '__main__':
    opt = json.loads(sys.argv[2]) if len(sys.argv) > 2 else {}
    open(sys.argv[1], 'w').write(build(opt))
```

```python
from asm import *
from lay import *
SPIN = 1 << 18
S_SEG = 40; S_SPIN = 50; S_P = 51; S_Q = 41; S_B = 42; S_M = 43; S_G = 44; S_OB = 45
S_C = 46
S_MK = 52
S_TM = 64
WS = f's[{S_WS}:{S_WS+3}]'; DBG = f's[{S_DBG}:{S_DBG+3}]'
MF32 = 'v_mfma_f32_32x32x16_bf16'; MF = 'v_mfma_f32_16x16x32_bf16'; MH = 'v_mfma_f32_16x16x16_bf16'
def R(i): return f's[{i}:{i+3}]'

def srd_fix(a, r, nbytes):
    a(f's_and_b32 s{r+1}, s{r+1}, 0xffff'); a(f's_mov_b32 s{r+2}, {nbytes}'); a(f's_mov_b32 s{r+3}, 0x20000')

def poll(a, vaddr, srd, soff, sval, tmp, name, imm=0):
    lab = a.newlabel('L_' + name)
    a.label(lab)
    if vaddr is None: a(f'buffer_load_dword v{tmp}, off, {srd}, {soff} offset:{imm} sc1')
    else: a(f'buffer_load_dword v{tmp}, v{vaddr}, {srd}, {soff} offen offset:{imm} sc1')
    a(f's_add_u32 s{S_SPIN}, s{S_SPIN}, 1')
    a(f's_cmp_ge_u32 s{S_SPIN}, {SPIN}')
    a('s_waitcnt vmcnt(0)')
    a(f's_cbranch_scc1 {lab}_x')
    a(f'v_cmp_ge_u32 vcc, {sval}, v{tmp}')
    a(f's_cbranch_vccnz {lab}')
    a.label(lab + '_x')

S_FP = 48; S_FC = 49; S_TAG = 60; S_SL = 61; S_FA = 92
S_LOC = 39; S_SPL = 38; S_N = 95; S_FV = 96
def spoll(a, cache, need, loads, name, sentinel=False):
    lab = a.newlabel('L_' + name)
    if not sentinel: a(f's_cmp_ge_u32 s{cache}, {need}'); a(f's_cbranch_scc1 {lab}_x')
    a.label(lab)
    r = S_FV; regs = []
    for n, off in loads:
        a(f's_load_dword{"" if n == 1 else "x%d" % n} {sr(r, n)}, s[{S_WS}:{S_WS+1}], {off} glc')
        regs += list(range(r, r + n)); r += n
    a(f's_add_u32 s{S_SPIN}, s{S_SPIN}, 1')
    a(f's_cmp_ge_u32 s{S_SPIN}, {SPIN}'); a(f's_cbranch_scc1 {lab}_y')
    a('s_waitcnt lgkmcnt(0)')
    if sentinel:
        a(f's_cmp_eq_u32 s{S_FV}, -1')
    else:
        if len(regs) == 1: a(f's_mov_b32 s{cache}, s{regs[0]}')
        else:
            a(f's_min_u32 s{cache}, s{regs[0]}, s{regs[1]}')
            for x in regs[2:]: a(f's_min_u32 s{cache}, s{cache}, s{x}')
        a(f's_cmp_lt_u32 s{cache}, {need}')
    a(f's_cbranch_scc1 {lab}')
    a.label(lab + '_y')
    a('s_waitcnt lgkmcnt(0)')
    a.label(lab + '_x')

def dpoll(a, T, words, name):
    for off, need in words: poll(a, None, DBG, 0, str(need - 1), T, name, off)

def count(a, T, cnt, total, go):
    lab = a.newlabel('L_cnt')
    a(f'v_mov_b32 v{T}, 1'); a('s_mov_b64 exec, 1')
    a(f'buffer_atomic_add v{T}, off, {DBG}, 0 offset:{cnt} sc0')
    a('s_waitcnt vmcnt(0)')
    a(f'v_readfirstlane_b32 s{S_P}, v{T}')
    a(f'v_mov_b32 v{T}, 1')
    a(f's_cmp_lg_u32 s{S_P}, {total - 1}'); a(f's_cbranch_scc1 {lab}')
    a(f'buffer_store_dword v{T}, off, {DBG}, 0 offset:{go} sc1')
    a.label(lab)
    a('s_mov_b64 exec, -1')

def meet(a, T, cnt, words, name):
    lab = a.newlabel('L_meet')
    if cnt:
        a('s_waitcnt vmcnt(0)')
        a('s_barrier')
    a(f's_cmp_lg_u32 s{S_WAVE}, 0'); a(f's_cbranch_scc1 {lab}')
    if cnt: count(a, T, *cnt)
    dpoll(a, T, words, name)
    a.label(lab)
    if words: a('s_barrier')

def fill(a, L16, T, sbases):
    a(f'v_mov_b64 {vr(T,2)}, -1'); a(f'v_mov_b64 {vr(T+2,2)}, -1')
    for sb, base in sbases:
        for i in range(9):
            if i % 4 == 0: a(f's_add_u32 s{S_P}, s{sb}, {base + i * 1024}')
            a(f'buffer_store_dwordx4 {vr(T,4)}, v{L16}, {WS}, s{S_P} offen offset:{(i & 3) * 1024} sc1')

def retry(a, lab_ok):
    a(f's_add_u32 s{S_SPIN}, s{S_SPIN}, 1')
    a(f's_cmp_ge_u32 s{S_SPIN}, {SPIN}'); a(f's_cbranch_scc1 {lab_ok}')

def tstamp(a, opt, i):
    if opt.get('times'): a(f's_memrealtime s[{S_TM+2*i}:{S_TM+2*i+1}]'); a('s_waitcnt lgkmcnt(0)')
def tk(a, opt, i):
    if opt.get('wst'): a(f's_memrealtime s[{S_TM+2*i}:{S_TM+2*i+1}]')
def tacc(a, opt, i, j, k):
    if opt.get('wacc'):
        a('s_waitcnt lgkmcnt(0)'); a(f's_sub_u32 s{S_TM+2*i+1}, s{S_TM+2*j}, s{S_TM+2*i}'); a(f's_add_u32 s{S_TM+2*k}, s{S_TM+2*k}, s{S_TM+2*i+1}')
        a(f's_cmp_gt_u32 s{S_TM+2*i+1}, {opt["wacc"]}'); a(f's_addc_u32 s{S_TM+2*k+2}, s{S_TM+2*k+2}, 0')
def th(a, opt, i):
    if opt.get('hst'): a(f's_memrealtime s[{S_TM+2*i}:{S_TM+2*i+1}]'); a('s_waitcnt lgkmcnt(0)')
def tfirst(a, opt, first_cond):
    if opt.get('times'):
        lab = a.newlabel('L_tf'); a(first_cond); a(f's_cbranch_scc0 {lab}'); tstamp(a, opt, 1); a.label(lab)
def finish(a, opt):
    if opt.get('times'):
        tstamp(a, opt, 2)
        a(f's_add_u32 s{S_T}, s{S_ROLE}, 32'); a(f's_lshl_b32 s{S_T}, s{S_T}, 2'); a(f's_add_u32 s{S_T}, s{S_T}, s{S_WAVE}')
        a(f's_lshl_b32 s{S_T}, s{S_T}, 6'); a(f's_add_u32 s{S_T}, s{S_T}, {TIMES}')
        for i, r in enumerate([62] + [S_TM + 2 * k for k in range(14)]):
            a(f'v_mov_b32 v1, s{r}'); a(f'buffer_store_dword v1, off, {WS}, s{S_T} offset:{4*i}')
        if opt.get('dbgt'):
            a('s_mov_b64 exec, 1')
            a('s_not_b32 s63, s62')
            for r, o in ((63, 32), (62, 48), (S_TM + 4, 44), (S_TM, 52), (S_TM + 2, 56)):
                a(f'v_mov_b32 v1, s{r}'); a(f'buffer_atomic_umax v1, off, {DBG}, 0 offset:{o}')
    a('s_endpgm')

def x_consts(a, DO, XA, T):
    a(f's_mul_i32 s{S_T}, s{S_WAVE}, 576')
    a(f's_mov_b32 s{S_T+1}, 58255')
    for i in range(9):
        a(f'''
        v_add_u32 v{T}, s{S_T}, v0
        v_add_u32 v{T}, {64*i}, v{T}
        v_mul_lo_u32 v{T+1}, v{T}, s{S_T+1}
        v_lshrrev_b32 v{T+1}, 22, v{T+1}
        v_mul_u32_u24 v{T+2}, 72, v{T+1}
        v_sub_u32 v{T+2}, v{T}, v{T+2}
        v_bfe_u32 v{T+3}, v{T+1}, 1, 3
        v_xor_b32 v{T+2}, v{T+2}, v{T+3}
        v_mul_u32_u24 v{T+1}, 1152, v{T+1}
        v_lshl_add_u32 v{DO+i}, v{T+2}, 4, v{T+1}
        ''')
    a(f'''
    v_and_b32 v{T}, 31, v0
    v_lshrrev_b32 v{T+1}, 5, v0
    v_bfe_u32 v{T+2}, v{T}, 1, 3
    v_mul_u32_u24 v{T}, 1152, v{T}
    ''')
    for m in range(4):
        a(f'v_add_u32 v{T+3}, {2*m}, v{T+1}'); a(f'v_xor_b32 v{T+3}, v{T+3}, v{T+2}'); a(f'v_lshl_add_u32 v{XA+m}, v{T+3}, 4, v{T}')
assert all((x * 58255) >> 22 == x // 72 for x in range(2304))

def x_dma(a, DO, soff, sbuf):
    for i in range(9):
        if i == 0: a(f's_mov_b32 m0, s{sbuf}')
        else: a(f's_add_u32 m0, s{sbuf}, {1024*i}')
        a(f'buffer_load_dwordx4 v{DO+i}, {WS}, s{soff} offen sc1 lds')

def sel(a, dst, T, mode):
    a(f'v_and_b32 v{T}, 15, v0')
    if mode == 'hi': a(f'v_xor_b32 v{T}, 8, v{T}')
    if mode == 'dup': a(f'v_and_b32 v{T}, 7, v{T}')
    a(f'v_and_b32 v{T+1}, 1, v{T}'); a(f'v_lshlrev_b32 v{T+1}, 4, v{T+1}')
    a(f'v_mov_b32 v{T+2}, 0x3f80'); a(f'v_lshlrev_b32 v{T+2}, v{T+1}, v{T+2}')
    a(f'v_lshrrev_b32 v{T}, 1, v{T}')
    for d in range(4):
        a(f'v_cmp_eq_u32 vcc, {d}, v{T}'); a(f'v_cndmask_b32 v{dst+d}, 0, v{T+2}, vcc')

def proj(a, opt):
    DO = 1; XA = 10; ST = 14; TA = 15; ACC = [16, 32]; XR = [48, 52, 56, 60]; T = 64; FV = 70
    def W(kk, cb): return ur(224 + 8 * kk + 4 * cb, 4)
    a.label('L_proj')
    a(f's_load_dwordx4 s[{S_R1}:{S_R1+3}], s[0:1], 16')
    a(f's_load_dwordx2 s[{S_R2}:{S_R2+1}], s[0:1], 32')
    a(f's_mov_b32 s{S_SPIN}, 0')
    a('s_waitcnt lgkmcnt(0)')
    a(f's_and_b32 s{S_T+2}, s{S_WAVE}, 1')
    a(f's_cmp_lt_u32 s{S_ROLE}, 32'); a('s_cbranch_scc1 L_proj_kv')
    a(f's_mov_b32 s{S_R0}, s{S_R1}'); a(f's_mov_b32 s{S_R0+1}, s{S_R1+1}')
    a(f's_sub_u32 s{S_T}, s{S_ROLE}, 32'); a(f's_lshl_b32 s{S_T}, s{S_T}, 1'); a(f's_lshr_b32 s{S_T+1}, s{S_WAVE}, 1'); a(f's_add_u32 s{S_T}, s{S_T}, s{S_T+1}')
    a(f's_mov_b32 s{S_OB}, {QX}'); a(f's_mov_b32 s{S_G}, 0')
    a('s_branch L_proj_j')
    a.label('L_proj_kv')
    a(f's_mov_b32 s{S_T}, s{S_ROLE}')
    a(f's_cmp_ge_u32 s{S_WAVE}, 2'); a('s_cbranch_scc1 L_proj_v')
    a(f's_mov_b32 s{S_R0}, s{S_R1+2}'); a(f's_mov_b32 s{S_R0+1}, s{S_R1+3}')
    a(f's_mov_b32 s{S_OB}, {KX}'); a(f's_mov_b32 s{S_G}, 0')
    a('s_branch L_proj_j')
    a.label('L_proj_v')
    a(f's_mov_b32 s{S_R0}, s{S_R2}'); a(f's_mov_b32 s{S_R0+1}, s{S_R2+1}')
    a(f's_mov_b32 s{S_OB}, {VX}'); a(f's_mov_b32 s{S_G}, 1')
    a.label('L_proj_j')
    srd_fix(a, S_R0, 4718592)
    a(f's_lshl_b32 s{S_T+1}, s{S_T}, 13'); a(f's_add_u32 s{S_OB}, s{S_OB}, s{S_T+1}')
    a(f's_add_u32 s{S_T+3}, s{S_G}, 11'); a(f's_lshl_b32 s{S_T+1}, s{S_T+2}, s{S_T+3}'); a(f's_add_u32 s{S_OB}, s{S_OB}, s{S_T+1}')
    a(f's_lshl_b32 s{S_T}, s{S_T}, 8'); a(f's_lshl_b32 s{S_T+2}, s{S_T+2}, 7'); a(f's_add_u32 s{S_T}, s{S_T}, s{S_T+2}')
    a(f's_lshl_b32 s{S_B}, s{S_WAVE}, 15')
    a(f'''
    v_lshrrev_b32 v{T}, 3, v0
    v_and_b32 v{T+1}, 7, v0
    v_lshlrev_b32 v{T}, 13, v{T}
    v_lshl_add_u32 v{T}, v{T+1}, 4, v{T}
    v_add_u32 v{FV+1}, s{S_T}, v{T}
    ''')
    vm = Cnt(a, 'vmcnt', 63)
    def dma(i):
        a(f's_add_u32 m0, s{S_B}, {(i % 32) * 1024}'); a(f's_mov_b32 s{S_P}, {i * 65536}')
        a(f'buffer_load_dwordx4 v{FV+1}, {R(S_R0)}, s{S_P} offen lds'); vm.issue(i)
    gp = opt.get('gate_proj')
    if gp is not None:
        for i in range(gp): dma(i)
        meet(a, T, None, [(GO_X, 1)], 'gp')
    for i in range(gp or 0, 32): dma(i)
    a(f'''
    v_lshrrev_b32 v{T}, 5, v0
    v_bfe_u32 v{T+1}, v0, 2, 2
    v_lshl_add_u32 v{T}, v{T}, 3, v{T+1}
    v_lshlrev_b32 v{T}, 7, v{T}
    v_bfe_u32 v{T+1}, v0, 4, 1
    v_lshl_add_u32 v{T}, v{T+1}, 5, v{T}
    v_and_b32 v{T+1}, 3, v0
    v_lshl_add_u32 v{T}, v{T+1}, 3, v{T}
    v_add_u32 v{TA}, s{S_B}, v{T}
    ''')
    x_consts(a, DO, XA, T)
    a(f's_lshl_b32 s{S_T}, s{S_G}, 1'); a(f's_sub_u32 s{S_T}, 12, s{S_T}')
    a(f'''
    v_bfe_u32 v{T}, v0, 4, 1
    v_lshlrev_b32 v{T}, s{S_T}, v{T}
    v_lshrrev_b32 v{T+1}, 5, v0
    v_lshl_add_u32 v{T}, v{T+1}, 8, v{T}
    v_and_b32 v{T+1}, 15, v0
    v_lshl_add_u32 v{ST}, v{T+1}, 4, v{T}
    ''')
    for kk in range(36):
        vm.wait(2 * kk + 1)
        for cb in range(2):
            for p in range(2):
                a(f'ds_read_b64_tr_b16 {ur(224 + 8*kk + 4*cb + 2*p, 2)}, v{TA} offset:{(kk % 16) * 2048 + p * 512 + cb * 64}')
        if kk >= 1 and 2 * (kk - 1) + 32 < 72:
            a('s_waitcnt lgkmcnt(4)')
            dma(2 * (kk - 1) + 32); dma(2 * (kk - 1) + 33)
    a('s_waitcnt lgkmcnt(0)')
    th(a, opt, 3)
    meet(a, T, (DB_P, 48, GO_P), [(DB_Z, NZ), (GO_X, 1)], 'pw')
    tstamp(a, opt, 0)
    a(f's_mul_i32 s{S_B}, s{S_WAVE}, 9216')
    a(f's_mov_b32 s{S_Q}, {XN}')
    x_dma(a, DO, S_Q, S_B)
    a(f's_mov_b32 s{S_SEG}, 0')
    a(f's_lshl_b32 s{S_M}, s{S_ROLE}, 7'); a(f's_lshl_b32 s{S_T}, s{S_WAVE}, 2'); a(f's_add_u32 s{S_M}, s{S_M}, s{S_T}'); a(f's_add_u32 s{S_M}, s{S_M}, {flag(F_PROJ)}')
    STR = 72
    a(f'v_mov_b32 v{STR}, v{ST}'); a(f'v_mov_b32 v{ST}, 0x{OOB:x}')
    a(f's_sub_u32 s{S_OB}, s{S_OB}, {32 * 8192}')
    a('s_waitcnt vmcnt(0)')
    a(f's_cmp_eq_u32 s{S_G}, 1'); a('s_cbranch_scc1 L_proj_lv')
    ACCS = [[16, 32], [80, 96]]
    for isv in range(2):
        L = 'L_proj_lv' if isv else 'L_proj_lk'
        def epi(acc, cb, b):
            q = acc[cb]
            src = [[0, 2, 8, 10], [4, 6, 12, 14]] if isv else [[0, 2, 4, 6], [8, 10, 12, 14]]
            for d in range(4): a(f'v_cvt_pk_bf16_f32 v{q+4*b+d}, v{q+src[b][d]}, v{q+src[b][d]+1}')
            a(f'buffer_store_dwordx4 {vr(q+4*b,4)}, v{ST}, {WS}, s{S_OB} offen offset:{cb * (2048 if isv else 1024) + b * 512} sc1')
        a.label(L)
        for par in range(2):
            acc = ACCS[par]
            a('s_waitcnt vmcnt(1)')
            a('s_barrier')
            lg = Cnt(a, 'lgkmcnt', 15)
            def rd(kk):
                a(f'ds_read_b128 {vr(XR[kk % 4], 4)}, v{XA + (kk & 3)} offset:{(kk >> 2) * 128}'); lg.issue(kk)
            for kk in range(3): rd(kk)
            a(f's_cmp_lt_u32 s{S_SEG}, 63'); a(f's_cselect_b32 s{S_T}, 36864, 0'); a(f's_add_u32 s{S_Q}, s{S_Q}, s{S_T}')
            a(f's_xor_b32 s{S_B}, s{S_B}, 0x10000')
            for kk in range(36):
                lg.wait(kk)
                for cb in range(2):
                    c = '0' if kk == 0 else vr(acc[cb], 16)
                    x = vr(XR[kk % 4], 4)
                    if opt.get('pj_nomf') and kk >= opt['pj_nomf']: a('s_nop 6')
                    elif isv: a(f'{MF32} {vr(acc[cb],16)}, {x}, {W(kk,cb)}, {c}')
                    else: a(f'{MF32} {vr(acc[cb],16)}, {W(kk,cb)}, {x}, {c}')
                    if cb == 0 and kk + 3 < 36: rd(kk + 3)
                if 1 <= kk <= 4: epi(ACCS[par ^ 1], (kk - 1) >> 1, (kk - 1) & 1)
                if 5 <= kk <= 13:
                    i = kk - 5
                    a(f's_add_u32 m0, s{S_B}, {1024*i}')
                    a(f'buffer_load_dwordx4 v{DO+i}, {WS}, s{S_Q} offen sc1 lds')
                if kk == 5 and par == 1: tfirst(a, opt, f's_cmp_eq_u32 s{S_SEG}, 1')
                if kk == opt.get('pfk', 22):
                    a('s_waitcnt vmcnt(9)')
                    a(f'v_mov_b32 v{FV}, s{S_SEG}')
                    a(f'buffer_store_dword v{FV}, off, {WS}, s{S_M} sc1')
                if kk == 33:
                    for m in range(4): a(f'v_xor_b32 v{XA+m}, 0x10000, v{XA+m}')
                if kk == 34:
                    if not opt.get('pj_nost'): a(f'v_mov_b32 v{ST}, v{STR}')
                    a(f's_add_u32 s{S_OB}, s{S_OB}, {32 * 8192}')
                    a(f's_add_u32 s{S_SEG}, s{S_SEG}, 1')
            if par == 1: a(f's_cmp_lt_u32 s{S_SEG}, 64'); a(f's_cbranch_scc1 {L}')
        for cb in range(2):
            for b in range(2): epi(ACCS[1], cb, b)
        if not isv: a('s_branch L_proj_end')
    a.label('L_proj_end')
    a('s_waitcnt vmcnt(0)')
    a(f'v_mov_b32 v{FV}, 64')
    a(f'buffer_store_dword v{FV}, off, {WS}, s{S_M} sc1')
    if opt.get('f4'):
        a('s_barrier')
        a(f's_cmp_lt_u32 s{S_ROLE}, 36'); a('s_cbranch_scc1 L_ffn')
    finish(a, opt)

def tiles_of(w):
    b = 9 * (w >> 1)
    if w & 1 == 0: return [(b + i, T) for i in range(4) for T in range(2)] + [(b + 4, 0)]
    return [(b + 5 + i, T) for i in range(4) for T in range(2)] + [(b + 4, 1)]

def row_stage_dma(a, srd, L16, st, sbase, vm, tag):
    for i in range(9):
        a(f's_add_u32 m0, s{S_B}, {(st % 4) * 36864 + (i & ~3) * 1024}') if i % 4 == 0 else None
        if i % 4 == 0: a(f's_add_u32 s{S_P}, s{sbase}, {st * 36864 + i * 1024}')
        a(f'buffer_load_dwordx4 v{L16}, {R(srd)}, s{S_P} offen offset:{(i & 3) * 1024} lds'); vm.issue(tag)

def allreduce(a, v, t, op='v_add_f32', lanes=64):
    for d in ('quad_perm:[1,0,3,2]', 'quad_perm:[2,3,0,1]', 'row_half_mirror', 'row_mirror')[:3 if lanes == 8 else 4]:
        a(f'{op}_dpp v{v}, v{v}, v{v} {d} row_mask:0xf bank_mask:0xf')
    if lanes == 64:
        for sw in ('v_permlane16_swap_b32', 'v_permlane32_swap_b32'):
            a(f'v_mov_b32 v{t}, v{v}'); a(f'{sw} v{v}, v{t}'); a(f'{op} v{v}, v{v}, v{t}')

def att(a, opt):
    L16, KMA, L8, PST, RB, XO, XO2, RB4, XO4, T = 1, 2, 3, 4, 5, 6, 7, 8, 9, 10
    Q = 16; K = 32; V = 64; KMF = 96; VMF = 112; SM, S0, S1 = 120, 124, 128; PX = 132; PM = 136; ONE = 140; SUM = 144
    O = 148; OF = 148; ACC = 96
    SLO, SHI = 212, 216
    RR = 128
    XX, WO_ = S_R0, S_R1
    a.label('L_att')
    a(f's_load_dwordx2 s[{XX}:{XX+1}], s[0:1], 0')
    a(f's_load_dwordx2 s[{WO_}:{WO_+1}], s[0:1], 40')
    a(f's_mov_b32 s{S_SPIN}, 0')
    a(f's_sub_u32 s{S_T}, s{S_ROLE}, 48'); a(f's_and_b32 s{S_M}, s{S_T}, 15'); a(f's_lshr_b32 s{S_G}, s{S_T}, 4')
    a(f'v_lshlrev_b32 v{L16}, 4, v0')
    a('s_waitcnt lgkmcnt(0)')
    srd_fix(a, XX, 2359296); srd_fix(a, WO_, 4718592)
    X = 16; Fp = 64
    a(f's_mul_i32 s{S_Q}, s{S_T}, 36864'); a(f's_mul_i32 s{S_B}, s{S_WAVE}, 9216'); a(f's_add_u32 s{S_Q}, s{S_Q}, s{S_B}')
    a(f'v_lshrrev_b32 v{T}, 3, v0'); a(f'v_mul_u32_u24 v{T}, 1152, v{T}'); a(f'v_and_b32 v{T+1}, 7, v0'); a(f'v_lshl_add_u32 v{T}, v{T+1}, 4, v{T}')
    vm = Cnt(a, 'vmcnt', 63)
    for i in range(9): a(f'buffer_load_dwordx4 {vr(X+4*i,4)}, v{T}, {R(XX)}, s{S_Q} offen offset:{128*i}'); vm.issue('x')
    a(f's_mul_i32 s{S_OB}, s{S_M}, {2 * 147456}'); a(f's_add_u32 s{S_OB}, s{S_OB}, s{S_B}')
    ns = opt.get('nsent', 4); assert ns % 4 == 0
    a(f's_lshl2_add_u32 s{S_T}, s{S_T}, s{S_WAVE}'); a(f's_mul_i32 s{S_T}, s{S_T}, {ns * 256}')
    a(f'v_mov_b64 {vr(Fp,2)}, -1'); a(f'v_mov_b64 {vr(Fp+2,2)}, -1')
    for base in (KM, VM):
        a(f's_add_u32 s{S_P}, s{S_T}, {base + (64 - ns) * 65536}')
        for i in range(ns // 4): a(f'buffer_store_dwordx4 {vr(Fp,4)}, v{L16}, {WS}, s{S_P} offen offset:{1024 * i} sc1'); vm.issue('sf')
    vm.wait('x')
    th(a, opt, 3)
    for i in range(36):
        a(f'v_lshlrev_b32 v{Fp+2*i}, 16, v{X+i}'); a(f'v_and_b32 v{Fp+2*i+1}, 0xffff0000, v{X+i}')
    A4 = [T + 2, T + 3, T + 4, T + 5]
    for i in range(72):
        if i < 4: a(f'v_add_f32 v{A4[i]}, v{Fp+i}, v{Fp+i+4}')
        elif i >= 8: a(f'v_add_f32 v{A4[i&3]}, v{A4[i&3]}, v{Fp+i}')
    a(f'v_add_f32 v{A4[0]}, v{A4[0]}, v{A4[1]}'); a(f'v_add_f32 v{A4[2]}, v{A4[2]}, v{A4[3]}'); a(f'v_add_f32 v{A4[0]}, v{A4[0]}, v{A4[2]}')
    allreduce(a, A4[0], T + 1, lanes=8)
    a(f'v_mul_f32 v{T+1}, 0x{0x3ae38e39:x}, v{A4[0]}')
    for i in range(72): a(f'v_sub_f32 v{Fp+i}, v{Fp+i}, v{T+1}')
    for i in range(72):
        if i < 4: a(f'v_mul_f32 v{A4[i]}, v{Fp+i}, v{Fp+i}')
        else: a(f'v_fmac_f32 v{A4[i&3]}, v{Fp+i}, v{Fp+i}')
    a(f'v_add_f32 v{A4[0]}, v{A4[0]}, v{A4[1]}'); a(f'v_add_f32 v{A4[2]}, v{A4[2]}, v{A4[3]}'); a(f'v_add_f32 v{A4[0]}, v{A4[0]}, v{A4[2]}')
    allreduce(a, A4[0], T + 1, lanes=8)
    a(f'v_mov_b32 v{T+1}, 0x{0x3727c5ac:x}')
    a(f'v_fmac_f32 v{T+1}, 0x{0x3ae38e39:x}, v{A4[0]}')
    a(f'v_rsq_f32 v{T+1}, v{T+1}')
    for i in range(72): a(f'v_mul_f32 v{Fp+i}, v{T+1}, v{Fp+i}')
    for i in range(36): a(f'v_cvt_pk_bf16_f32 v{X+i}, v{Fp+2*i}, v{Fp+2*i+1}')
    a(f's_add_u32 s{S_Q}, s{S_Q}, {XN}')
    for i in range(9): a(f'buffer_store_dwordx4 {vr(X+4*i,4)}, v{T}, {WS}, s{S_Q} offen offset:{128*i} sc1'); vm.issue('xs')
    th(a, opt, 4)
    GATE = {'p': [(GO_P, 1)], 'c': [(GO_C, 1)], None: []}
    NG = opt.get('ng', 4)
    if NG == 3:
        a(f's_cmp_lg_u32 s{S_G}, 3'); a('s_cbranch_scc1 L_att_full')
        meet(a, T + 4, (DB_X, 64, GO_X), [], 'gl')
        a(f's_sub_u32 s{S_T+1}, s{S_ROLE}, 48'); a(f's_mul_i32 s{S_T+1}, s{S_T+1}, 36864'); a(f's_add_u32 s{S_T+1}, s{S_T+1}, s{S_B}')
        fill(a, L16, 16, [(S_T + 1, HB), (S_T + 1, XN2)])
        meet(a, T, (DB_AI, 64, GO_AI), [], 'al')
        for i in range(2): tstamp(a, opt, i)
        finish(a, opt)
        a.label('L_att_full')
    if opt.get('fe_att'):
        meet(a, T + 4, (DB_X, 64, GO_X), [], 'gx')
        a(f's_mul_i32 s{S_T}, s{S_G}, {2 * PA_SLOT}'); a(f's_mul_i32 s{S_T+1}, s{S_M}, 36864'); a(f's_add_u32 s{S_T}, s{S_T}, s{S_T+1}')
        a(f's_sub_u32 s{S_T+1}, s{S_ROLE}, 48'); a(f's_mul_i32 s{S_T+1}, s{S_T+1}, 36864')
        a(f's_add_u32 s{S_T}, s{S_T}, s{S_B}'); a(f's_add_u32 s{S_T+1}, s{S_T+1}, s{S_B}')
        fill(a, L16, 60, [(S_T, PA), (S_T, PA + PA_SLOT), (S_T + 1, HB), (S_T + 1, XN2)])
        meet(a, T + 4, None, GATE[opt.get('gate_att')], 'ga')
        a('s_waitcnt vmcnt(0)')
    else: meet(a, T + 4, (DB_X, 64, GO_X), GATE[opt.get('gate_att')], 'ga')
    vm.reset()
    th(a, opt, 5)
    for st in range(4): row_stage_dma(a, WO_, L16, st, S_OB, vm, st)
    for w in range(1, 4):
        a(f's_cmp_eq_u32 s{S_WAVE}, {w}'); a(f's_cbranch_scc1 L_att_w{w}')
    vm0 = list(vm.q)
    for w in range(4):
        hh, qt = w >> 1, w & 1
        tl = tiles_of(w)
        def WOF(ti, k8): return ur(224 + 4 * (ti * 8 + k8), 4)
        a.label(f'L_att_w{w}')
        vm.q = list(vm0)
        TA = T + 2
        a(f'v_lshrrev_b32 v{TA}, 2, v0'); a(f'v_mul_u32_u24 v{TA}, 1152, v{TA}'); a(f'v_and_b32 v{T+3}, 3, v0'); a(f'v_lshl_add_u32 v{TA}, v{T+3}, 4, v{TA}')
        a(f'v_add_u32 v{TA+1}, {2 * 36864}, v{TA}')
        for st in range(8):
            vm.wait(st)
            a('s_barrier')
            for ti, (P, TT) in enumerate(tl):
                for p in range(2):
                    off = (st % 2) * 36864 + p * 16 * 1152 + P * 64 + TT * 8
                    a(f'ds_read_b64_tr_b16 {ur(224 + 4*(ti*8+st) + 2*p, 2)}, v{TA + ((st % 4) >> 1)} offset:{off}')
            a('s_waitcnt lgkmcnt(0)')
            if st < 4:
                a('s_barrier')
                row_stage_dma(a, WO_, L16, st + 4, S_OB, vm, st + 4)
        th(a, opt, 6)
        red = qt == 0
        a(f'''
        v_and_b32 v{T}, 15, v0
        v_lshrrev_b32 v{T+1}, 4, v0
        v_lshrrev_b32 v{T+2}, 2, v{T}
        v_and_b32 v{T+3}, 1, v0
        v_lshl_add_u32 v{T+4}, v{T+2}, 1, v{T+3}
        v_lshlrev_b32 v{T+4}, 4, v{T+4}
        v_lshl_add_u32 v{KMA}, v{T+1}, 7, v{T+4}
        v_lshlrev_b32 v{L8}, 3, v0
        v_lshrrev_b32 v{T+4}, 1, v{T}
        v_mul_u32_u24 v{T+4}, 36864, v{T+4}
        v_lshl_add_u32 v{T+4}, v{T+3}, 6, v{T+4}
        v_lshl_add_u32 v{T+4}, v{T+1}, 4, v{T+4}
        s_mul_i32 s{S_T}, s{S_M}, 2304
        v_add_u32 v{PST}, s{S_T}, v{T+4}
        ''')
        if red:
            a(f'''
            v_mul_u32_u24 v{T+4}, 2304, v{T+1}
            v_and_b32 v{T+5}, 3, v0
            v_lshl_add_u32 v{T+4}, v{T+5}, 4, v{T+4}
            s_mul_i32 s{S_T}, s{S_M}, 36864
            s_add_u32 s{S_T}, s{S_T}, {64 * hh}
            v_add_u32 v{T+4}, s{S_T}, v{T+4}
            v_lshl_add_u32 v{RB}, v{T+2}, 7, v{T+4}
            v_and_b32 v{RB4}, 1, v{T+2}
            v_lshl_add_u32 v{RB4}, v{RB4}, 7, v{T+4}
            s_mul_i32 s{S_T}, s{S_M}, 2304
            s_add_u32 s{S_T}, s{S_T}, {1152 * hh}
            v_lshlrev_b32 v{T+5}, 4, v{T+5}
            v_add_u32 v{T+5}, s{S_T}, v{T+5}
            v_lshrrev_b32 v{T+4}, 1, v{T+2}
            v_mul_u32_u24 v{T+4}, 9, v{T+4}
            v_and_b32 v{T+3}, 1, v{T+2}
            v_mul_u32_u24 v{T}, 5, v{T+3}
            v_add_u32 v{T+4}, v{T+4}, v{T}
            v_lshrrev_b32 v{T}, 1, v{T+1}
            v_add_u32 v{T+4}, v{T+4}, v{T}
            v_lshl_add_u32 v{T+4}, v{T+4}, 6, v{T+5}
            v_and_b32 v{T+1}, 1, v{T+1}
            v_lshl_add_u32 v{XO}, v{T+1}, 3, v{T+4}
            v_lshl_add_u32 v{XO4}, v{T+1}, 7, v{T+4}
            v_mul_u32_u24 v{T+3}, 576, v{T+3}
            v_add_u32 v{T+3}, 256, v{T+3}
            v_add_u32 v{T+3}, v{T+3}, v{T+5}
            v_lshl_add_u32 v{T+3}, v{T+1}, 3, v{T+3}
            s_mov_b32 s{S_T}, 0x00ff00ff
            s_mov_b32 s{S_T+1}, 0
            v_mov_b32 v{T+4}, 0x{OOB:x}
            v_cndmask_b32 v{XO2}, v{T+4}, v{T+3}, s[{S_T}:{S_T+1}]
            ''')
            sel(a, SLO, T, 'lo'); sel(a, SHI, T, 'hi')
        a(f'''
        s_lshl_b32 s{S_T}, s{S_M}, 8
        s_add_u32 s{S_FA}, s{S_T}, {flag(F_PROJ + hh)}
        s_add_u32 s{S_FA+2}, s{S_T}, {flag(F_CHAIN + hh)}
        s_lshl_b32 s{S_T}, s{S_M}, 7
        s_add_u32 s{S_FA+1}, s{S_T}, {flag(F_PROJ + 32) + 8 * hh}
        s_mov_b32 s{S_FP}, 0
        s_mov_b32 s{S_FC}, 0
        ''')
        for r in range(4):
            mk = sum(1 << l for l in range(64) if 4 * (l >> 4) + r <= (l & 15))
            a(f's_mov_b32 s{S_MK+2*r}, 0x{mk & 0xffffffff:x}'); a(f's_mov_b32 s{S_MK+2*r+1}, 0x{mk >> 32:x}')
        a(f's_mov_b32 s{S_C}, 0x3e0293ee'); a(f's_mov_b32 s{S_C+1}, 0xbe0293ee')
        a(f's_mul_i32 s{S_T}, s{S_G}, {2 * PA_SLOT}'); a(f's_mul_i32 s{S_T+1}, s{S_M}, 36864'); a(f's_add_u32 s{S_T}, s{S_T}, s{S_T+1}')
        a(f's_sub_u32 s{S_T+1}, s{S_ROLE}, 48'); a(f's_mul_i32 s{S_T+1}, s{S_T+1}, 36864')
        if not opt.get('fe_att'): fill(a, L16, 16, [(S_T, PA + w * 9216), (S_T, PA + PA_SLOT + w * 9216), (S_T + 1, HB + w * 9216), (S_T + 1, XN2 + w * 9216)])
        afast = opt.get('afast') and not opt.get('force_slow') == 1
        split = afast and opt.get('split')
        if split:
            lab = a.newlabel('L_nof')
            a(f's_cmp_lt_u32 s{S_ROLE}, 104'); a(f's_cbranch_scc1 {lab}')
            a(f's_mul_i32 s{S_T}, s{S_M}, 36864')
            fill(a, L16, 16, [(S_T, PA + 8 * PA_SLOT + w * 9216)])
            a.label(lab)
        th(a, opt, 7)
        meet(a, T, (DB_AI, 64, GO_AI), [(DB_Z, NZ), (GO_AI, 1)], 'ai')
        tstamp(a, opt, 0)
        if afast:
            th3, th0 = {'att': (20, 999), 'att2': (16, 32)}[opt.get('x1', 'att')]
            a(f'buffer_load_dword v{T}, off, {DBG}, 0 offset:{DB_C1} sc1')
            a(f's_cmp_eq_u32 s{S_G}, 0'); a(f's_cselect_b32 s{S_LOC}, {th0}, -1')
            a(f's_cmp_eq_u32 s{S_G}, 3'); a(f's_cselect_b32 s{S_LOC}, {th3}, s{S_LOC}')
            a('s_waitcnt vmcnt(0)')
            a(f'v_readfirstlane_b32 s{S_T}, v{T}')
            a(f's_cmp_ge_u32 s{S_T}, s{S_LOC}'); a(f's_cselect_b32 s{S_LOC}, 1, 0')
            if split: a(f's_cmp_ge_u32 s{S_T}, {th0}'); a(f's_cselect_b32 s{S_SPL}, s{S_LOC}, 0')
        a(f's_mov_b32 s{S_SEG}, s{S_G}')
        a(f's_mov_b32 s{S_B}, 0')
        a(f's_mov_b32 s{S_SL}, 0')
        def qkv(step):
            a(f's_add_u32 s{S_N}, s{S_SEG}, {step + 1}')
            spoll(a, S_FP, f's{S_N}', [(4, f's{S_FA}'), (2, f's{S_FA+1}')], 'ap')
            a(f's_lshl_b32 s{S_T}, s{S_SEG}, 5'); a(f's_lshl1_add_u32 s{S_T}, s{S_M}, s{S_T}'); a(f's_add_u32 s{S_T}, s{S_T}, {32 * step + hh}')
            a(f's_lshl_b32 s{S_T}, s{S_T}, 13')
            a(f's_add_u32 s{S_P}, s{S_T}, {QX + qt * 4096}')
            for ks in range(4): a(f'buffer_load_dwordx4 {vr(Q+4*ks,4)}, v{L16}, {WS}, s{S_P} offen offset:{1024*ks} sc1')
            for kt in range(qt + 1):
                a(f's_add_u32 s{S_P}, s{S_T}, {KX + kt * 4096}')
                for ks in range(4): a(f'buffer_load_dwordx4 {vr(K+16*kt+4*ks,4)}, v{L16}, {WS}, s{S_P} offen offset:{1024*ks} sc1')
            for hf in range(2):
                a(f's_add_u32 s{S_P}, s{S_T}, {VX + hf * 4096}')
                for u in range(4): a(f'buffer_load_dwordx4 {vr(V+16*hf+4*u,4)}, v{L16}, {WS}, s{S_P} offen offset:{1024*u} sc1')
        qkv(0)
        L = f'L_att_l{w}'
        a.label(L)
        vm.reset()
        a(f's_lshl_b32 s{S_Q}, s{S_SEG}, 5'); a(f's_lshl1_add_u32 s{S_Q}, s{S_M}, s{S_Q}'); a(f's_add_u32 s{S_Q}, s{S_Q}, {hh}')
        a(f's_lshl_b32 s{S_Q}, s{S_Q}, 11')
        a(f's_bfe_u32 s{S_TAG}, s{S_SL}, 0x10001'); a(f's_and_b32 s{S_T}, s{S_SL}, 1'); a(f's_add_u32 s{S_SL}, s{S_SL}, 1')
        a(f's_lshl1_add_u32 s{S_T}, s{S_G}, s{S_T}'); a(f's_mul_i32 s{S_OB}, s{S_T}, {PA_SLOT}'); a(f's_add_u32 s{S_OB}, s{S_OB}, {PA}')
        a(f'v_mov_b32 v{ONE}, 0x3f803f80'); a(f'v_mov_b32 v{ONE+1}, 0x3f803f80'); a(f'v_mov_b64 {vr(ONE+2,2)}, {vr(ONE,2)}')
        a(f'v_mov_b64 {vr(PM,2)}, 0'); a(f'v_mov_b64 {vr(PM+2,2)}, 0')
        if qt == 0: a(f'v_mov_b64 {vr(PX+2,2)}, 0')
        a('s_waitcnt vmcnt(0)')
        tk(a, opt, 3)
        for ks in range(4):
            for kt in range(qt + 1):
                S = S1 if kt else S0
                a(f'{MF} {vr(S,4)}, {vr(K+16*kt+4*ks,4)}, {vr(Q+4*ks,4)}, {"0" if ks == 0 else vr(S,4)}')
        SD = S1 if qt else S0
        a(f'v_mov_b32 v{T}, 0xff800000')
        for r in range(4): a(f'v_cndmask_b32 v{SD+r}, v{T}, v{SD+r}, s[{S_MK+2*r}:{S_MK+2*r+1}]')
        M, M2 = T + 2, T + 3
        a(f'v_max3_f32 v{M}, v{S0}, v{S0+1}, v{S0+2}')
        if qt:
            a(f'v_max3_f32 v{M}, v{M}, v{S0+3}, v{S1}'); a(f'v_max3_f32 v{M}, v{M}, v{S1+1}, v{S1+2}'); a(f'v_max_f32 v{M}, v{M}, v{S1+3}')
        else: a(f'v_max_f32 v{M}, v{M}, v{S0+3}')
        a(f's_cmp_lt_u32 s{S_SEG}, {64 - opt.get("nuse", opt.get("nsent", 4))}'); a(f's_addc_u32 s{S_N}, s{S_SEG}, 0'); a(f's_cmp_eq_u32 s{S_SEG}, 63'); a(f's_cselect_b32 s{S_N}, {opt.get("nmax", 62)}, s{S_N}')
        spoll(a, S_FC, f's{S_N}', [(1, f's{S_FA+2}')], 'ac')
        tk(a, opt, 4)
        tacc(a, opt, 3, 4, 12)
        LK = f'L_att_k{w}'
        a.label(LK)
        a(f's_add_u32 s{S_P}, s{S_Q}, {KM}')
        for ks in range(4): a(f'buffer_load_dwordx4 {vr(KMF+4*ks,4)}, v{KMA}, {WS}, s{S_P} offen offset:{512*ks} sc1'); vm.issue(('km', ks))
        a(f's_add_u32 s{S_P}, s{S_Q}, {VM}')
        for u in range(4): a(f'buffer_load_dwordx2 {vr(VMF+2*u,2)}, v{L8}, {WS}, s{S_P} offen offset:{512*u} sc1'); vm.issue(('vm', u))
        for ks in range(4):
            vm.wait(('km', ks))
            a(f'{MF} {vr(SM,4)}, {vr(KMF+4*ks,4)}, {vr(Q+4*ks,4)}, {"0" if ks == 0 else vr(SM,4)}')
        a(f'v_max3_u32 v{T}, v{KMF}, v{KMF+4}, v{KMF+8}')
        vm.wait(('vm', 3))
        a(f'v_max3_u32 v{T}, v{T}, v{KMF+12}, v{VMF}')
        a(f'v_max3_u32 v{T}, v{T}, v{VMF+2}, v{VMF+4}')
        a(f'v_max_u32 v{T}, v{T}, v{VMF+6}')
        a(f'v_cmp_eq_u32 vcc, -1, v{T}')
        a(f's_cbranch_vccz {LK}_x')
        retry(a, LK + '_x')
        a(f's_branch {LK}')
        a.label(LK + '_x')
        a(f'v_max3_f32 v{M}, v{M}, v{SM}, v{SM+1}')
        tk(a, opt, 5)
        for sw in ('v_permlane32_swap_b32', 'v_permlane16_swap_b32'):
            a(f'v_mov_b32 v{M2}, v{M}'); a(f'{sw} v{M}, v{M2}'); a(f'v_max_f32 v{M}, v{M}, v{M2}')
        a(f'v_mul_f32 v{M}, s{S_C+1}, v{M}')
        vals = [SM, SM + 1, S0, S0 + 1, S0 + 2, S0 + 3] + ([S1, S1 + 1, S1 + 2, S1 + 3] if qt else [])
        for r in vals: a(f'v_fma_f32 v{r}, v{r}, s{S_C}, v{M}')
        for r in vals: a(f'v_exp_f32 v{r}, v{r}')
        a(f'v_cvt_pk_bf16_f32 v{PX}, v{S0}, v{S0+1}'); a(f'v_cvt_pk_bf16_f32 v{PX+1}, v{S0+2}, v{S0+3}')
        if qt: a(f'v_cvt_pk_bf16_f32 v{PX+2}, v{S1}, v{S1+1}'); a(f'v_cvt_pk_bf16_f32 v{PX+3}, v{S1+2}, v{S1+3}')
        a(f'v_cvt_pk_bf16_f32 v{PM}, v{SM}, v{SM+1}'); a(f'v_cvt_pk_bf16_f32 v{PM+3}, v{SM}, v{SM+1}')
        a(f'{MF} {vr(SUM,4)}, {vr(ONE,4)}, {vr(PX,4)}, 0')
        for u in range(4): a(f'{MF} {vr(O+4*u,4)}, {vr(V+4*u,4)}, {vr(PX,4)}, 0')
        a(f'{MH} {vr(SUM,4)}, {vr(ONE,2)}, {vr(PM,2)}, {vr(SUM,4)}')
        for u in range(4, 8): a(f'{MF} {vr(O+4*u,4)}, {vr(V+4*u,4)}, {vr(PX,4)}, 0')
        a(f'v_add_u32 v{T+1}, s{S_B}, v{L16}')
        for u in range(8):
            a(f'{MH} {vr(O+4*u,4)}, {vr(VMF+2*(u>>1),2)}, {vr(PM+2*(u&1),2)}, {vr(O+4*u,4)}')
            if u == 0: a(f'v_rcp_f32 v{T+2}, v{SUM}')
        for w4 in range(4):
            q = O + 8 * w4
            for r in range(4): a(f'v_pk_mul_f32 {vr(q+2*r,2)}, {vr(q+2*r,2)}, {vr(T+2,2)} op_sel_hi:[1,0]')
            for d in range(4): a(f'v_cvt_pk_bf16_f32 v{q+d}, v{q+2*d}, v{q+2*d+1}')
            a(f'ds_write_b128 v{T+1}, {vr(q,4)} offset:{(w * 4 + w4) * 1024}')
        a('s_waitcnt lgkmcnt(0)')
        a('s_barrier')
        tk(a, opt, 6)
        if opt.get('wst'): a('s_waitcnt lgkmcnt(0)')
        XV = 48
        def wo_block(sc, tts):
            lg = Cnt(a, 'lgkmcnt', 15)
            for k8 in range(8):
                for tt in tts:
                    a(f'ds_read_b128 {vr(OF+4*(2*k8+tt),4)}, v{T+1} offset:{(((k8 >> 2) * 2 + tt) * 4 + (k8 & 3)) * 1024}'); lg.issue((k8, tt))
            a(f's_xor_b32 s{S_B}, s{S_B}, 0x4000')
            a(f's_add_u32 s{S_P}, s{S_OB}, 294912')
            if red: a(f's_mul_i32 s{S_Q}, s{S_SEG}, 36864')
            def fin(gi):
                base = ACC + 16 * (gi & 1); ops = []
                for tt in tts:
                    so = S_P if tt else S_OB
                    q = base + 8 * tt
                    if gi < 4:
                        ops += [f'v_cvt_pk_bf16_f32 v{q+d}, v{q+2*d}, v{q+2*d+1}' for d in range(4)] + [f'v_bfi_b32 v{q+d}, 1, s{S_TAG}, v{q+d}' for d in (0, 2)]
                        ops[-1] += f'\nbuffer_store_dwordx4 {vr(q,4)}, v{PST}, {WS}, s{so} offen offset:{(4 * gi + w) * 128}{sc}'
                    else:
                        ops += [f'v_cvt_pk_bf16_f32 v{q+d}, v{q+2*d}, v{q+2*d+1}' for d in range(2)] + [f'v_bfi_b32 v{q}, 1, s{S_TAG}, v{q}']
                        ops[-1] += f'\nbuffer_store_dwordx2 {vr(q,2)}, v{PST}, {WS}, s{so} offen offset:{(16 + hh) * 128 + 8*tl[8][1]}{sc}'
                return ops
            fq = []; afs = opt.get('afs', 99)
            for gi in range(5):
                base = ACC + 16 * (gi & 1); n = 0
                for k8 in range(8):
                    for tt in tts:
                        if gi == 0: lg.wait((k8, tt))
                        for TT in range(2 if gi < 4 else 1):
                            q = base + 8 * tt + 4 * TT
                            a(f'{MF} {vr(q,4)}, {WOF(2*gi+TT,k8)}, {vr(OF+4*(2*k8+tt),4)}, {"0" if k8 == 0 else vr(q,4)}')
                            n += 1
                            if n == 3 and gi > 0: fq += fin(gi - 1)
                            for _ in range(afs):
                                if fq: a(fq.pop(0))
                    if red and gi == 0 and 2 <= k8 <= 4 and 0 in tts:
                        q3 = k8 - 2
                        a(f'buffer_load_dwordx2 {vr(XV+2*q3,2)}, v{XO2 if q3 == 2 else XO}, {R(XX)}, s{S_Q} offen offset:{128*q3 if q3 < 2 else 0}')
                assert not fq
            for x in fin(4): a(x)
        if afast:
            a(f's_cmp_eq_u32 s{S_LOC}, 0'); a(f's_cbranch_scc1 {L}_ws')
            if split:
                a(f's_cmp_eq_u32 s{S_SEG}, 63'); a(f's_cselect_b32 s{S_T}, s{S_SPL}, 0')
                a(f's_cmp_eq_u32 s{S_T}, 0'); a(f's_cbranch_scc1 {L}_wf')
                a(f's_cmp_eq_u32 s{S_G}, 0'); a(f's_cbranch_scc1 {L}_wh')
                wo_block('', [0])
                if red:
                    a(f's_cmp_ge_u32 s{S_M}, 8'); a(f's_cselect_b32 s{S_OB}, {PA + 8 * PA_SLOT}, s{S_OB}'); a(f's_cselect_b32 s{S_TAG}, 0, s{S_TAG}')
                a(f's_branch {L}_wx')
                a.label(L + '_wh')
                a(f's_mov_b32 s{S_OB}, {PA + 8 * PA_SLOT}'); a(f's_mov_b32 s{S_TAG}, 0')
                wo_block('', [1])
                a(f's_branch {L}_end')
                a.label(L + '_wf')
            wo_block('', [0, 1])
            a(f's_branch {L}_wx')
            a.label(L + '_ws')
        wo_block(' sc1', [0, 1])
        a.label(L + '_wx')
        tk(a, opt, 7)
        if red:
            RA = 96; H = 108; H2 = 116
            def rl(t0):
                for t5 in range(t0, 5):
                    for u in range(4):
                        a(f's_add_u32 s{S_P}, s{S_OB}, {u * 9216}')
                        a(f'buffer_load_dwordx4 {vr(RR+4*(4*t5+u),4)}, v{RB4 if t5 == 4 else RB}, {WS}, s{S_P} offen offset:{512*t5} sc1')
            rl(0)
            tk(a, opt, 8)
            for t5 in range(5):
                LR = f'L_att_r{w}_{t5}'
                a.label(LR)
                a(f's_waitcnt vmcnt({4 * (4 - t5)})')
                z = [RR + 4 * (4 * t5 + u) for u in range(4)]
                for u in range(4): a(f'v_bitop3_b32 v{T+u}, v{z[u]}, v{z[u]+2}, s{S_TAG} bitop3:0x7e')
                a(f'v_or3_b32 v{T}, v{T}, v{T+1}, v{T+2}')
                a(f'v_bitop3_b32 v{T}, v{T}, v{T+3}, 1 bitop3:0xa8')
                a(f'v_cmp_eq_u32 vcc, 1, v{T}')
                a(f's_cbranch_vccz {LR}_x')
                retry(a, LR + '_x')
                rl(t5)
                a(f's_branch {LR}')
                a.label(LR + '_x')
                if t5 == 0:
                    for q in range(3):
                        for d in range(2):
                            a(f'v_lshlrev_b32 v{RA+4*q+2*d}, 16, v{XV+2*q+d}'); a(f'v_and_b32 v{RA+4*q+2*d+1}, 0xffff0000, v{XV+2*q+d}')
                if t5 == 4: tk(a, opt, 9)
                q = RA + 4 * (t5 >> 1)
                for u in range(4): a(f'{MF} {vr(q,4)}, {vr(SHI if t5 & 1 else SLO,4)}, {vr(z[u],4)}, {vr(q,4)}')
            tk(a, opt, 10)
            a(f's_mov_b32 s{S_T}, 0x00ff00ff'); a(f's_mov_b32 s{S_T+1}, 0')
            for i in range(6): a(f'v_cvt_pk_bf16_f32 v{H+i}, v{RA+2*i}, v{RA+2*i+1}')
            for i in (4, 5): a(f'v_cndmask_b32 v{H+i}, 0, v{H+i}, s[{S_T}:{S_T+1}]')
            for i in range(6): a(f'v_lshlrev_b32 v{RA+2*i}, 16, v{H+i}'); a(f'v_and_b32 v{RA+2*i+1}, 0xffff0000, v{H+i}')
            def put(r, base):
                a(f's_add_u32 s{S_P}, s{S_Q}, {base}')
                for d in range(2): a(f'v_permlane16_swap_b32 v{r+d}, v{r+2+d}')
                a(f'buffer_store_dwordx4 {vr(r,4)}, v{XO4}, {WS}, s{S_P} offen sc1')
                a(f'buffer_store_dwordx2 {vr(r+4,2)}, v{XO2}, {WS}, s{S_P} offen sc1')
            put(H, HB)
            a(f'v_add_f32 v{T}, v{RA}, v{RA+1}'); a(f'v_add_f32 v{T+1}, v{RA+2}, v{RA+3}')
            for i in range(4, 12): a(f'v_add_f32 v{T+(i&1)}, v{T+(i&1)}, v{RA+i}')
            a(f'v_add_f32 v{T}, v{T}, v{T+1}')
            allreduce(a, T, T + 1)
            a(f'v_mul_f32 v{T}, 0x{0x3ae38e39:x}, v{T}')
            for i in range(12): a(f'v_sub_f32 v{RA+i}, v{RA+i}, v{T}')
            for i in range(8, 12): a(f'v_cndmask_b32 v{RA+i}, 0, v{RA+i}, s[{S_T}:{S_T+1}]')
            a(f'v_mul_f32 v{T}, v{RA}, v{RA}'); a(f'v_mul_f32 v{T+1}, v{RA+1}, v{RA+1}')
            for i in range(2, 12): a(f'v_fmac_f32 v{T+(i&1)}, v{RA+i}, v{RA+i}')
            a(f'v_add_f32 v{T}, v{T}, v{T+1}')
            allreduce(a, T, T + 1)
            a(f'v_mov_b32 v{T+1}, 0x{0x3727c5ac:x}'); a(f'v_fmac_f32 v{T+1}, 0x{0x3ae38e39:x}, v{T}'); a(f'v_rsq_f32 v{T+1}, v{T+1}')
            for i in range(12): a(f'v_mul_f32 v{RA+i}, v{T+1}, v{RA+i}')
            for i in range(6): a(f'v_cvt_pk_bf16_f32 v{H2+i}, v{RA+2*i}, v{RA+2*i+1}')
            put(H2, XN2)
            tk(a, opt, 11)
        tfirst(a, opt, f's_cmp_lt_u32 s{S_SEG}, {NG}')
        if split:
            a(f's_cmp_eq_u32 s{S_SEG}, 60'); a(f's_cselect_b32 s{S_T}, s{S_SPL}, 0'); a(f's_sub_u32 s{S_SEG}, s{S_SEG}, s{S_T}')
        a(f's_cmp_ge_u32 s{S_SEG}, {64 - NG}'); a(f's_cbranch_scc1 {L}_end')
        if not red: a('s_waitcnt vmcnt(0)')
        qkv(NG)
        a(f's_add_u32 s{S_SEG}, s{S_SEG}, {NG}')
        a(f's_branch {L}')
        a.label(L + '_end')
        finish(a, opt)

def ffn(a, opt):
    DO = 1; XA = 10; L16 = 14; PST = 15; RB = 16; OA = 17; XW = 18; T = 20
    SEL = 28; ACC = [32, 48]; XR = [64, 68, 72, 76]
    AF = 32
    DA = 64
    WG, WU, WD, OUT = S_R0, S_R1, S_R2, S_R3
    ACTL = 40960
    def GU(m, kk): return 80 + 8 * kk + 4 * m
    a.label('L_ffn')
    a(f's_load_dwordx4 s[{WG}:{WG+3}], s[0:1], 64')
    a(f's_load_dwordx4 s[{WD}:{WD+3}], s[0:1], 80')
    a(f's_mov_b32 s{S_SPIN}, 0')
    a(f's_sub_u32 s{S_M}, s{S_ROLE}, 112'); a(f's_mov_b32 s{S_G}, 0')
    for _ in range(2):
        a(f's_cmp_ge_u32 s{S_M}, 36'); a(f's_cselect_b32 s{S_T}, 36, 0'); a(f's_cselect_b32 s{S_T+1}, 1, 0')
        a(f's_sub_u32 s{S_M}, s{S_M}, s{S_T}'); a(f's_add_u32 s{S_G}, s{S_G}, s{S_T+1}')
    F4 = opt.get('f4')
    if F4:
        assert F4 % 3 == 0
        a(f's_cmp_lt_u32 s{S_ROLE}, 36'); a(f's_cselect_b32 s{S_M}, s{S_ROLE}, s{S_M}'); a(f's_cselect_b32 s{S_G}, 3, s{S_G}')
    a(f'v_lshlrev_b32 v{L16}, 4, v0')
    a('s_waitcnt lgkmcnt(0)')
    a(f's_mov_b32 s{WU}, s{WG+2}'); a(f's_mov_b32 s{WU+1}, s{WG+3}'); a(f's_mov_b32 s{OUT}, s{WD+2}'); a(f's_mov_b32 s{OUT+1}, s{WD+3}')
    for r in (WG, WU, WD): srd_fix(a, r, 5308416)
    srd_fix(a, OUT, 2359296)
    if opt.get('wpf'):
        lab = a.newlabel('L_wpf')
        a(f's_cmp_ge_u32 s{S_G}, 3'); a(f's_cbranch_scc1 {lab}')
        a(f's_lshl_b32 s{S_T}, s{S_G}, 3')
        a(f's_load_dwordx2 s[{S_R4}:{S_R4+1}], s[0:1], s{S_T} offset:16')
        a(f's_lshl2_add_u32 s{S_T}, s{S_M}, s{S_WAVE}'); a(f's_lshl_b32 s{S_T}, s{S_T}, 15')
        a(f'v_lshlrev_b32 v{T}, {6 if opt["wpf"] == 64 else 7}, v0')
        a('s_waitcnt lgkmcnt(0)')
        srd_fix(a, S_R4, 4718592)
        for i in range(8 if opt['wpf'] == 64 else 4):
            a(f'buffer_load_dword v70, v{T}, {R(S_R4)}, s{S_T} offen')
            a(f's_add_u32 s{S_T}, s{S_T}, {64 * opt["wpf"]}')
        a.label(lab)
    GA = T + 4; TA = T + 5
    a(f's_mul_i32 s{S_T}, s{S_WAVE}, {16 * 9216}'); a(f's_lshl_b32 s{S_T+1}, s{S_M}, 8'); a(f's_add_u32 s{S_T}, s{S_T}, s{S_T+1}')
    a(f'''
    v_lshrrev_b32 v{T}, 4, v0
    v_mul_u32_u24 v{T}, 9216, v{T}
    v_and_b32 v{T+1}, 15, v0
    v_lshl_add_u32 v{T}, v{T+1}, 4, v{T}
    v_add_u32 v{GA}, s{S_T}, v{T}
    ''')
    a(f's_lshl_b32 s{S_B}, s{S_WAVE}, 12')
    vm = Cnt(a, 'vmcnt', 63)
    def gdma(st):
        for m in range(2):
            for u in range(4):
                a(f's_add_u32 m0, s{S_B}, {(st % 4) * 32768 + m * 16384 + u * 1024}')
                a(f's_mov_b32 s{S_P}, {(64 * st + 4 * u) * 9216}')
                a(f'buffer_load_dwordx4 v{GA}, {R(WU if m else WG)}, s{S_P} offen lds'); vm.issue(st)
    if opt.get('fe_ffn'):
        if opt['fe_ffn'] == 'x': meet(a, T, None, [(GO_X, 1)], 'gx')
        a(f's_mul_i32 s{S_T}, s{S_G}, {2 * PF_SLOT}'); a(f's_mul_i32 s{S_T+1}, s{S_M}, 36864'); a(f's_add_u32 s{S_T}, s{S_T}, s{S_T+1}')
        a(f's_mul_i32 s{S_T+1}, s{S_WAVE}, 9216'); a(f's_add_u32 s{S_T}, s{S_T}, s{S_T+1}')
        fill(a, L16, 32, [(S_T, PF), (S_T, PF + PF_SLOT)])
    if opt.get('gate_ffn'): meet(a, T, None, [({'p': GO_P, 'c': GO_C, 'a': GO_AI}[opt['gate_ffn']], 1)], 'gf')
    if opt.get('fe_ffn'): a('s_waitcnt vmcnt(0)')
    for st in range(4): gdma(st)
    a(f's_lshl_b32 s{S_T}, s{S_WAVE}, 6')
    a(f'''
    v_lshrrev_b32 v{T}, 5, v0
    v_bfe_u32 v{T+1}, v0, 2, 2
    v_lshl_add_u32 v{T}, v{T}, 3, v{T+1}
    v_lshlrev_b32 v{T}, 8, v{T}
    v_bfe_u32 v{T+1}, v0, 4, 1
    v_lshl_add_u32 v{T}, v{T+1}, 5, v{T}
    v_and_b32 v{T+1}, 3, v0
    v_lshl_add_u32 v{T}, v{T+1}, 3, v{T}
    v_add_u32 v{TA}, s{S_T}, v{T}
    v_add_u32 v{TA+1}, 65536, v{TA}
    ''')
    x_consts(a, DO, XA, T)
    for st in range(9):
        vm.wait(st)
        a('s_barrier')
        for k4 in range(4):
            for m in range(2):
                for p in range(2):
                    a(f'ds_read_b64_tr_b16 {ur(GU(m, 4*st+k4) + 2*p, 2)}, v{TA + ((st % 4) >> 1)} offset:{(st % 2) * 32768 + m * 16384 + k4 * 4096 + p * 1024}')
        a('s_waitcnt lgkmcnt(0)')
        if st + 4 < 9:
            a('s_barrier'); gdma(st + 4)
    a('s_barrier')
    th(a, opt, 3)
    a(f's_mul_i32 s{S_B}, s{S_WAVE}, 9216'); a(f's_mul_i32 s{S_OB}, s{S_M}, 147456'); a(f's_add_u32 s{S_OB}, s{S_OB}, s{S_B}')
    for st in range(4): row_stage_dma(a, WD, L16, st, S_OB, vm, 100 + st)
    sel(a, SEL, T, 'dup')
    a(f'''
    v_and_b32 v{T}, 15, v0
    v_lshrrev_b32 v{T+1}, 4, v0
    v_lshlrev_b32 v{T+2}, 6, v{T}
    v_lshl_add_u32 v{T+2}, v{T+1}, 4, v{T+2}
    s_lshl_b32 s{S_T}, s{S_M}, 10
    v_add_u32 v{PST}, s{S_T}, v{T+2}
    v_lshlrev_b32 v{T+2}, 4, v{T}
    v_lshl_add_u32 v{T+2}, v{T+1}, 10, v{T+2}
    s_mul_i32 s{S_T}, s{S_M}, 36864
    s_lshl_b32 s{S_T+1}, s{S_WAVE}, 8
    s_add_u32 s{S_T}, s{S_T}, s{S_T+1}
    v_add_u32 v{RB}, s{S_T}, v{T+2}
    s_cmp_ge_u32 s{S_M}, 18
    s_cselect_b32 s{S_T}, {16 * 1152 - 18 * 64}, 0
    s_lshl_b32 s{S_T+1}, s{S_M}, 6
    s_add_u32 s{S_T}, s{S_T}, s{S_T+1}
    s_mul_i32 s{S_T+1}, s{S_WAVE}, 4608
    s_add_u32 s{S_T}, s{S_T}, s{S_T+1}
    v_lshrrev_b32 v{T+2}, 2, v{T}
    v_mul_u32_u24 v{T+2}, 1152, v{T+2}
    v_and_b32 v{T+3}, 3, v0
    v_lshl_add_u32 v{T+2}, v{T+3}, 4, v{T+2}
    v_lshl_add_u32 v{T+2}, v{T+1}, 3, v{T+2}
    v_add_u32 v{T+2}, s{S_T}, v{T+2}
    v_mov_b32 v{T+3}, 0x{OOB:x}
    v_cmp_gt_u32 vcc, 32, v0
    v_cndmask_b32 v{OA}, v{T+3}, v{T+2}, vcc
    v_add_u32 v{XW}, s{S_B}, v{L16}
    ''')
    a(f'''
    v_lshrrev_b32 v{T}, 5, v0
    v_bfe_u32 v{T+1}, v0, 2, 3
    v_lshl_add_u32 v{T}, v{T}, 4, v{T+1}
    v_mul_u32_u24 v{T}, 1152, v{T}
    v_and_b32 v{T+1}, 3, v0
    v_lshl_add_u32 v{TA}, v{T+1}, 4, v{T}
    v_add_u32 v{TA+1}, {2 * 36864}, v{TA}
    ''')
    for w in range(1, 4):
        a(f's_cmp_eq_u32 s{S_WAVE}, {w}'); a(f's_cbranch_scc1 L_ffn_w{w}')
    vm0 = list(vm.q)
    for w in range(4):
        tl = tiles_of(w)
        def WDF(ti, ks): return 368 + 4 * (ti * 4 + ks)
        a.label(f'L_ffn_w{w}')
        vm.q = list(vm0)
        for st in range(4):
            vm.wait(100 + st)
            a('s_barrier')
            for ti, (P, TT) in enumerate(tl):
                for p in range(2):
                    a(f'ds_read_b64_tr_b16 {ur(WDF(ti, st) + 2*p, 2)}, v{TA + (st >> 1)} offset:{(st % 2) * 36864 + p * 8 * 1152 + P * 64 + TT * 8}')
        a('s_waitcnt lgkmcnt(0)')
        th(a, opt, 4)
        a(f's_mul_i32 s{S_T}, s{S_G}, {2 * PF_SLOT}'); a(f's_mul_i32 s{S_T+1}, s{S_M}, 36864'); a(f's_add_u32 s{S_T}, s{S_T}, s{S_T+1}')
        if not opt.get('fe_ffn'): fill(a, L16, 32, [(S_T, PF + w * 9216), (S_T, PF + PF_SLOT + w * 9216)])
        th(a, opt, 5)
        if F4:
            lab = a.newlabel('L_f4')
            a(f's_cmp_lg_u32 s{S_G}, 3'); a(f's_cbranch_scc1 {lab}')
            meet(a, T, (DB_F4, 36, GO_F4), [(GO_F4, 1), (GO_AI, 1)], 'f4')
            a(f's_mov_b32 s{S_SEG}, {F4 + 3}')
            a(f's_branch {lab}_x')
            a.label(lab)
        meet(a, T, (DB_FI, 108, GO_FI), [(GO_FI, 1), (GO_AI, 1)], 'fi')
        a(f's_mov_b32 s{S_SEG}, s{S_G}')
        if F4: a.label(lab + '_x')
        tstamp(a, opt, 0)
        a(f's_mov_b32 s{S_N}, 0')
        S_SP = S_FP; PB = 19
        a(f's_mov_b32 s{S_SP}, 0')
        a(f'v_min_u32 v{PB}, 7, v0'); a(f'v_mul_u32_u24 v{PB}, 1152, v{PB}')
        if opt.get('vprobe') == 'x': a(f'v_add_u32 v{PB}, {w * 9216}, v{PB}')
        AW = T + 4; HV = 26
        a(f'''
        v_bfe_u32 v{T}, v0, 4, 1
        v_lshlrev_b32 v{T}, 10, v{T}
        v_lshrrev_b32 v{T+1}, 5, v0
        v_lshl_add_u32 v{T}, v{T+1}, 8, v{T}
        v_and_b32 v{T+1}, 15, v0
        v_lshl_add_u32 v{AW}, v{T+1}, 4, v{T}
        ''')
        L = f'L_ffn_l{w}'
        a.label(L)
        a(f's_mul_i32 s{S_OB}, s{S_SEG}, 36864'); a(f's_add_u32 s{S_T+1}, s{S_OB}, {XN2}')
        a(f's_add_u32 s{S_T}, s{S_OB}, {HB + w * 9216}')
        a(f's_bfe_u32 s{S_TAG}, s{S_N}, 0x10001'); a(f's_and_b32 s{S_Q}, s{S_N}, 1')
        a(f's_lshl1_add_u32 s{S_Q}, s{S_G}, s{S_Q}'); a(f's_mul_i32 s{S_Q}, s{S_Q}, {PF_SLOT}'); a(f's_add_u32 s{S_Q}, s{S_Q}, {PF}')
        S_NX = S_FC
        a(f's_cmp_ge_u32 s{S_SEG}, {F4 or 64}'); a(f's_addc_u32 s{S_NX}, s{S_SEG}, 3')
        tk(a, opt, 3)
        XL = 32
        spec = opt.get('fspec')
        if spec:
            a(f's_cmp_eq_u32 s{S_SP}, 0'); a(f's_cbranch_scc1 {L}_reg')
            a('s_waitcnt vmcnt(1)')
            for i in range(9): a(f'ds_read_b128 {vr(XL+4*i,4)}, v{XW} offset:{1024 * i}')
            for i in range(9):
                a(f's_waitcnt lgkmcnt({8 - i})')
                if i == 0: a(f'v_max_u32 v{T}, v{XL}, v{XL+2}')
                else: a(f'v_max3_u32 v{T}, v{T}, v{XL+4*i}, v{XL+4*i+2}')
            a(f'v_cmp_eq_u32 vcc, -1, v{T}')
            tk(a, opt, 4)
            a(f's_cbranch_vccz {L}_xok')
            if opt.get('wacc'): a(f's_add_u32 s{S_TM+26}, s{S_TM+26}, 0x10000')
            a.label(L + '_reg')
        if opt.get('vprobe'):
            LP = L + '_p'
            a.label(LP)
            a(f'buffer_load_dword v{T}, v{PB}, {WS}, s{S_T + (1 if opt["vprobe"] == "x" else 0)} offen sc1')
            a(f's_add_u32 s{S_SPIN}, s{S_SPIN}, 1')
            a(f's_cmp_ge_u32 s{S_SPIN}, {SPIN}')
            a('s_waitcnt vmcnt(0)')
            a(f's_cbranch_scc1 {LP}_x')
            a(f'v_cmp_eq_u32 vcc, -1, v{T}')
            a(f's_cbranch_vccnz {LP}')
            a.label(LP + '_x')
        else: spoll(a, None, None, [(1, f's{S_T}')], 'fh', sentinel=True)
        tk(a, opt, 4)
        tacc(a, opt, 3, 4, 12)
        def xl(g0):
            for i in range(3 * g0, 9): a(f'buffer_load_dwordx4 {vr(XL+4*i,4)}, v{DO+i}, {WS}, s{S_T+1} offen sc1')
        xl(0)
        for g3 in range(3):
            LX = f'L_ffn_x{w}_{g3}'
            a.label(LX)
            z = [XL + 4 * (3 * g3 + u) for u in range(3)]
            for u in range(3):
                a(f's_waitcnt vmcnt({8 - 3 * g3 - u})')
                a(f'ds_write_b128 v{XW}, {vr(z[u],4)} offset:{1024 * (3 * g3 + u)}')
                if u == 0: a(f'v_max_u32 v{T}, v{z[u]}, v{z[u]+2}')
                else: a(f'v_max3_u32 v{T}, v{T}, v{z[u]}, v{z[u]+2}')
            a(f'v_cmp_eq_u32 vcc, -1, v{T}')
            a(f's_cbranch_vccz {LX}_x')
            retry(a, LX + '_x')
            a('s_waitcnt lgkmcnt(0)')
            xl(g3)
            a(f's_branch {LX}')
            a.label(LX + '_x')
        a('s_waitcnt lgkmcnt(0)')
        a.label(L + '_xok')
        a('s_barrier')
        tk(a, opt, 5)
        if opt.get('wst'): a('s_waitcnt lgkmcnt(0)')
        lg = Cnt(a, 'lgkmcnt', 15)
        def rd(kk):
            a(f'ds_read_b128 {vr(XR[kk % 4], 4)}, v{XA + (kk & 3)} offset:{(kk >> 2) * 128}'); lg.issue(kk)
        for kk in range(3): rd(kk)
        a(f's_add_u32 s{S_T}, s{S_OB}, {HB}')
        for kk in range(36):
            lg.wait(kk)
            for m in range(2):
                a(f'{MF32} {vr(ACC[m],16)}, {ur(GU(m,kk),4)}, {vr(XR[kk%4],4)}, {"0" if kk == 0 else vr(ACC[m],16)}')
                if m == 0 and kk + 3 < 36: rd(kk + 3)
            if kk == 8: a(f'buffer_load_dwordx2 {vr(HV,2)}, v{OA}, {WS}, s{S_T} offen sc1')
        g, u = ACC
        tk(a, opt, 6)
        for r in range(16): a(f'v_max_f32 v{g+r}, 0, v{g+r}')
        for b in range(2):
            for r in range(4): a(f'v_pk_mul_f32 {vr(g+8*b+2*r,2)}, {vr(g+8*b+2*r,2)}, {vr(u+8*b+2*r,2)}')
            for d in range(4): a(f'v_cvt_pk_bf16_f32 v{g+8*b+d}, v{g+8*b+2*d}, v{g+8*b+2*d+1}')
            a(f'ds_write_b128 v{AW}, {vr(g+8*b,4)} offset:{ACTL + w * 2048 + b * 512}')
        a('s_waitcnt lgkmcnt(0)')
        a('s_barrier')
        for ks in range(4):
            for tt in range(2):
                a(f'ds_read_b128 {vr(AF+4*(2*ks+tt),4)}, v{L16} offset:{ACTL + ks * 2048 + tt * 1024}'); lg.issue((ks, tt))
        groups = [(gi, tt) for gi in range(5) for tt in range(2)]
        def fin(n):
            gi, tt = groups[n]; q = DA + 8 * (n & 1); P = tl[2 * gi][0]
            a(f's_add_u32 s{S_P}, s{S_Q}, {(tt * 18 + P) * 36864}')
            if gi < 4:
                for d in range(4): a(f'v_cvt_pk_bf16_f32 v{q+d}, v{q+2*d}, v{q+2*d+1}')
                for d in (0, 2): a(f'v_bfi_b32 v{q+d}, 1, s{S_TAG}, v{q+d}')
                a(f'buffer_store_dwordx4 {vr(q,4)}, v{PST}, {WS}, s{S_P} offen {opt.get("fsc", "sc1")}')
            else:
                for d in range(2): a(f'v_cvt_pk_bf16_f32 v{q+d}, v{q+2*d}, v{q+2*d+1}')
                a(f'v_bfi_b32 v{q}, 1, s{S_TAG}, v{q}')
                a(f'buffer_store_dwordx2 {vr(q,2)}, v{PST}, {WS}, s{S_P} offen offset:{8*tl[8][1]} {opt.get("fsc", "sc1")}')
        for n, (gi, tt) in enumerate(groups):
            for ks in range(4):
                if n < 2: lg.wait((ks, tt))
                for TT in range(2 if gi < 4 else 1):
                    q = DA + 8 * (n & 1) + 4 * TT
                    a(f'{MF} {vr(q,4)}, {ur(WDF(2*gi+TT,ks),4)}, {vr(AF+4*(2*ks+tt),4)}, {"0" if ks == 0 else vr(q,4)}')
                if ks == 1 and n > 0: fin(n - 1)
                if spec and ks == 3 and n == opt.get('spn', 7):
                    a(f's_mul_i32 s{S_T+1}, s{S_NX}, 36864'); a(f's_add_u32 s{S_T+1}, s{S_T+1}, {XN2}')
                    for r in range(8): a(f's_load_dword s{S_MK+r}, s[{S_WS}:{S_WS+1}], s{S_T+1} offset:{w * 9216 + r * 1152} glc')
        fin(9)
        tk(a, opt, 7)
        RA = 68; RR = 32
        def pl(g0):
            for u9 in range(3 * g0, 9):
                a(f's_add_u32 s{S_P}, s{S_Q}, {u9 * 4096}')
                a(f'buffer_load_dwordx4 {vr(RR+4*u9,4)}, v{RB}, {WS}, s{S_P} offen sc1')
        if opt.get('fwait') is not None:
            a(f's_waitcnt vmcnt({opt["fwait"]})'); tk(a, opt, 11)
        pl(0)
        tk(a, opt, 8)
        def red(extra):
            for g3 in range(3):
                LF = f'L_ffn_f{w}_{g3}'
                if not extra: a.label(LF)
                a(f's_waitcnt vmcnt({6 - 3 * g3 + extra})')
                z = [RR + 4 * (3 * g3 + u) for u in range(3)]
                for u in range(3): a(f'v_bitop3_b32 v{T+u}, v{z[u]}, v{z[u]+2}, s{S_TAG} bitop3:0x7e')
                a(f'v_or3_b32 v{T}, v{T}, v{T+1}, v{T+2}')
                a(f'v_and_b32 v{T}, 1, v{T}')
                if g3 == 0:
                    a(f'v_cmp_eq_u32 vcc, -1, v{HV}'); a(f'v_cndmask_b32 v{T}, v{T}, 1, vcc')
                a(f'v_cmp_eq_u32 vcc, 1, v{T}')
                if extra: a(f's_cbranch_vccnz {LF}_r')
                else:
                    a(f's_cbranch_vccz {LF}_x')
                    a.label(LF + '_r')
                    if opt.get('wacc'): a(f's_add_u32 s{S_TM+26}, s{S_TM+26}, 0x10000')
                    retry(a, LF + '_x')
                    if g3 == 0: a(f'buffer_load_dwordx2 {vr(HV,2)}, v{OA}, {WS}, s{S_T} offen sc1')
                    pl(g3)
                    a(f's_branch {LF}')
                    a.label(LF + '_x')
                if g3 == 0:
                    for d in range(2): a(f'v_lshlrev_b32 v{RA+2*d}, 16, v{HV+d}'); a(f'v_and_b32 v{RA+2*d+1}, 0xffff0000, v{HV+d}')
                if g3 == 2: tk(a, opt, 9)
                for u in range(3): a(f'{MF} {vr(RA,4)}, {vr(SEL,4)}, {vr(z[u],4)}, {vr(RA,4)}')
        if spec:
            a('s_waitcnt lgkmcnt(0)')
            for r in range(1, 8): a(f's_max_u32 s{S_MK}, s{S_MK}, s{S_MK+r}')
            a(f's_cmp_lt_u32 s{S_NX}, 64'); a(f's_cselect_b32 s{S_MK}, s{S_MK}, -1')
            a(f's_cmp_lg_u32 s{S_MK}, -1'); a(f's_cselect_b32 s{S_SP}, 1, 0')
            a(f's_cbranch_scc0 L_ffn_f{w}_0')
            x_dma(a, DO, S_T + 1, S_B)
            red(9)
            a(f's_branch {L}_out')
        red(0)
        a.label(L + '_out')
        tk(a, opt, 10)
        for d in range(2): a(f'v_cvt_pk_bf16_f32 v{RA+d}, v{RA+2*d}, v{RA+2*d+1}')
        a(f'buffer_store_dwordx2 {vr(RA,2)}, v{OA}, {R(OUT)}, s{S_OB} offen')
        tfirst(a, opt, f's_cmp_lt_u32 s{S_SEG}, 3')
        a(f's_mov_b32 s{S_SEG}, s{S_NX}'); a(f's_add_u32 s{S_N}, s{S_N}, 1')
        a(f's_cmp_lt_u32 s{S_SEG}, 64'); a(f's_cbranch_scc1 {L}')
        if opt.get('times'): a('s_waitcnt vmcnt(0)')
        finish(a, opt)

def roles(a, opt):
    if opt.get('xcc'): a(f's_getreg_b32 s{S_TM+24}, hwreg(HW_REG_XCC_ID)'); a(f's_getreg_b32 s{S_TM+26}, hwreg(HW_REG_HW_ID)')
    if opt.get('wacc'): a(f's_mov_b32 s{S_TM+24}, 0'); a(f's_mov_b32 s{S_TM+26}, 0')
    a(f's_cmp_ge_u32 s{S_ROLE}, 112'); a('s_cbranch_scc1 L_ffn')
    a(f's_cmp_ge_u32 s{S_ROLE}, 48'); a('s_cbranch_scc1 L_att')
    proj(a, opt); att(a, opt); ffn(a, opt)
```

```python
import sys, json
sys.path.insert(0, 'gen')
from asm import *
from lay import *
import os, importlib, workers
chain = importlib.import_module(os.environ.get('CHAIN', 'chain3'))
NAME = 'sequential_preLN__memory_aug_recurrent_mem_tr__glu_gated_reglu__prompt'

def build(opt):
    a = Asm(); a.timed = opt.get('timed', True)
    DBG = f's[{S_DBG}:{S_DBG+3}]'; WS = f's[{S_WS}:{S_WS+3}]'
    a(f's_cmp_ge_u32 s{S_WG}, 256'); a('s_cbranch_scc1 L_exit')
    if opt.get('times', False) or 'dly' in opt: a('s_memrealtime s[62:63]')
    a(f's_load_dwordx4 s[{S_DBG}:{S_DBG+3}], s[0:1], 96')
    if opt.get('opf'): a(f's_load_dwordx2 s[{S_R4}:{S_R4+1}], s[0:1], 40')
    a(f's_getreg_b32 s{S_T}, hwreg(HW_REG_XCC_ID)')
    a(f'v_readfirstlane_b32 s{S_WAVE}, v0')
    a(f's_and_b32 s{S_T}, s{S_T}, 15')
    a(f's_lshr_b32 s{S_WAVE}, s{S_WAVE}, 6')
    a('v_and_b32 v0, 63, v0')
    a('s_waitcnt lgkmcnt(0)')
    a(f's_mov_b32 s{S_WS}, s{S_DBG+2}'); a(f's_and_b32 s{S_WS+1}, s{S_DBG+3}, 0xffff')
    a(f's_mov_b32 s{S_WS+2}, {WS_BYTES}'); a(f's_mov_b32 s{S_WS+3}, 0x20000')
    a(f's_and_b32 s{S_DBG+1}, s{S_DBG+1}, 0xffff'); a(f's_mov_b32 s{S_DBG+2}, 256'); a(f's_mov_b32 s{S_DBG+3}, 0x20000')
    if opt.get('force_slow'): a(f's_or_b32 s{S_T}, s{S_T}, {opt["force_slow"]}')
    if opt.get('cpf'):
        nsh = opt['cpf']; per = 1024 // nsh // 2
        a(f's_cmp_lt_u32 s{S_WAVE}, 2'); a('s_cbranch_scc1 L_nocpf')
        a(f's_getpc_b64 s[{S_T+2}:{S_T+3}]')
        a.label('L_pc')
        a(f's_lshr_b32 s{S_T+1}, s{S_WG}, 3'); a(f's_and_b32 s{S_T+1}, s{S_T+1}, {nsh - 1}')
        a(f's_lshl1_add_u32 s{S_T+1}, s{S_T+1}, s{S_WAVE}'); a(f's_sub_u32 s{S_T+1}, s{S_T+1}, 2')
        a(f's_mul_i32 s{S_T+1}, s{S_T+1}, {per * 128}')
        a('v_lshlrev_b32 v1, 7, v0'); a(f'v_add_u32 v1, s{S_T+1}, v1')
        a(f's_mov_b32 s{S_T+1}, L_code_end-L_pc-4')
        for i in range(per // 64):
            a(f'v_min_u32 v2, s{S_T+1}, v1')
            a(f'v_mov_b32 v3, s{S_T+3}')
            a(f'v_add_co_u32 v2, vcc, s{S_T+2}, v2'); a('v_addc_co_u32 v3, vcc, 0, v3, vcc')
            a(f'global_load_dword v{4 + i}, v[2:3], off')
            a('v_add_u32 v1, 8192, v1')
        a('s_waitcnt vmcnt(0)')
        a('s_branch L_noticket')
        a.label('L_nocpf')
    def early():
        lab = a.newlabel('L_early')
        a(f's_cmp_lg_u32 s{S_T}, 0'); a(f's_cbranch_scc1 {lab}')
        if opt.get('ecp'):
            a(f's_getpc_b64 s[{S_T+2}:{S_T+3}]')
            a.label(lab + '_pc')
            a(f's_mov_b32 s{S_T+4}, L_chain-{lab}_pc')
            for w in range(1, 4): a(f's_cmp_eq_u32 s{S_WAVE}, {w}'); a(f's_cselect_b32 s{S_T+4}, L_chain_w{w}-{lab}_pc, s{S_T+4}')
            a('v_lshlrev_b32 v10, 6, v0'); a(f'v_add_u32 v10, s{S_T+4}, v10')
            for i in range(opt['ecp']):
                if i: a('v_add_u32 v10, 0x1000, v10')
                a(f'v_min_u32 v8, L_code_end-{lab}_pc-4, v10'); a(f'v_mov_b32 v9, s{S_T+3}')
                a(f'v_add_co_u32 v8, vcc, s{S_T+2}, v8'); a('v_addc_co_u32 v9, vcc, 0, v9, vcc')
                a('global_load_dword v255, v[8:9], off')
        if opt.get('opf'):
            a(f's_cmp_lt_u32 s{S_WAVE}, 2'); a(f's_cbranch_scc1 {lab}')
            a(f's_and_b32 s{S_R4+1}, s{S_R4+1}, 0xffff'); a(f's_mov_b32 s{S_R4+2}, 4718592'); a(f's_mov_b32 s{S_R4+3}, 0x20000')
            a(f's_bfe_u32 s{S_T+2}, s{S_WG}, 0x50003'); a(f's_mul_i32 s{S_T+2}, s{S_T+2}, 147456')
            a(f's_and_b32 s{S_T+3}, s{S_WAVE}, 1'); a(f's_lshl_b32 s{S_T+3}, s{S_T+3}, 12'); a(f's_add_u32 s{S_T+2}, s{S_T+2}, s{S_T+3}')
            a('v_lshlrev_b32 v8, 6, v0')
            for i in range(opt['opf']):
                a(f'buffer_load_dword v255, v8, s[{S_R4}:{S_R4+3}], s{S_T+2} offen')
                a(f's_add_u32 s{S_T+2}, s{S_T+2}, 8192')
        a.label(lab)
    if opt.get('ecp') or opt.get('opf'):
        a(f's_cmp_eq_u32 s{S_WAVE}, 0'); a('s_cbranch_scc1 L_nozero')
        early()
    a(f's_cmp_lg_u32 s{S_WAVE}, 1'); a('s_cbranch_scc1 L_nozero')
    a(f's_cmp_lt_u32 s{S_WG}, {256 - 2 * NZ}'); a('s_cbranch_scc1 L_noticket')
    a(f's_bitcmp0_b32 s{S_WG}, 0'); a('s_cbranch_scc1 L_noticket')
    a('v_mov_b64 v[4:5], 0'); a('v_mov_b64 v[6:7], 0'); a('v_lshlrev_b32 v3, 4, v0')
    a(f's_sub_u32 s{S_T+2}, s{S_WG}, {257 - 2 * NZ}'); a(f's_lshl_b32 s{S_T+2}, s{S_T+2}, 9')
    a(f'buffer_store_dwordx4 v[4:7], v3, {WS}, s{S_T+2} offen sc1')
    a('v_mov_b32 v1, 1')
    a('s_waitcnt vmcnt(0)')
    a('s_mov_b64 exec, 1')
    a(f'buffer_atomic_add v1, off, {DBG}, 0 offset:{DB_Z}')
    a('s_mov_b64 exec, -1')
    a('s_branch L_noticket')
    a.label('L_nozero')
    if opt.get('even', True):
        x1 = opt.get('x1', 'att')
        a(f's_cmp_lg_u32 s{S_WAVE}, 0'); a('s_cbranch_scc1 L_noticket')
        a('v_mov_b32 v2, 0')
        a('s_mov_b64 exec, 1')
        a('v_mov_b32 v1, 1')
        a(f's_and_b32 s{S_T}, s{S_T}, 7')
        a(f's_lshl_b32 s{S_T+2}, s{S_T}, 2'); a(f's_add_u32 s{S_T+2}, s{S_T+2}, {DB_CX - 8}')
        a(f's_cmp_eq_u32 s{S_T}, 1'); a(f's_cselect_b32 s{S_T+2}, {DB_C1}, s{S_T+2}')
        a(f's_cmp_eq_u32 s{S_T}, 0'); a(f's_cselect_b32 s{S_T+2}, {DB_CT}, s{S_T+2}')
        a(f'buffer_atomic_add v1, off, {DBG}, s{S_T+2} sc0')
        if opt.get('ecp'):
            a('s_mov_b64 exec, -1'); o_ = opt.pop('opf', None); early(); opt['opf'] = o_; a('s_mov_b64 exec, 1')
            a(f's_cmp_eq_u32 s{S_T}, 0'); a('s_cbranch_scc0 L_tk0')
            a(f's_waitcnt vmcnt({opt["ecp"]})'); a('s_branch L_tk1')
            a.label('L_tk0')
        a('s_waitcnt vmcnt(0)')
        a.label('L_tk1')
        a(f's_lshl_b32 s{S_T+2}, s{S_T}, 16')
        a(f'v_readfirstlane_b32 s{S_T+1}, v1')
        a(f'v_or_b32 v1, s{S_T+2}, v1')
        a(f's_cmp_lt_u32 s{S_T+1}, 32'); a('s_cbranch_scc1 L_ticket')
        a('v_mov_b32 v1, 1')
        a(f'buffer_atomic_add v1, off, {DBG}, 0 offset:{DB_WT} sc0')
        a('s_waitcnt vmcnt(0)')
        a('v_or_b32 v1, 0x80000, v1')
        a.label('L_ticket')
        a('ds_write_b32 v2, v1')
        a('s_waitcnt lgkmcnt(0)')
        a('s_mov_b64 exec, -1')
        a.label('L_noticket')
        a('s_barrier')
        a('v_mov_b32 v2, 0'); a('ds_read_b32 v1, v2'); a('s_waitcnt lgkmcnt(0)')
        a(f'v_readfirstlane_b32 s{S_T+1}, v1')
        a('s_barrier')
        a(f's_and_b32 s{S_ROLE}, s{S_T+1}, 0xffff')
        a(f's_lshr_b32 s{S_T}, s{S_T+1}, 16')
        a(f's_cmp_lt_u32 s{S_T}, 8'); a('s_cbranch_scc1 L_drawn')
        a(f's_mov_b32 s{S_T+3}, 0')
        a('v_lshlrev_b32 v2, 2, v0'); a(f'v_add_u32 v2, {DB_CX - 8}, v2')
        a(f'v_mov_b32 v3, {DB_CT}'); a('v_cmp_eq_u32 vcc, 0, v0'); a('v_cndmask_b32 v2, v2, v3, vcc')
        a(f'v_mov_b32 v3, {DB_C1}'); a('v_cmp_eq_u32 vcc, 1, v0'); a('v_cndmask_b32 v2, v2, v3, vcc')
        a(f'v_mov_b32 v3, {DB_WT}'); a('v_cmp_lt_u32 vcc, 7, v0'); a('v_cndmask_b32 v2, v2, v3, vcc')
        a.label('L_spare')
        a(f'buffer_load_dword v1, v2, {DBG}, 0 offen sc1')
        a(f's_add_u32 s{S_T+3}, s{S_T+3}, 1')
        a('s_waitcnt vmcnt(0)')
        a(f'v_readlane_b32 s{S_T+1}, v1, 8')
        a('v_min_u32 v1, 32, v1')
        a(f's_cmp_ge_u32 s{S_T+3}, {chain.SPIN}'); a('s_cbranch_scc1 L_exit')
        for k in range(8): a(f'v_readlane_b32 s{S_T+2}, v1, {k}'); a(f's_add_u32 s{S_T+1}, s{S_T+1}, s{S_T+2}')
        a(f's_cmp_lt_u32 s{S_T+1}, 256'); a('s_cbranch_scc1 L_spare')
        for k in range(8):
            a(f'v_readlane_b32 s{S_T+2}, v1, {k}')
            a(f's_mov_b32 s{S_T}, {k}')
            a(f's_add_u32 s{S_ROLE}, s{S_ROLE}, s{S_T+2}')
            a(f's_cmp_lt_u32 s{S_ROLE}, 32'); a('s_cbranch_scc1 L_drawn')
            a(f's_sub_u32 s{S_ROLE}, s{S_ROLE}, 32')
        a('s_branch L_exit')
        a.label('L_drawn')
        a(f's_cmp_eq_u32 s{S_T}, 0'); a('s_cbranch_scc1 L_chain')
        a(f's_mul_i32 s{S_T+1}, s{S_ROLE}, 6'); a(f's_add_u32 s{S_T+1}, s{S_T+1}, s{S_T}'); a(f's_sub_u32 s{S_T+1}, s{S_T+1}, 2')
        a(f's_sub_u32 s{S_ROLE}, 223, s{S_ROLE}')
        a(f's_cmp_eq_u32 s{S_T}, 1'); a(f's_cselect_b32 s{S_ROLE}, s{S_ROLE}, s{S_T+1}')
    else:
        x1 = opt.get('x1', 'att')
        a(f's_cmp_lg_u32 s{S_WAVE}, 0'); a('s_cbranch_scc1 L_noticket')
        a('v_mov_b32 v2, 0')
        a('s_mov_b64 exec, 1')
        a(f's_cmp_gt_u32 s{S_T}, {1 if x1 else 0}'); a('s_cbranch_scc1 L_wticket')
        a('v_mov_b32 v1, 1')
        a(f's_mul_i32 s{S_T+2}, s{S_T}, {DB_C1 - DB_CT}')
        a(f'buffer_atomic_add v1, off, {DBG}, s{S_T+2} offset:{DB_CT} sc0')
        a(f's_add_u32 s{S_T+2}, s{S_T}, 1'); a(f's_lshl_b32 s{S_T+2}, s{S_T+2}, 16')
        a('s_waitcnt vmcnt(0)')
        a(f'v_readfirstlane_b32 s{S_T+1}, v1')
        a(f'v_or_b32 v1, s{S_T+2}, v1')
        a(f's_cmp_lt_u32 s{S_T+1}, 32'); a('s_cbranch_scc1 L_ticket')
        a.label('L_wticket')
        a('v_mov_b32 v1, 1')
        a(f'buffer_atomic_add v1, off, {DBG}, 0 offset:{DB_WT} sc0')
        a('s_waitcnt vmcnt(0)')
        a.label('L_ticket')
        a('ds_write_b32 v2, v1')
        a('s_waitcnt lgkmcnt(0)')
        a('s_mov_b64 exec, -1')
        a.label('L_noticket')
        a('s_barrier')
        a('v_mov_b32 v2, 0'); a('ds_read_b32 v1, v2'); a('s_waitcnt lgkmcnt(0)')
        a(f'v_readfirstlane_b32 s{S_T+1}, v1')
        a('s_barrier')
        a(f's_and_b32 s{S_ROLE}, s{S_T+1}, 0xffff')
        a(f's_bitcmp1_b32 s{S_T+1}, 16'); a('s_cbranch_scc1 L_chain')
        a(f's_bitcmp0_b32 s{S_T+1}, 17'); a('s_cbranch_scc1 L_front')
        a(f's_sub_u32 s{S_ROLE}, 223, s{S_ROLE}')
        a('s_branch L_list')
        a.label('L_front')
        a(f's_cmp_lt_u32 s{S_ROLE}, {192 if x1 else 220}'); a('s_cbranch_scc1 L_list')
        a(f's_mov_b32 s{S_T+3}, 0')
        a.label('L_spare')
        a(f'buffer_load_dword v1, off, {DBG}, 0 offset:{DB_CT} sc1')
        a(f'buffer_load_dword v2, off, {DBG}, 0 offset:{DB_WT} sc1')
        a(f'buffer_load_dword v3, off, {DBG}, 0 offset:{DB_C1} sc1')
        a(f's_add_u32 s{S_T+3}, s{S_T+3}, 1')
        a('s_waitcnt vmcnt(0)')
        a(f'v_readfirstlane_b32 s{S_T+2}, v1'); a(f'v_readfirstlane_b32 s{S_T+1}, v2'); a(f'v_readfirstlane_b32 s{S_T}, v3')
        a(f's_cmp_ge_u32 s{S_T+3}, {chain.SPIN}'); a('s_cbranch_scc1 L_exit')
        a(f's_min_u32 s{S_T+2}, s{S_T+2}, 32'); a(f's_min_u32 s{S_T}, s{S_T}, 32')
        a(f's_add_u32 s{S_T+1}, s{S_T+1}, s{S_T+2}'); a(f's_add_u32 s{S_T+1}, s{S_T+1}, s{S_T}')
        a(f's_cmp_lt_u32 s{S_T+1}, 256'); a('s_cbranch_scc1 L_spare')
        a(f's_sub_u32 s{S_T}, 224, s{S_T}')
        a(f's_cmp_lt_u32 s{S_ROLE}, s{S_T}'); a('s_cbranch_scc1 L_list')
        a(f's_sub_u32 s{S_ROLE}, s{S_ROLE}, s{S_T}')
        a(f's_add_u32 s{S_ROLE}, s{S_ROLE}, s{S_T+2}')
        a(f's_cmp_lt_u32 s{S_ROLE}, 32'); a('s_cbranch_scc1 L_chain')
        a('s_branch L_exit')
    a.label('L_list')
    if x1 == 'att2':
        a(f's_cmp_lt_u32 s{S_ROLE}, 48'); a('s_cbranch_scc1 L_roles')
        a(f's_cmp_lt_u32 s{S_ROLE}, 80'); a(f's_cselect_b32 s{S_T}, 16, 32')
        a(f's_cmp_lt_u32 s{S_ROLE}, 192'); a(f's_cselect_b32 s{S_T}, s{S_T}, -144')
        a(f's_cmp_lt_u32 s{S_ROLE}, 208'); a(f's_cselect_b32 s{S_T}, s{S_T}, -112')
        a(f's_add_u32 s{S_ROLE}, s{S_ROLE}, s{S_T}')
    a(f's_cmp_ge_u32 s{S_ROLE}, 220'); a('s_cbranch_scc1 L_exit')
    if x1 == 'att':
        a(f's_cmp_lt_u32 s{S_ROLE}, 84'); a('s_cbranch_scc1 L_roles')
        a(f's_cmp_lt_u32 s{S_ROLE}, 192'); a(f's_cselect_b32 s{S_T}, 28, -108')
        a(f's_add_u32 s{S_ROLE}, s{S_ROLE}, s{S_T}')
    a('s_branch L_roles')
    a.label('L_exit')
    a('s_endpgm')
    a.label('L_roles')
    for _ in range(opt.get('pad', 0)): a('s_nop 0')
    if opt.get('flags'): workers.roles(a, opt)
    else: a('s_endpgm')
    chain.entry(a, opt)
    a.label('L_code_end')
    n = a.fix(verbose=opt.get('verbose', False))
    head = open('cdna_kernels/' + NAME + '.s.ref').read().split('\n')
    hdr = [l for l in head if l.startswith(';') and '@launch' not in l]
    hdr = hdr[:[i for i, l in enumerate(hdr) if 'Override launch' in l][0]]
    out = '\n'.join(hdr) + '\n; @launch grid=(256,1,1) block=(256,1,1) lds=163840\n'
    out += f'''.amdgcn_target "amdgcn-amd-amdhsa--gfx950"
.text
.globl {NAME}_kernel
.p2align 8
.type {NAME}_kernel,@function
{NAME}_kernel:
''' + a.text() + f'''.section .rodata,"a"
.p2align 6
.amdhsa_kernel {NAME}_kernel
  .amdhsa_next_free_vgpr 512
  .amdhsa_next_free_sgpr 102
  .amdhsa_accum_offset 256
  .amdhsa_group_segment_fixed_size 0
  .amdhsa_kernarg_size 112
  .amdhsa_user_sgpr_count 2
  .amdhsa_user_sgpr_kernarg_segment_ptr 1
  .amdhsa_system_sgpr_workgroup_id_x 1
.end_amdhsa_kernel
'''
    return out

if __name__ == '__main__':
    opt = json.loads(sys.argv[2]) if len(sys.argv) > 2 else {}
    open(sys.argv[1], 'w').write(build(opt))
```

```python
FLAGS = 0
HOPA = 0x10000; HOPA_SLOT = 72 * 4096
HOPB = HOPA + 2 * HOPA_SLOT; HOPB_SLOT = 9216
HOPA_E = HOPA + HOPA_SLOT; HOPB_E = HOPB + 3 * HOPB_SLOT
TIMES = 0xB0000
XN = 0x100000
HB = 0x400000
XN2 = 0x700000
KM = 0xA00000
VM = 0xE00000
QX = 0x1200000
KX = 0x2200000
VX = 0x3200000
PA = 0x4200000
PA_SLOT = 16 * 36864
PF = 0x4800000
PF_SLOT = 36 * 36864
KM2 = 0x6000000
WS_BYTES = 268435456
assert HOPB + 6 * HOPB_SLOT <= TIMES
assert PA + 9 * PA_SLOT <= PF and PF + 8 * PF_SLOT <= WS_BYTES
OOB = 0x80000000
F_PROJ = 0
F_CHAIN = 48
DB_WT = 0
DB_Z = 4
DB_CI = 8
DB_X = 12
DB_P = 16
DB_C = 20
DB_AI = 24
DB_FI = 28
DB_F4 = 64; GO_F4 = 156
DB_CX = 96
DB_CT = 128
DB_C1 = 152
GO_X = 132; GO_P = 136; GO_C = 140; GO_AI = 144; GO_FI = 148
DB_X0 = 68; GO_X0 = 160; GO_Z = 164
NZ = 10
def flag(line): return FLAGS + line * 128
def km_sel(a, opt, s):
    if opt['kmn'] == 3: a(f's_mov_b32 s{s}, {opt.get("kmb", KM2)}'); return
    a(f's_sub_u32 s{s}, {0x2000 if opt["kmn"] == 1 else 0x4000}, s{S_WS}'); a(f's_and_b32 s{s}, s{s}, 0x3fff'); a(f's_add_u32 s{s}, s{s}, {opt.get("kmb", KM2)}')
def km_sh(opt): return 13 if opt['kmn'] == 3 else 14

S_WG = 2
S_WS = 4
S_DBG = 8
S_R0 = 12
S_R1 = 16
S_R2 = 20
S_R3 = 24
S_R4 = 28
S_ROLE = 32
S_WAVE = 33
S_T = 34
```

```python
from asm import *
from lay import *
SPIN = 1 << 18
S_SEG = 40; S_SPIN = 50; S_P = 51; S_Q = 41; S_B = 42; S_M = 43; S_G = 44; S_OB = 45
S_C = 46
S_MK = 52
S_TM = 64
WS = f's[{S_WS}:{S_WS+3}]'; DBG = f's[{S_DBG}:{S_DBG+3}]'
MF32 = 'v_mfma_f32_32x32x16_bf16'; MF = 'v_mfma_f32_16x16x32_bf16'; MH = 'v_mfma_f32_16x16x16_bf16'
def NT(opt, k): return ' ' + opt.get('ntm', 'nt') if k in opt.get('nt', '') else ''
def R(i): return f's[{i}:{i+3}]'

def srd_fix(a, r, nbytes):
    a(f's_and_b32 s{r+1}, s{r+1}, 0xffff'); a(f's_mov_b32 s{r+2}, {nbytes}'); a(f's_mov_b32 s{r+3}, 0x20000')

def poll(a, vaddr, srd, soff, sval, tmp, name, imm=0):
    lab = a.newlabel('L_' + name)
    a.label(lab)
    if vaddr is None: a(f'buffer_load_dword v{tmp}, off, {srd}, {soff} offset:{imm} sc1')
    else: a(f'buffer_load_dword v{tmp}, v{vaddr}, {srd}, {soff} offen offset:{imm} sc1')
    a(f's_add_u32 s{S_SPIN}, s{S_SPIN}, 1')
    a(f's_cmp_ge_u32 s{S_SPIN}, {SPIN}')
    a('s_waitcnt vmcnt(0)')
    a(f's_cbranch_scc1 {lab}_x')
    a(f'v_cmp_ge_u32 vcc, {sval}, v{tmp}')
    a(f's_cbranch_vccnz {lab}')
    a.label(lab + '_x')

S_FP = 48; S_FC = 49; S_TAG = 60; S_SL = 61; S_FA = 92
S_LOC = 39; S_SPL = 38; S_N = 95; S_FV = 96
def spoll(a, cache, need, loads, name, sentinel=False):
    lab = a.newlabel('L_' + name)
    if not sentinel: a(f's_cmp_ge_u32 s{cache}, {need}'); a(f's_cbranch_scc1 {lab}_x')
    a.label(lab)
    r = S_FV; regs = []
    for n, off in loads:
        a(f's_load_dword{"" if n == 1 else "x%d" % n} {sr(r, n)}, s[{S_WS}:{S_WS+1}], {off} glc')
        regs += list(range(r, r + n)); r += n
    a(f's_add_u32 s{S_SPIN}, s{S_SPIN}, 1')
    a(f's_cmp_ge_u32 s{S_SPIN}, {SPIN}'); a(f's_cbranch_scc1 {lab}_y')
    a('s_waitcnt lgkmcnt(0)')
    if sentinel:
        a(f's_cmp_eq_u32 s{S_FV}, -1')
    else:
        if len(regs) == 1: a(f's_mov_b32 s{cache}, s{regs[0]}')
        else:
            a(f's_min_u32 s{cache}, s{regs[0]}, s{regs[1]}')
            for x in regs[2:]: a(f's_min_u32 s{cache}, s{cache}, s{x}')
        a(f's_cmp_lt_u32 s{cache}, {need}')
    a(f's_cbranch_scc1 {lab}')
    a.label(lab + '_y')
    a('s_waitcnt lgkmcnt(0)')
    a.label(lab + '_x')

def dpoll(a, T, words, name):
    for off, need in words: poll(a, None, DBG, 0, str(need - 1), T, name, off)

def count(a, T, cnt, total, go):
    lab = a.newlabel('L_cnt')
    a(f'v_mov_b32 v{T}, 1'); a('s_mov_b64 exec, 1')
    a(f'buffer_atomic_add v{T}, off, {DBG}, 0 offset:{cnt} sc0')
    a('s_waitcnt vmcnt(0)')
    a(f'v_readfirstlane_b32 s{S_P}, v{T}')
    a(f'v_mov_b32 v{T}, 1')
    a(f's_cmp_lg_u32 s{S_P}, {total - 1}'); a(f's_cbranch_scc1 {lab}')
    a(f'buffer_store_dword v{T}, off, {DBG}, 0 offset:{go} sc1')
    a.label(lab)
    a('s_mov_b64 exec, -1')

def meet(a, T, cnt, words, name, pre=None, post=None):
    lab = a.newlabel('L_meet')
    if cnt:
        a('s_waitcnt vmcnt(0)')
        a('s_barrier')
    a(f's_cmp_lg_u32 s{S_WAVE}, 0'); a(f's_cbranch_scc1 {lab}')
    if pre: pre()
    if cnt: count(a, T, *cnt)
    dpoll(a, T, words, name)
    if post: post()
    a.label(lab)
    if words: a('s_barrier')

def qgate(a, T, g):
    a(f's_and_b32 s{S_P}, s{S_ROLE}, 31'); a(f's_lshl_b32 s{S_P}, s{S_P}, 7'); a(f's_add_u32 s{S_P}, s{S_P}, {flag(F_PROJ) if g[0] == "q" else flag(F_CHAIN) + 4}')
    poll(a, None, WS, f's{S_P}', str(int(g[1:] or 1) - 1), T, 'qg')

def fill(a, L16, T, sbases):
    a(f'v_mov_b64 {vr(T,2)}, -1'); a(f'v_mov_b64 {vr(T+2,2)}, -1')
    for sb, base in sbases:
        for i in range(9):
            if i % 4 == 0: a(f's_add_u32 s{S_P}, s{sb}, {base + i * 1024}')
            a(f'buffer_store_dwordx4 {vr(T,4)}, v{L16}, {WS}, s{S_P} offen offset:{(i & 3) * 1024} sc1')

def retry(a, lab_ok):
    a(f's_add_u32 s{S_SPIN}, s{S_SPIN}, 1')
    a(f's_cmp_ge_u32 s{S_SPIN}, {SPIN}'); a(f's_cbranch_scc1 {lab_ok}')

def tstamp(a, opt, i):
    if opt.get('times'): a(f's_memrealtime s[{S_TM+2*i}:{S_TM+2*i+1}]'); a('s_waitcnt lgkmcnt(0)')
def tk(a, opt, i):
    if opt.get('wst'): a(f's_memrealtime s[{S_TM+2*i}:{S_TM+2*i+1}]')
def tacc(a, opt, i, j, k):
    if opt.get('wacc'):
        a('s_waitcnt lgkmcnt(0)'); a(f's_sub_u32 s{S_TM+2*i+1}, s{S_TM+2*j}, s{S_TM+2*i}'); a(f's_add_u32 s{S_TM+2*k}, s{S_TM+2*k}, s{S_TM+2*i+1}')
        a(f's_cmp_gt_u32 s{S_TM+2*i+1}, {opt["wacc"]}'); a(f's_addc_u32 s{S_TM+2*k+2}, s{S_TM+2*k+2}, 0')
def th(a, opt, i):
    if opt.get('hst'): a(f's_memrealtime s[{S_TM+2*i}:{S_TM+2*i+1}]'); a('s_waitcnt lgkmcnt(0)')
def tfirst(a, opt, first_cond):
    if opt.get('times'):
        lab = a.newlabel('L_tf'); a(first_cond); a(f's_cbranch_scc0 {lab}'); tstamp(a, opt, 1); a.label(lab)
def finish(a, opt):
    if opt.get('wdl'):
        lo, hi, i = opt['wdl']; lab = a.newlabel('L_wdl')
        a(f's_cmp_lt_u32 s{S_ROLE}, {lo}'); a(f's_cbranch_scc1 {lab}_x'); a(f's_cmp_ge_u32 s{S_ROLE}, {hi}'); a(f's_cbranch_scc1 {lab}_x')
        a('s_add_u32 s63, s62, 20000')
        if i >= 0: a(f's_sub_u32 s{S_T}, s{S_TM+2*i}, s62'); a(f's_lshl2_add_u32 s63, s{S_T}, s63')
        a.label(lab)
        a(f's_memrealtime s[{S_T}:{S_T+1}]'); a('s_waitcnt lgkmcnt(0)')
        a(f's_sub_u32 s{S_T}, s{S_T}, s63'); a(f's_cmp_lt_i32 s{S_T}, 0'); a(f's_cbranch_scc1 {lab}')
        a.label(lab + '_x')
    if opt.get('times'):
        tstamp(a, opt, 2)
        a(f's_add_u32 s{S_T}, s{S_ROLE}, 32'); a(f's_lshl_b32 s{S_T}, s{S_T}, 2'); a(f's_add_u32 s{S_T}, s{S_T}, s{S_WAVE}')
        a(f's_lshl_b32 s{S_T}, s{S_T}, 6'); a(f's_add_u32 s{S_T}, s{S_T}, {TIMES}')
        for i, r in enumerate([62] + [S_TM + 2 * k for k in range(14)]):
            a(f'v_mov_b32 v1, s{r}'); a(f'buffer_store_dword v1, off, {WS}, s{S_T} offset:{4*i}')
        if opt.get('dbgt'):
            a('s_mov_b64 exec, 1')
            a('s_not_b32 s63, s62')
            for r, o in ((63, 32), (62, 48), (S_TM + 4, 44), (S_TM, 52), (S_TM + 2, 56)):
                a(f'v_mov_b32 v1, s{r}'); a(f'buffer_atomic_umax v1, off, {DBG}, 0 offset:{o}')
    a('s_endpgm')

def x_consts(a, DO, XA, T):
    a(f's_mul_i32 s{S_T}, s{S_WAVE}, 576')
    a(f's_mov_b32 s{S_T+1}, 58255')
    for i in range(9):
        a(f'''
        v_add_u32 v{T}, s{S_T}, v0
        v_add_u32 v{T}, {64*i}, v{T}
        v_mul_lo_u32 v{T+1}, v{T}, s{S_T+1}
        v_lshrrev_b32 v{T+1}, 22, v{T+1}
        v_mul_u32_u24 v{T+2}, 72, v{T+1}
        v_sub_u32 v{T+2}, v{T}, v{T+2}
        v_bfe_u32 v{T+3}, v{T+1}, 1, 3
        v_xor_b32 v{T+2}, v{T+2}, v{T+3}
        v_mul_u32_u24 v{T+1}, 1152, v{T+1}
        v_lshl_add_u32 v{DO+i}, v{T+2}, 4, v{T+1}
        ''')
    a(f'''
    v_and_b32 v{T}, 31, v0
    v_lshrrev_b32 v{T+1}, 5, v0
    v_bfe_u32 v{T+2}, v{T}, 1, 3
    v_mul_u32_u24 v{T}, 1152, v{T}
    ''')
    for m in range(4):
        a(f'v_add_u32 v{T+3}, {2*m}, v{T+1}'); a(f'v_xor_b32 v{T+3}, v{T+3}, v{T+2}'); a(f'v_lshl_add_u32 v{XA+m}, v{T+3}, 4, v{T}')
assert all((x * 58255) >> 22 == x // 72 for x in range(2304))

def x_dma(a, DO, soff, sbuf):
    for i in range(9):
        if i == 0: a(f's_mov_b32 m0, s{sbuf}')
        else: a(f's_add_u32 m0, s{sbuf}, {1024*i}')
        a(f'buffer_load_dwordx4 v{DO+i}, {WS}, s{soff} offen sc1 lds')

def sel(a, dst, T, mode):
    a(f'v_and_b32 v{T}, 15, v0')
    if mode == 'hi': a(f'v_xor_b32 v{T}, 8, v{T}')
    if mode == 'dup': a(f'v_and_b32 v{T}, 7, v{T}')
    a(f'v_and_b32 v{T+1}, 1, v{T}'); a(f'v_lshlrev_b32 v{T+1}, 4, v{T+1}')
    a(f'v_mov_b32 v{T+2}, 0x3f80'); a(f'v_lshlrev_b32 v{T+2}, v{T+1}, v{T+2}')
    a(f'v_lshrrev_b32 v{T}, 1, v{T}')
    for d in range(4):
        a(f'v_cmp_eq_u32 vcc, {d}, v{T}'); a(f'v_cndmask_b32 v{dst+d}, 0, v{T+2}, vcc')

def proj(a, opt):
    DO = 1; XA = 10; ST = 14; TA = 15; ACC = [16, 32]; XR = [48, 52, 56, 60]; T = 64; FV = 70
    def W(kk, cb): return ur(224 + 8 * kk + 4 * cb, 4)
    a.label('L_proj')
    if opt.get('pdl'):
        a.label('L_pdl'); a('s_memrealtime s[64:65]'); a('s_waitcnt lgkmcnt(0)'); a('s_sub_u32 s64, s64, s62'); a(f's_cmp_lt_u32 s64, {opt["pdl"] * 100}'); a('s_cbranch_scc1 L_pdl')
    a(f's_load_dwordx4 s[{S_R1}:{S_R1+3}], s[0:1], 16')
    a(f's_load_dwordx2 s[{S_R2}:{S_R2+1}], s[0:1], 32')
    if opt.get('pln'): a(f's_load_dwordx2 s[{S_R3}:{S_R3+1}], s[0:1], 0')
    a(f's_mov_b32 s{S_SPIN}, 0')
    a('s_waitcnt lgkmcnt(0)')
    a(f's_and_b32 s{S_T+2}, s{S_WAVE}, 1')
    a(f's_cmp_lt_u32 s{S_ROLE}, 32'); a('s_cbranch_scc1 L_proj_kv')
    a(f's_mov_b32 s{S_R0}, s{S_R1}'); a(f's_mov_b32 s{S_R0+1}, s{S_R1+1}')
    a(f's_sub_u32 s{S_T}, s{S_ROLE}, 32'); a(f's_lshl_b32 s{S_T}, s{S_T}, 1'); a(f's_lshr_b32 s{S_T+1}, s{S_WAVE}, 1'); a(f's_add_u32 s{S_T}, s{S_T}, s{S_T+1}')
    a(f's_mov_b32 s{S_OB}, {QX}'); a(f's_mov_b32 s{S_G}, 0')
    a('s_branch L_proj_j')
    a.label('L_proj_kv')
    a(f's_mov_b32 s{S_T}, s{S_ROLE}')
    a(f's_cmp_ge_u32 s{S_WAVE}, 2'); a('s_cbranch_scc1 L_proj_v')
    a(f's_mov_b32 s{S_R0}, s{S_R1+2}'); a(f's_mov_b32 s{S_R0+1}, s{S_R1+3}')
    a(f's_mov_b32 s{S_OB}, {KX}'); a(f's_mov_b32 s{S_G}, 0')
    a('s_branch L_proj_j')
    a.label('L_proj_v')
    a(f's_mov_b32 s{S_R0}, s{S_R2}'); a(f's_mov_b32 s{S_R0+1}, s{S_R2+1}')
    a(f's_mov_b32 s{S_OB}, {VX}'); a(f's_mov_b32 s{S_G}, 1')
    a.label('L_proj_j')
    srd_fix(a, S_R0, 4718592)
    a(f's_lshl_b32 s{S_T+1}, s{S_T}, 13'); a(f's_add_u32 s{S_OB}, s{S_OB}, s{S_T+1}')
    a(f's_add_u32 s{S_T+3}, s{S_G}, 11'); a(f's_lshl_b32 s{S_T+1}, s{S_T+2}, s{S_T+3}'); a(f's_add_u32 s{S_OB}, s{S_OB}, s{S_T+1}')
    a(f's_lshl_b32 s{S_T}, s{S_T}, 8'); a(f's_lshl_b32 s{S_T+2}, s{S_T+2}, 7'); a(f's_add_u32 s{S_T}, s{S_T}, s{S_T+2}')
    pq = opt.get('pq'); NS = 30 if pq else 32; XB0 = 4 * NS * 1024
    a(f's_mul_i32 s{S_B}, s{S_WAVE}, {NS * 1024}')
    a(f'''
    v_lshrrev_b32 v{T}, 3, v0
    v_and_b32 v{T+1}, 7, v0
    v_lshlrev_b32 v{T}, 13, v{T}
    v_lshl_add_u32 v{T}, v{T+1}, 4, v{T}
    v_add_u32 v{FV+1}, s{S_T}, v{T}
    ''')
    vm = Cnt(a, 'vmcnt', 63)
    def dma(i):
        a(f's_add_u32 m0, s{S_B}, {(i % NS) * 1024}'); a(f's_mov_b32 s{S_P}, {i * 65536}')
        a(f'buffer_load_dwordx4 v{FV+1}, {R(S_R0)}, s{S_P} offen{NT(opt, "p")} lds'); vm.issue(i)
    if opt.get('gate_q'):
        lab = a.newlabel('L_gq')
        a(f's_cmp_lt_u32 s{S_ROLE}, 32'); a(f's_cbranch_scc1 {lab}')
        meet(a, T, None, [({'x': GO_X, 'x0': GO_X0}[opt['gate_q']], 1)], 'gq')
        a.label(lab)
    pln = opt.get('pln')
    if pln:
        LX = 16; LF = 80; LT = 52
        srd_fix(a, S_R3, 2359296)
        a(f's_mul_i32 s{S_Q}, s{S_WAVE}, 9216')
        a(f'v_lshrrev_b32 v{LT+1}, 3, v0'); a(f'v_mul_u32_u24 v{LT}, 1152, v{LT+1}'); a(f'v_and_b32 v{LT+2}, 7, v0'); a(f'v_lshl_add_u32 v{LT+3}, v{LT+2}, 4, v{LT}')
        for i in range(9): a(f'buffer_load_dwordx4 {vr(LX+4*i,4)}, v{LT+3}, {R(S_R3)}, s{S_Q} offen offset:{128*i}'); vm.issue('lx')
        a(f's_lshl_b32 s{S_T}, s{S_WAVE}, 2'); a(f'v_lshrrev_b32 v{LT+1}, 1, v{LT+1}'); a(f'v_add_u32 v{LT+1}, s{S_T}, v{LT+1}')
        a(f'v_xor_b32 v{LT+1}, v{LT+1}, v{LT+2}'); a(f'v_and_b32 v{LT+1}, 7, v{LT+1}'); a(f'v_lshl_add_u32 v{LT}, v{LT+1}, 4, v{LT}')
        a(f's_add_u32 s{S_Q}, s{S_Q}, {XB0}'); a(f'v_add_u32 v{LT}, s{S_Q}, v{LT}')
    gp = opt.get('gate_proj')
    if gp is not None:
        for i in range(gp): dma(i)
        meet(a, T, None, [(GO_X, 1)], 'gp')
    for i in range(gp or 0, NS): dma(i)
    a(f'''
    v_lshrrev_b32 v{T}, 5, v0
    v_bfe_u32 v{T+1}, v0, 2, 2
    v_lshl_add_u32 v{T}, v{T}, 3, v{T+1}
    v_lshlrev_b32 v{T}, 7, v{T}
    v_bfe_u32 v{T+1}, v0, 4, 1
    v_lshl_add_u32 v{T}, v{T+1}, 5, v{T}
    v_and_b32 v{T+1}, 3, v0
    v_lshl_add_u32 v{T}, v{T+1}, 3, v{T}
    v_add_u32 v{TA}, s{S_B}, v{T}
    ''')
    x_consts(a, DO, XA, T)
    a(f's_lshl_b32 s{S_T}, s{S_G}, 1'); a(f's_sub_u32 s{S_T}, 12, s{S_T}')
    a(f'''
    v_bfe_u32 v{T}, v0, 4, 1
    v_lshlrev_b32 v{T}, s{S_T}, v{T}
    v_lshrrev_b32 v{T+1}, 5, v0
    v_lshl_add_u32 v{T}, v{T+1}, 8, v{T}
    v_and_b32 v{T+1}, 15, v0
    v_lshl_add_u32 v{ST}, v{T+1}, 4, v{T}
    ''')
    for kk in range(36):
        if pln and kk == pln - 1:
            vm.wait('lx')
            ln_rows(a, LX, LF, LT)
            for i in range(9): a(f'ds_write_b128 v{LT}, {vr(LX+4*i,4)} offset:{128*i}')
        vm.wait(2 * kk + 1)
        if kk == 0: th(a, opt, 6)
        if kk == 14: th(a, opt, 7)
        for cb in range(2):
            for p in range(2):
                a(f'ds_read_b64_tr_b16 {ur(224 + 8*kk + 4*cb + 2*p, 2)}, v{TA} offset:{(kk % (NS // 2)) * 2048 + p * 512 + cb * 64}')
        if kk >= 1 and 2 * (kk - 1) + NS < 72:
            a('s_waitcnt lgkmcnt(4)')
            dma(2 * (kk - 1) + NS); dma(2 * (kk - 1) + NS + 1)
        if pln and kk == pq: a(f's_load_dwordx2 s[{S_FV}:{S_FV+1}], s[{S_DBG}:{S_DBG+1}], {GO_X0} glc')
        if pq and not pln and kk == pq:
            lab = a.newlabel('L_pq')
            th(a, opt, 4)
            a.label(lab)
            a(f's_load_dwordx2 s[{S_FV}:{S_FV+1}], s[{S_DBG}:{S_DBG+1}], {GO_X0} glc')
            a(f's_add_u32 s{S_SPIN}, s{S_SPIN}, 1')
            a('s_waitcnt lgkmcnt(0)')
            a(f's_cmp_ge_u32 s{S_SPIN}, {SPIN}'); a(f's_cbranch_scc1 {lab}_x')
            a(f's_add_u32 s{S_FV}, s{S_FV}, s{S_FV+1}')
            a(f's_cmp_lt_u32 s{S_FV}, 2'); a(f's_cbranch_scc1 {lab}')
            a.label(lab + '_x')
            th(a, opt, 5)
            a(f's_mul_i32 s{S_T}, s{S_WAVE}, 9216'); a(f's_add_u32 s{S_T}, s{S_T}, {XB0}')
            a(f's_mov_b32 s{S_Q}, {XN}')
            x_dma(a, DO, S_Q, S_T)
            for _ in range(9): vm.issue('x')
    a('s_waitcnt lgkmcnt(0)')
    th(a, opt, 3)
    if pln:
        lab = a.newlabel('L_pl')
        a.label(lab)
        a(f's_add_u32 s{S_FV}, s{S_FV}, s{S_FV+1}'); a(f's_cmp_eq_u32 s{S_FV}, 2'); a(f's_cbranch_scc1 {lab}_x')
        a(f's_load_dwordx2 s[{S_FV}:{S_FV+1}], s[{S_DBG}:{S_DBG+1}], {GO_X0} glc')
        a(f's_add_u32 s{S_SPIN}, s{S_SPIN}, 1')
        a('s_waitcnt lgkmcnt(0)')
        a(f's_cmp_lt_u32 s{S_SPIN}, {SPIN}'); a(f's_cbranch_scc1 {lab}')
        a.label(lab + '_x')
        a(f's_mov_b32 s{S_Q}, {XN}')
        th(a, opt, 4)
    if pq:
        assert 'p' not in (opt.get('gate_att'), opt.get('gate_ffn'))
        for m in range(4): a(f'v_add_u32 v{XA+m}, {XB0}, v{XA+m}')
        a(f's_mov_b32 s{S_N}, {0x10000 - XB0}')
    else: meet(a, T, (DB_P, 48, GO_P), [(DB_Z, NZ), (GO_X, 1)], 'pw')
    tstamp(a, opt, 0)
    a(f's_mul_i32 s{S_B}, s{S_WAVE}, 9216')
    if not pq:
        a(f's_mov_b32 s{S_Q}, {XN}')
        x_dma(a, DO, S_Q, S_B)
    a(f's_mov_b32 s{S_SEG}, 0')
    a(f's_lshl_b32 s{S_M}, s{S_ROLE}, 7'); a(f's_lshl_b32 s{S_T}, s{S_WAVE}, 2'); a(f's_add_u32 s{S_M}, s{S_M}, s{S_T}'); a(f's_add_u32 s{S_M}, s{S_M}, {flag(F_PROJ)}')
    STR = 72
    a(f'v_mov_b32 v{STR}, v{ST}'); a(f'v_mov_b32 v{ST}, 0x{OOB:x}')
    a(f's_sub_u32 s{S_OB}, s{S_OB}, {32 * 8192}')
    a('s_waitcnt vmcnt(0)')
    a(f's_cmp_eq_u32 s{S_G}, 1'); a('s_cbranch_scc1 L_proj_lv')
    ACCS = [[16, 32], [80, 96]]
    for isv in range(2):
        L = 'L_proj_lv' if isv else 'L_proj_lk'
        def epi(acc, cb, b):
            q = acc[cb]
            src = [[0, 2, 8, 10], [4, 6, 12, 14]] if isv else [[0, 2, 4, 6], [8, 10, 12, 14]]
            for d in range(4): a(f'v_cvt_pk_bf16_f32 v{q+4*b+d}, v{q+src[b][d]}, v{q+src[b][d]+1}')
            a(f'buffer_store_dwordx4 {vr(q+4*b,4)}, v{ST}, {WS}, s{S_OB} offen offset:{cb * (2048 if isv else 1024) + b * 512} sc1')
        a.label(L)
        for par in range(2):
            acc = ACCS[par]
            if pq and par == 0:
                a(f's_cmp_eq_u32 s{S_SEG}, 8'); a(f's_cbranch_scc1 {L}_gx')
                a.label(L + '_gy')
            a('s_waitcnt vmcnt(1)')
            a('s_barrier')
            lg = Cnt(a, 'lgkmcnt', 15)
            def rd(kk):
                a(f'ds_read_b128 {vr(XR[kk % 4], 4)}, v{XA + (kk & 3)} offset:{(kk >> 2) * 128}'); lg.issue(kk)
            for kk in range(3): rd(kk)
            a(f's_cmp_lt_u32 s{S_SEG}, 63'); a(f's_cselect_b32 s{S_T}, 36864, 0'); a(f's_add_u32 s{S_Q}, s{S_Q}, s{S_T}')
            a(f's_xor_b32 s{S_B}, s{S_B}, 0x10000')
            for kk in range(36):
                lg.wait(kk)
                for cb in range(2):
                    c = '0' if kk == 0 else vr(acc[cb], 16)
                    x = vr(XR[kk % 4], 4)
                    if opt.get('pj_nomf') and kk >= opt['pj_nomf']: a('s_nop 6')
                    elif isv: a(f'{MF32} {vr(acc[cb],16)}, {x}, {W(kk,cb)}, {c}')
                    else: a(f'{MF32} {vr(acc[cb],16)}, {W(kk,cb)}, {x}, {c}')
                    if cb == 0 and kk + 3 < 36: rd(kk + 3)
                if 1 <= kk <= 4: epi(ACCS[par ^ 1], (kk - 1) >> 1, (kk - 1) & 1)
                if 5 <= kk <= 13:
                    i = kk - 5
                    a(f's_add_u32 m0, s{S_B}, {1024*i}')
                    a(f'buffer_load_dwordx4 v{DO+i}, {WS}, s{S_Q} offen sc1 lds')
                if kk == 5 and par == 1: tfirst(a, opt, f's_cmp_eq_u32 s{S_SEG}, 1')
                if kk == opt.get('pfk', 22):
                    a('s_waitcnt vmcnt(9)')
                    a(f'v_mov_b32 v{FV}, s{S_SEG}')
                    a(f'buffer_store_dword v{FV}, off, {WS}, s{S_M} sc1')
                if kk == 33:
                    if pq and par == 0:
                        for m in range(4): a(f'v_add_u32 v{XA+m}, s{S_N}, v{XA+m}')
                        a(f's_mov_b32 s{S_N}, 0x10000')
                    else:
                        for m in range(4): a(f'v_xor_b32 v{XA+m}, 0x10000, v{XA+m}')
                if kk == 34:
                    if not opt.get('pj_nost'): a(f'v_mov_b32 v{ST}, v{STR}')
                    a(f's_add_u32 s{S_OB}, s{S_OB}, {32 * 8192}')
                    a(f's_add_u32 s{S_SEG}, s{S_SEG}, 1')
            if par == 1: a(f's_cmp_lt_u32 s{S_SEG}, 64'); a(f's_cbranch_scc1 {L}')
        for cb in range(2):
            for b in range(2): epi(ACCS[1], cb, b)
        if not isv or pq: a('s_branch L_proj_end')
        if pq:
            a.label(L + '_gx')
            a(f's_load_dword s{S_FV}, s[{S_DBG}:{S_DBG+1}], {GO_X} glc')
            a(f's_add_u32 s{S_SPIN}, s{S_SPIN}, 1')
            a('s_waitcnt lgkmcnt(0)')
            a(f's_cmp_ge_u32 s{S_SPIN}, {SPIN}'); a(f's_cbranch_scc1 {L}_gy')
            a(f's_cmp_eq_u32 s{S_FV}, 0'); a(f's_cbranch_scc1 {L}_gx')
            a(f's_branch {L}_gy')
    a.label('L_proj_end')
    a('s_waitcnt vmcnt(0)')
    a(f'v_mov_b32 v{FV}, 64')
    a(f'buffer_store_dword v{FV}, off, {WS}, s{S_M} sc1')
    if opt.get('f4'):
        a('s_barrier')
        a(f's_cmp_lt_u32 s{S_ROLE}, 36'); a('s_cbranch_scc1 L_ffn')
    finish(a, opt)

def tiles_of(w):
    b = 9 * (w >> 1)
    if w & 1 == 0: return [(b + i, T) for i in range(4) for T in range(2)] + [(b + 4, 0)]
    return [(b + 5 + i, T) for i in range(4) for T in range(2)] + [(b + 4, 1)]

def row_stage_dma(a, srd, L16, st, sbase, vm, tag, nt=''):
    for i in range(9):
        a(f's_add_u32 m0, s{S_B}, {(st % 4) * 36864 + (i & ~3) * 1024}') if i % 4 == 0 else None
        if i % 4 == 0: a(f's_add_u32 s{S_P}, s{sbase}, {st * 36864 + i * 1024}')
        a(f'buffer_load_dwordx4 v{L16}, {R(srd)}, s{S_P} offen offset:{(i & 3) * 1024}{nt} lds'); vm.issue(tag)

def allreduce(a, v, t, op='v_add_f32', lanes=64):
    for d in ('quad_perm:[1,0,3,2]', 'quad_perm:[2,3,0,1]', 'row_half_mirror', 'row_mirror')[:3 if lanes == 8 else 4]:
        a(f'{op}_dpp v{v}, v{v}, v{v} {d} row_mask:0xf bank_mask:0xf')
    if lanes == 64:
        for sw in ('v_permlane16_swap_b32', 'v_permlane32_swap_b32'):
            a(f'v_mov_b32 v{t}, v{v}'); a(f'{sw} v{v}, v{t}'); a(f'{op} v{v}, v{v}, v{t}')

def ln_rows(a, X, Fp, T):
    for i in range(36):
        a(f'v_lshlrev_b32 v{Fp+2*i}, 16, v{X+i}'); a(f'v_and_b32 v{Fp+2*i+1}, 0xffff0000, v{X+i}')
    A4 = [T + 2, T + 3, T + 4, T + 5]
    for i in range(72):
        if i < 4: a(f'v_add_f32 v{A4[i]}, v{Fp+i}, v{Fp+i+4}')
        elif i >= 8: a(f'v_add_f32 v{A4[i&3]}, v{A4[i&3]}, v{Fp+i}')
    a(f'v_add_f32 v{A4[0]}, v{A4[0]}, v{A4[1]}'); a(f'v_add_f32 v{A4[2]}, v{A4[2]}, v{A4[3]}'); a(f'v_add_f32 v{A4[0]}, v{A4[0]}, v{A4[2]}')
    allreduce(a, A4[0], T + 1, lanes=8)
    a(f'v_mul_f32 v{T+1}, 0x{0x3ae38e39:x}, v{A4[0]}')
    for i in range(72): a(f'v_sub_f32 v{Fp+i}, v{Fp+i}, v{T+1}')
    for i in range(72):
        if i < 4: a(f'v_mul_f32 v{A4[i]}, v{Fp+i}, v{Fp+i}')
        else: a(f'v_fmac_f32 v{A4[i&3]}, v{Fp+i}, v{Fp+i}')
    a(f'v_add_f32 v{A4[0]}, v{A4[0]}, v{A4[1]}'); a(f'v_add_f32 v{A4[2]}, v{A4[2]}, v{A4[3]}'); a(f'v_add_f32 v{A4[0]}, v{A4[0]}, v{A4[2]}')
    allreduce(a, A4[0], T + 1, lanes=8)
    a(f'v_mov_b32 v{T+1}, 0x{0x3727c5ac:x}')
    a(f'v_fmac_f32 v{T+1}, 0x{0x3ae38e39:x}, v{A4[0]}')
    a(f'v_rsq_f32 v{T+1}, v{T+1}')
    for i in range(72): a(f'v_mul_f32 v{Fp+i}, v{T+1}, v{Fp+i}')
    for i in range(36): a(f'v_cvt_pk_bf16_f32 v{X+i}, v{Fp+2*i}, v{Fp+2*i+1}')

def att(a, opt):
    L16, KMA, L8, PST, RB, XO, XO2, RB4, XO4, T = 1, 2, 3, 4, 5, 6, 7, 8, 9, 10
    Q = 16; K = 32; V = 64; KMF = 96; VMF = 112; SM, S0, S1 = 120, 124, 128; PX = 132; PM = 136; ONE = 140; SUM = 144
    O = 148; OF = 148; ACC = 96
    SLO, SHI = 212, 216
    RR = 128
    XX, WO_ = S_R0, S_R1
    a.label('L_att')
    a(f's_load_dwordx2 s[{XX}:{XX+1}], s[0:1], 0')
    a(f's_load_dwordx2 s[{WO_}:{WO_+1}], s[0:1], 40')
    a(f's_mov_b32 s{S_SPIN}, 0')
    a(f's_sub_u32 s{S_T}, s{S_ROLE}, 48'); a(f's_and_b32 s{S_M}, s{S_T}, 15'); a(f's_lshr_b32 s{S_G}, s{S_T}, 4')
    a(f'v_lshlrev_b32 v{L16}, 4, v0')
    a('s_waitcnt lgkmcnt(0)')
    srd_fix(a, XX, 2359296); srd_fix(a, WO_, 4718592)
    X = 16; Fp = 64
    a(f's_mul_i32 s{S_Q}, s{S_T}, 36864'); a(f's_mul_i32 s{S_B}, s{S_WAVE}, 9216'); a(f's_add_u32 s{S_Q}, s{S_Q}, s{S_B}')
    a(f'v_lshrrev_b32 v{T}, 3, v0'); a(f'v_mul_u32_u24 v{T}, 1152, v{T}'); a(f'v_and_b32 v{T+1}, 7, v0'); a(f'v_lshl_add_u32 v{T}, v{T+1}, 4, v{T}')
    vm = Cnt(a, 'vmcnt', 63)
    for i in range(9): a(f'buffer_load_dwordx4 {vr(X+4*i,4)}, v{T}, {R(XX)}, s{S_Q} offen offset:{128*i}{NT(opt, "x")}'); vm.issue('x')
    a(f's_mul_i32 s{S_OB}, s{S_M}, {2 * 147456}'); a(f's_add_u32 s{S_OB}, s{S_OB}, s{S_B}')
    ns = opt.get('nsent', 4); assert ns % 4 == 0
    a(f's_lshl2_add_u32 s{S_T}, s{S_T}, s{S_WAVE}')
    a(f'v_mov_b64 {vr(Fp,2)}, -1'); a(f'v_mov_b64 {vr(Fp+2,2)}, -1')
    if opt.get('kmn'):
        assert ns == 8
        km_sel(a, opt, S_P)
        a(f's_and_b32 s{S_T+1}, s{S_T}, 1'); a(f's_lshl_b32 s{S_T+1}, s{S_T+1}, 12'); a(f's_add_u32 s{S_P}, s{S_P}, s{S_T+1}')
        a(f's_lshr_b32 s{S_T}, s{S_T}, 1'); a(f's_add_u32 s{S_T}, s{S_T}, {(64 - ns) * 16}'); a(f's_lshl_b32 s{S_T}, s{S_T}, {km_sh(opt)}'); a(f's_add_u32 s{S_P}, s{S_P}, s{S_T}')
        for i in range(4): a(f'buffer_store_dwordx4 {vr(Fp,4)}, v{L16}, {WS}, s{S_P} offen offset:{1024 * i} sc1'); vm.issue('sf')
    else:
        a(f's_mul_i32 s{S_T}, s{S_T}, {ns * 256}')
        for base in (KM, VM):
            a(f's_add_u32 s{S_P}, s{S_T}, {base + (64 - ns) * 65536}')
            for i in range(ns // 4): a(f'buffer_store_dwordx4 {vr(Fp,4)}, v{L16}, {WS}, s{S_P} offen offset:{1024 * i} sc1'); vm.issue('sf')
    vm.wait('x')
    th(a, opt, 3)
    ln_rows(a, X, Fp, T)
    a(f's_add_u32 s{S_Q}, s{S_Q}, {XN}')
    for i in range(9): a(f'buffer_store_dwordx4 {vr(X+4*i,4)}, v{T}, {WS}, s{S_Q} offen offset:{128*i} sc1'); vm.issue('xs')
    th(a, opt, 4)
    GATE = {'p': [(GO_P, 1)], 'c': [(GO_C, 1)], 'q': [(GO_Z, 1)], 'x': [(GO_X, 1)], None: []}
    NG = opt.get('ng', 4)
    if NG == 3:
        a(f's_cmp_lg_u32 s{S_G}, 3'); a('s_cbranch_scc1 L_att_full')
        meet(a, T + 4, (DB_X, 64, GO_X), [], 'gl')
        a(f's_sub_u32 s{S_T+1}, s{S_ROLE}, 48'); a(f's_mul_i32 s{S_T+1}, s{S_T+1}, 36864'); a(f's_add_u32 s{S_T+1}, s{S_T+1}, s{S_B}')
        fill(a, L16, 16, [(S_T + 1, HB), (S_T + 1, XN2)])
        meet(a, T, (DB_AI, 64, GO_AI), [], 'al')
        for i in range(2): tstamp(a, opt, i)
        finish(a, opt)
        a.label('L_att_full')
    if opt.get('fe_att'):
        meet(a, T + 4, (DB_X, 64, GO_X), [], 'gx')
        a(f's_mul_i32 s{S_T}, s{S_G}, {2 * PA_SLOT}'); a(f's_mul_i32 s{S_T+1}, s{S_M}, 36864'); a(f's_add_u32 s{S_T}, s{S_T}, s{S_T+1}')
        a(f's_sub_u32 s{S_T+1}, s{S_ROLE}, 48'); a(f's_mul_i32 s{S_T+1}, s{S_T+1}, 36864')
        a(f's_add_u32 s{S_T}, s{S_T}, s{S_B}'); a(f's_add_u32 s{S_T+1}, s{S_T+1}, s{S_B}')
        fill(a, L16, 60, [(S_T, PA), (S_T, PA + PA_SLOT), (S_T + 1, HB), (S_T + 1, XN2)])
        meet(a, T + 4, None, GATE[opt.get('gate_att')], 'ga')
        a('s_waitcnt vmcnt(0)')
    else:
        def first():
            lab = a.newlabel('L_x0')
            a(f's_cmp_lg_u32 s{S_G}, 0'); a(f's_cbranch_scc1 {lab}')
            count(a, T + 4, DB_X0, 16, GO_X0)
            a.label(lab)
        meet(a, T + 4, (DB_X, 64, GO_X), GATE.get(opt.get('gate_att'), [(GO_Z, 1)]), 'ga', first if opt.get('pq') else None,
             (lambda: qgate(a, T + 4, opt['gate_att'])) if str(opt.get('gate_att'))[0] in 'qe' else None)
    if opt.get('noatt'): finish(a, opt)
    vm.reset()
    th(a, opt, 5)
    for st in range(4): row_stage_dma(a, WO_, L16, st, S_OB, vm, st, NT(opt, 'a'))
    for w in range(1, 4):
        a(f's_cmp_eq_u32 s{S_WAVE}, {w}'); a(f's_cbranch_scc1 L_att_w{w}')
    vm0 = list(vm.q)
    for w in range(4):
        hh, qt = w >> 1, w & 1
        tl = tiles_of(w)
        def WOF(ti, k8): return ur(224 + 4 * (ti * 8 + k8), 4)
        a.label(f'L_att_w{w}')
        vm.q = list(vm0)
        TA = T + 2
        a(f'v_lshrrev_b32 v{TA}, 2, v0'); a(f'v_mul_u32_u24 v{TA}, 1152, v{TA}'); a(f'v_and_b32 v{T+3}, 3, v0'); a(f'v_lshl_add_u32 v{TA}, v{T+3}, 4, v{TA}')
        a(f'v_add_u32 v{TA+1}, {2 * 36864}, v{TA}')
        for st in range(8):
            vm.wait(st)
            a('s_barrier')
            for ti, (P, TT) in enumerate(tl):
                for p in range(2):
                    off = (st % 2) * 36864 + p * 16 * 1152 + P * 64 + TT * 8
                    a(f'ds_read_b64_tr_b16 {ur(224 + 4*(ti*8+st) + 2*p, 2)}, v{TA + ((st % 4) >> 1)} offset:{off}')
            a('s_waitcnt lgkmcnt(0)')
            if st < 4:
                a('s_barrier')
                row_stage_dma(a, WO_, L16, st + 4, S_OB, vm, st + 4, NT(opt, 'a'))
        th(a, opt, 6)
        red = qt == 0
        a(f'''
        v_and_b32 v{T}, 15, v0
        v_lshrrev_b32 v{T+1}, 4, v0
        v_lshrrev_b32 v{T+2}, 2, v{T}
        v_and_b32 v{T+3}, 1, v0
        v_lshl_add_u32 v{T+4}, v{T+2}, 1, v{T+3}
        v_lshlrev_b32 v{T+4}, 4, v{T+4}
        v_lshl_add_u32 v{KMA}, v{T+1}, 7, v{T+4}
        v_lshlrev_b32 v{L8}, 3, v0
        v_lshrrev_b32 v{T+4}, 1, v{T}
        v_mul_u32_u24 v{T+4}, 36864, v{T+4}
        v_lshl_add_u32 v{T+4}, v{T+3}, 6, v{T+4}
        v_lshl_add_u32 v{T+4}, v{T+1}, 4, v{T+4}
        s_mul_i32 s{S_T}, s{S_M}, 2304
        v_add_u32 v{PST}, s{S_T}, v{T+4}
        ''')
        if red:
            a(f'''
            v_mul_u32_u24 v{T+4}, 2304, v{T+1}
            v_and_b32 v{T+5}, 3, v0
            v_lshl_add_u32 v{T+4}, v{T+5}, 4, v{T+4}
            s_mul_i32 s{S_T}, s{S_M}, 36864
            s_add_u32 s{S_T}, s{S_T}, {64 * hh}
            v_add_u32 v{T+4}, s{S_T}, v{T+4}
            v_lshl_add_u32 v{RB}, v{T+2}, 7, v{T+4}
            v_and_b32 v{RB4}, 1, v{T+2}
            v_lshl_add_u32 v{RB4}, v{RB4}, 7, v{T+4}
            s_mul_i32 s{S_T}, s{S_M}, 2304
            s_add_u32 s{S_T}, s{S_T}, {1152 * hh}
            v_lshlrev_b32 v{T+5}, 4, v{T+5}
            v_add_u32 v{T+5}, s{S_T}, v{T+5}
            v_lshrrev_b32 v{T+4}, 1, v{T+2}
            v_mul_u32_u24 v{T+4}, 9, v{T+4}
            v_and_b32 v{T+3}, 1, v{T+2}
            v_mul_u32_u24 v{T}, 5, v{T+3}
            v_add_u32 v{T+4}, v{T+4}, v{T}
            v_lshrrev_b32 v{T}, 1, v{T+1}
            v_add_u32 v{T+4}, v{T+4}, v{T}
            v_lshl_add_u32 v{T+4}, v{T+4}, 6, v{T+5}
            v_and_b32 v{T+1}, 1, v{T+1}
            v_lshl_add_u32 v{XO}, v{T+1}, 3, v{T+4}
            v_lshl_add_u32 v{XO4}, v{T+1}, 7, v{T+4}
            v_mul_u32_u24 v{T+3}, 576, v{T+3}
            v_add_u32 v{T+3}, 256, v{T+3}
            v_add_u32 v{T+3}, v{T+3}, v{T+5}
            v_lshl_add_u32 v{T+3}, v{T+1}, 3, v{T+3}
            s_mov_b32 s{S_T}, 0x00ff00ff
            s_mov_b32 s{S_T+1}, 0
            v_mov_b32 v{T+4}, 0x{OOB:x}
            v_cndmask_b32 v{XO2}, v{T+4}, v{T+3}, s[{S_T}:{S_T+1}]
            ''')
            sel(a, SLO, T, 'lo'); sel(a, SHI, T, 'hi')
        a(f'''
        s_lshl_b32 s{S_T}, s{S_M}, 8
        s_add_u32 s{S_FA}, s{S_T}, {flag(F_PROJ + hh)}
        s_add_u32 s{S_FA+2}, s{S_T}, {flag(F_CHAIN + hh)}
        s_lshl_b32 s{S_T}, s{S_M}, 7
        s_add_u32 s{S_FA+1}, s{S_T}, {flag(F_PROJ + 32) + 8 * hh}
        s_mov_b32 s{S_FP}, 0
        s_mov_b32 s{S_FC}, 0
        ''')
        for r in range(4):
            mk = sum(1 << l for l in range(64) if 4 * (l >> 4) + r <= (l & 15))
            a(f's_mov_b32 s{S_MK+2*r}, 0x{mk & 0xffffffff:x}'); a(f's_mov_b32 s{S_MK+2*r+1}, 0x{mk >> 32:x}')
        a(f's_mov_b32 s{S_C}, 0x3e0293ee'); a(f's_mov_b32 s{S_C+1}, 0xbe0293ee')
        a(f's_mul_i32 s{S_T}, s{S_G}, {2 * PA_SLOT}'); a(f's_mul_i32 s{S_T+1}, s{S_M}, 36864'); a(f's_add_u32 s{S_T}, s{S_T}, s{S_T+1}')
        a(f's_sub_u32 s{S_T+1}, s{S_ROLE}, 48'); a(f's_mul_i32 s{S_T+1}, s{S_T+1}, 36864')
        if not opt.get('fe_att'): fill(a, L16, 16, [(S_T, PA + w * 9216), (S_T, PA + PA_SLOT + w * 9216), (S_T + 1, HB + w * 9216), (S_T + 1, XN2 + w * 9216)])
        afast = opt.get('afast') and not opt.get('force_slow') == 1
        split = afast and opt.get('split')
        if split:
            lab = a.newlabel('L_nof')
            a(f's_cmp_lt_u32 s{S_ROLE}, 104'); a(f's_cbranch_scc1 {lab}')
            a(f's_mul_i32 s{S_T}, s{S_M}, 36864')
            fill(a, L16, 16, [(S_T, PA + 8 * PA_SLOT + w * 9216)])
            a.label(lab)
        th(a, opt, 7)
        meet(a, T, (DB_AI, 64, GO_AI), [(DB_Z, NZ), (GO_AI, 1)], 'ai')
        tstamp(a, opt, 0)
        if afast:
            th3, th0 = {'att': (20, 999), 'att2': (16, 32)}[opt.get('x1', 'att')]
            a(f'buffer_load_dword v{T}, off, {DBG}, 0 offset:{DB_C1} sc1')
            a(f's_cmp_eq_u32 s{S_G}, 0'); a(f's_cselect_b32 s{S_LOC}, {th0}, -1')
            a(f's_cmp_eq_u32 s{S_G}, 3'); a(f's_cselect_b32 s{S_LOC}, {th3}, s{S_LOC}')
            a('s_waitcnt vmcnt(0)')
            a(f'v_readfirstlane_b32 s{S_T}, v{T}')
            a(f's_cmp_ge_u32 s{S_T}, s{S_LOC}'); a(f's_cselect_b32 s{S_LOC}, 1, 0')
            if split: a(f's_cmp_ge_u32 s{S_T}, {th0}'); a(f's_cselect_b32 s{S_SPL}, s{S_LOC}, 0')
        a(f's_mov_b32 s{S_SEG}, s{S_G}')
        if opt.get('ek'):
            assert opt['ek'] <= NG
            a(f's_cmp_lt_u32 s{S_G}, {opt["ek"]}'); a(f's_cselect_b32 s{S_T}, 4, 0'); a(f's_add_u32 s{S_FA+2}, s{S_FA+2}, s{S_T}')
        a(f's_mov_b32 s{S_B}, 0')
        a(f's_mov_b32 s{S_SL}, 0')
        def qkv(step):
            a(f's_add_u32 s{S_N}, s{S_SEG}, {step + 1}')
            spoll(a, S_FP, f's{S_N}', [(4, f's{S_FA}'), (2, f's{S_FA+1}')], 'ap')
            a(f's_lshl_b32 s{S_T}, s{S_SEG}, 5'); a(f's_lshl1_add_u32 s{S_T}, s{S_M}, s{S_T}'); a(f's_add_u32 s{S_T}, s{S_T}, {32 * step + hh}')
            a(f's_lshl_b32 s{S_T}, s{S_T}, 13')
            a(f's_add_u32 s{S_P}, s{S_T}, {QX + qt * 4096}')
            for ks in range(4): a(f'buffer_load_dwordx4 {vr(Q+4*ks,4)}, v{L16}, {WS}, s{S_P} offen offset:{1024*ks} sc1')
            for kt in range(qt + 1):
                a(f's_add_u32 s{S_P}, s{S_T}, {KX + kt * 4096}')
                for ks in range(4): a(f'buffer_load_dwordx4 {vr(K+16*kt+4*ks,4)}, v{L16}, {WS}, s{S_P} offen offset:{1024*ks} sc1')
            for hf in range(2):
                a(f's_add_u32 s{S_P}, s{S_T}, {VX + hf * 4096}')
                for u in range(4): a(f'buffer_load_dwordx4 {vr(V+16*hf+4*u,4)}, v{L16}, {WS}, s{S_P} offen offset:{1024*u} sc1')
        qkv(0)
        L = f'L_att_l{w}'
        a.label(L)
        vm.reset()
        if opt.get('kmn'):
            km_sel(a, opt, S_Q)
            a(f's_lshl4_add_u32 s{S_T}, s{S_SEG}, s{S_M}'); a(f's_lshl_b32 s{S_T}, s{S_T}, {km_sh(opt)}'); a(f's_add_u32 s{S_Q}, s{S_Q}, s{S_T}')
            if hh: a(f's_add_u32 s{S_Q}, s{S_Q}, 4096')
        else:
            a(f's_lshl_b32 s{S_Q}, s{S_SEG}, 5'); a(f's_lshl1_add_u32 s{S_Q}, s{S_M}, s{S_Q}'); a(f's_add_u32 s{S_Q}, s{S_Q}, {hh}')
            a(f's_lshl_b32 s{S_Q}, s{S_Q}, 11')
        a(f's_bfe_u32 s{S_TAG}, s{S_SL}, 0x10001'); a(f's_and_b32 s{S_T}, s{S_SL}, 1'); a(f's_add_u32 s{S_SL}, s{S_SL}, 1')
        a(f's_lshl1_add_u32 s{S_T}, s{S_G}, s{S_T}'); a(f's_mul_i32 s{S_OB}, s{S_T}, {PA_SLOT}'); a(f's_add_u32 s{S_OB}, s{S_OB}, {PA}')
        a(f'v_mov_b32 v{ONE}, 0x3f803f80'); a(f'v_mov_b32 v{ONE+1}, 0x3f803f80'); a(f'v_mov_b64 {vr(ONE+2,2)}, {vr(ONE,2)}')
        a(f'v_mov_b64 {vr(PM,2)}, 0'); a(f'v_mov_b64 {vr(PM+2,2)}, 0')
        if qt == 0: a(f'v_mov_b64 {vr(PX+2,2)}, 0')
        a('s_waitcnt vmcnt(0)')
        tk(a, opt, 3)
        for ks in range(4):
            for kt in range(qt + 1):
                S = S1 if kt else S0
                a(f'{MF} {vr(S,4)}, {vr(K+16*kt+4*ks,4)}, {vr(Q+4*ks,4)}, {"0" if ks == 0 else vr(S,4)}')
        SD = S1 if qt else S0
        a(f'v_mov_b32 v{T}, 0xff800000')
        for r in range(4): a(f'v_cndmask_b32 v{SD+r}, v{T}, v{SD+r}, s[{S_MK+2*r}:{S_MK+2*r+1}]')
        M, M2 = T + 2, T + 3
        a(f'v_max3_f32 v{M}, v{S0}, v{S0+1}, v{S0+2}')
        if qt:
            a(f'v_max3_f32 v{M}, v{M}, v{S0+3}, v{S1}'); a(f'v_max3_f32 v{M}, v{M}, v{S1+1}, v{S1+2}'); a(f'v_max_f32 v{M}, v{M}, v{S1+3}')
        else: a(f'v_max_f32 v{M}, v{M}, v{S0+3}')
        a(f's_cmp_lt_u32 s{S_SEG}, {64 - opt.get("nuse", opt.get("nsent", 4))}'); a(f's_addc_u32 s{S_N}, s{S_SEG}, 0'); a(f's_cmp_eq_u32 s{S_SEG}, 63'); a(f's_cselect_b32 s{S_N}, {opt.get("nmax", 62)}, s{S_N}')
        spoll(a, S_FC, f's{S_N}', [(1, f's{S_FA+2}')], 'ac')
        if opt.get('ek'): a(f's_andn2_b32 s{S_FA+2}, s{S_FA+2}, 4')
        tk(a, opt, 4)
        tacc(a, opt, 3, 4, 12)
        LK = f'L_att_k{w}'
        a.label(LK)
        kmn = opt.get('kmn')
        if not kmn: a(f's_add_u32 s{S_P}, s{S_Q}, {KM}')
        for ks in range(4): a(f'buffer_load_dwordx4 {vr(KMF+4*ks,4)}, v{KMA}, {WS}, s{S_Q if kmn else S_P} offen offset:{512*ks} sc1'); vm.issue(('km', ks))
        if not kmn: a(f's_add_u32 s{S_P}, s{S_Q}, {VM}')
        for u in range(4): a(f'buffer_load_dwordx2 {vr(VMF+2*u,2)}, v{L8}, {WS}, s{S_Q if kmn else S_P} offen offset:{512*u + (2048 if kmn else 0)} sc1'); vm.issue(('vm', u))
        for ks in range(4):
            vm.wait(('km', ks))
            a(f'{MF} {vr(SM,4)}, {vr(KMF+4*ks,4)}, {vr(Q+4*ks,4)}, {"0" if ks == 0 else vr(SM,4)}')
        a(f'v_max3_u32 v{T}, v{KMF}, v{KMF+4}, v{KMF+8}')
        vm.wait(('vm', 3))
        a(f'v_max3_u32 v{T}, v{T}, v{KMF+12}, v{VMF}')
        a(f'v_max3_u32 v{T}, v{T}, v{VMF+2}, v{VMF+4}')
        a(f'v_max_u32 v{T}, v{T}, v{VMF+6}')
        a(f'v_cmp_eq_u32 vcc, -1, v{T}')
        a(f's_cbranch_vccz {LK}_x')
        retry(a, LK + '_x')
        a(f's_branch {LK}')
        a.label(LK + '_x')
        a(f'v_max3_f32 v{M}, v{M}, v{SM}, v{SM+1}')
        tk(a, opt, 5)
        for sw in ('v_permlane32_swap_b32', 'v_permlane16_swap_b32'):
            a(f'v_mov_b32 v{M2}, v{M}'); a(f'{sw} v{M}, v{M2}'); a(f'v_max_f32 v{M}, v{M}, v{M2}')
        a(f'v_mul_f32 v{M}, s{S_C+1}, v{M}')
        vals = [SM, SM + 1, S0, S0 + 1, S0 + 2, S0 + 3] + ([S1, S1 + 1, S1 + 2, S1 + 3] if qt else [])
        for r in vals: a(f'v_fma_f32 v{r}, v{r}, s{S_C}, v{M}')
        for r in vals: a(f'v_exp_f32 v{r}, v{r}')
        a(f'v_cvt_pk_bf16_f32 v{PX}, v{S0}, v{S0+1}'); a(f'v_cvt_pk_bf16_f32 v{PX+1}, v{S0+2}, v{S0+3}')
        if qt: a(f'v_cvt_pk_bf16_f32 v{PX+2}, v{S1}, v{S1+1}'); a(f'v_cvt_pk_bf16_f32 v{PX+3}, v{S1+2}, v{S1+3}')
        a(f'v_cvt_pk_bf16_f32 v{PM}, v{SM}, v{SM+1}'); a(f'v_cvt_pk_bf16_f32 v{PM+3}, v{SM}, v{SM+1}')
        a(f'{MF} {vr(SUM,4)}, {vr(ONE,4)}, {vr(PX,4)}, 0')
        for u in range(4): a(f'{MF} {vr(O+4*u,4)}, {vr(V+4*u,4)}, {vr(PX,4)}, 0')
        a(f'{MH} {vr(SUM,4)}, {vr(ONE,2)}, {vr(PM,2)}, {vr(SUM,4)}')
        for u in range(4, 8): a(f'{MF} {vr(O+4*u,4)}, {vr(V+4*u,4)}, {vr(PX,4)}, 0')
        a(f'v_add_u32 v{T+1}, s{S_B}, v{L16}')
        for u in range(8):
            a(f'{MH} {vr(O+4*u,4)}, {vr(VMF+2*(u>>1),2)}, {vr(PM+2*(u&1),2)}, {vr(O+4*u,4)}')
            if u == 0: a(f'v_rcp_f32 v{T+2}, v{SUM}')
        for w4 in range(4):
            q = O + 8 * w4
            for r in range(4): a(f'v_pk_mul_f32 {vr(q+2*r,2)}, {vr(q+2*r,2)}, {vr(T+2,2)} op_sel_hi:[1,0]')
            for d in range(4): a(f'v_cvt_pk_bf16_f32 v{q+d}, v{q+2*d}, v{q+2*d+1}')
            a(f'ds_write_b128 v{T+1}, {vr(q,4)} offset:{(w * 4 + w4) * 1024}')
        a('s_waitcnt lgkmcnt(0)')
        a('s_barrier')
        tk(a, opt, 6)
        if opt.get('wst'): a('s_waitcnt lgkmcnt(0)')
        XV = 48
        def wo_block(sc, tts):
            lg = Cnt(a, 'lgkmcnt', 15)
            for k8 in range(8):
                for tt in tts:
                    a(f'ds_read_b128 {vr(OF+4*(2*k8+tt),4)}, v{T+1} offset:{(((k8 >> 2) * 2 + tt) * 4 + (k8 & 3)) * 1024}'); lg.issue((k8, tt))
            a(f's_xor_b32 s{S_B}, s{S_B}, 0x4000')
            a(f's_add_u32 s{S_P}, s{S_OB}, 294912')
            if red: a(f's_mul_i32 s{S_Q}, s{S_SEG}, 36864')
            def fin(gi):
                base = ACC + 16 * (gi & 1); ops = []
                for tt in tts:
                    so = S_P if tt else S_OB
                    q = base + 8 * tt
                    if gi < 4:
                        ops += [f'v_cvt_pk_bf16_f32 v{q+d}, v{q+2*d}, v{q+2*d+1}' for d in range(4)] + [f'v_bfi_b32 v{q+d}, 1, s{S_TAG}, v{q+d}' for d in (0, 2)]
                        ops[-1] += f'\nbuffer_store_dwordx4 {vr(q,4)}, v{PST}, {WS}, s{so} offen offset:{(4 * gi + w) * 128}{sc}'
                    else:
                        ops += [f'v_cvt_pk_bf16_f32 v{q+d}, v{q+2*d}, v{q+2*d+1}' for d in range(2)] + [f'v_bfi_b32 v{q}, 1, s{S_TAG}, v{q}']
                        ops[-1] += f'\nbuffer_store_dwordx2 {vr(q,2)}, v{PST}, {WS}, s{so} offen offset:{(16 + hh) * 128 + 8*tl[8][1]}{sc}'
                return ops
            fq = []; afs = opt.get('afs', 99)
            for gi in range(5):
                base = ACC + 16 * (gi & 1); n = 0
                for k8 in range(8):
                    for tt in tts:
                        if gi == 0: lg.wait((k8, tt))
                        for TT in range(2 if gi < 4 else 1):
                            q = base + 8 * tt + 4 * TT
                            a(f'{MF} {vr(q,4)}, {WOF(2*gi+TT,k8)}, {vr(OF+4*(2*k8+tt),4)}, {"0" if k8 == 0 else vr(q,4)}')
                            n += 1
                            if n == 3 and gi > 0: fq += fin(gi - 1)
                            for _ in range(afs):
                                if fq: a(fq.pop(0))
                    if red and gi == 0 and 2 <= k8 <= 4 and 0 in tts:
                        q3 = k8 - 2
                        a(f'buffer_load_dwordx2 {vr(XV+2*q3,2)}, v{XO2 if q3 == 2 else XO}, {R(XX)}, s{S_Q} offen offset:{128*q3 if q3 < 2 else 0}')
                assert not fq
            for x in fin(4): a(x)
        if afast:
            a(f's_cmp_eq_u32 s{S_LOC}, 0'); a(f's_cbranch_scc1 {L}_ws')
            if split:
                a(f's_cmp_eq_u32 s{S_SEG}, 63'); a(f's_cselect_b32 s{S_T}, s{S_SPL}, 0')
                a(f's_cmp_eq_u32 s{S_T}, 0'); a(f's_cbranch_scc1 {L}_wf')
                a(f's_cmp_eq_u32 s{S_G}, 0'); a(f's_cbranch_scc1 {L}_wh')
                wo_block('', [0])
                if red:
                    a(f's_cmp_ge_u32 s{S_M}, 8'); a(f's_cselect_b32 s{S_OB}, {PA + 8 * PA_SLOT}, s{S_OB}'); a(f's_cselect_b32 s{S_TAG}, 0, s{S_TAG}')
                a(f's_branch {L}_wx')
                a.label(L + '_wh')
                a(f's_mov_b32 s{S_OB}, {PA + 8 * PA_SLOT}'); a(f's_mov_b32 s{S_TAG}, 0')
                wo_block('', [1])
                a(f's_branch {L}_end')
                a.label(L + '_wf')
            wo_block('', [0, 1])
            a(f's_branch {L}_wx')
            a.label(L + '_ws')
        wo_block(' sc1', [0, 1])
        a.label(L + '_wx')
        tk(a, opt, 7)
        if red:
            RA = 96; H = 108; H2 = 116
            def rl(t0):
                for t5 in range(t0, 5):
                    for u in range(4):
                        a(f's_add_u32 s{S_P}, s{S_OB}, {u * 9216}')
                        a(f'buffer_load_dwordx4 {vr(RR+4*(4*t5+u),4)}, v{RB4 if t5 == 4 else RB}, {WS}, s{S_P} offen offset:{512*t5} sc1')
            rl(0)
            tk(a, opt, 8)
            for t5 in range(5):
                LR = f'L_att_r{w}_{t5}'
                a.label(LR)
                a(f's_waitcnt vmcnt({4 * (4 - t5)})')
                z = [RR + 4 * (4 * t5 + u) for u in range(4)]
                for u in range(4): a(f'v_bitop3_b32 v{T+u}, v{z[u]}, v{z[u]+2}, s{S_TAG} bitop3:0x7e')
                a(f'v_or3_b32 v{T}, v{T}, v{T+1}, v{T+2}')
                a(f'v_bitop3_b32 v{T}, v{T}, v{T+3}, 1 bitop3:0xa8')
                a(f'v_cmp_eq_u32 vcc, 1, v{T}')
                a(f's_cbranch_vccz {LR}_x')
                retry(a, LR + '_x')
                rl(t5)
                a(f's_branch {LR}')
                a.label(LR + '_x')
                if t5 == 0:
                    for q in range(3):
                        for d in range(2):
                            a(f'v_lshlrev_b32 v{RA+4*q+2*d}, 16, v{XV+2*q+d}'); a(f'v_and_b32 v{RA+4*q+2*d+1}, 0xffff0000, v{XV+2*q+d}')
                if t5 == 4: tk(a, opt, 9)
                q = RA + 4 * (t5 >> 1)
                for u in range(4): a(f'{MF} {vr(q,4)}, {vr(SHI if t5 & 1 else SLO,4)}, {vr(z[u],4)}, {vr(q,4)}')
            tk(a, opt, 10)
            a(f's_mov_b32 s{S_T}, 0x00ff00ff'); a(f's_mov_b32 s{S_T+1}, 0')
            for i in range(6): a(f'v_cvt_pk_bf16_f32 v{H+i}, v{RA+2*i}, v{RA+2*i+1}')
            for i in (4, 5): a(f'v_cndmask_b32 v{H+i}, 0, v{H+i}, s[{S_T}:{S_T+1}]')
            for i in range(6): a(f'v_lshlrev_b32 v{RA+2*i}, 16, v{H+i}'); a(f'v_and_b32 v{RA+2*i+1}, 0xffff0000, v{H+i}')
            def put(r, base):
                a(f's_add_u32 s{S_P}, s{S_Q}, {base}')
                for d in range(2): a(f'v_permlane16_swap_b32 v{r+d}, v{r+2+d}')
                a(f'buffer_store_dwordx4 {vr(r,4)}, v{XO4}, {WS}, s{S_P} offen sc1')
                a(f'buffer_store_dwordx2 {vr(r+4,2)}, v{XO2}, {WS}, s{S_P} offen sc1')
            put(H, HB)
            a(f'v_add_f32 v{T}, v{RA}, v{RA+1}'); a(f'v_add_f32 v{T+1}, v{RA+2}, v{RA+3}')
            for i in range(4, 12): a(f'v_add_f32 v{T+(i&1)}, v{T+(i&1)}, v{RA+i}')
            a(f'v_add_f32 v{T}, v{T}, v{T+1}')
            allreduce(a, T, T + 1)
            a(f'v_mul_f32 v{T}, 0x{0x3ae38e39:x}, v{T}')
            for i in range(12): a(f'v_sub_f32 v{RA+i}, v{RA+i}, v{T}')
            for i in range(8, 12): a(f'v_cndmask_b32 v{RA+i}, 0, v{RA+i}, s[{S_T}:{S_T+1}]')
            a(f'v_mul_f32 v{T}, v{RA}, v{RA}'); a(f'v_mul_f32 v{T+1}, v{RA+1}, v{RA+1}')
            for i in range(2, 12): a(f'v_fmac_f32 v{T+(i&1)}, v{RA+i}, v{RA+i}')
            a(f'v_add_f32 v{T}, v{T}, v{T+1}')
            allreduce(a, T, T + 1)
            a(f'v_mov_b32 v{T+1}, 0x{0x3727c5ac:x}'); a(f'v_fmac_f32 v{T+1}, 0x{0x3ae38e39:x}, v{T}'); a(f'v_rsq_f32 v{T+1}, v{T+1}')
            for i in range(12): a(f'v_mul_f32 v{RA+i}, v{T+1}, v{RA+i}')
            for i in range(6): a(f'v_cvt_pk_bf16_f32 v{H2+i}, v{RA+2*i}, v{RA+2*i+1}')
            put(H2, XN2)
            tk(a, opt, 11)
        tfirst(a, opt, f's_cmp_lt_u32 s{S_SEG}, {NG}')
        if split:
            a(f's_cmp_eq_u32 s{S_SEG}, 60'); a(f's_cselect_b32 s{S_T}, s{S_SPL}, 0'); a(f's_sub_u32 s{S_SEG}, s{S_SEG}, s{S_T}')
        a(f's_cmp_ge_u32 s{S_SEG}, {64 - NG}'); a(f's_cbranch_scc1 {L}_end')
        if not red: a('s_waitcnt vmcnt(0)')
        qkv(NG)
        a(f's_add_u32 s{S_SEG}, s{S_SEG}, {NG}')
        a(f's_branch {L}')
        a.label(L + '_end')
        finish(a, opt)

def ffn(a, opt):
    DO = 1; XA = 10; L16 = 14; PST = 15; RB = 16; OA = 17; XW = 18; T = 20
    SEL = 28; ACC = [32, 48]; XR = [64, 68, 72, 76]
    AF = 32
    DA = 64
    WG, WU, WD, OUT = S_R0, S_R1, S_R2, S_R3
    ACTL = 40960
    def GU(m, kk): return 80 + 8 * kk + 4 * m
    a.label('L_ffn')
    if opt.get('noffn'): finish(a, opt)
    a(f's_load_dwordx4 s[{WG}:{WG+3}], s[0:1], 64')
    a(f's_load_dwordx4 s[{WD}:{WD+3}], s[0:1], 80')
    a(f's_mov_b32 s{S_SPIN}, 0')
    a(f's_sub_u32 s{S_M}, s{S_ROLE}, 112'); a(f's_mov_b32 s{S_G}, 0')
    for _ in range(2):
        a(f's_cmp_ge_u32 s{S_M}, 36'); a(f's_cselect_b32 s{S_T}, 36, 0'); a(f's_cselect_b32 s{S_T+1}, 1, 0')
        a(f's_sub_u32 s{S_M}, s{S_M}, s{S_T}'); a(f's_add_u32 s{S_G}, s{S_G}, s{S_T+1}')
    F4 = opt.get('f4')
    if F4:
        assert F4 % 3 == 0
        a(f's_cmp_lt_u32 s{S_ROLE}, 36'); a(f's_cselect_b32 s{S_M}, s{S_ROLE}, s{S_M}'); a(f's_cselect_b32 s{S_G}, 3, s{S_G}')
    a(f'v_lshlrev_b32 v{L16}, 4, v0')
    a('s_waitcnt lgkmcnt(0)')
    a(f's_mov_b32 s{WU}, s{WG+2}'); a(f's_mov_b32 s{WU+1}, s{WG+3}'); a(f's_mov_b32 s{OUT}, s{WD+2}'); a(f's_mov_b32 s{OUT+1}, s{WD+3}')
    for r in (WG, WU, WD): srd_fix(a, r, 5308416)
    srd_fix(a, OUT, 2359296)
    if opt.get('wpf'):
        lab = a.newlabel('L_wpf')
        a(f's_cmp_ge_u32 s{S_G}, 3'); a(f's_cbranch_scc1 {lab}')
        a(f's_lshl_b32 s{S_T}, s{S_G}, 3')
        a(f's_load_dwordx2 s[{S_R4}:{S_R4+1}], s[0:1], s{S_T} offset:16')
        a(f's_lshl2_add_u32 s{S_T}, s{S_M}, s{S_WAVE}'); a(f's_lshl_b32 s{S_T}, s{S_T}, 15')
        a(f'v_lshlrev_b32 v{T}, {6 if opt["wpf"] == 64 else 7}, v0')
        a('s_waitcnt lgkmcnt(0)')
        srd_fix(a, S_R4, 4718592)
        for i in range(8 if opt['wpf'] == 64 else 4):
            a(f'buffer_load_dword v70, v{T}, {R(S_R4)}, s{S_T} offen')
            a(f's_add_u32 s{S_T}, s{S_T}, {64 * opt["wpf"]}')
        a.label(lab)
    GA = T + 4; TA = T + 5
    a(f's_mul_i32 s{S_T}, s{S_WAVE}, {16 * 9216}'); a(f's_lshl_b32 s{S_T+1}, s{S_M}, 8'); a(f's_add_u32 s{S_T}, s{S_T}, s{S_T+1}')
    a(f'''
    v_lshrrev_b32 v{T}, 4, v0
    v_mul_u32_u24 v{T}, 9216, v{T}
    v_and_b32 v{T+1}, 15, v0
    v_lshl_add_u32 v{T}, v{T+1}, 4, v{T}
    v_add_u32 v{GA}, s{S_T}, v{T}
    ''')
    a(f's_lshl_b32 s{S_B}, s{S_WAVE}, 12')
    vm = Cnt(a, 'vmcnt', 63)
    def gdma(st):
        for m in range(2):
            for u in range(4):
                a(f's_add_u32 m0, s{S_B}, {(st % 4) * 32768 + m * 16384 + u * 1024}')
                a(f's_mov_b32 s{S_P}, {(64 * st + 4 * u) * 9216}')
                a(f'buffer_load_dwordx4 v{GA}, {R(WU if m else WG)}, s{S_P} offen{NT(opt, "f")} lds'); vm.issue(st)
    if opt.get('fe_ffn'):
        if opt['fe_ffn'] == 'x': meet(a, T, None, [(GO_X, 1)], 'gx')
        a(f's_mul_i32 s{S_T}, s{S_G}, {2 * PF_SLOT}'); a(f's_mul_i32 s{S_T+1}, s{S_M}, 36864'); a(f's_add_u32 s{S_T}, s{S_T}, s{S_T+1}')
        a(f's_mul_i32 s{S_T+1}, s{S_WAVE}, 9216'); a(f's_add_u32 s{S_T}, s{S_T}, s{S_T+1}')
        fill(a, L16, 32, [(S_T, PF), (S_T, PF + PF_SLOT)])
    if str(opt.get('gate_ffn'))[0] in 'qe': meet(a, T, None, [(GO_Z, 1)], 'gf', None, lambda: qgate(a, T, opt['gate_ffn']))
    elif opt.get('gate_ffn'): meet(a, T, None, [({'p': GO_P, 'c': GO_C, 'a': GO_AI, 'x': GO_X}[opt['gate_ffn']], 1)], 'gf')
    if opt.get('fe_ffn'): a('s_waitcnt vmcnt(0)')
    for st in range(4): gdma(st)
    a(f's_lshl_b32 s{S_T}, s{S_WAVE}, 6')
    a(f'''
    v_lshrrev_b32 v{T}, 5, v0
    v_bfe_u32 v{T+1}, v0, 2, 2
    v_lshl_add_u32 v{T}, v{T}, 3, v{T+1}
    v_lshlrev_b32 v{T}, 8, v{T}
    v_bfe_u32 v{T+1}, v0, 4, 1
    v_lshl_add_u32 v{T}, v{T+1}, 5, v{T}
    v_and_b32 v{T+1}, 3, v0
    v_lshl_add_u32 v{T}, v{T+1}, 3, v{T}
    v_add_u32 v{TA}, s{S_T}, v{T}
    v_add_u32 v{TA+1}, 65536, v{TA}
    ''')
    x_consts(a, DO, XA, T)
    for st in range(9):
        vm.wait(st)
        a('s_barrier')
        for k4 in range(4):
            for m in range(2):
                for p in range(2):
                    a(f'ds_read_b64_tr_b16 {ur(GU(m, 4*st+k4) + 2*p, 2)}, v{TA + ((st % 4) >> 1)} offset:{(st % 2) * 32768 + m * 16384 + k4 * 4096 + p * 1024}')
        a('s_waitcnt lgkmcnt(0)')
        if st + 4 < 9:
            a('s_barrier'); gdma(st + 4)
    a('s_barrier')
    th(a, opt, 3)
    a(f's_mul_i32 s{S_B}, s{S_WAVE}, 9216'); a(f's_mul_i32 s{S_OB}, s{S_M}, 147456'); a(f's_add_u32 s{S_OB}, s{S_OB}, s{S_B}')
    for st in range(4): row_stage_dma(a, WD, L16, st, S_OB, vm, 100 + st, NT(opt, 'f'))
    sel(a, SEL, T, 'dup')
    a(f'''
    v_and_b32 v{T}, 15, v0
    v_lshrrev_b32 v{T+1}, 4, v0
    v_lshlrev_b32 v{T+2}, 6, v{T}
    v_lshl_add_u32 v{T+2}, v{T+1}, 4, v{T+2}
    s_lshl_b32 s{S_T}, s{S_M}, 10
    v_add_u32 v{PST}, s{S_T}, v{T+2}
    v_lshlrev_b32 v{T+2}, 4, v{T}
    v_lshl_add_u32 v{T+2}, v{T+1}, 10, v{T+2}
    s_mul_i32 s{S_T}, s{S_M}, 36864
    s_lshl_b32 s{S_T+1}, s{S_WAVE}, 8
    s_add_u32 s{S_T}, s{S_T}, s{S_T+1}
    v_add_u32 v{RB}, s{S_T}, v{T+2}
    s_cmp_ge_u32 s{S_M}, 18
    s_cselect_b32 s{S_T}, {16 * 1152 - 18 * 64}, 0
    s_lshl_b32 s{S_T+1}, s{S_M}, 6
    s_add_u32 s{S_T}, s{S_T}, s{S_T+1}
    s_mul_i32 s{S_T+1}, s{S_WAVE}, 4608
    s_add_u32 s{S_T}, s{S_T}, s{S_T+1}
    v_lshrrev_b32 v{T+2}, 2, v{T}
    v_mul_u32_u24 v{T+2}, 1152, v{T+2}
    v_and_b32 v{T+3}, 3, v0
    v_lshl_add_u32 v{T+2}, v{T+3}, 4, v{T+2}
    v_lshl_add_u32 v{T+2}, v{T+1}, 3, v{T+2}
    v_add_u32 v{T+2}, s{S_T}, v{T+2}
    v_mov_b32 v{T+3}, 0x{OOB:x}
    v_cmp_gt_u32 vcc, 32, v0
    v_cndmask_b32 v{OA}, v{T+3}, v{T+2}, vcc
    v_add_u32 v{XW}, s{S_B}, v{L16}
    ''')
    a(f'''
    v_lshrrev_b32 v{T}, 5, v0
    v_bfe_u32 v{T+1}, v0, 2, 3
    v_lshl_add_u32 v{T}, v{T}, 4, v{T+1}
    v_mul_u32_u24 v{T}, 1152, v{T}
    v_and_b32 v{T+1}, 3, v0
    v_lshl_add_u32 v{TA}, v{T+1}, 4, v{T}
    v_add_u32 v{TA+1}, {2 * 36864}, v{TA}
    ''')
    for w in range(1, 4):
        a(f's_cmp_eq_u32 s{S_WAVE}, {w}'); a(f's_cbranch_scc1 L_ffn_w{w}')
    vm0 = list(vm.q)
    for w in range(4):
        tl = tiles_of(w)
        def WDF(ti, ks): return 368 + 4 * (ti * 4 + ks)
        a.label(f'L_ffn_w{w}')
        vm.q = list(vm0)
        for st in range(4):
            vm.wait(100 + st)
            a('s_barrier')
            for ti, (P, TT) in enumerate(tl):
                for p in range(2):
                    a(f'ds_read_b64_tr_b16 {ur(WDF(ti, st) + 2*p, 2)}, v{TA + (st >> 1)} offset:{(st % 2) * 36864 + p * 8 * 1152 + P * 64 + TT * 8}')
        a('s_waitcnt lgkmcnt(0)')
        th(a, opt, 4)
        a(f's_mul_i32 s{S_T}, s{S_G}, {2 * PF_SLOT}'); a(f's_mul_i32 s{S_T+1}, s{S_M}, 36864'); a(f's_add_u32 s{S_T}, s{S_T}, s{S_T+1}')
        if not opt.get('fe_ffn'): fill(a, L16, 32, [(S_T, PF + w * 9216), (S_T, PF + PF_SLOT + w * 9216)])
        th(a, opt, 5)
        if F4:
            lab = a.newlabel('L_f4')
            a(f's_cmp_lg_u32 s{S_G}, 3'); a(f's_cbranch_scc1 {lab}')
            meet(a, T, (DB_F4, 36, GO_F4), [(GO_F4, 1), (GO_AI, 1)], 'f4')
            a(f's_mov_b32 s{S_SEG}, {F4 + 3}')
            a(f's_branch {lab}_x')
            a.label(lab)
        meet(a, T, (DB_FI, 108, GO_FI), [(GO_FI, 1), (GO_AI, 1)], 'fi')
        a(f's_mov_b32 s{S_SEG}, s{S_G}')
        if F4: a.label(lab + '_x')
        tstamp(a, opt, 0)
        a(f's_mov_b32 s{S_N}, 0')
        S_SP = S_FP; PB = 19
        a(f's_mov_b32 s{S_SP}, 0')
        a(f'v_min_u32 v{PB}, 7, v0'); a(f'v_mul_u32_u24 v{PB}, 1152, v{PB}')
        if opt.get('vprobe') == 'x': a(f'v_add_u32 v{PB}, {w * 9216}, v{PB}')
        AW = T + 4; HV = 26
        a(f'''
        v_bfe_u32 v{T}, v0, 4, 1
        v_lshlrev_b32 v{T}, 10, v{T}
        v_lshrrev_b32 v{T+1}, 5, v0
        v_lshl_add_u32 v{T}, v{T+1}, 8, v{T}
        v_and_b32 v{T+1}, 15, v0
        v_lshl_add_u32 v{AW}, v{T+1}, 4, v{T}
        ''')
        L = f'L_ffn_l{w}'
        a.label(L)
        a(f's_mul_i32 s{S_OB}, s{S_SEG}, 36864'); a(f's_add_u32 s{S_T+1}, s{S_OB}, {XN2}')
        a(f's_add_u32 s{S_T}, s{S_OB}, {HB + w * 9216}')
        a(f's_bfe_u32 s{S_TAG}, s{S_N}, 0x10001'); a(f's_and_b32 s{S_Q}, s{S_N}, 1')
        a(f's_lshl1_add_u32 s{S_Q}, s{S_G}, s{S_Q}'); a(f's_mul_i32 s{S_Q}, s{S_Q}, {PF_SLOT}'); a(f's_add_u32 s{S_Q}, s{S_Q}, {PF}')
        S_NX = S_FC
        a(f's_cmp_ge_u32 s{S_SEG}, {F4 or 64}'); a(f's_addc_u32 s{S_NX}, s{S_SEG}, 3')
        tk(a, opt, 3)
        XL = 32
        spec = opt.get('fspec')
        if spec:
            a(f's_cmp_eq_u32 s{S_SP}, 0'); a(f's_cbranch_scc1 {L}_reg')
            a('s_waitcnt vmcnt(1)')
            for i in range(9): a(f'ds_read_b128 {vr(XL+4*i,4)}, v{XW} offset:{1024 * i}')
            for i in range(9):
                a(f's_waitcnt lgkmcnt({8 - i})')
                if i == 0: a(f'v_max_u32 v{T}, v{XL}, v{XL+2}')
                else: a(f'v_max3_u32 v{T}, v{T}, v{XL+4*i}, v{XL+4*i+2}')
            a(f'v_cmp_eq_u32 vcc, -1, v{T}')
            tk(a, opt, 4)
            a(f's_cbranch_vccz {L}_xok')
            if opt.get('wacc'): a(f's_add_u32 s{S_TM+26}, s{S_TM+26}, 0x10000')
            a.label(L + '_reg')
        if opt.get('vprobe'):
            LP = L + '_p'
            a.label(LP)
            a(f'buffer_load_dword v{T}, v{PB}, {WS}, s{S_T + (1 if opt["vprobe"] == "x" else 0)} offen sc1')
            a(f's_add_u32 s{S_SPIN}, s{S_SPIN}, 1')
            a(f's_cmp_ge_u32 s{S_SPIN}, {SPIN}')
            a('s_waitcnt vmcnt(0)')
            a(f's_cbranch_scc1 {LP}_x')
            a(f'v_cmp_eq_u32 vcc, -1, v{T}')
            a(f's_cbranch_vccnz {LP}')
            a.label(LP + '_x')
        else: spoll(a, None, None, [(1, f's{S_T}')], 'fh', sentinel=True)
        tk(a, opt, 4)
        tacc(a, opt, 3, 4, 12)
        def xl(g0):
            for i in range(3 * g0, 9): a(f'buffer_load_dwordx4 {vr(XL+4*i,4)}, v{DO+i}, {WS}, s{S_T+1} offen sc1')
        xl(0)
        for g3 in range(3):
            LX = f'L_ffn_x{w}_{g3}'
            a.label(LX)
            z = [XL + 4 * (3 * g3 + u) for u in range(3)]
            for u in range(3):
                a(f's_waitcnt vmcnt({8 - 3 * g3 - u})')
                a(f'ds_write_b128 v{XW}, {vr(z[u],4)} offset:{1024 * (3 * g3 + u)}')
                if u == 0: a(f'v_max_u32 v{T}, v{z[u]}, v{z[u]+2}')
                else: a(f'v_max3_u32 v{T}, v{T}, v{z[u]}, v{z[u]+2}')
            a(f'v_cmp_eq_u32 vcc, -1, v{T}')
            a(f's_cbranch_vccz {LX}_x')
            retry(a, LX + '_x')
            a('s_waitcnt lgkmcnt(0)')
            xl(g3)
            a(f's_branch {LX}')
            a.label(LX + '_x')
        a('s_waitcnt lgkmcnt(0)')
        a.label(L + '_xok')
        a('s_barrier')
        tk(a, opt, 5)
        if opt.get('wst'): a('s_waitcnt lgkmcnt(0)')
        lg = Cnt(a, 'lgkmcnt', 15)
        def rd(kk):
            a(f'ds_read_b128 {vr(XR[kk % 4], 4)}, v{XA + (kk & 3)} offset:{(kk >> 2) * 128}'); lg.issue(kk)
        for kk in range(3): rd(kk)
        a(f's_add_u32 s{S_T}, s{S_OB}, {HB}')
        for kk in range(36):
            lg.wait(kk)
            for m in range(2):
                if opt.get('f_nomf') and kk > 0: a('s_nop 7')
                else: a(f'{MF32} {vr(ACC[m],16)}, {ur(GU(m,kk),4)}, {vr(XR[kk%4],4)}, {"0" if kk == 0 else vr(ACC[m],16)}')
                if m == 0 and kk + 3 < 36: rd(kk + 3)
            if kk == 8: a(f'buffer_load_dwordx2 {vr(HV,2)}, v{OA}, {WS}, s{S_T} offen sc1')
        g, u = ACC
        tk(a, opt, 6)
        for r in range(16): a(f'v_max_f32 v{g+r}, 0, v{g+r}')
        for b in range(2):
            for r in range(4): a(f'v_pk_mul_f32 {vr(g+8*b+2*r,2)}, {vr(g+8*b+2*r,2)}, {vr(u+8*b+2*r,2)}')
            for d in range(4): a(f'v_cvt_pk_bf16_f32 v{g+8*b+d}, v{g+8*b+2*d}, v{g+8*b+2*d+1}')
            a(f'ds_write_b128 v{AW}, {vr(g+8*b,4)} offset:{ACTL + w * 2048 + b * 512}')
        a('s_waitcnt lgkmcnt(0)')
        a('s_barrier')
        for ks in range(4):
            for tt in range(2):
                a(f'ds_read_b128 {vr(AF+4*(2*ks+tt),4)}, v{L16} offset:{ACTL + ks * 2048 + tt * 1024}'); lg.issue((ks, tt))
        groups = [(gi, tt) for gi in range(5) for tt in range(2)]
        def fin(n):
            gi, tt = groups[n]; q = DA + 8 * (n & 1); P = tl[2 * gi][0]
            a(f's_add_u32 s{S_P}, s{S_Q}, {(tt * 18 + P) * 36864}')
            if gi < 4:
                for d in range(4): a(f'v_cvt_pk_bf16_f32 v{q+d}, v{q+2*d}, v{q+2*d+1}')
                for d in (0, 2): a(f'v_bfi_b32 v{q+d}, 1, s{S_TAG}, v{q+d}')
                a(f'buffer_store_dwordx4 {vr(q,4)}, v{PST}, {WS}, s{S_P} offen {opt.get("fsc", "sc1")}')
            else:
                for d in range(2): a(f'v_cvt_pk_bf16_f32 v{q+d}, v{q+2*d}, v{q+2*d+1}')
                a(f'v_bfi_b32 v{q}, 1, s{S_TAG}, v{q}')
                a(f'buffer_store_dwordx2 {vr(q,2)}, v{PST}, {WS}, s{S_P} offen offset:{8*tl[8][1]} {opt.get("fsc", "sc1")}')
        for n, (gi, tt) in enumerate(groups):
            for ks in range(4):
                if n < 2: lg.wait((ks, tt))
                for TT in range(2 if gi < 4 else 1):
                    q = DA + 8 * (n & 1) + 4 * TT
                    if opt.get('f_nomf') and ks > 0: a('s_nop 3')
                    else: a(f'{MF} {vr(q,4)}, {ur(WDF(2*gi+TT,ks),4)}, {vr(AF+4*(2*ks+tt),4)}, {"0" if ks == 0 else vr(q,4)}')
                if ks == 1 and n > 0: fin(n - 1)
                if spec and ks == 3 and n == opt.get('spn', 7):
                    a(f's_mul_i32 s{S_T+1}, s{S_NX}, 36864'); a(f's_add_u32 s{S_T+1}, s{S_T+1}, {XN2}')
                    for r in range(8): a(f's_load_dword s{S_MK+r}, s[{S_WS}:{S_WS+1}], s{S_T+1} offset:{w * 9216 + r * 1152} glc')
        fin(9)
        tk(a, opt, 7)
        RA = 68; RR = 32
        def pl(g0):
            for u9 in range(3 * g0, 9):
                a(f's_add_u32 s{S_P}, s{S_Q}, {u9 * 4096}')
                a(f'buffer_load_dwordx4 {vr(RR+4*u9,4)}, v{RB}, {WS}, s{S_P} offen sc1')
        if opt.get('fwait') is not None:
            a(f's_waitcnt vmcnt({opt["fwait"]})'); tk(a, opt, 11)
        pl(0)
        tk(a, opt, 8)
        def red(extra):
            for g3 in range(3):
                LF = f'L_ffn_f{w}_{g3}'
                if not extra: a.label(LF)
                a(f's_waitcnt vmcnt({6 - 3 * g3 + extra})')
                z = [RR + 4 * (3 * g3 + u) for u in range(3)]
                for u in range(3): a(f'v_bitop3_b32 v{T+u}, v{z[u]}, v{z[u]+2}, s{S_TAG} bitop3:0x7e')
                a(f'v_or3_b32 v{T}, v{T}, v{T+1}, v{T+2}')
                a(f'v_and_b32 v{T}, 1, v{T}')
                if g3 == 0:
                    a(f'v_cmp_eq_u32 vcc, -1, v{HV}'); a(f'v_cndmask_b32 v{T}, v{T}, 1, vcc')
                a(f'v_cmp_eq_u32 vcc, 1, v{T}')
                if extra: a(f's_cbranch_vccnz {LF}_r')
                else:
                    a(f's_cbranch_vccz {LF}_x')
                    a.label(LF + '_r')
                    if opt.get('wacc'): a(f's_add_u32 s{S_TM+26}, s{S_TM+26}, 0x10000')
                    retry(a, LF + '_x')
                    if g3 == 0: a(f'buffer_load_dwordx2 {vr(HV,2)}, v{OA}, {WS}, s{S_T} offen sc1')
                    pl(g3)
                    a(f's_branch {LF}')
                    a.label(LF + '_x')
                if g3 == 0:
                    for d in range(2): a(f'v_lshlrev_b32 v{RA+2*d}, 16, v{HV+d}'); a(f'v_and_b32 v{RA+2*d+1}, 0xffff0000, v{HV+d}')
                if g3 == 2: tk(a, opt, 9)
                for u in range(3): a(f'{MF} {vr(RA,4)}, {vr(SEL,4)}, {vr(z[u],4)}, {vr(RA,4)}')
        if spec:
            a('s_waitcnt lgkmcnt(0)')
            for r in range(1, 8): a(f's_max_u32 s{S_MK}, s{S_MK}, s{S_MK+r}')
            a(f's_cmp_lt_u32 s{S_NX}, 64'); a(f's_cselect_b32 s{S_MK}, s{S_MK}, -1')
            a(f's_cmp_lg_u32 s{S_MK}, -1'); a(f's_cselect_b32 s{S_SP}, 1, 0')
            a(f's_cbranch_scc0 L_ffn_f{w}_0')
            x_dma(a, DO, S_T + 1, S_B)
            red(9)
            a(f's_branch {L}_out')
        red(0)
        a.label(L + '_out')
        tk(a, opt, 10)
        for d in range(2): a(f'v_cvt_pk_bf16_f32 v{RA+d}, v{RA+2*d}, v{RA+2*d+1}')
        a(f'buffer_store_dwordx2 {vr(RA,2)}, v{OA}, {R(OUT)}, s{S_OB} offen')
        tfirst(a, opt, f's_cmp_lt_u32 s{S_SEG}, 3')
        a(f's_mov_b32 s{S_SEG}, s{S_NX}'); a(f's_add_u32 s{S_N}, s{S_N}, 1')
        a(f's_cmp_lt_u32 s{S_SEG}, 64'); a(f's_cbranch_scc1 {L}')
        if opt.get('times'): a('s_waitcnt vmcnt(0)')
        finish(a, opt)

def roles(a, opt):
    if opt.get('xcc'): a(f's_getreg_b32 s{S_TM+24}, hwreg(HW_REG_XCC_ID)'); a(f's_getreg_b32 s{S_TM+26}, hwreg(HW_REG_HW_ID)')
    if opt.get('wacc'): a(f's_mov_b32 s{S_TM+24}, 0'); a(f's_mov_b32 s{S_TM+26}, 0')
    if opt.get('ek') and opt.get('plc'):
        a(f's_cmp_lt_u32 s{S_ROLE}, 112'); a('s_cbranch_scc1 L_noffn')
        a(f's_cmp_ge_u32 s{S_ROLE}, 144'); a('s_cbranch_scc1 L_ffn')
        a(f's_mov_b32 s100, s{S_ROLE}'); a(f's_sub_u32 s{S_ROLE}, s{S_ROLE}, 112')
        a('s_branch L_chain_e')
        a.label('L_noffn')
    elif opt.get('ek'):
        t0 = opt.get('et0', 14)
        a(f's_cmp_lt_u32 s{S_ROLE}, 112'); a('s_cbranch_scc1 L_noffn')
        a(f's_sub_u32 s{S_T}, s{S_ROLE}, {32 + 6 * t0}')
        a(f's_cmp_ge_u32 s{S_T}, {48 if opt.get("exd") == "47" else 32}'); a('s_cbranch_scc1 L_ffn')
        a(f's_mul_i32 s{S_T+1}, s{S_T}, 43'); a(f's_lshr_b32 s{S_T+1}, s{S_T+1}, 8')
        a(f's_mul_i32 s{S_T+2}, s{S_T+1}, 6'); a(f's_sub_u32 s{S_T+2}, s{S_T}, s{S_T+2}')
        if opt.get('exd') == '47':
            a(f's_cmp_lt_u32 s{S_T+2}, 2'); a('s_cbranch_scc1 L_ffn')
            a(f's_sub_u32 s{S_T+2}, s{S_T+2}, 2'); a(f's_lshl3_add_u32 s{S_T}, s{S_T+2}, s{S_T+1}')
        else:
            a(f's_min_u32 s{S_T}, s{S_T+2}, 2'); a(f's_add_u32 s{S_T}, s{S_T}, s{S_T+1}')
            a(f's_mul_i32 s{S_T+2}, s{S_T+2}, 5'); a(f's_add_u32 s{S_T}, s{S_T}, s{S_T+2}')
        a(f's_mov_b32 s100, s{S_ROLE}'); a(f's_mov_b32 s{S_ROLE}, s{S_T}')
        a('s_branch L_chain_e')
        a.label('L_noffn')
        assert all((x * 43) >> 8 == x // 6 for x in range(48))
    else: a(f's_cmp_ge_u32 s{S_ROLE}, 112'); a('s_cbranch_scc1 L_ffn')
    a(f's_cmp_ge_u32 s{S_ROLE}, 48'); a('s_cbranch_scc1 L_att')
    proj(a, opt); att(a, opt); ffn(a, opt)
```

```python
import sys, json
sys.path.insert(0, 'gen')
from asm import *
from lay import *
import os, importlib, workers
chain = importlib.import_module(os.environ.get('CHAIN', 'chain3'))
NAME = 'sequential_preLN__memory_aug_recurrent_mem_tr__glu_gated_reglu__prompt'

def build(opt):
    a = Asm(); a.timed = opt.get('timed', True)
    DBG = f's[{S_DBG}:{S_DBG+3}]'; WS = f's[{S_WS}:{S_WS+3}]'
    a(f's_cmp_ge_u32 s{S_WG}, 256'); a('s_cbranch_scc1 L_exit')
    if opt.get('times', False) or 'dly' in opt: a('s_memrealtime s[62:63]')
    a(f's_load_dwordx4 s[{S_DBG}:{S_DBG+3}], s[0:1], 96')
    if opt.get('opf'): a(f's_load_dwordx2 s[{S_R4}:{S_R4+1}], s[0:1], 40')
    if opt.get('warm'): a(f's_load_dwordx8 s[{S_R0}:{S_R0+7}], s[0:1], 16')
    a(f's_getreg_b32 s{S_T}, hwreg(HW_REG_XCC_ID)')
    a(f'v_readfirstlane_b32 s{S_WAVE}, v0')
    a(f's_and_b32 s{S_T}, s{S_T}, 15')
    a(f's_lshr_b32 s{S_WAVE}, s{S_WAVE}, 6')
    a('v_and_b32 v0, 63, v0')
    a('s_waitcnt lgkmcnt(0)')
    a(f's_mov_b32 s{S_WS}, s{S_DBG+2}'); a(f's_and_b32 s{S_WS+1}, s{S_DBG+3}, 0xffff')
    a(f's_mov_b32 s{S_WS+2}, {WS_BYTES}'); a(f's_mov_b32 s{S_WS+3}, 0x20000')
    a(f's_and_b32 s{S_DBG+1}, s{S_DBG+1}, 0xffff'); a(f's_mov_b32 s{S_DBG+2}, 256'); a(f's_mov_b32 s{S_DBG+3}, 0x20000')
    if opt.get('force_slow'): a(f's_or_b32 s{S_T}, s{S_T}, {opt["force_slow"]}')
    if opt.get('cpf'):
        nsh = opt['cpf']; per = 1024 // nsh // 2
        a(f's_cmp_lt_u32 s{S_WAVE}, 2'); a('s_cbranch_scc1 L_nocpf')
        a(f's_getpc_b64 s[{S_T+2}:{S_T+3}]')
        a.label('L_pc')
        a(f's_lshr_b32 s{S_T+1}, s{S_WG}, 3'); a(f's_and_b32 s{S_T+1}, s{S_T+1}, {nsh - 1}')
        a(f's_lshl1_add_u32 s{S_T+1}, s{S_T+1}, s{S_WAVE}'); a(f's_sub_u32 s{S_T+1}, s{S_T+1}, 2')
        a(f's_mul_i32 s{S_T+1}, s{S_T+1}, {per * 128}')
        a('v_lshlrev_b32 v1, 7, v0'); a(f'v_add_u32 v1, s{S_T+1}, v1')
        a(f's_mov_b32 s{S_T+1}, L_code_end-L_pc-4')
        for i in range(per // 64):
            a(f'v_min_u32 v2, s{S_T+1}, v1')
            a(f'v_mov_b32 v3, s{S_T+3}')
            a(f'v_add_co_u32 v2, vcc, s{S_T+2}, v2'); a('v_addc_co_u32 v3, vcc, 0, v3, vcc')
            a(f'global_load_dword v{4 + i}, v[2:3], off')
            a('v_add_u32 v1, 8192, v1')
        a('s_waitcnt vmcnt(0)')
        a('s_branch L_noticket')
        a.label('L_nocpf')
    def early():
        lab = a.newlabel('L_early')
        if opt.get('ecq'): a(f's_bitcmp0_b32 13, s{S_T}'); a(f's_cbranch_scc1 {lab}')
        else: a(f's_cmp_lg_u32 s{S_T}, 0'); a(f's_cbranch_scc1 {lab}')
        if opt.get('ecp'):
            a(f's_getpc_b64 s[{S_T+2}:{S_T+3}]')
            a.label(lab + '_pc')
            a(f's_mov_b32 s{S_T+4}, L_chain-{lab}_pc')
            for w in range(1, 4): a(f's_cmp_eq_u32 s{S_WAVE}, {w}'); a(f's_cselect_b32 s{S_T+4}, L_chain_w{w}-{lab}_pc, s{S_T+4}')
            a('v_lshlrev_b32 v10, 6, v0'); a(f'v_add_u32 v10, s{S_T+4}, v10')
            for i in range(opt['ecp']):
                if i: a('v_add_u32 v10, 0x1000, v10')
                a(f'v_min_u32 v8, L_code_end-{lab}_pc-4, v10'); a(f'v_mov_b32 v9, s{S_T+3}')
                a(f'v_add_co_u32 v8, vcc, s{S_T+2}, v8'); a('v_addc_co_u32 v9, vcc, 0, v9, vcc')
                a('global_load_dword v255, v[8:9], off')
        if opt.get('opf'):
            a(f's_cmp_lt_u32 s{S_WAVE}, 2'); a(f's_cbranch_scc1 {lab}')
            if opt.get('ecq'): a(f's_cmp_lg_u32 s{S_T}, 0'); a(f's_cbranch_scc1 {lab}')
            a(f's_and_b32 s{S_R4+1}, s{S_R4+1}, 0xffff'); a(f's_mov_b32 s{S_R4+2}, 4718592'); a(f's_mov_b32 s{S_R4+3}, 0x20000')
            a(f's_bfe_u32 s{S_T+2}, s{S_WG}, 0x50003'); a(f's_mul_i32 s{S_T+2}, s{S_T+2}, 147456')
            a(f's_and_b32 s{S_T+3}, s{S_WAVE}, 1'); a(f's_lshl_b32 s{S_T+3}, s{S_T+3}, 12'); a(f's_add_u32 s{S_T+2}, s{S_T+2}, s{S_T+3}')
            a('v_lshlrev_b32 v8, 6, v0')
            for i in range(opt['opf']):
                a(f'buffer_load_dword v255, v8, s[{S_R4}:{S_R4+3}], s{S_T+2} offen')
                a(f's_add_u32 s{S_T+2}, s{S_T+2}, 8192')
        a.label(lab)
    if opt.get('ecp') or opt.get('opf'):
        a(f's_cmp_eq_u32 s{S_WAVE}, 0'); a('s_cbranch_scc1 L_nozero')
        early()
    if opt.get('warm'):
        st = opt.get('wst_', 64)
        a(f's_cmp_lt_u32 s{S_WAVE}, 2'); a('s_cbranch_scc1 L_nowarm')
        a(f's_cmp_eq_u32 s{S_T}, 0'); a('s_cbranch_scc1 L_nowarm')
        a(f's_and_b32 s{S_T+1}, s{S_WG}, 7'); a(f's_lshr_b32 s{S_T+2}, s{S_WG}, 3')
        a(f's_cmp_eq_u32 s{S_T+1}, 0'); a('s_cbranch_scc1 L_nowarm')
        a(f'v_mul_u32_u24 v8, {st}, v0')
        a(f's_cmp_ge_u32 s{S_T+1}, 4'); a('s_cbranch_scc1 L_warm1')
        for c, (n, lo) in enumerate(((3, 1), (4, 4))):
            if c: a.label('L_warm1')
            ms = opt['warm'][c]
            nl = -(-4718592 // (32 * n * 2 * 64 * st))
            a(f's_mul_i32 s{S_T+2}, s{S_T+2}, {n}'); a(f's_add_u32 s{S_T+2}, s{S_T+2}, s{S_T+1}'); a(f's_sub_u32 s{S_T+2}, s{S_T+2}, {lo}')
            a(f's_lshl1_add_u32 s{S_T+2}, s{S_T+2}, s{S_WAVE}'); a(f's_sub_u32 s{S_T+2}, s{S_T+2}, 2')
            rows = opt.get('wrow', 1)
            a(f's_mul_i32 s{S_T+2}, s{S_T+2}, {64 * st * (1 if rows else nl)}')
            for m in ms:
                r = {'q': S_R0, 'k': S_R0 + 2, 'v': S_R1, 'o': S_R1 + 2}[m]
                a(f's_mov_b32 s{S_R2}, s{r}'); a(f's_and_b32 s{S_R2+1}, s{r+1}, 0xffff'); a(f's_mov_b32 s{S_R2+2}, 4718592'); a(f's_mov_b32 s{S_R2+3}, 0x20000')
                for i in range(nl):
                    a(f's_add_u32 s{S_T+3}, s{S_T+2}, {i * 64 * st * (64 * n if rows else 1)}')
                    a(f'buffer_load_dword v255, v8, s[{S_R2}:{S_R2+3}], s{S_T+3} offen')
            if c == 0: a('s_branch L_nowarm')
        a.label('L_nowarm')
    a(f's_cmp_lg_u32 s{S_WAVE}, 1'); a('s_cbranch_scc1 L_nozero')
    a(f's_cmp_lt_u32 s{S_WG}, {256 - 2 * NZ}'); a('s_cbranch_scc1 L_noticket')
    a(f's_bitcmp0_b32 s{S_WG}, 0'); a('s_cbranch_scc1 L_noticket')
    a('v_mov_b64 v[4:5], 0'); a('v_mov_b64 v[6:7], 0'); a('v_lshlrev_b32 v3, 4, v0')
    a(f's_sub_u32 s{S_T+2}, s{S_WG}, {257 - 2 * NZ}'); a(f's_lshl_b32 s{S_T+2}, s{S_T+2}, 9')
    a(f'buffer_store_dwordx4 v[4:7], v3, {WS}, s{S_T+2} offen sc1')
    a('v_mov_b32 v1, 1')
    a('s_waitcnt vmcnt(0)')
    a('s_mov_b64 exec, 1')
    if opt.get('pq'):
        a(f'buffer_atomic_add v1, off, {DBG}, 0 offset:{DB_Z} sc0')
        a('s_waitcnt vmcnt(0)')
        a(f'v_cmp_eq_u32 vcc, {NZ - 1}, v1'); a('v_mov_b32 v1, 1'); a('s_and_b64 exec, exec, vcc')
        a('s_cbranch_execz L_nogz')
        a(f'buffer_store_dword v1, off, {DBG}, 0 offset:{GO_Z} sc1')
        a.label('L_nogz')
    else: a(f'buffer_atomic_add v1, off, {DBG}, 0 offset:{DB_Z}')
    a('s_mov_b64 exec, -1')
    a('s_branch L_noticket')
    a.label('L_nozero')
    if opt.get('even', True):
        x1 = opt.get('x1', 'att')
        a(f's_cmp_lg_u32 s{S_WAVE}, 0'); a('s_cbranch_scc1 L_noticket')
        a('v_mov_b32 v2, 0')
        a('s_mov_b64 exec, 1')
        a('v_mov_b32 v1, 1')
        a(f's_and_b32 s{S_T}, s{S_T}, 7')
        a(f's_lshl_b32 s{S_T+2}, s{S_T}, 2'); a(f's_add_u32 s{S_T+2}, s{S_T+2}, {DB_CX - 8}')
        a(f's_cmp_eq_u32 s{S_T}, 1'); a(f's_cselect_b32 s{S_T+2}, {DB_C1}, s{S_T+2}')
        a(f's_cmp_eq_u32 s{S_T}, 0'); a(f's_cselect_b32 s{S_T+2}, {DB_CT}, s{S_T+2}')
        a(f'buffer_atomic_add v1, off, {DBG}, s{S_T+2} sc0')
        if opt.get('ecp'):
            a('s_mov_b64 exec, -1'); o_ = opt.pop('opf', None); early(); opt['opf'] = o_; a('s_mov_b64 exec, 1')
            a(f's_bitcmp1_b32 13, s{S_T}' if opt.get('ecq') else f's_cmp_eq_u32 s{S_T}, 0'); a('s_cbranch_scc0 L_tk0')
            a(f's_waitcnt vmcnt({opt["ecp"]})'); a('s_branch L_tk1')
            a.label('L_tk0')
        a('s_waitcnt vmcnt(0)')
        a.label('L_tk1')
        a(f's_lshl_b32 s{S_T+2}, s{S_T}, 16')
        a(f'v_readfirstlane_b32 s{S_T+1}, v1')
        a(f'v_or_b32 v1, s{S_T+2}, v1')
        a(f's_cmp_lt_u32 s{S_T+1}, 32'); a('s_cbranch_scc1 L_ticket')
        a('v_mov_b32 v1, 1')
        a(f'buffer_atomic_add v1, off, {DBG}, 0 offset:{DB_WT} sc0')
        a('s_waitcnt vmcnt(0)')
        a('v_or_b32 v1, 0x80000, v1')
        a.label('L_ticket')
        a('ds_write_b32 v2, v1')
        a('s_waitcnt lgkmcnt(0)')
        a('s_mov_b64 exec, -1')
        a.label('L_noticket')
        a('s_barrier')
        a('v_mov_b32 v2, 0'); a('ds_read_b32 v1, v2'); a('s_waitcnt lgkmcnt(0)')
        a(f'v_readfirstlane_b32 s{S_T+1}, v1')
        a('s_barrier')
        a(f's_and_b32 s{S_ROLE}, s{S_T+1}, 0xffff')
        a(f's_lshr_b32 s{S_T}, s{S_T+1}, 16')
        a(f's_cmp_lt_u32 s{S_T}, 8'); a('s_cbranch_scc1 L_drawn')
        a(f's_mov_b32 s{S_T+3}, 0')
        a('v_lshlrev_b32 v2, 2, v0'); a(f'v_add_u32 v2, {DB_CX - 8}, v2')
        a(f'v_mov_b32 v3, {DB_CT}'); a('v_cmp_eq_u32 vcc, 0, v0'); a('v_cndmask_b32 v2, v2, v3, vcc')
        a(f'v_mov_b32 v3, {DB_C1}'); a('v_cmp_eq_u32 vcc, 1, v0'); a('v_cndmask_b32 v2, v2, v3, vcc')
        a(f'v_mov_b32 v3, {DB_WT}'); a('v_cmp_lt_u32 vcc, 7, v0'); a('v_cndmask_b32 v2, v2, v3, vcc')
        a.label('L_spare')
        a(f'buffer_load_dword v1, v2, {DBG}, 0 offen sc1')
        a(f's_add_u32 s{S_T+3}, s{S_T+3}, 1')
        a('s_waitcnt vmcnt(0)')
        a(f'v_readlane_b32 s{S_T+1}, v1, 8')
        a('v_min_u32 v1, 32, v1')
        a(f's_cmp_ge_u32 s{S_T+3}, {chain.SPIN}'); a('s_cbranch_scc1 L_exit')
        for k in range(8): a(f'v_readlane_b32 s{S_T+2}, v1, {k}'); a(f's_add_u32 s{S_T+1}, s{S_T+1}, s{S_T+2}')
        a(f's_cmp_lt_u32 s{S_T+1}, 256'); a('s_cbranch_scc1 L_spare')
        for k in range(8):
            a(f'v_readlane_b32 s{S_T+2}, v1, {k}')
            a(f's_mov_b32 s{S_T}, {k}')
            a(f's_add_u32 s{S_ROLE}, s{S_ROLE}, s{S_T+2}')
            a(f's_cmp_lt_u32 s{S_ROLE}, 32'); a('s_cbranch_scc1 L_drawn')
            a(f's_sub_u32 s{S_ROLE}, s{S_ROLE}, 32')
        a('s_branch L_exit')
        a.label('L_drawn')
        a(f's_cmp_eq_u32 s{S_T}, 0'); a('s_cbranch_scc1 L_chain')
        if opt.get('plc'):
            assert x1 == 'att2'
            a(f's_cmp_eq_u32 s{S_T}, 1'); a('s_cbranch_scc1 L_plc1')
            a(f's_cmp_lt_u32 s{S_T}, 4'); a(f's_cselect_b32 s{S_T+1}, 16, 12')
            a(f's_cmp_ge_u32 s{S_ROLE}, s{S_T+1}'); a('s_cbranch_scc1 L_plcr')
            a(f's_cmp_lt_u32 s{S_T}, 4'); a('s_cbranch_scc0 L_plcp')
            a(f's_lshl4_add_u32 s{S_ROLE}, s{S_T}, s{S_ROLE}'); a(f's_add_u32 s{S_ROLE}, s{S_ROLE}, {112 - 32}')
            a('s_branch L_roles')
            a.label('L_plcp')
            if opt['plc'] == 2:
                assert 0
            a(f's_lshl3_add_u32 s{S_T+1}, s{S_T}, s{S_ROLE}'); a(f's_sub_u32 s{S_T+1}, s{S_T+1}, 32')
            a(f's_lshl2_add_u32 s{S_T+2}, s{S_T}, s{S_ROLE}'); a(f's_add_u32 s{S_T+2}, s{S_T+2}, {32 - 16 - 8}')
            a(f's_cmp_lt_u32 s{S_ROLE}, 8'); a(f's_cselect_b32 s{S_ROLE}, s{S_T+1}, s{S_T+2}')
            a('s_branch L_roles')
            a.label('L_plcr')
            a(f's_sub_u32 s{S_ROLE}, s{S_ROLE}, s{S_T+1}')
            a(f's_mul_i32 s{S_T+1}, s{S_ROLE}, 6'); a(f's_add_u32 s{S_T+1}, s{S_T+1}, s{S_T}'); a(f's_sub_u32 s{S_T+1}, s{S_T+1}, 2')
            a(f's_lshl2_add_u32 s{S_T+2}, s{S_ROLE}, s{S_T}'); a(f's_add_u32 s{S_T+2}, s{S_T+2}, {96 - 64 - 4}')
            a(f's_cmp_lt_u32 s{S_ROLE}, 16'); a(f's_cselect_b32 s{S_ROLE}, s{S_T+1}, s{S_T+2}')
            a(f's_cmp_lt_u32 s{S_ROLE}, 32'); a(f's_cselect_b32 s{S_T+1}, 64, 112')
            a(f's_add_u32 s{S_ROLE}, s{S_ROLE}, s{S_T+1}')
            a(f's_cmp_ge_u32 s{S_ROLE}, 220'); a('s_cbranch_scc1 L_exit')
            a('s_branch L_roles')
            a.label('L_plc1')
        a(f's_mul_i32 s{S_T+1}, s{S_ROLE}, 6'); a(f's_add_u32 s{S_T+1}, s{S_T+1}, s{S_T}'); a(f's_sub_u32 s{S_T+1}, s{S_T+1}, 2')
        a(f's_sub_u32 s{S_ROLE}, 223, s{S_ROLE}')
        a(f's_cmp_eq_u32 s{S_T}, 1'); a(f's_cselect_b32 s{S_ROLE}, s{S_ROLE}, s{S_T+1}')
    else:
        x1 = opt.get('x1', 'att')
        a(f's_cmp_lg_u32 s{S_WAVE}, 0'); a('s_cbranch_scc1 L_noticket')
        a('v_mov_b32 v2, 0')
        a('s_mov_b64 exec, 1')
        a(f's_cmp_gt_u32 s{S_T}, {1 if x1 else 0}'); a('s_cbranch_scc1 L_wticket')
        a('v_mov_b32 v1, 1')
        a(f's_mul_i32 s{S_T+2}, s{S_T}, {DB_C1 - DB_CT}')
        a(f'buffer_atomic_add v1, off, {DBG}, s{S_T+2} offset:{DB_CT} sc0')
        a(f's_add_u32 s{S_T+2}, s{S_T}, 1'); a(f's_lshl_b32 s{S_T+2}, s{S_T+2}, 16')
        a('s_waitcnt vmcnt(0)')
        a(f'v_readfirstlane_b32 s{S_T+1}, v1')
        a(f'v_or_b32 v1, s{S_T+2}, v1')
        a(f's_cmp_lt_u32 s{S_T+1}, 32'); a('s_cbranch_scc1 L_ticket')
        a.label('L_wticket')
        a('v_mov_b32 v1, 1')
        a(f'buffer_atomic_add v1, off, {DBG}, 0 offset:{DB_WT} sc0')
        a('s_waitcnt vmcnt(0)')
        a.label('L_ticket')
        a('ds_write_b32 v2, v1')
        a('s_waitcnt lgkmcnt(0)')
        a('s_mov_b64 exec, -1')
        a.label('L_noticket')
        a('s_barrier')
        a('v_mov_b32 v2, 0'); a('ds_read_b32 v1, v2'); a('s_waitcnt lgkmcnt(0)')
        a(f'v_readfirstlane_b32 s{S_T+1}, v1')
        a('s_barrier')
        a(f's_and_b32 s{S_ROLE}, s{S_T+1}, 0xffff')
        a(f's_bitcmp1_b32 s{S_T+1}, 16'); a('s_cbranch_scc1 L_chain')
        a(f's_bitcmp0_b32 s{S_T+1}, 17'); a('s_cbranch_scc1 L_front')
        a(f's_sub_u32 s{S_ROLE}, 223, s{S_ROLE}')
        a('s_branch L_list')
        a.label('L_front')
        a(f's_cmp_lt_u32 s{S_ROLE}, {192 if x1 else 220}'); a('s_cbranch_scc1 L_list')
        a(f's_mov_b32 s{S_T+3}, 0')
        a.label('L_spare')
        a(f'buffer_load_dword v1, off, {DBG}, 0 offset:{DB_CT} sc1')
        a(f'buffer_load_dword v2, off, {DBG}, 0 offset:{DB_WT} sc1')
        a(f'buffer_load_dword v3, off, {DBG}, 0 offset:{DB_C1} sc1')
        a(f's_add_u32 s{S_T+3}, s{S_T+3}, 1')
        a('s_waitcnt vmcnt(0)')
        a(f'v_readfirstlane_b32 s{S_T+2}, v1'); a(f'v_readfirstlane_b32 s{S_T+1}, v2'); a(f'v_readfirstlane_b32 s{S_T}, v3')
        a(f's_cmp_ge_u32 s{S_T+3}, {chain.SPIN}'); a('s_cbranch_scc1 L_exit')
        a(f's_min_u32 s{S_T+2}, s{S_T+2}, 32'); a(f's_min_u32 s{S_T}, s{S_T}, 32')
        a(f's_add_u32 s{S_T+1}, s{S_T+1}, s{S_T+2}'); a(f's_add_u32 s{S_T+1}, s{S_T+1}, s{S_T}')
        a(f's_cmp_lt_u32 s{S_T+1}, 256'); a('s_cbranch_scc1 L_spare')
        a(f's_sub_u32 s{S_T}, 224, s{S_T}')
        a(f's_cmp_lt_u32 s{S_ROLE}, s{S_T}'); a('s_cbranch_scc1 L_list')
        a(f's_sub_u32 s{S_ROLE}, s{S_ROLE}, s{S_T}')
        a(f's_add_u32 s{S_ROLE}, s{S_ROLE}, s{S_T+2}')
        a(f's_cmp_lt_u32 s{S_ROLE}, 32'); a('s_cbranch_scc1 L_chain')
        a('s_branch L_exit')
    a.label('L_list')
    if x1 == 'att2':
        a(f's_cmp_lt_u32 s{S_ROLE}, 48'); a('s_cbranch_scc1 L_roles')
        a(f's_cmp_lt_u32 s{S_ROLE}, 80'); a(f's_cselect_b32 s{S_T}, 16, 32')
        a(f's_cmp_lt_u32 s{S_ROLE}, 192'); a(f's_cselect_b32 s{S_T}, s{S_T}, -144')
        a(f's_cmp_lt_u32 s{S_ROLE}, 208'); a(f's_cselect_b32 s{S_T}, s{S_T}, -112')
        a(f's_add_u32 s{S_ROLE}, s{S_ROLE}, s{S_T}')
    a(f's_cmp_ge_u32 s{S_ROLE}, 220'); a('s_cbranch_scc1 L_exit')
    if x1 == 'att':
        a(f's_cmp_lt_u32 s{S_ROLE}, 84'); a('s_cbranch_scc1 L_roles')
        a(f's_cmp_lt_u32 s{S_ROLE}, 192'); a(f's_cselect_b32 s{S_T}, 28, -108')
        a(f's_add_u32 s{S_ROLE}, s{S_ROLE}, s{S_T}')
    a('s_branch L_roles')
    a.label('L_exit')
    a('s_endpgm')
    a.label('L_roles')
    for _ in range(opt.get('pad', 0)): a('s_nop 0')
    if opt.get('flags'): workers.roles(a, opt)
    else: a('s_endpgm')
    chain.entry(a, opt)
    a.label('L_code_end')
    n = a.fix(verbose=opt.get('verbose', False))
    head = open('cdna_kernels/' + NAME + '.s.ref').read().split('\n')
    hdr = [l for l in head if l.startswith(';') and '@launch' not in l]
    hdr = hdr[:[i for i, l in enumerate(hdr) if 'Override launch' in l][0]]
    out = '\n'.join(hdr) + '\n; @launch grid=(256,1,1) block=(256,1,1) lds=163840\n'
    out += f'''.amdgcn_target "amdgcn-amd-amdhsa--gfx950"
.text
.globl {NAME}_kernel
.p2align 8
.type {NAME}_kernel,@function
{NAME}_kernel:
''' + a.text() + f'''.section .rodata,"a"
.p2align 6
.amdhsa_kernel {NAME}_kernel
  .amdhsa_next_free_vgpr 512
  .amdhsa_next_free_sgpr 102
  .amdhsa_accum_offset 256
  .amdhsa_group_segment_fixed_size 0
  .amdhsa_kernarg_size 112
  .amdhsa_user_sgpr_count 2
  .amdhsa_user_sgpr_kernarg_segment_ptr 1
  .amdhsa_system_sgpr_workgroup_id_x 1
.end_amdhsa_kernel
'''
    return out

if __name__ == '__main__':
    opt = json.loads(sys.argv[2]) if len(sys.argv) > 2 else {}
    open(sys.argv[1], 'w').write(build(opt))
```

```python
import re

REG_RE = re.compile(r'^(-?)(?:abs\()?([vas])(?:(\d+)|\[(\d+):(\d+)\])\)?$')

def regs_of(op):
    op = op.strip()
    if op in ('vcc',): return [('s', 'vcc_lo'), ('s', 'vcc_hi')]
    if op in ('vcc_lo', 'vcc_hi', 'm0', 'exec_lo', 'exec_hi', 'scc'): return [('s', op)]
    if op == 'exec': return [('s', 'exec_lo'), ('s', 'exec_hi')]
    m = REG_RE.match(op)
    if not m: return []
    c = m.group(2)
    if m.group(3) is not None: return [(c, int(m.group(3)))]
    return [(c, i) for i in range(int(m.group(4)), int(m.group(5)) + 1)]

TRANS = ('v_exp_f32', 'v_log_f32', 'v_rcp_f32', 'v_rsq_f32', 'v_sqrt_f32', 'v_sin_f32', 'v_cos_f32', 'v_rcp_iflag_f32')

class I:
    __slots__ = ('text', 'mn', 'ops', 'kind', 'defs', 'uses', 'passes', 'srcc', 'states', 'wide_store', 'label', 'target', 'dpp', 'sdefs', 'ab', 'lds_dma')
    def __init__(self, text):
        self.text = text
        t = text.split(';')[0].strip()
        self.label = None; self.target = None; self.kind = 'none'; self.defs = []; self.uses = []
        self.passes = 0; self.srcc = []; self.states = 0; self.wide_store = False; self.dpp = False; self.ab = []
        self.lds_dma = False
        self.mn = ''
        if not t or t.startswith('.'):
            return
        if t.endswith(':'):
            self.label = t[:-1]; self.kind = 'label'; return
        parts = t.split(None, 1)
        mn = parts[0]; self.mn = mn
        rest = parts[1] if len(parts) > 1 else ''
        ops = []; cur = ''; depth = 0
        for ch in rest:
            if ch in '[(': depth += 1
            if ch in '])': depth -= 1
            if ch == ',' and depth == 0: ops.append(cur.strip()); cur = ''
            else: cur += ch
        if cur.strip(): ops.append(cur.strip())
        mods = ''
        if ops:
            sp = ops[-1].split(None, 1)
            if len(sp) > 1 and not ops[-1].startswith('hwreg') and mn not in ('s_waitcnt',):
                ops[-1] = sp[0]; mods = sp[1]
        self.ops = ops
        self.states = 1
        base = mn.replace('_e32', '').replace('_e64', '').replace('_dpp', '').replace('_sdwa', '')
        R = regs_of
        if mn == 's_nop':
            self.kind = 'nop'; self.states = int(ops[0], 0) + 1
        elif mn.startswith('v_mfma') or mn.startswith('v_smfmac'):
            self.kind = 'mfma'
            self.passes = 8 if '32x32' in mn else 4
            self.defs = R(ops[0]); self.ab = R(ops[1]) + R(ops[2])
            if mn.startswith('v_smfmac'):
                self.srcc = R(ops[0]); self.ab += R(ops[3])
            else:
                self.srcc = R(ops[3])
            self.uses = self.ab + self.srcc
        elif mn.startswith('v_'):
            self.kind = 'trans' if base in TRANS else 'valu'
            if 'quad_perm' in mods or 'row_' in mods or 'wave_' in mods or mn.endswith('_dpp'): self.dpp = True
            if base.startswith('v_cmpx'):
                self.defs = R(ops[0]) + R('exec'); self.uses = sum((R(o) for o in ops[1:]), [])
            elif base.startswith('v_permlane') and 'swap' in base:
                self.defs = R(ops[0]) + R(ops[1]); self.uses = list(self.defs); self.kind = 'perm'
            elif base in ('v_add_co_u32', 'v_sub_co_u32', 'v_addc_co_u32', 'v_mad_u64_u32'):
                self.defs = R(ops[0]) + R(ops[1]); self.uses = sum((R(o) for o in ops[2:]), [])
            elif base == 'v_nop':
                pass
            else:
                self.defs = R(ops[0]); self.uses = sum((R(o) for o in ops[1:]), [])
                if base in ('v_fmac_f32', 'v_writelane_b32', 'v_dot2c_f32_bf16') or self.dpp: self.uses += R(ops[0])
                if base == 'v_cndmask_b32' and len(ops) == 3: self.uses += R('vcc')
        elif mn.startswith('ds_'):
            self.kind = 'ds'
            if 'read' in mn or 'bpermute' in mn or 'swizzle' in mn or 'permute' in mn or '_rtn' in mn:
                self.defs = R(ops[0]); self.uses = sum((R(o) for o in ops[1:]), [])
            else:
                self.uses = sum((R(o) for o in ops), [])
        elif mn.startswith('buffer_') or mn.startswith('global_'):
            self.kind = 'vmem'
            allmods = mods + ' ' + ' '.join(ops)
            if mn in ('buffer_wbl2', 'buffer_inv'):
                pass
            elif re.search(r'\blds\b', allmods) or 'load_lds' in mn:
                self.lds_dma = True
                self.uses = sum((R(o) for o in ops), []) + R('m0')
            elif 'load' in mn:
                self.defs = R(ops[0]); self.uses = sum((R(o) for o in ops[1:]), [])
            elif 'atomic' in mn:
                self.uses = sum((R(o) for o in ops), [])
                if 'sc0' in allmods: self.defs = R(ops[0])
            else:
                self.uses = sum((R(o) for o in ops), [])
                if 'x3' in mn or 'x4' in mn:
                    self.wide_store = True
                    self.srcc = R(ops[0]) if mn.startswith('buffer') else R(ops[1])
        elif mn.startswith('s_'):
            self.kind = 'salu'
            if mn.startswith('s_cbranch') or mn == 's_branch':
                self.target = ops[0]; self.kind = 'branch'
                if 'vcc' in mn: self.uses = R('vcc')
                if 'exec' in mn: self.uses = R('exec')
            elif mn in ('s_waitcnt', 's_barrier', 's_endpgm', 's_setprio', 's_sleep'):
                pass
            elif mn.startswith('s_cmp') or mn.startswith('s_bitcmp'):
                self.uses = sum((R(o) for o in ops), [])
            elif mn.startswith('s_load') or mn in ('s_memtime', 's_memrealtime', 's_getreg_b32'):
                self.defs = R(ops[0]); self.uses = sum((R(o) for o in ops[1:]), [])
            else:
                self.defs = R(ops[0]); self.uses = sum((R(o) for o in ops[1:]), [])
                if 'saveexec' in mn: self.defs += R('exec'); self.uses += R('exec')
                if mn in ('s_addk_i32', 's_mulk_i32'): self.uses += R(ops[0])
        else:
            raise ValueError('unknown instr: ' + text)

def isv(k): return k in ('valu', 'trans', 'perm')

def need(p, c):
    n = 0
    pd = set(p.defs)
    vd = {r for r in pd if r[0] in 'va'}
    sd = {r for r in pd if r[0] == 's'}
    cu = set(c.uses); cd = set(c.defs)
    if isv(p.kind):
        if c.kind == 'mfma' and vd & cu: n = max(n, 2)
        if c.kind == 'perm' and vd & cu: n = max(n, 2)
        if c.dpp and vd & cu: n = max(n, 2)
        if c.mn.startswith('v_readlane') or c.mn.startswith('v_readfirstlane'):
            if vd & cu: n = max(n, 1)
            if any(r[1] in ('exec_lo', 'exec_hi') for r in sd): n = max(n, 4)
            if c.mn.startswith('v_readlane') and sd & cu: n = max(n, 4)
        if c.mn.startswith('v_writelane') and sd & cu: n = max(n, 4)
        if p.kind == 'trans' and (isv(c.kind) or c.kind == 'mfma') and c.kind != 'trans' and vd & cu: n = max(n, 1)
        if p.kind == 'trans' and c.kind == 'trans' and vd & cu: n = max(n, 1)
        if sd:
            if c.kind == 'vmem' and sd & cu: n = max(n, 5)
            if isv(c.kind) and sd & cu: n = max(n, 2)
            ex = any(r[1] in ('exec_lo', 'exec_hi') for r in sd)
            if ex and c.kind == 'mfma': n = max(n, 4)
            if ex and c.dpp: n = max(n, 5)
            if ex and c.kind == 'perm': n = max(n, 4)
            if c.kind in ('salu', 'branch') and sd & cu: n = max(n, 1)
    if p.kind == 'mfma':
        far = 8 if p.passes == 4 else 12
        if c.kind == 'mfma':
            if vd & set(c.ab): n = max(n, far)
            if vd & set(c.srcc):
                same = (p.defs == c.srcc) and p.mn == c.mn
                if not same: n = max(n, far - 2)
            elif vd & cd:
                n = max(n, far)
        elif c.kind in ('valu', 'trans', 'perm', 'ds', 'vmem'):
            if vd & (cu | cd): n = max(n, far)
            if isv(c.kind) and set(p.srcc) & cd: n = max(n, 3 if p.passes == 4 else 7)
    if p.wide_store:
        if set(p.srcc) & cd: n = max(n, 2 if isv(c.kind) else 1)
    if p.kind == 'salu' and ('s', 'm0') in pd and c.lds_dma: n = max(n, 1)
    return n

def timed_dist(p, between, c):
    occ = lambda z: 2 if '16x16x16' in z.mn else z.passes
    t = 1; last = 0; lp = occ(p)
    for x in between + [c]:
        if x.kind == 'mfma':
            t = max(t, last + lp); last = t; lp = occ(x)
        if x is c: return t - 1
        t += x.states

class Asm:
    def __init__(self):
        self.timed = False
        self.L = []
        self.uid = 0
    def __call__(self, text):
        for line in text.split('\n'):
            s = line.strip()
            if s: self.L.append(I(s))
    def label(self, name): self.L.append(I(name + ':'))
    def newlabel(self, base):
        self.uid += 1
        return '%s_%d' % (base, self.uid)
    def fix(self, verbose=False):
        out = []
        nins = 0
        for c in self.L:
            if c.kind not in ('none', 'label'):
                req = 0; dist = 0
                seq = []
                for p in reversed(out):
                    if p.kind in ('none', 'label'): continue
                    if p.mn in ('s_branch', 's_endpgm'): break
                    if dist >= 20: break
                    nd = need(p, c)
                    if nd > dist:
                        r = nd - dist
                        if self.timed and p.kind == 'mfma':
                            r = 0
                            while r < nd - dist and timed_dist(p, seq[::-1] + ([I('s_nop %d' % (r - 1))] if r else []), c) - 1 < nd: r += 1
                        req = max(req, r)
                    seq.append(p)
                    dist += p.states
                if req > 0:
                    out.append(I('s_nop %d' % (req - 1))); nins += 1
                    if verbose: print('nop', req, 'before', c.text)
            out.append(c)
        self.L = out
        pos = {x.label: i for i, x in enumerate(out) if x.label}
        changed = True
        while changed:
            changed = False
            out = self.L
            pos = {x.label: i for i, x in enumerate(out) if x.label}
            for bi, b in enumerate(out):
                if b.kind != 'branch': continue
                hist = []; d = 0; j = bi
                while j >= 0 and d < 20:
                    p = out[j]
                    if p.kind not in ('none', 'label'):
                        if j != bi and p.mn in ('s_branch', 's_endpgm'): break
                        hist.append((p, d)); d += p.states
                    j -= 1
                j = pos[b.target]; fwd = 0; worst = 0
                while j < len(out) and fwd < 20:
                    c = out[j]
                    if c.kind not in ('none', 'label'):
                        for p, dd in hist:
                            r = need(p, c) - (dd + fwd)
                            worst = max(worst, r)
                        fwd += c.states
                        if c.mn in ('s_branch', 's_endpgm'): break
                    j += 1
                if worst > 0:
                    self.L.insert(bi, I('s_nop %d' % (worst - 1)))
                    if verbose: print('branch nop', worst, 'before', b.text)
                    changed = True
                    break
        return nins
    def text(self):
        o = []
        for x in self.L:
            o.append(x.text if x.kind == 'label' or x.text.startswith('.') else '  ' + x.text)
        return '\n'.join(o) + '\n'

def vr(i, n=1):
    return 'v%d' % i if n == 1 else 'v[%d:%d]' % (i, i + n - 1)
def ar(i, n=1):
    return 'a%d' % i if n == 1 else 'a[%d:%d]' % (i, i + n - 1)
def sr(i, n=1):
    return 's%d' % i if n == 1 else 's[%d:%d]' % (i, i + n - 1)
def ur(i, n=1):
    return vr(i, n) if i < 256 else ar(i - 256, n)

class Cnt:
    def __init__(self, a, name, mx):
        self.a = a; self.name = name; self.mx = mx; self.q = []
    def issue(self, tag=None): self.q.append(tag)
    def wait(self, *tags):
        idx = -1
        for t in tags:
            for i, x in enumerate(self.q):
                if x == t: idx = max(idx, i)
        if idx < 0: return
        n = len(self.q) - 1 - idx
        n = min(n, self.mx)
        self.a('s_waitcnt %s(%d)' % (self.name, n))
        self.q = self.q[len(self.q) - n:] if n else []
    def all(self):
        self.a('s_waitcnt %s(0)' % self.name); self.q = []
    def reset(self): self.q = []

BIG = ('ds_', 'buffer_', 'global_', 's_load', 's_memtime', 's_memrealtime', 'v_mfma', 'v_smfmac', 'v_pk_', 'v_cvt_pk', 'v_max3', 'v_min3',
       'v_or3', 'v_bfi', 'v_bitop3', 'v_bfe', 'v_fma_', 'v_add3', 'v_lshl_', 'v_mul_lo', 'v_and_or', 'v_perm_', 'v_readlane', 'v_accvgpr')
WIDE = ('v_mov_b32', 'v_mov_b64', 'v_max_f32', 'v_max_u32', 'v_add_f32', 'v_mul_f32', 'v_exp_f32', 'v_rcp_f32', 'v_or_b32', 'v_and_b32', 'v_xor_b32',
        'v_lshrrev_b32', 'v_lshlrev_b32', 'v_cmp_eq_u32', 'v_cmp_le_u32', 'v_cndmask_b32', 'v_permlane32_swap_b32', 'v_permlane16_swap_b32')
def has_lit(x):
    if x.mn in ('s_waitcnt', 's_nop', 's_barrier') or x.kind == 'branch' or x.mn.endswith('k_i32'): return False
    for o in x.ops:
        try: v = int(o, 0)
        except ValueError:
            if 'L_' in o: return True
            continue
        if not -16 <= v <= 64: return True
    return False
def isize(x):
    if x.mn.startswith(BIG) or x.mn.endswith('_e64') or has_lit(x): return 8
    return 4
def can_widen(x): return x.mn in WIDE and not has_lit(x)
def fetch_plan(code, ph, wt, beam=400, wait=4, FL=20, wc=0.01, log=None):
    S = [(0, ph * 4, tuple((0, 0, 16) for _ in wt), (), ())]
    rep = {}
    for k, (x, who, jump) in enumerate(code):
        nxt = {}
        for cost, ad, P, ch, lg0 in S:
            for wd in ((0, 1) if can_widen(x) else (0,)):
                n = isize(x) + 4 * wd; ad1 = ad + n; c = cost + wc * wd; Q = []; lg = ()
                for p, (mf, a0, a1) in enumerate(P):
                    if p not in who: Q.append((mf, a0, a1)); continue
                    t0 = mf if x.kind == 'mfma' else 0
                    st = max(0, (a1 if ad1 > 32 else a0) - t0); t0 += st; c += wt[p] * st
                    if st and log is not None: lg += ((k, p, st, ad),)
                    m2 = t0 + (16 if 'smfmac' in x.mn else 8) if x.kind == 'mfma' else mf
                    d = 4 * x.states if x.kind == 'nop' else 8 if x.kind == 'trans' else 12 if x.mn == 's_barrier' else wait if x.mn == 's_waitcnt' else 4
                    t1 = t0 + d
                    if p in jump: t1 = t0 + 24; b0, b1 = t1, t1 + 16
                    elif x.kind == 'branch': b0, b1 = (t0 + 24, t0 + 40) if ad1 == 32 else (a0, t0 + 24)
                    elif ad1 >= 32: b0, b1 = a1, t0 + FL
                    else: b0, b1 = a0, a1
                    Q.append((max(m2 - t1, 0), max(b0 - t1, 0), max(b1 - t1, 0)))
                key = (ad1 % 32, tuple(Q))
                if key not in nxt or c < nxt[key][0]: nxt[key] = (c, key[0], key[1], ch + ((k,) if wd else ()), lg0 + lg)
        S = sorted(nxt.values())[:beam]
    if log is not None: log += [(code[k][0].text, p, st, ad) for k, p, st, ad in S[0][4]]
    return S[0][3], S[0][0]
def place_loop(a, head, ph, skip, wt=(1, 1), wait=4, **kw):
    pos = {x.label: i for i, x in enumerate(a.L) if x.label}
    i = pos[head]; code = []; idx = []; away = None
    while True:
        x = a.L[i]; i += 1
        if x.label == away: away = None
        if x.kind in ('none', 'label'):
            assert not x.text.startswith('.fill')
            continue
        who = {1} if away else {0, 1}; jump = set()
        if x.kind == 'branch' and x.target in skip: jump = {0}; away = x.target
        code.append((x, who, jump)); idx.append(i - 1)
        if x.mn == 's_branch' and x.target == head: break
    ch, cost = fetch_plan(code, ph, wt, wait=wait, **kw)
    for k in ch:
        x = a.L[idx[k]]; a.L[idx[k]] = I(x.text.replace(x.mn, x.mn + '_e64', 1))
    return len(ch), cost
```

```python
FLAGS = 0
HOPA = 0x10000; HOPA_SLOT = 72 * 4096
HOPB = HOPA + 2 * HOPA_SLOT; HOPB_SLOT = 9216
HOPA_E = HOPA + HOPA_SLOT; HOPB_E = HOPB + 3 * HOPB_SLOT
TIMES = 0xB0000
XN = 0x100000
HB = 0x400000
XN2 = 0x700000
KM = 0xA00000
VM = 0xE00000
QX = 0x1200000
KX = 0x2200000
VX = 0x3200000
PA = 0x4200000
PA_SLOT = 16 * 36864
PF = 0x4800000
PF_SLOT = 36 * 36864
KM2 = 0x6000000
WS_BYTES = 268435456
assert HOPB + 6 * HOPB_SLOT <= TIMES
assert PA + 9 * PA_SLOT <= PF and PF + 8 * PF_SLOT <= WS_BYTES
OOB = 0x80000000
F_PROJ = 0
F_CHAIN = 48
DB_WT = 0
DB_Z = 4
DB_CI = 8
DB_X = 12
DB_P = 16
DB_C = 20
DB_AI = 24
DB_FI = 28
DB_F4 = 64; GO_F4 = 156
DB_CX = 96
DB_CT = 128
DB_C1 = 152
GO_X = 132; GO_P = 136; GO_C = 140; GO_AI = 144; GO_FI = 148
DB_X0 = 68; GO_X0 = 160; GO_Z = 164
NZ = 10
def placement(opt):
    xa, k = opt['xa'], opt.get('x1k', 'f2')
    P = list(range(48)); A = list(range(64, 96)); F = list(range(112, 220)); I = [255] * 4
    tab = {xa: list(range(111, 95, -1)) + list(range(63, 47, -1))}
    if opt.get('xb'): tab[opt['xb']] = A[::-1]; A = []
    if 1 not in tab:
        n = int(k[2:] or 28)
        if k[0] == 'f' and k[1] == 'm': sel = [112 + 36 * (i % 3) + 35 - i // 3 for i in range(n)]
        elif k[0] == 'f': sel = [112 + 36 * int(k[1]) + 35 - i for i in range(n)]
        elif k[:2] == 'pa': sel = P[:n]
        elif k[:2] == 'pb': sel = P[48 - n:]
        elif k[:2] == 'aa': sel = A[:n]
        tab[1] = sel + I[:32 - n]; I = I[32 - n:]
        P, A, F = [[r for r in z if r not in sel] for z in (P, A, F)]
    rest = [x for x in opt.get('xord', range(2, 8)) if x not in tab]
    for x in rest: tab[x] = []
    for g, x in zip((1, 2), opt.get('xg', ())):
        if x: tab[x] = list(range(48 + 16 * g, 64 + 16 * g)); A = [r for r in A if r not in tab[x]]
    lst = P + A + F + I
    while lst:
        for x in rest:
            if len(tab[x]) < 32: tab[x].append(lst.pop(0))
    assert sorted(sum(tab.values(), [])) == list(range(220)) + [255] * 4
    return tab
def flag(line): return FLAGS + line * 128
def km_sel(a, opt, s):
    if opt['kmn'] == 3: a(f's_mov_b32 s{s}, {opt.get("kmb", KM2)}'); return
    a(f's_sub_u32 s{s}, {0x2000 if opt["kmn"] == 1 else 0x4000}, s{S_WS}'); a(f's_and_b32 s{s}, s{s}, 0x3fff'); a(f's_add_u32 s{s}, s{s}, {opt.get("kmb", KM2)}')
def km_sh(opt): return 13 if opt['kmn'] == 3 else 14

S_WG = 2
S_WS = 4
S_DBG = 8
S_R0 = 12
S_R1 = 16
S_R2 = 20
S_R3 = 24
S_R4 = 28
S_ROLE = 32
S_WAVE = 33
S_T = 34
```

```python
from asm import *
from lay import *
SPIN = 1 << 18
S_SEG = 40; S_SPIN = 50; S_P = 51; S_Q = 41; S_B = 42; S_M = 43; S_G = 44; S_OB = 45
S_C = 46
S_MK = 52
S_TM = 64
WS = f's[{S_WS}:{S_WS+3}]'; DBG = f's[{S_DBG}:{S_DBG+3}]'
MF32 = 'v_mfma_f32_32x32x16_bf16'; MF = 'v_mfma_f32_16x16x32_bf16'; MH = 'v_mfma_f32_16x16x16_bf16'
def NT(opt, k): return ' ' + opt.get('ntm', 'nt') if k in opt.get('nt', '') else ''
def R(i): return f's[{i}:{i+3}]'

def srd_fix(a, r, nbytes):
    a(f's_and_b32 s{r+1}, s{r+1}, 0xffff'); a(f's_mov_b32 s{r+2}, {nbytes}'); a(f's_mov_b32 s{r+3}, 0x20000')

def poll(a, vaddr, srd, soff, sval, tmp, name, imm=0):
    lab = a.newlabel('L_' + name)
    a.label(lab)
    if vaddr is None: a(f'buffer_load_dword v{tmp}, off, {srd}, {soff} offset:{imm} sc1')
    else: a(f'buffer_load_dword v{tmp}, v{vaddr}, {srd}, {soff} offen offset:{imm} sc1')
    a(f's_add_u32 s{S_SPIN}, s{S_SPIN}, 1')
    a(f's_cmp_ge_u32 s{S_SPIN}, {SPIN}')
    a('s_waitcnt vmcnt(0)')
    a(f's_cbranch_scc1 {lab}_x')
    a(f'v_cmp_ge_u32 vcc, {sval}, v{tmp}')
    a(f's_cbranch_vccnz {lab}')
    a.label(lab + '_x')

S_FP = 48; S_FC = 49; S_TAG = 60; S_SL = 61; S_FA = 92
S_LOC = 39; S_SPL = 38; S_N = 95; S_FV = 96
def spoll(a, cache, need, loads, name, sentinel=False):
    lab = a.newlabel('L_' + name)
    if not sentinel: a(f's_cmp_ge_u32 s{cache}, {need}'); a(f's_cbranch_scc1 {lab}_x')
    a.label(lab)
    r = S_FV; regs = []
    for n, off in loads:
        a(f's_load_dword{"" if n == 1 else "x%d" % n} {sr(r, n)}, s[{S_WS}:{S_WS+1}], {off} glc')
        regs += list(range(r, r + n)); r += n
    a(f's_add_u32 s{S_SPIN}, s{S_SPIN}, 1')
    a(f's_cmp_ge_u32 s{S_SPIN}, {SPIN}'); a(f's_cbranch_scc1 {lab}_y')
    a('s_waitcnt lgkmcnt(0)')
    if sentinel:
        a(f's_cmp_eq_u32 s{S_FV}, -1')
    else:
        if len(regs) == 1: a(f's_mov_b32 s{cache}, s{regs[0]}')
        else:
            a(f's_min_u32 s{cache}, s{regs[0]}, s{regs[1]}')
            for x in regs[2:]: a(f's_min_u32 s{cache}, s{cache}, s{x}')
        a(f's_cmp_lt_u32 s{cache}, {need}')
    a(f's_cbranch_scc1 {lab}')
    a.label(lab + '_y')
    a('s_waitcnt lgkmcnt(0)')
    a.label(lab + '_x')

def dpoll(a, T, words, name):
    for off, need in words: poll(a, None, DBG, 0, str(need - 1), T, name, off)

def count(a, T, cnt, total, go):
    lab = a.newlabel('L_cnt')
    a(f'v_mov_b32 v{T}, 1'); a('s_mov_b64 exec, 1')
    a(f'buffer_atomic_add v{T}, off, {DBG}, 0 offset:{cnt} sc0')
    a('s_waitcnt vmcnt(0)')
    a(f'v_readfirstlane_b32 s{S_P}, v{T}')
    a(f'v_mov_b32 v{T}, 1')
    a(f's_cmp_lg_u32 s{S_P}, {total - 1}'); a(f's_cbranch_scc1 {lab}')
    a(f'buffer_store_dword v{T}, off, {DBG}, 0 offset:{go} sc1')
    a.label(lab)
    a('s_mov_b64 exec, -1')

def meet(a, T, cnt, words, name, pre=None, post=None):
    lab = a.newlabel('L_meet')
    if cnt:
        a('s_waitcnt vmcnt(0)')
        a('s_barrier')
    a(f's_cmp_lg_u32 s{S_WAVE}, 0'); a(f's_cbranch_scc1 {lab}')
    if pre: pre()
    if cnt: count(a, T, *cnt)
    dpoll(a, T, words, name)
    if post: post()
    a.label(lab)
    if words: a('s_barrier')

def qgate(a, T, g):
    a(f's_and_b32 s{S_P}, s{S_ROLE}, 31'); a(f's_lshl_b32 s{S_P}, s{S_P}, 7'); a(f's_add_u32 s{S_P}, s{S_P}, {flag(F_PROJ) if g[0] == "q" else flag(F_CHAIN) + 4}')
    poll(a, None, WS, f's{S_P}', str(int(g[1:] or 1) - 1), T, 'qg')

def fill(a, L16, T, sbases):
    a(f'v_mov_b64 {vr(T,2)}, -1'); a(f'v_mov_b64 {vr(T+2,2)}, -1')
    for sb, base in sbases:
        for i in range(9):
            if i % 4 == 0: a(f's_add_u32 s{S_P}, s{sb}, {base + i * 1024}')
            a(f'buffer_store_dwordx4 {vr(T,4)}, v{L16}, {WS}, s{S_P} offen offset:{(i & 3) * 1024} sc1')

def retry(a, lab_ok):
    a(f's_add_u32 s{S_SPIN}, s{S_SPIN}, 1')
    a(f's_cmp_ge_u32 s{S_SPIN}, {SPIN}'); a(f's_cbranch_scc1 {lab_ok}')

def tstamp(a, opt, i):
    if opt.get('times'): a(f's_memrealtime s[{S_TM+2*i}:{S_TM+2*i+1}]'); a('s_waitcnt lgkmcnt(0)')
def tk(a, opt, i):
    if opt.get('wst'): a(f's_memrealtime s[{S_TM+2*i}:{S_TM+2*i+1}]')
def tacc(a, opt, i, j, k):
    if opt.get('wacc'):
        a('s_waitcnt lgkmcnt(0)'); a(f's_sub_u32 s{S_TM+2*i+1}, s{S_TM+2*j}, s{S_TM+2*i}'); a(f's_add_u32 s{S_TM+2*k}, s{S_TM+2*k}, s{S_TM+2*i+1}')
        a(f's_cmp_gt_u32 s{S_TM+2*i+1}, {opt["wacc"]}'); a(f's_addc_u32 s{S_TM+2*k+2}, s{S_TM+2*k+2}, 0')
def th(a, opt, i):
    if opt.get('hst'): a(f's_memrealtime s[{S_TM+2*i}:{S_TM+2*i+1}]'); a('s_waitcnt lgkmcnt(0)')
def tfirst(a, opt, first_cond):
    if opt.get('times'):
        lab = a.newlabel('L_tf'); a(first_cond); a(f's_cbranch_scc0 {lab}'); tstamp(a, opt, 1); a.label(lab)
def finish(a, opt):
    if opt.get('wdl'):
        lo, hi, i = opt['wdl']; lab = a.newlabel('L_wdl')
        a(f's_cmp_lt_u32 s{S_ROLE}, {lo}'); a(f's_cbranch_scc1 {lab}_x'); a(f's_cmp_ge_u32 s{S_ROLE}, {hi}'); a(f's_cbranch_scc1 {lab}_x')
        a('s_add_u32 s63, s62, 20000')
        if i >= 0: a(f's_sub_u32 s{S_T}, s{S_TM+2*i}, s62'); a(f's_lshl2_add_u32 s63, s{S_T}, s63')
        a.label(lab)
        a(f's_memrealtime s[{S_T}:{S_T+1}]'); a('s_waitcnt lgkmcnt(0)')
        a(f's_sub_u32 s{S_T}, s{S_T}, s63'); a(f's_cmp_lt_i32 s{S_T}, 0'); a(f's_cbranch_scc1 {lab}')
        a.label(lab + '_x')
    if opt.get('times'):
        tstamp(a, opt, 2)
        a(f's_add_u32 s{S_T}, s{S_ROLE}, 32'); a(f's_lshl_b32 s{S_T}, s{S_T}, 2'); a(f's_add_u32 s{S_T}, s{S_T}, s{S_WAVE}')
        a(f's_lshl_b32 s{S_T}, s{S_T}, 6'); a(f's_add_u32 s{S_T}, s{S_T}, {TIMES}')
        for i, r in enumerate([62] + [S_TM + 2 * k for k in range(14)]):
            a(f'v_mov_b32 v1, s{r}'); a(f'buffer_store_dword v1, off, {WS}, s{S_T} offset:{4*i}')
        if opt.get('dbgt'):
            a('s_mov_b64 exec, 1')
            a('s_not_b32 s63, s62')
            for r, o in ((63, 32), (62, 48), (S_TM + 4, 44), (S_TM, 52), (S_TM + 2, 56)):
                a(f'v_mov_b32 v1, s{r}'); a(f'buffer_atomic_umax v1, off, {DBG}, 0 offset:{o}')
    a('s_endpgm')

def x_consts(a, DO, XA, T):
    a(f's_mul_i32 s{S_T}, s{S_WAVE}, 576')
    a(f's_mov_b32 s{S_T+1}, 58255')
    for i in range(9):
        a(f'''
        v_add_u32 v{T}, s{S_T}, v0
        v_add_u32 v{T}, {64*i}, v{T}
        v_mul_lo_u32 v{T+1}, v{T}, s{S_T+1}
        v_lshrrev_b32 v{T+1}, 22, v{T+1}
        v_mul_u32_u24 v{T+2}, 72, v{T+1}
        v_sub_u32 v{T+2}, v{T}, v{T+2}
        v_bfe_u32 v{T+3}, v{T+1}, 1, 3
        v_xor_b32 v{T+2}, v{T+2}, v{T+3}
        v_mul_u32_u24 v{T+1}, 1152, v{T+1}
        v_lshl_add_u32 v{DO+i}, v{T+2}, 4, v{T+1}
        ''')
    a(f'''
    v_and_b32 v{T}, 31, v0
    v_lshrrev_b32 v{T+1}, 5, v0
    v_bfe_u32 v{T+2}, v{T}, 1, 3
    v_mul_u32_u24 v{T}, 1152, v{T}
    ''')
    for m in range(4):
        a(f'v_add_u32 v{T+3}, {2*m}, v{T+1}'); a(f'v_xor_b32 v{T+3}, v{T+3}, v{T+2}'); a(f'v_lshl_add_u32 v{XA+m}, v{T+3}, 4, v{T}')
assert all((x * 58255) >> 22 == x // 72 for x in range(2304))

def x_dma(a, DO, soff, sbuf):
    for i in range(9):
        if i == 0: a(f's_mov_b32 m0, s{sbuf}')
        else: a(f's_add_u32 m0, s{sbuf}, {1024*i}')
        a(f'buffer_load_dwordx4 v{DO+i}, {WS}, s{soff} offen sc1 lds')

def sel(a, dst, T, mode):
    a(f'v_and_b32 v{T}, 15, v0')
    if mode == 'hi': a(f'v_xor_b32 v{T}, 8, v{T}')
    if mode == 'dup': a(f'v_and_b32 v{T}, 7, v{T}')
    a(f'v_and_b32 v{T+1}, 1, v{T}'); a(f'v_lshlrev_b32 v{T+1}, 4, v{T+1}')
    a(f'v_mov_b32 v{T+2}, 0x3f80'); a(f'v_lshlrev_b32 v{T+2}, v{T+1}, v{T+2}')
    a(f'v_lshrrev_b32 v{T}, 1, v{T}')
    for d in range(4):
        a(f'v_cmp_eq_u32 vcc, {d}, v{T}'); a(f'v_cndmask_b32 v{dst+d}, 0, v{T+2}, vcc')

def proj(a, opt):
    DO = 1; XA = 10; ST = 14; TA = 15; ACC = [16, 32]; XR = [48, 52, 56, 60]; T = 64; FV = 70
    def W(kk, cb): return ur(224 + 8 * kk + 4 * cb, 4)
    a.label('L_proj')
    if opt.get('pdl'):
        a.label('L_pdl'); a('s_memrealtime s[64:65]'); a('s_waitcnt lgkmcnt(0)'); a('s_sub_u32 s64, s64, s62'); a(f's_cmp_lt_u32 s64, {opt["pdl"] * 100}'); a('s_cbranch_scc1 L_pdl')
    a(f's_load_dwordx4 s[{S_R1}:{S_R1+3}], s[0:1], 16')
    a(f's_load_dwordx2 s[{S_R2}:{S_R2+1}], s[0:1], 32')
    if opt.get('pln'): a(f's_load_dwordx2 s[{S_R3}:{S_R3+1}], s[0:1], 0')
    a(f's_mov_b32 s{S_SPIN}, 0')
    a('s_waitcnt lgkmcnt(0)')
    a(f's_and_b32 s{S_T+2}, s{S_WAVE}, 1')
    a(f's_cmp_lt_u32 s{S_ROLE}, 32'); a('s_cbranch_scc1 L_proj_kv')
    a(f's_mov_b32 s{S_R0}, s{S_R1}'); a(f's_mov_b32 s{S_R0+1}, s{S_R1+1}')
    a(f's_sub_u32 s{S_T}, s{S_ROLE}, 32'); a(f's_lshl_b32 s{S_T}, s{S_T}, 1'); a(f's_lshr_b32 s{S_T+1}, s{S_WAVE}, 1'); a(f's_add_u32 s{S_T}, s{S_T}, s{S_T+1}')
    a(f's_mov_b32 s{S_OB}, {QX}'); a(f's_mov_b32 s{S_G}, 0')
    a('s_branch L_proj_j')
    a.label('L_proj_kv')
    a(f's_mov_b32 s{S_T}, s{S_ROLE}')
    a(f's_cmp_ge_u32 s{S_WAVE}, 2'); a('s_cbranch_scc1 L_proj_v')
    a(f's_mov_b32 s{S_R0}, s{S_R1+2}'); a(f's_mov_b32 s{S_R0+1}, s{S_R1+3}')
    a(f's_mov_b32 s{S_OB}, {KX}'); a(f's_mov_b32 s{S_G}, 0')
    a('s_branch L_proj_j')
    a.label('L_proj_v')
    a(f's_mov_b32 s{S_R0}, s{S_R2}'); a(f's_mov_b32 s{S_R0+1}, s{S_R2+1}')
    a(f's_mov_b32 s{S_OB}, {VX}'); a(f's_mov_b32 s{S_G}, 1')
    a.label('L_proj_j')
    srd_fix(a, S_R0, 4718592)
    a(f's_lshl_b32 s{S_T+1}, s{S_T}, 13'); a(f's_add_u32 s{S_OB}, s{S_OB}, s{S_T+1}')
    a(f's_add_u32 s{S_T+3}, s{S_G}, 11'); a(f's_lshl_b32 s{S_T+1}, s{S_T+2}, s{S_T+3}'); a(f's_add_u32 s{S_OB}, s{S_OB}, s{S_T+1}')
    a(f's_lshl_b32 s{S_T}, s{S_T}, 8'); a(f's_lshl_b32 s{S_T+2}, s{S_T+2}, 7'); a(f's_add_u32 s{S_T}, s{S_T}, s{S_T+2}')
    pq = opt.get('pq'); NS = 30 if pq else 32; XB0 = 4 * NS * 1024
    a(f's_mul_i32 s{S_B}, s{S_WAVE}, {NS * 1024}')
    a(f'''
    v_lshrrev_b32 v{T}, 3, v0
    v_and_b32 v{T+1}, 7, v0
    v_lshlrev_b32 v{T}, 13, v{T}
    v_lshl_add_u32 v{T}, v{T+1}, 4, v{T}
    v_add_u32 v{FV+1}, s{S_T}, v{T}
    ''')
    vm = Cnt(a, 'vmcnt', 63)
    def dma(i):
        a(f's_add_u32 m0, s{S_B}, {(i % NS) * 1024}'); a(f's_mov_b32 s{S_P}, {i * 65536}')
        a(f'buffer_load_dwordx4 v{FV+1}, {R(S_R0)}, s{S_P} offen{NT(opt, "p")} lds'); vm.issue(i)
    if opt.get('gate_q'):
        lab = a.newlabel('L_gq')
        a(f's_cmp_lt_u32 s{S_ROLE}, 32'); a(f's_cbranch_scc1 {lab}')
        meet(a, T, None, [({'x': GO_X, 'x0': GO_X0}[opt['gate_q']], 1)], 'gq')
        a.label(lab)
    pln = opt.get('pln')
    if pln:
        LX = 16; LF = 80; LT = 52
        srd_fix(a, S_R3, 2359296)
        a(f's_mul_i32 s{S_Q}, s{S_WAVE}, 9216')
        a(f'v_lshrrev_b32 v{LT+1}, 3, v0'); a(f'v_mul_u32_u24 v{LT}, 1152, v{LT+1}'); a(f'v_and_b32 v{LT+2}, 7, v0'); a(f'v_lshl_add_u32 v{LT+3}, v{LT+2}, 4, v{LT}')
        for i in range(9): a(f'buffer_load_dwordx4 {vr(LX+4*i,4)}, v{LT+3}, {R(S_R3)}, s{S_Q} offen offset:{128*i}'); vm.issue('lx')
        a(f's_lshl_b32 s{S_T}, s{S_WAVE}, 2'); a(f'v_lshrrev_b32 v{LT+1}, 1, v{LT+1}'); a(f'v_add_u32 v{LT+1}, s{S_T}, v{LT+1}')
        a(f'v_xor_b32 v{LT+1}, v{LT+1}, v{LT+2}'); a(f'v_and_b32 v{LT+1}, 7, v{LT+1}'); a(f'v_lshl_add_u32 v{LT}, v{LT+1}, 4, v{LT}')
        a(f's_add_u32 s{S_Q}, s{S_Q}, {XB0}'); a(f'v_add_u32 v{LT}, s{S_Q}, v{LT}')
    gp = opt.get('gate_proj')
    if gp is not None:
        for i in range(gp): dma(i)
        meet(a, T, None, [(GO_X, 1)], 'gp')
    for i in range(gp or 0, NS): dma(i)
    a(f'''
    v_lshrrev_b32 v{T}, 5, v0
    v_bfe_u32 v{T+1}, v0, 2, 2
    v_lshl_add_u32 v{T}, v{T}, 3, v{T+1}
    v_lshlrev_b32 v{T}, 7, v{T}
    v_bfe_u32 v{T+1}, v0, 4, 1
    v_lshl_add_u32 v{T}, v{T+1}, 5, v{T}
    v_and_b32 v{T+1}, 3, v0
    v_lshl_add_u32 v{T}, v{T+1}, 3, v{T}
    v_add_u32 v{TA}, s{S_B}, v{T}
    ''')
    x_consts(a, DO, XA, T)
    a(f's_lshl_b32 s{S_T}, s{S_G}, 1'); a(f's_sub_u32 s{S_T}, 12, s{S_T}')
    a(f'''
    v_bfe_u32 v{T}, v0, 4, 1
    v_lshlrev_b32 v{T}, s{S_T}, v{T}
    v_lshrrev_b32 v{T+1}, 5, v0
    v_lshl_add_u32 v{T}, v{T+1}, 8, v{T}
    v_and_b32 v{T+1}, 15, v0
    v_lshl_add_u32 v{ST}, v{T+1}, 4, v{T}
    ''')
    for kk in range(36):
        if pln and kk == pln - 1:
            vm.wait('lx')
            ln_rows(a, LX, LF, LT)
            for i in range(9): a(f'ds_write_b128 v{LT}, {vr(LX+4*i,4)} offset:{128*i}')
        vm.wait(2 * kk + 1)
        if kk == 0: th(a, opt, 6)
        if kk == 14: th(a, opt, 7)
        for cb in range(2):
            for p in range(2):
                a(f'ds_read_b64_tr_b16 {ur(224 + 8*kk + 4*cb + 2*p, 2)}, v{TA} offset:{(kk % (NS // 2)) * 2048 + p * 512 + cb * 64}')
        if kk >= 1 and 2 * (kk - 1) + NS < 72:
            a('s_waitcnt lgkmcnt(4)')
            dma(2 * (kk - 1) + NS); dma(2 * (kk - 1) + NS + 1)
        if pln and kk == pq: a(f's_load_dwordx2 s[{S_FV}:{S_FV+1}], s[{S_DBG}:{S_DBG+1}], {GO_X0} glc')
        if pq and not pln and kk == pq:
            lab = a.newlabel('L_pq')
            th(a, opt, 4)
            a.label(lab)
            a(f's_load_dwordx2 s[{S_FV}:{S_FV+1}], s[{S_DBG}:{S_DBG+1}], {GO_X0} glc')
            a(f's_add_u32 s{S_SPIN}, s{S_SPIN}, 1')
            a('s_waitcnt lgkmcnt(0)')
            a(f's_cmp_ge_u32 s{S_SPIN}, {SPIN}'); a(f's_cbranch_scc1 {lab}_x')
            a(f's_add_u32 s{S_FV}, s{S_FV}, s{S_FV+1}')
            a(f's_cmp_lt_u32 s{S_FV}, 2'); a(f's_cbranch_scc1 {lab}')
            a.label(lab + '_x')
            th(a, opt, 5)
            a(f's_mul_i32 s{S_T}, s{S_WAVE}, 9216'); a(f's_add_u32 s{S_T}, s{S_T}, {XB0}')
            a(f's_mov_b32 s{S_Q}, {XN}')
            x_dma(a, DO, S_Q, S_T)
            for _ in range(9): vm.issue('x')
    a('s_waitcnt lgkmcnt(0)')
    th(a, opt, 3)
    if pln:
        lab = a.newlabel('L_pl')
        a.label(lab)
        a(f's_add_u32 s{S_FV}, s{S_FV}, s{S_FV+1}'); a(f's_cmp_eq_u32 s{S_FV}, 2'); a(f's_cbranch_scc1 {lab}_x')
        a(f's_load_dwordx2 s[{S_FV}:{S_FV+1}], s[{S_DBG}:{S_DBG+1}], {GO_X0} glc')
        a(f's_add_u32 s{S_SPIN}, s{S_SPIN}, 1')
        a('s_waitcnt lgkmcnt(0)')
        a(f's_cmp_lt_u32 s{S_SPIN}, {SPIN}'); a(f's_cbranch_scc1 {lab}')
        a.label(lab + '_x')
        a(f's_mov_b32 s{S_Q}, {XN}')
        th(a, opt, 4)
    if pq:
        assert 'p' not in (opt.get('gate_att'), opt.get('gate_ffn'))
        for m in range(4): a(f'v_add_u32 v{XA+m}, {XB0}, v{XA+m}')
        a(f's_mov_b32 s{S_N}, {0x10000 - XB0}')
    else: meet(a, T, (DB_P, 48, GO_P), [(DB_Z, NZ), (GO_X, 1)], 'pw')
    tstamp(a, opt, 0)
    a(f's_mul_i32 s{S_B}, s{S_WAVE}, 9216')
    if not pq:
        a(f's_mov_b32 s{S_Q}, {XN}')
        x_dma(a, DO, S_Q, S_B)
    a(f's_mov_b32 s{S_SEG}, 0')
    a(f's_lshl_b32 s{S_M}, s{S_ROLE}, 7'); a(f's_lshl_b32 s{S_T}, s{S_WAVE}, 2'); a(f's_add_u32 s{S_M}, s{S_M}, s{S_T}'); a(f's_add_u32 s{S_M}, s{S_M}, {flag(F_PROJ)}')
    STR = 72
    a(f'v_mov_b32 v{STR}, v{ST}'); a(f'v_mov_b32 v{ST}, 0x{OOB:x}')
    a(f's_sub_u32 s{S_OB}, s{S_OB}, {32 * 8192}')
    a('s_waitcnt vmcnt(0)')
    a(f's_cmp_eq_u32 s{S_G}, 1'); a('s_cbranch_scc1 L_proj_lv')
    ACCS = [[16, 32], [80, 96]]
    for isv in range(2):
        L = 'L_proj_lv' if isv else 'L_proj_lk'
        def epi(acc, cb, b):
            q = acc[cb]
            src = [[0, 2, 8, 10], [4, 6, 12, 14]] if isv else [[0, 2, 4, 6], [8, 10, 12, 14]]
            for d in range(4): a(f'v_cvt_pk_bf16_f32 v{q+4*b+d}, v{q+src[b][d]}, v{q+src[b][d]+1}')
            a(f'buffer_store_dwordx4 {vr(q+4*b,4)}, v{ST}, {WS}, s{S_OB} offen offset:{cb * (2048 if isv else 1024) + b * 512} sc1')
        a.label(L)
        for par in range(2):
            acc = ACCS[par]
            if pq and par == 0:
                a(f's_cmp_eq_u32 s{S_SEG}, 8'); a(f's_cbranch_scc1 {L}_gx')
                a.label(L + '_gy')
            a('s_waitcnt vmcnt(1)')
            a('s_barrier')
            lg = Cnt(a, 'lgkmcnt', 15)
            def rd(kk):
                a(f'ds_read_b128 {vr(XR[kk % 4], 4)}, v{XA + (kk & 3)} offset:{(kk >> 2) * 128}'); lg.issue(kk)
            for kk in range(3): rd(kk)
            a(f's_cmp_lt_u32 s{S_SEG}, 63'); a(f's_cselect_b32 s{S_T}, 36864, 0'); a(f's_add_u32 s{S_Q}, s{S_Q}, s{S_T}')
            a(f's_xor_b32 s{S_B}, s{S_B}, 0x10000')
            for kk in range(36):
                lg.wait(kk)
                for cb in range(2):
                    c = '0' if kk == 0 else vr(acc[cb], 16)
                    x = vr(XR[kk % 4], 4)
                    if opt.get('pj_nomf') and kk >= opt['pj_nomf']: a('s_nop 6')
                    elif isv: a(f'{MF32} {vr(acc[cb],16)}, {x}, {W(kk,cb)}, {c}')
                    else: a(f'{MF32} {vr(acc[cb],16)}, {W(kk,cb)}, {x}, {c}')
                    if cb == 0 and kk + 3 < 36: rd(kk + 3)
                if 1 <= kk <= 4: epi(ACCS[par ^ 1], (kk - 1) >> 1, (kk - 1) & 1)
                if 5 <= kk <= 13:
                    i = kk - 5
                    a(f's_add_u32 m0, s{S_B}, {1024*i}')
                    a(f'buffer_load_dwordx4 v{DO+i}, {WS}, s{S_Q} offen sc1 lds')
                if kk == 5 and par == 1: tfirst(a, opt, f's_cmp_eq_u32 s{S_SEG}, 1')
                if kk == opt.get('pfk', 22):
                    a('s_waitcnt vmcnt(9)')
                    a(f'v_mov_b32 v{FV}, s{S_SEG}')
                    a(f'buffer_store_dword v{FV}, off, {WS}, s{S_M} sc1')
                if kk == 33:
                    if pq and par == 0:
                        for m in range(4): a(f'v_add_u32 v{XA+m}, s{S_N}, v{XA+m}')
                        a(f's_mov_b32 s{S_N}, 0x10000')
                    else:
                        for m in range(4): a(f'v_xor_b32 v{XA+m}, 0x10000, v{XA+m}')
                if kk == 34:
                    if not opt.get('pj_nost'): a(f'v_mov_b32 v{ST}, v{STR}')
                    a(f's_add_u32 s{S_OB}, s{S_OB}, {32 * 8192}')
                    a(f's_add_u32 s{S_SEG}, s{S_SEG}, 1')
            if par == 1: a(f's_cmp_lt_u32 s{S_SEG}, 64'); a(f's_cbranch_scc1 {L}')
        for cb in range(2):
            for b in range(2): epi(ACCS[1], cb, b)
        if not isv or pq: a('s_branch L_proj_end')
        if pq:
            a.label(L + '_gx')
            a(f's_load_dword s{S_FV}, s[{S_DBG}:{S_DBG+1}], {GO_X} glc')
            a(f's_add_u32 s{S_SPIN}, s{S_SPIN}, 1')
            a('s_waitcnt lgkmcnt(0)')
            a(f's_cmp_ge_u32 s{S_SPIN}, {SPIN}'); a(f's_cbranch_scc1 {L}_gy')
            a(f's_cmp_eq_u32 s{S_FV}, 0'); a(f's_cbranch_scc1 {L}_gx')
            a(f's_branch {L}_gy')
    a.label('L_proj_end')
    a('s_waitcnt vmcnt(0)')
    a(f'v_mov_b32 v{FV}, 64')
    a(f'buffer_store_dword v{FV}, off, {WS}, s{S_M} sc1')
    if opt.get('f4'):
        a('s_barrier')
        a(f's_cmp_lt_u32 s{S_ROLE}, 36'); a('s_cbranch_scc1 L_ffn')
    finish(a, opt)

def tiles_of(w):
    b = 9 * (w >> 1)
    if w & 1 == 0: return [(b + i, T) for i in range(4) for T in range(2)] + [(b + 4, 0)]
    return [(b + 5 + i, T) for i in range(4) for T in range(2)] + [(b + 4, 1)]

def row_stage_dma(a, srd, L16, st, sbase, vm, tag, nt=''):
    for i in range(9):
        a(f's_add_u32 m0, s{S_B}, {(st % 4) * 36864 + (i & ~3) * 1024}') if i % 4 == 0 else None
        if i % 4 == 0: a(f's_add_u32 s{S_P}, s{sbase}, {st * 36864 + i * 1024}')
        a(f'buffer_load_dwordx4 v{L16}, {R(srd)}, s{S_P} offen offset:{(i & 3) * 1024}{nt} lds'); vm.issue(tag)

def allreduce(a, v, t, op='v_add_f32', lanes=64):
    for d in ('quad_perm:[1,0,3,2]', 'quad_perm:[2,3,0,1]', 'row_half_mirror', 'row_mirror')[:3 if lanes == 8 else 4]:
        a(f'{op}_dpp v{v}, v{v}, v{v} {d} row_mask:0xf bank_mask:0xf')
    if lanes == 64:
        for sw in ('v_permlane16_swap_b32', 'v_permlane32_swap_b32'):
            a(f'v_mov_b32 v{t}, v{v}'); a(f'{sw} v{v}, v{t}'); a(f'{op} v{v}, v{v}, v{t}')

def ln_rows(a, X, Fp, T):
    for i in range(36):
        a(f'v_lshlrev_b32 v{Fp+2*i}, 16, v{X+i}'); a(f'v_and_b32 v{Fp+2*i+1}, 0xffff0000, v{X+i}')
    A4 = [T + 2, T + 3, T + 4, T + 5]
    for i in range(72):
        if i < 4: a(f'v_add_f32 v{A4[i]}, v{Fp+i}, v{Fp+i+4}')
        elif i >= 8: a(f'v_add_f32 v{A4[i&3]}, v{A4[i&3]}, v{Fp+i}')
    a(f'v_add_f32 v{A4[0]}, v{A4[0]}, v{A4[1]}'); a(f'v_add_f32 v{A4[2]}, v{A4[2]}, v{A4[3]}'); a(f'v_add_f32 v{A4[0]}, v{A4[0]}, v{A4[2]}')
    allreduce(a, A4[0], T + 1, lanes=8)
    a(f'v_mul_f32 v{T+1}, 0x{0x3ae38e39:x}, v{A4[0]}')
    for i in range(72): a(f'v_sub_f32 v{Fp+i}, v{Fp+i}, v{T+1}')
    for i in range(72):
        if i < 4: a(f'v_mul_f32 v{A4[i]}, v{Fp+i}, v{Fp+i}')
        else: a(f'v_fmac_f32 v{A4[i&3]}, v{Fp+i}, v{Fp+i}')
    a(f'v_add_f32 v{A4[0]}, v{A4[0]}, v{A4[1]}'); a(f'v_add_f32 v{A4[2]}, v{A4[2]}, v{A4[3]}'); a(f'v_add_f32 v{A4[0]}, v{A4[0]}, v{A4[2]}')
    allreduce(a, A4[0], T + 1, lanes=8)
    a(f'v_mov_b32 v{T+1}, 0x{0x3727c5ac:x}')
    a(f'v_fmac_f32 v{T+1}, 0x{0x3ae38e39:x}, v{A4[0]}')
    a(f'v_rsq_f32 v{T+1}, v{T+1}')
    for i in range(72): a(f'v_mul_f32 v{Fp+i}, v{T+1}, v{Fp+i}')
    for i in range(36): a(f'v_cvt_pk_bf16_f32 v{X+i}, v{Fp+2*i}, v{Fp+2*i+1}')

def att(a, opt):
    L16, KMA, L8, PST, RB, XO, XO2, RB4, XO4, T = 1, 2, 3, 4, 5, 6, 7, 8, 9, 10
    Q = 16; K = 32; V = 64; KMF = 96; VMF = 112; SM, S0, S1 = 120, 124, 128; PX = 132; PM = 136; ONE = 140; SUM = 144
    O = 148; OF = 148; ACC = 96
    SLO, SHI = 212, 216
    RR = 128
    XX, WO_ = S_R0, S_R1
    a.label('L_att')
    a(f's_load_dwordx2 s[{XX}:{XX+1}], s[0:1], 0')
    a(f's_load_dwordx2 s[{WO_}:{WO_+1}], s[0:1], 40')
    a(f's_mov_b32 s{S_SPIN}, 0')
    a(f's_sub_u32 s{S_T}, s{S_ROLE}, 48'); a(f's_and_b32 s{S_M}, s{S_T}, 15'); a(f's_lshr_b32 s{S_G}, s{S_T}, 4')
    a(f'v_lshlrev_b32 v{L16}, 4, v0')
    a('s_waitcnt lgkmcnt(0)')
    srd_fix(a, XX, 2359296); srd_fix(a, WO_, 4718592)
    X = 16; Fp = 64
    a(f's_mul_i32 s{S_Q}, s{S_T}, 36864'); a(f's_mul_i32 s{S_B}, s{S_WAVE}, 9216'); a(f's_add_u32 s{S_Q}, s{S_Q}, s{S_B}')
    a(f'v_lshrrev_b32 v{T}, 3, v0'); a(f'v_mul_u32_u24 v{T}, 1152, v{T}'); a(f'v_and_b32 v{T+1}, 7, v0'); a(f'v_lshl_add_u32 v{T}, v{T+1}, 4, v{T}')
    vm = Cnt(a, 'vmcnt', 63)
    for i in range(9): a(f'buffer_load_dwordx4 {vr(X+4*i,4)}, v{T}, {R(XX)}, s{S_Q} offen offset:{128*i}{NT(opt, "x")}'); vm.issue('x')
    a(f's_mul_i32 s{S_OB}, s{S_M}, {2 * 147456}'); a(f's_add_u32 s{S_OB}, s{S_OB}, s{S_B}')
    ns = opt.get('nsent', 4); assert ns % 4 == 0
    a(f's_lshl2_add_u32 s{S_T}, s{S_T}, s{S_WAVE}')
    a(f'v_mov_b64 {vr(Fp,2)}, -1'); a(f'v_mov_b64 {vr(Fp+2,2)}, -1')
    if opt.get('kmn'):
        assert ns == 8
        km_sel(a, opt, S_P)
        a(f's_and_b32 s{S_T+1}, s{S_T}, 1'); a(f's_lshl_b32 s{S_T+1}, s{S_T+1}, 12'); a(f's_add_u32 s{S_P}, s{S_P}, s{S_T+1}')
        a(f's_lshr_b32 s{S_T}, s{S_T}, 1'); a(f's_add_u32 s{S_T}, s{S_T}, {(64 - ns) * 16}'); a(f's_lshl_b32 s{S_T}, s{S_T}, {km_sh(opt)}'); a(f's_add_u32 s{S_P}, s{S_P}, s{S_T}')
        for i in range(4): a(f'buffer_store_dwordx4 {vr(Fp,4)}, v{L16}, {WS}, s{S_P} offen offset:{1024 * i} sc1'); vm.issue('sf')
    else:
        a(f's_mul_i32 s{S_T}, s{S_T}, {ns * 256}')
        for base in (KM, VM):
            a(f's_add_u32 s{S_P}, s{S_T}, {base + (64 - ns) * 65536}')
            for i in range(ns // 4): a(f'buffer_store_dwordx4 {vr(Fp,4)}, v{L16}, {WS}, s{S_P} offen offset:{1024 * i} sc1'); vm.issue('sf')
    vm.wait('x')
    th(a, opt, 3)
    ln_rows(a, X, Fp, T)
    a(f's_add_u32 s{S_Q}, s{S_Q}, {XN}')
    for i in range(9): a(f'buffer_store_dwordx4 {vr(X+4*i,4)}, v{T}, {WS}, s{S_Q} offen offset:{128*i} sc1'); vm.issue('xs')
    th(a, opt, 4)
    GATE = {'p': [(GO_P, 1)], 'c': [(GO_C, 1)], 'q': [(GO_Z, 1)], 'x': [(GO_X, 1)], None: []}
    NG = opt.get('ng', 4)
    if NG == 3:
        a(f's_cmp_lg_u32 s{S_G}, 3'); a('s_cbranch_scc1 L_att_full')
        meet(a, T + 4, (DB_X, 64, GO_X), [], 'gl')
        a(f's_sub_u32 s{S_T+1}, s{S_ROLE}, 48'); a(f's_mul_i32 s{S_T+1}, s{S_T+1}, 36864'); a(f's_add_u32 s{S_T+1}, s{S_T+1}, s{S_B}')
        fill(a, L16, 16, [(S_T + 1, HB), (S_T + 1, XN2)])
        meet(a, T, (DB_AI, 64, GO_AI), [], 'al')
        for i in range(2): tstamp(a, opt, i)
        finish(a, opt)
        a.label('L_att_full')
    if opt.get('fe_att'):
        meet(a, T + 4, (DB_X, 64, GO_X), [], 'gx')
        a(f's_mul_i32 s{S_T}, s{S_G}, {2 * PA_SLOT}'); a(f's_mul_i32 s{S_T+1}, s{S_M}, 36864'); a(f's_add_u32 s{S_T}, s{S_T}, s{S_T+1}')
        a(f's_sub_u32 s{S_T+1}, s{S_ROLE}, 48'); a(f's_mul_i32 s{S_T+1}, s{S_T+1}, 36864')
        a(f's_add_u32 s{S_T}, s{S_T}, s{S_B}'); a(f's_add_u32 s{S_T+1}, s{S_T+1}, s{S_B}')
        fill(a, L16, 60, [(S_T, PA), (S_T, PA + PA_SLOT), (S_T + 1, HB), (S_T + 1, XN2)])
        meet(a, T + 4, None, GATE[opt.get('gate_att')], 'ga')
        a('s_waitcnt vmcnt(0)')
    else:
        def first():
            lab = a.newlabel('L_x0')
            a(f's_cmp_lg_u32 s{S_G}, 0'); a(f's_cbranch_scc1 {lab}')
            count(a, T + 4, DB_X0, 16, GO_X0)
            a.label(lab)
        def g1():
            lab = a.newlabel('L_g1')
            a(f's_sub_u32 s{S_P}, s{S_G}, 1'); a(f's_cmp_lt_u32 s{S_P}, 2'); a(f's_cbranch_scc1 {lab}')
            dpoll(a, T + 4, [(DB_Z, NZ)], 'g1z'); qgate(a, T + 4, opt['gate_a1'])
            a.label(lab)
        meet(a, T + 4, (DB_X, 64, GO_X), GATE.get(opt.get('gate_att'), [(GO_Z, 1)]), 'ga', first if opt.get('pq') else None,
             (lambda: qgate(a, T + 4, opt['gate_att'])) if str(opt.get('gate_att'))[0] in 'qe' else g1 if opt.get('gate_a1') else None)
    if opt.get('noatt'): finish(a, opt)
    vm.reset()
    th(a, opt, 5)
    for st in range(4): row_stage_dma(a, WO_, L16, st, S_OB, vm, st, NT(opt, 'a'))
    for w in range(1, 4):
        a(f's_cmp_eq_u32 s{S_WAVE}, {w}'); a(f's_cbranch_scc1 L_att_w{w}')
    vm0 = list(vm.q)
    for w in range(4):
        hh, qt = w >> 1, w & 1
        tl = tiles_of(w)
        def WOF(ti, k8): return ur(224 + 4 * (ti * 8 + k8), 4)
        a.label(f'L_att_w{w}')
        vm.q = list(vm0)
        TA = T + 2
        a(f'v_lshrrev_b32 v{TA}, 2, v0'); a(f'v_mul_u32_u24 v{TA}, 1152, v{TA}'); a(f'v_and_b32 v{T+3}, 3, v0'); a(f'v_lshl_add_u32 v{TA}, v{T+3}, 4, v{TA}')
        a(f'v_add_u32 v{TA+1}, {2 * 36864}, v{TA}')
        for st in range(8):
            vm.wait(st)
            a('s_barrier')
            for ti, (P, TT) in enumerate(tl):
                for p in range(2):
                    off = (st % 2) * 36864 + p * 16 * 1152 + P * 64 + TT * 8
                    a(f'ds_read_b64_tr_b16 {ur(224 + 4*(ti*8+st) + 2*p, 2)}, v{TA + ((st % 4) >> 1)} offset:{off}')
            a('s_waitcnt lgkmcnt(0)')
            if st < 4:
                a('s_barrier')
                row_stage_dma(a, WO_, L16, st + 4, S_OB, vm, st + 4, NT(opt, 'a'))
        th(a, opt, 6)
        red = qt == 0
        a(f'''
        v_and_b32 v{T}, 15, v0
        v_lshrrev_b32 v{T+1}, 4, v0
        v_lshrrev_b32 v{T+2}, 2, v{T}
        v_and_b32 v{T+3}, 1, v0
        v_lshl_add_u32 v{T+4}, v{T+2}, 1, v{T+3}
        v_lshlrev_b32 v{T+4}, 4, v{T+4}
        v_lshl_add_u32 v{KMA}, v{T+1}, 7, v{T+4}
        v_lshlrev_b32 v{L8}, 3, v0
        v_lshrrev_b32 v{T+4}, 1, v{T}
        v_mul_u32_u24 v{T+4}, 36864, v{T+4}
        v_lshl_add_u32 v{T+4}, v{T+3}, 6, v{T+4}
        v_lshl_add_u32 v{T+4}, v{T+1}, 4, v{T+4}
        s_mul_i32 s{S_T}, s{S_M}, 2304
        v_add_u32 v{PST}, s{S_T}, v{T+4}
        ''')
        if red:
            a(f'''
            v_mul_u32_u24 v{T+4}, 2304, v{T+1}
            v_and_b32 v{T+5}, 3, v0
            v_lshl_add_u32 v{T+4}, v{T+5}, 4, v{T+4}
            s_mul_i32 s{S_T}, s{S_M}, 36864
            s_add_u32 s{S_T}, s{S_T}, {64 * hh}
            v_add_u32 v{T+4}, s{S_T}, v{T+4}
            v_lshl_add_u32 v{RB}, v{T+2}, 7, v{T+4}
            v_and_b32 v{RB4}, 1, v{T+2}
            v_lshl_add_u32 v{RB4}, v{RB4}, 7, v{T+4}
            s_mul_i32 s{S_T}, s{S_M}, 2304
            s_add_u32 s{S_T}, s{S_T}, {1152 * hh}
            v_lshlrev_b32 v{T+5}, 4, v{T+5}
            v_add_u32 v{T+5}, s{S_T}, v{T+5}
            v_lshrrev_b32 v{T+4}, 1, v{T+2}
            v_mul_u32_u24 v{T+4}, 9, v{T+4}
            v_and_b32 v{T+3}, 1, v{T+2}
            v_mul_u32_u24 v{T}, 5, v{T+3}
            v_add_u32 v{T+4}, v{T+4}, v{T}
            v_lshrrev_b32 v{T}, 1, v{T+1}
            v_add_u32 v{T+4}, v{T+4}, v{T}
            v_lshl_add_u32 v{T+4}, v{T+4}, 6, v{T+5}
            v_and_b32 v{T+1}, 1, v{T+1}
            v_lshl_add_u32 v{XO}, v{T+1}, 3, v{T+4}
            v_lshl_add_u32 v{XO4}, v{T+1}, 7, v{T+4}
            v_mul_u32_u24 v{T+3}, 576, v{T+3}
            v_add_u32 v{T+3}, 256, v{T+3}
            v_add_u32 v{T+3}, v{T+3}, v{T+5}
            v_lshl_add_u32 v{T+3}, v{T+1}, 3, v{T+3}
            s_mov_b32 s{S_T}, 0x00ff00ff
            s_mov_b32 s{S_T+1}, 0
            v_mov_b32 v{T+4}, 0x{OOB:x}
            v_cndmask_b32 v{XO2}, v{T+4}, v{T+3}, s[{S_T}:{S_T+1}]
            ''')
            sel(a, SLO, T, 'lo'); sel(a, SHI, T, 'hi')
        a(f'''
        s_lshl_b32 s{S_T}, s{S_M}, 8
        s_add_u32 s{S_FA}, s{S_T}, {flag(F_PROJ + hh)}
        s_add_u32 s{S_FA+2}, s{S_T}, {flag(F_CHAIN + hh)}
        s_lshl_b32 s{S_T}, s{S_M}, 7
        s_add_u32 s{S_FA+1}, s{S_T}, {flag(F_PROJ + 32) + 8 * hh}
        s_mov_b32 s{S_FP}, 0
        s_mov_b32 s{S_FC}, 0
        ''')
        for r in range(4):
            mk = sum(1 << l for l in range(64) if 4 * (l >> 4) + r <= (l & 15))
            a(f's_mov_b32 s{S_MK+2*r}, 0x{mk & 0xffffffff:x}'); a(f's_mov_b32 s{S_MK+2*r+1}, 0x{mk >> 32:x}')
        a(f's_mov_b32 s{S_C}, 0x3e0293ee'); a(f's_mov_b32 s{S_C+1}, 0xbe0293ee')
        a(f's_mul_i32 s{S_T}, s{S_G}, {2 * PA_SLOT}'); a(f's_mul_i32 s{S_T+1}, s{S_M}, 36864'); a(f's_add_u32 s{S_T}, s{S_T}, s{S_T+1}')
        a(f's_sub_u32 s{S_T+1}, s{S_ROLE}, 48'); a(f's_mul_i32 s{S_T+1}, s{S_T+1}, 36864')
        if not opt.get('fe_att'): fill(a, L16, 16, [(S_T, PA + w * 9216), (S_T, PA + PA_SLOT + w * 9216), (S_T + 1, HB + w * 9216), (S_T + 1, XN2 + w * 9216)])
        afast = opt.get('afast') and not opt.get('force_slow') == 1
        split = afast and opt.get('split')
        if split:
            lab = a.newlabel('L_nof')
            a(f's_cmp_lt_u32 s{S_ROLE}, 104'); a(f's_cbranch_scc1 {lab}')
            a(f's_mul_i32 s{S_T}, s{S_M}, 36864')
            fill(a, L16, 16, [(S_T, PA + 8 * PA_SLOT + w * 9216)])
            a.label(lab)
        th(a, opt, 7)
        meet(a, T, (DB_AI, 64, GO_AI), [(DB_Z, NZ), (GO_AI, 1)], 'ai')
        tstamp(a, opt, 0)
        if afast:
            th3, th0 = {'att': (20, 999), 'att2': (16, 32)}[opt.get('x1', 'att')]
            xa = opt.get('xa', 1); xb = opt.get('xb')
            ctr = lambda x: DB_C1 if x == 1 else DB_CX + 4 * (x - 2)
            if xb:
                a(f's_sub_u32 s{S_T}, s{S_G}, 1'); a(f's_cmp_lt_u32 s{S_T}, 2'); a(f's_mov_b32 s{S_T}, {ctr(xa)}'); a(f's_cselect_b32 s{S_T}, {ctr(xb)}, s{S_T}')
                a(f'buffer_load_dword v{T}, off, {DBG}, s{S_T} sc1')
                a(f's_cmp_lt_u32 s{S_G}, 2'); a(f's_cselect_b32 s{S_LOC}, 32, 16')
            elif opt.get('xg'):
                a(f's_mov_b32 s{S_T}, {ctr(xa)}')
                a(f's_cmp_eq_u32 s{S_G}, 0'); a(f's_cselect_b32 s{S_LOC}, 32, 16')
                for g, x in zip((1, 2), opt['xg']):
                    a(f's_cmp_eq_u32 s{S_G}, {g}')
                    if x: a(f's_cselect_b32 s{S_T}, {ctr(x)}, s{S_T}')
                    else: a(f's_cselect_b32 s{S_LOC}, -1, s{S_LOC}')
                a(f'buffer_load_dword v{T}, off, {DBG}, s{S_T} sc1')
            else:
                a(f'buffer_load_dword v{T}, off, {DBG}, 0 offset:{ctr(xa)} sc1')
                a(f's_cmp_eq_u32 s{S_G}, 0'); a(f's_cselect_b32 s{S_LOC}, {th0}, -1')
                a(f's_cmp_eq_u32 s{S_G}, 3'); a(f's_cselect_b32 s{S_LOC}, {th3}, s{S_LOC}')
            a('s_waitcnt vmcnt(0)')
            a(f'v_readfirstlane_b32 s{S_T}, v{T}')
            a(f's_cmp_ge_u32 s{S_T}, s{S_LOC}'); a(f's_cselect_b32 s{S_LOC}, 1, 0')
            if split:
                a(f's_cmp_ge_u32 s{S_T}, {th0}'); a(f's_cselect_b32 s{S_SPL}, s{S_LOC}, 0')
                if xb or opt.get('xg'): a(f's_sub_u32 s{S_T}, s{S_G}, 1'); a(f's_cmp_lt_u32 s{S_T}, 2'); a(f's_cselect_b32 s{S_SPL}, 0, s{S_SPL}')
        a(f's_mov_b32 s{S_SEG}, s{S_G}')
        if opt.get('ek'):
            assert opt['ek'] <= NG
            a(f's_cmp_lt_u32 s{S_G}, {opt["ek"]}'); a(f's_cselect_b32 s{S_T}, 4, 0'); a(f's_add_u32 s{S_FA+2}, s{S_FA+2}, s{S_T}')
        a(f's_mov_b32 s{S_B}, 0')
        a(f's_mov_b32 s{S_SL}, 0')
        def qkv(step):
            a(f's_add_u32 s{S_N}, s{S_SEG}, {step + 1}')
            spoll(a, S_FP, f's{S_N}', [(4, f's{S_FA}'), (2, f's{S_FA+1}')], 'ap')
            a(f's_lshl_b32 s{S_T}, s{S_SEG}, 5'); a(f's_lshl1_add_u32 s{S_T}, s{S_M}, s{S_T}'); a(f's_add_u32 s{S_T}, s{S_T}, {32 * step + hh}')
            a(f's_lshl_b32 s{S_T}, s{S_T}, 13')
            a(f's_add_u32 s{S_P}, s{S_T}, {QX + qt * 4096}')
            for ks in range(4): a(f'buffer_load_dwordx4 {vr(Q+4*ks,4)}, v{L16}, {WS}, s{S_P} offen offset:{1024*ks} sc1')
            for kt in range(qt + 1):
                a(f's_add_u32 s{S_P}, s{S_T}, {KX + kt * 4096}')
                for ks in range(4): a(f'buffer_load_dwordx4 {vr(K+16*kt+4*ks,4)}, v{L16}, {WS}, s{S_P} offen offset:{1024*ks} sc1')
            for hf in range(2):
                a(f's_add_u32 s{S_P}, s{S_T}, {VX + hf * 4096}')
                for u in range(4): a(f'buffer_load_dwordx4 {vr(V+16*hf+4*u,4)}, v{L16}, {WS}, s{S_P} offen offset:{1024*u} sc1')
        qkv(0)
        L = f'L_att_l{w}'
        if 'a' in opt.get('wal', ''): a('.p2align 5')
        a.label(L)
        vm.reset()
        if opt.get('kmn'):
            km_sel(a, opt, S_Q)
            a(f's_lshl4_add_u32 s{S_T}, s{S_SEG}, s{S_M}'); a(f's_lshl_b32 s{S_T}, s{S_T}, {km_sh(opt)}'); a(f's_add_u32 s{S_Q}, s{S_Q}, s{S_T}')
            if hh: a(f's_add_u32 s{S_Q}, s{S_Q}, 4096')
        else:
            a(f's_lshl_b32 s{S_Q}, s{S_SEG}, 5'); a(f's_lshl1_add_u32 s{S_Q}, s{S_M}, s{S_Q}'); a(f's_add_u32 s{S_Q}, s{S_Q}, {hh}')
            a(f's_lshl_b32 s{S_Q}, s{S_Q}, 11')
        a(f's_bfe_u32 s{S_TAG}, s{S_SL}, 0x10001'); a(f's_and_b32 s{S_T}, s{S_SL}, 1'); a(f's_add_u32 s{S_SL}, s{S_SL}, 1')
        a(f's_lshl1_add_u32 s{S_T}, s{S_G}, s{S_T}'); a(f's_mul_i32 s{S_OB}, s{S_T}, {PA_SLOT}'); a(f's_add_u32 s{S_OB}, s{S_OB}, {PA}')
        a(f'v_mov_b32 v{ONE}, 0x3f803f80'); a(f'v_mov_b32 v{ONE+1}, 0x3f803f80'); a(f'v_mov_b64 {vr(ONE+2,2)}, {vr(ONE,2)}')
        a(f'v_mov_b64 {vr(PM,2)}, 0'); a(f'v_mov_b64 {vr(PM+2,2)}, 0')
        if qt == 0: a(f'v_mov_b64 {vr(PX+2,2)}, 0')
        a('s_waitcnt vmcnt(0)')
        tk(a, opt, 3)
        for ks in range(4):
            for kt in range(qt + 1):
                S = S1 if kt else S0
                a(f'{MF} {vr(S,4)}, {vr(K+16*kt+4*ks,4)}, {vr(Q+4*ks,4)}, {"0" if ks == 0 else vr(S,4)}')
        SD = S1 if qt else S0
        a(f'v_mov_b32 v{T}, 0xff800000')
        for r in range(4): a(f'v_cndmask_b32 v{SD+r}, v{T}, v{SD+r}, s[{S_MK+2*r}:{S_MK+2*r+1}]')
        M, M2 = T + 2, T + 3
        a(f'v_max3_f32 v{M}, v{S0}, v{S0+1}, v{S0+2}')
        if qt:
            a(f'v_max3_f32 v{M}, v{M}, v{S0+3}, v{S1}'); a(f'v_max3_f32 v{M}, v{M}, v{S1+1}, v{S1+2}'); a(f'v_max_f32 v{M}, v{M}, v{S1+3}')
        else: a(f'v_max_f32 v{M}, v{M}, v{S0+3}')
        if opt.get('acp') and split:
            a(f's_cmp_lt_u32 s{S_SEG}, {opt["acp"]}'); a(f's_cbranch_scc1 {L}_ncp')
            a(f's_getpc_b64 s[{S_FV}:{S_FV+1}]'); a.label(L + '_pc')
            a(f's_add_u32 s{S_FV}, s{S_FV}, {L}_w0-{L}_pc'); a(f's_addc_u32 s{S_FV+1}, s{S_FV+1}, 0')
            a(f'v_lshlrev_b32 v{O}, 2, v{L16}'); a(f'v_mov_b32 v{O+1}, s{S_FV+1}')
            a(f'v_add_co_u32 v{O}, vcc, s{S_FV}, v{O}'); a(f'v_addc_co_u32 v{O+1}, vcc, 0, v{O+1}, vcc')
            a(f'global_load_dword v{O+2}, v[{O}:{O+1}], off')
            a.label(L + '_ncp')
        a(f's_cmp_lt_u32 s{S_SEG}, {64 - opt.get("nuse", opt.get("nsent", 4))}'); a(f's_addc_u32 s{S_N}, s{S_SEG}, 0'); a(f's_cmp_eq_u32 s{S_SEG}, 63'); a(f's_cselect_b32 s{S_N}, {opt.get("nmax", 62)}, s{S_N}')
        spoll(a, S_FC, f's{S_N}', [(1, f's{S_FA+2}')], 'ac')
        if opt.get('ek'): a(f's_andn2_b32 s{S_FA+2}, s{S_FA+2}, 4')
        tk(a, opt, 4)
        tacc(a, opt, 3, 4, 12)
        LK = f'L_att_k{w}'
        a.label(LK)
        kmn = opt.get('kmn')
        if not kmn: a(f's_add_u32 s{S_P}, s{S_Q}, {KM}')
        for ks in range(4): a(f'buffer_load_dwordx4 {vr(KMF+4*ks,4)}, v{KMA}, {WS}, s{S_Q if kmn else S_P} offen offset:{512*ks} sc1'); vm.issue(('km', ks))
        if not kmn: a(f's_add_u32 s{S_P}, s{S_Q}, {VM}')
        for u in range(4): a(f'buffer_load_dwordx2 {vr(VMF+2*u,2)}, v{L8}, {WS}, s{S_Q if kmn else S_P} offen offset:{512*u + (2048 if kmn else 0)} sc1'); vm.issue(('vm', u))
        for ks in range(4):
            vm.wait(('km', ks))
            a(f'{MF} {vr(SM,4)}, {vr(KMF+4*ks,4)}, {vr(Q+4*ks,4)}, {"0" if ks == 0 else vr(SM,4)}')
        a(f'v_max3_u32 v{T}, v{KMF}, v{KMF+4}, v{KMF+8}')
        vm.wait(('vm', 3))
        a(f'v_max3_u32 v{T}, v{T}, v{KMF+12}, v{VMF}')
        a(f'v_max3_u32 v{T}, v{T}, v{VMF+2}, v{VMF+4}')
        a(f'v_max_u32 v{T}, v{T}, v{VMF+6}')
        a(f'v_cmp_eq_u32 vcc, -1, v{T}')
        a(f's_cbranch_vccz {LK}_x')
        retry(a, LK + '_x')
        a(f's_branch {LK}')
        a.label(LK + '_x')
        a(f'v_max3_f32 v{M}, v{M}, v{SM}, v{SM+1}')
        tk(a, opt, 5)
        for sw in ('v_permlane32_swap_b32', 'v_permlane16_swap_b32'):
            a(f'v_mov_b32 v{M2}, v{M}'); a(f'{sw} v{M}, v{M2}'); a(f'v_max_f32 v{M}, v{M}, v{M2}')
        a(f'v_mul_f32 v{M}, s{S_C+1}, v{M}')
        vals = [SM, SM + 1, S0, S0 + 1, S0 + 2, S0 + 3] + ([S1, S1 + 1, S1 + 2, S1 + 3] if qt else [])
        for r in vals: a(f'v_fma_f32 v{r}, v{r}, s{S_C}, v{M}')
        for r in vals: a(f'v_exp_f32 v{r}, v{r}')
        a(f'v_cvt_pk_bf16_f32 v{PX}, v{S0}, v{S0+1}'); a(f'v_cvt_pk_bf16_f32 v{PX+1}, v{S0+2}, v{S0+3}')
        if qt: a(f'v_cvt_pk_bf16_f32 v{PX+2}, v{S1}, v{S1+1}'); a(f'v_cvt_pk_bf16_f32 v{PX+3}, v{S1+2}, v{S1+3}')
        a(f'v_cvt_pk_bf16_f32 v{PM}, v{SM}, v{SM+1}'); a(f'v_cvt_pk_bf16_f32 v{PM+3}, v{SM}, v{SM+1}')
        a(f'{MF} {vr(SUM,4)}, {vr(ONE,4)}, {vr(PX,4)}, 0')
        for u in range(4): a(f'{MF} {vr(O+4*u,4)}, {vr(V+4*u,4)}, {vr(PX,4)}, 0')
        a(f'{MH} {vr(SUM,4)}, {vr(ONE,2)}, {vr(PM,2)}, {vr(SUM,4)}')
        for u in range(4, 8): a(f'{MF} {vr(O+4*u,4)}, {vr(V+4*u,4)}, {vr(PX,4)}, 0')
        a(f'v_add_u32 v{T+1}, s{S_B}, v{L16}')
        for u in range(8):
            a(f'{MH} {vr(O+4*u,4)}, {vr(VMF+2*(u>>1),2)}, {vr(PM+2*(u&1),2)}, {vr(O+4*u,4)}')
            if u == 0: a(f'v_rcp_f32 v{T+2}, v{SUM}')
        for w4 in range(4):
            q = O + 8 * w4
            for r in range(4): a(f'v_pk_mul_f32 {vr(q+2*r,2)}, {vr(q+2*r,2)}, {vr(T+2,2)} op_sel_hi:[1,0]')
            for d in range(4): a(f'v_cvt_pk_bf16_f32 v{q+d}, v{q+2*d}, v{q+2*d+1}')
            a(f'ds_write_b128 v{T+1}, {vr(q,4)} offset:{(w * 4 + w4) * 1024}')
        a('s_waitcnt lgkmcnt(0)')
        a('s_barrier')
        tk(a, opt, 6)
        if opt.get('wst'): a('s_waitcnt lgkmcnt(0)')
        XV = 48
        def wo_block(sc, tts):
            lg = Cnt(a, 'lgkmcnt', 15)
            for k8 in range(8):
                for tt in tts:
                    a(f'ds_read_b128 {vr(OF+4*(2*k8+tt),4)}, v{T+1} offset:{(((k8 >> 2) * 2 + tt) * 4 + (k8 & 3)) * 1024}'); lg.issue((k8, tt))
            a(f's_xor_b32 s{S_B}, s{S_B}, 0x4000')
            a(f's_add_u32 s{S_P}, s{S_OB}, 294912')
            if red: a(f's_mul_i32 s{S_Q}, s{S_SEG}, 36864')
            def fin(gi):
                base = ACC + 16 * (gi & 1); ops = []
                for tt in tts:
                    so = S_P if tt else S_OB
                    q = base + 8 * tt
                    if gi < 4:
                        ops += [f'v_cvt_pk_bf16_f32 v{q+d}, v{q+2*d}, v{q+2*d+1}' for d in range(4)] + [f'v_bfi_b32 v{q+d}, 1, s{S_TAG}, v{q+d}' for d in (0, 2)]
                        ops[-1] += f'\nbuffer_store_dwordx4 {vr(q,4)}, v{PST}, {WS}, s{so} offen offset:{(4 * gi + w) * 128}{sc}'
                    else:
                        ops += [f'v_cvt_pk_bf16_f32 v{q+d}, v{q+2*d}, v{q+2*d+1}' for d in range(2)] + [f'v_bfi_b32 v{q}, 1, s{S_TAG}, v{q}']
                        ops[-1] += f'\nbuffer_store_dwordx2 {vr(q,2)}, v{PST}, {WS}, s{so} offen offset:{(16 + hh) * 128 + 8*tl[8][1]}{sc}'
                return ops
            fq = []; afs = opt.get('afs', 99)
            for gi in range(5):
                base = ACC + 16 * (gi & 1); n = 0
                for k8 in range(8):
                    for tt in tts:
                        if gi == 0: lg.wait((k8, tt))
                        for TT in range(2 if gi < 4 else 1):
                            q = base + 8 * tt + 4 * TT
                            a(f'{MF} {vr(q,4)}, {WOF(2*gi+TT,k8)}, {vr(OF+4*(2*k8+tt),4)}, {"0" if k8 == 0 else vr(q,4)}')
                            n += 1
                            if n == 3 and gi > 0: fq += fin(gi - 1)
                            for _ in range(afs):
                                if fq: a(fq.pop(0))
                    if red and gi == 0 and 2 <= k8 <= 4 and 0 in tts:
                        q3 = k8 - 2
                        a(f'buffer_load_dwordx2 {vr(XV+2*q3,2)}, v{XO2 if q3 == 2 else XO}, {R(XX)}, s{S_Q} offen offset:{128*q3 if q3 < 2 else 0}')
                assert not fq
            for x in fin(4): a(x)
        if afast:
            a(f's_cmp_eq_u32 s{S_LOC}, 0'); a(f's_cbranch_scc1 {L}_ws')
            if split:
                a(f's_cmp_eq_u32 s{S_SEG}, 63'); a(f's_cselect_b32 s{S_T}, s{S_SPL}, 0')
                a(f's_cmp_eq_u32 s{S_T}, 0'); a(f's_cbranch_scc1 {L}_wf')
                a.label(L + '_w0')
                a(f's_cmp_eq_u32 s{S_G}, 0'); a(f's_cbranch_scc1 {L}_wh')
                wo_block('', [0])
                if red:
                    a(f's_cmp_ge_u32 s{S_M}, 8'); a(f's_cselect_b32 s{S_OB}, {PA + 8 * PA_SLOT}, s{S_OB}'); a(f's_cselect_b32 s{S_TAG}, 0, s{S_TAG}')
                a(f's_branch {L}_wx')
                a.label(L + '_wh')
                a(f's_mov_b32 s{S_OB}, {PA + 8 * PA_SLOT}'); a(f's_mov_b32 s{S_TAG}, 0')
                wo_block('', [1])
                a(f's_branch {L}_end')
                a.label(L + '_wf')
            wo_block('', [0, 1])
            a(f's_branch {L}_wx')
            a.label(L + '_ws')
        wo_block(' sc1', [0, 1])
        a.label(L + '_wx')
        tk(a, opt, 7)
        if red:
            RA = 96; H = 108; H2 = 116
            def rl(t0):
                for t5 in range(t0, 5):
                    for u in range(4):
                        a(f's_add_u32 s{S_P}, s{S_OB}, {u * 9216}')
                        a(f'buffer_load_dwordx4 {vr(RR+4*(4*t5+u),4)}, v{RB4 if t5 == 4 else RB}, {WS}, s{S_P} offen offset:{512*t5} sc1')
            rl(0)
            tk(a, opt, 8)
            for t5 in range(5):
                LR = f'L_att_r{w}_{t5}'
                a.label(LR)
                a(f's_waitcnt vmcnt({4 * (4 - t5)})')
                z = [RR + 4 * (4 * t5 + u) for u in range(4)]
                for u in range(4): a(f'v_bitop3_b32 v{T+u}, v{z[u]}, v{z[u]+2}, s{S_TAG} bitop3:0x7e')
                a(f'v_or3_b32 v{T}, v{T}, v{T+1}, v{T+2}')
                a(f'v_bitop3_b32 v{T}, v{T}, v{T+3}, 1 bitop3:0xa8')
                a(f'v_cmp_eq_u32 vcc, 1, v{T}')
                a(f's_cbranch_vccz {LR}_x')
                retry(a, LR + '_x')
                rl(t5)
                a(f's_branch {LR}')
                a.label(LR + '_x')
                if t5 == 0:
                    for q in range(3):
                        for d in range(2):
                            a(f'v_lshlrev_b32 v{RA+4*q+2*d}, 16, v{XV+2*q+d}'); a(f'v_and_b32 v{RA+4*q+2*d+1}, 0xffff0000, v{XV+2*q+d}')
                if t5 == 4: tk(a, opt, 9)
                q = RA + 4 * (t5 >> 1)
                for u in range(4): a(f'{MF} {vr(q,4)}, {vr(SHI if t5 & 1 else SLO,4)}, {vr(z[u],4)}, {vr(q,4)}')
            tk(a, opt, 10)
            a(f's_mov_b32 s{S_T}, 0x00ff00ff'); a(f's_mov_b32 s{S_T+1}, 0')
            for i in range(6): a(f'v_cvt_pk_bf16_f32 v{H+i}, v{RA+2*i}, v{RA+2*i+1}')
            for i in (4, 5): a(f'v_cndmask_b32 v{H+i}, 0, v{H+i}, s[{S_T}:{S_T+1}]')
            for i in range(6): a(f'v_lshlrev_b32 v{RA+2*i}, 16, v{H+i}'); a(f'v_and_b32 v{RA+2*i+1}, 0xffff0000, v{H+i}')
            def put(r, base):
                a(f's_add_u32 s{S_P}, s{S_Q}, {base}')
                for d in range(2): a(f'v_permlane16_swap_b32 v{r+d}, v{r+2+d}')
                a(f'buffer_store_dwordx4 {vr(r,4)}, v{XO4}, {WS}, s{S_P} offen sc1')
                a(f'buffer_store_dwordx2 {vr(r+4,2)}, v{XO2}, {WS}, s{S_P} offen sc1')
            put(H, HB)
            a(f'v_add_f32 v{T}, v{RA}, v{RA+1}'); a(f'v_add_f32 v{T+1}, v{RA+2}, v{RA+3}')
            for i in range(4, 12): a(f'v_add_f32 v{T+(i&1)}, v{T+(i&1)}, v{RA+i}')
            a(f'v_add_f32 v{T}, v{T}, v{T+1}')
            allreduce(a, T, T + 1)
            a(f'v_mul_f32 v{T}, 0x{0x3ae38e39:x}, v{T}')
            for i in range(12): a(f'v_sub_f32 v{RA+i}, v{RA+i}, v{T}')
            for i in range(8, 12): a(f'v_cndmask_b32 v{RA+i}, 0, v{RA+i}, s[{S_T}:{S_T+1}]')
            a(f'v_mul_f32 v{T}, v{RA}, v{RA}'); a(f'v_mul_f32 v{T+1}, v{RA+1}, v{RA+1}')
            for i in range(2, 12): a(f'v_fmac_f32 v{T+(i&1)}, v{RA+i}, v{RA+i}')
            a(f'v_add_f32 v{T}, v{T}, v{T+1}')
            allreduce(a, T, T + 1)
            a(f'v_mov_b32 v{T+1}, 0x{0x3727c5ac:x}'); a(f'v_fmac_f32 v{T+1}, 0x{0x3ae38e39:x}, v{T}'); a(f'v_rsq_f32 v{T+1}, v{T+1}')
            for i in range(12): a(f'v_mul_f32 v{RA+i}, v{T+1}, v{RA+i}')
            for i in range(6): a(f'v_cvt_pk_bf16_f32 v{H2+i}, v{RA+2*i}, v{RA+2*i+1}')
            put(H2, XN2)
            tk(a, opt, 11)
        tfirst(a, opt, f's_cmp_lt_u32 s{S_SEG}, {NG}')
        if split:
            a(f's_cmp_eq_u32 s{S_SEG}, 60'); a(f's_cselect_b32 s{S_T}, s{S_SPL}, 0'); a(f's_sub_u32 s{S_SEG}, s{S_SEG}, s{S_T}')
        a(f's_cmp_ge_u32 s{S_SEG}, {64 - NG}'); a(f's_cbranch_scc1 {L}_end')
        if not red: a('s_waitcnt vmcnt(0)')
        qkv(NG)
        a(f's_add_u32 s{S_SEG}, s{S_SEG}, {NG}')
        a(f's_branch {L}')
        a.label(L + '_end')
        finish(a, opt)

def ffn(a, opt):
    DO = 1; XA = 10; L16 = 14; PST = 15; RB = 16; OA = 17; XW = 18; T = 20
    SEL = 28; ACC = [32, 48]; XR = [64, 68, 72, 76]
    AF = 32
    DA = 64
    WG, WU, WD, OUT = S_R0, S_R1, S_R2, S_R3
    ACTL = 40960
    def GU(m, kk): return 80 + 8 * kk + 4 * m
    a.label('L_ffn')
    if opt.get('noffn'): finish(a, opt)
    a(f's_load_dwordx4 s[{WG}:{WG+3}], s[0:1], 64')
    a(f's_load_dwordx4 s[{WD}:{WD+3}], s[0:1], 80')
    a(f's_mov_b32 s{S_SPIN}, 0')
    a(f's_sub_u32 s{S_M}, s{S_ROLE}, 112'); a(f's_mov_b32 s{S_G}, 0')
    for _ in range(2):
        a(f's_cmp_ge_u32 s{S_M}, 36'); a(f's_cselect_b32 s{S_T}, 36, 0'); a(f's_cselect_b32 s{S_T+1}, 1, 0')
        a(f's_sub_u32 s{S_M}, s{S_M}, s{S_T}'); a(f's_add_u32 s{S_G}, s{S_G}, s{S_T+1}')
    F4 = opt.get('f4')
    if F4:
        assert F4 % 3 == 0
        a(f's_cmp_lt_u32 s{S_ROLE}, 36'); a(f's_cselect_b32 s{S_M}, s{S_ROLE}, s{S_M}'); a(f's_cselect_b32 s{S_G}, 3, s{S_G}')
    a(f'v_lshlrev_b32 v{L16}, 4, v0')
    a('s_waitcnt lgkmcnt(0)')
    a(f's_mov_b32 s{WU}, s{WG+2}'); a(f's_mov_b32 s{WU+1}, s{WG+3}'); a(f's_mov_b32 s{OUT}, s{WD+2}'); a(f's_mov_b32 s{OUT+1}, s{WD+3}')
    for r in (WG, WU, WD): srd_fix(a, r, 5308416)
    srd_fix(a, OUT, 2359296)
    if opt.get('wpf'):
        lab = a.newlabel('L_wpf')
        a(f's_cmp_ge_u32 s{S_G}, 3'); a(f's_cbranch_scc1 {lab}')
        a(f's_lshl_b32 s{S_T}, s{S_G}, 3')
        a(f's_load_dwordx2 s[{S_R4}:{S_R4+1}], s[0:1], s{S_T} offset:16')
        a(f's_lshl2_add_u32 s{S_T}, s{S_M}, s{S_WAVE}'); a(f's_lshl_b32 s{S_T}, s{S_T}, 15')
        a(f'v_lshlrev_b32 v{T}, {6 if opt["wpf"] == 64 else 7}, v0')
        a('s_waitcnt lgkmcnt(0)')
        srd_fix(a, S_R4, 4718592)
        for i in range(8 if opt['wpf'] == 64 else 4):
            a(f'buffer_load_dword v70, v{T}, {R(S_R4)}, s{S_T} offen')
            a(f's_add_u32 s{S_T}, s{S_T}, {64 * opt["wpf"]}')
        a.label(lab)
    GA = T + 4; TA = T + 5
    a(f's_mul_i32 s{S_T}, s{S_WAVE}, {16 * 9216}'); a(f's_lshl_b32 s{S_T+1}, s{S_M}, 8'); a(f's_add_u32 s{S_T}, s{S_T}, s{S_T+1}')
    a(f'''
    v_lshrrev_b32 v{T}, 4, v0
    v_mul_u32_u24 v{T}, 9216, v{T}
    v_and_b32 v{T+1}, 15, v0
    v_lshl_add_u32 v{T}, v{T+1}, 4, v{T}
    v_add_u32 v{GA}, s{S_T}, v{T}
    ''')
    a(f's_lshl_b32 s{S_B}, s{S_WAVE}, 12')
    vm = Cnt(a, 'vmcnt', 63)
    def gdma(st):
        for m in range(2):
            for u in range(4):
                a(f's_add_u32 m0, s{S_B}, {(st % 4) * 32768 + m * 16384 + u * 1024}')
                a(f's_mov_b32 s{S_P}, {(64 * st + 4 * u) * 9216}')
                a(f'buffer_load_dwordx4 v{GA}, {R(WU if m else WG)}, s{S_P} offen{NT(opt, "f")} lds'); vm.issue(st)
    if opt.get('fe_ffn'):
        if opt['fe_ffn'] == 'x': meet(a, T, None, [(GO_X, 1)], 'gx')
        a(f's_mul_i32 s{S_T}, s{S_G}, {2 * PF_SLOT}'); a(f's_mul_i32 s{S_T+1}, s{S_M}, 36864'); a(f's_add_u32 s{S_T}, s{S_T}, s{S_T+1}')
        a(f's_mul_i32 s{S_T+1}, s{S_WAVE}, 9216'); a(f's_add_u32 s{S_T}, s{S_T}, s{S_T+1}')
        fill(a, L16, 32, [(S_T, PF), (S_T, PF + PF_SLOT)])
    if str(opt.get('gate_ffn'))[0] in 'qe': meet(a, T, None, [(GO_Z, 1)], 'gf', None, lambda: qgate(a, T, opt['gate_ffn']))
    elif opt.get('gate_ffn'):
        def g1():
            lab = a.newlabel('L_g1')
            a(f's_cmp_lt_u32 s{S_ROLE}, {opt.get("gf1", 192)}'); a(f's_cbranch_scc1 {lab}')
            dpoll(a, T, [(DB_Z, NZ)], 'g1z'); qgate(a, T, opt['gate_f1'])
            a.label(lab)
        meet(a, T, None, [({'p': GO_P, 'c': GO_C, 'a': GO_AI, 'x': GO_X}[opt['gate_ffn']], 1)], 'gf', None, g1 if opt.get('gate_f1') else None)
    if opt.get('fe_ffn'): a('s_waitcnt vmcnt(0)')
    for st in range(4): gdma(st)
    a(f's_lshl_b32 s{S_T}, s{S_WAVE}, 6')
    a(f'''
    v_lshrrev_b32 v{T}, 5, v0
    v_bfe_u32 v{T+1}, v0, 2, 2
    v_lshl_add_u32 v{T}, v{T}, 3, v{T+1}
    v_lshlrev_b32 v{T}, 8, v{T}
    v_bfe_u32 v{T+1}, v0, 4, 1
    v_lshl_add_u32 v{T}, v{T+1}, 5, v{T}
    v_and_b32 v{T+1}, 3, v0
    v_lshl_add_u32 v{T}, v{T+1}, 3, v{T}
    v_add_u32 v{TA}, s{S_T}, v{T}
    v_add_u32 v{TA+1}, 65536, v{TA}
    ''')
    x_consts(a, DO, XA, T)
    for st in range(9):
        vm.wait(st)
        a('s_barrier')
        for k4 in range(4):
            for m in range(2):
                for p in range(2):
                    a(f'ds_read_b64_tr_b16 {ur(GU(m, 4*st+k4) + 2*p, 2)}, v{TA + ((st % 4) >> 1)} offset:{(st % 2) * 32768 + m * 16384 + k4 * 4096 + p * 1024}')
        a('s_waitcnt lgkmcnt(0)')
        if st + 4 < 9:
            a('s_barrier'); gdma(st + 4)
    a('s_barrier')
    th(a, opt, 3)
    a(f's_mul_i32 s{S_B}, s{S_WAVE}, 9216'); a(f's_mul_i32 s{S_OB}, s{S_M}, 147456'); a(f's_add_u32 s{S_OB}, s{S_OB}, s{S_B}')
    for st in range(4): row_stage_dma(a, WD, L16, st, S_OB, vm, 100 + st, NT(opt, 'f'))
    sel(a, SEL, T, 'dup')
    a(f'''
    v_and_b32 v{T}, 15, v0
    v_lshrrev_b32 v{T+1}, 4, v0
    v_lshlrev_b32 v{T+2}, 6, v{T}
    v_lshl_add_u32 v{T+2}, v{T+1}, 4, v{T+2}
    s_lshl_b32 s{S_T}, s{S_M}, 10
    v_add_u32 v{PST}, s{S_T}, v{T+2}
    v_lshlrev_b32 v{T+2}, 4, v{T}
    v_lshl_add_u32 v{T+2}, v{T+1}, 10, v{T+2}
    s_mul_i32 s{S_T}, s{S_M}, 36864
    s_lshl_b32 s{S_T+1}, s{S_WAVE}, 8
    s_add_u32 s{S_T}, s{S_T}, s{S_T+1}
    v_add_u32 v{RB}, s{S_T}, v{T+2}
    s_cmp_ge_u32 s{S_M}, 18
    s_cselect_b32 s{S_T}, {16 * 1152 - 18 * 64}, 0
    s_lshl_b32 s{S_T+1}, s{S_M}, 6
    s_add_u32 s{S_T}, s{S_T}, s{S_T+1}
    s_mul_i32 s{S_T+1}, s{S_WAVE}, 4608
    s_add_u32 s{S_T}, s{S_T}, s{S_T+1}
    v_lshrrev_b32 v{T+2}, 2, v{T}
    v_mul_u32_u24 v{T+2}, 1152, v{T+2}
    v_and_b32 v{T+3}, 3, v0
    v_lshl_add_u32 v{T+2}, v{T+3}, 4, v{T+2}
    v_lshl_add_u32 v{T+2}, v{T+1}, 3, v{T+2}
    v_add_u32 v{T+2}, s{S_T}, v{T+2}
    v_mov_b32 v{T+3}, 0x{OOB:x}
    v_cmp_gt_u32 vcc, 32, v0
    v_cndmask_b32 v{OA}, v{T+3}, v{T+2}, vcc
    v_add_u32 v{XW}, s{S_B}, v{L16}
    ''')
    a(f'''
    v_lshrrev_b32 v{T}, 5, v0
    v_bfe_u32 v{T+1}, v0, 2, 3
    v_lshl_add_u32 v{T}, v{T}, 4, v{T+1}
    v_mul_u32_u24 v{T}, 1152, v{T}
    v_and_b32 v{T+1}, 3, v0
    v_lshl_add_u32 v{TA}, v{T+1}, 4, v{T}
    v_add_u32 v{TA+1}, {2 * 36864}, v{TA}
    ''')
    for w in range(1, 4):
        a(f's_cmp_eq_u32 s{S_WAVE}, {w}'); a(f's_cbranch_scc1 L_ffn_w{w}')
    vm0 = list(vm.q)
    for w in range(4):
        tl = tiles_of(w)
        def WDF(ti, ks): return 368 + 4 * (ti * 4 + ks)
        a.label(f'L_ffn_w{w}')
        vm.q = list(vm0)
        for st in range(4):
            vm.wait(100 + st)
            a('s_barrier')
            for ti, (P, TT) in enumerate(tl):
                for p in range(2):
                    a(f'ds_read_b64_tr_b16 {ur(WDF(ti, st) + 2*p, 2)}, v{TA + (st >> 1)} offset:{(st % 2) * 36864 + p * 8 * 1152 + P * 64 + TT * 8}')
        a('s_waitcnt lgkmcnt(0)')
        th(a, opt, 4)
        a(f's_mul_i32 s{S_T}, s{S_G}, {2 * PF_SLOT}'); a(f's_mul_i32 s{S_T+1}, s{S_M}, 36864'); a(f's_add_u32 s{S_T}, s{S_T}, s{S_T+1}')
        if not opt.get('fe_ffn'): fill(a, L16, 32, [(S_T, PF + w * 9216), (S_T, PF + PF_SLOT + w * 9216)])
        th(a, opt, 5)
        if F4:
            lab = a.newlabel('L_f4')
            a(f's_cmp_lg_u32 s{S_G}, 3'); a(f's_cbranch_scc1 {lab}')
            meet(a, T, (DB_F4, 36, GO_F4), [(GO_F4, 1), (GO_AI, 1)], 'f4')
            a(f's_mov_b32 s{S_SEG}, {F4 + 3}')
            a(f's_branch {lab}_x')
            a.label(lab)
        meet(a, T, (DB_FI, 108, GO_FI), [(GO_FI, 1), (GO_AI, 1)], 'fi')
        a(f's_mov_b32 s{S_SEG}, s{S_G}')
        if F4: a.label(lab + '_x')
        tstamp(a, opt, 0)
        a(f's_mov_b32 s{S_N}, 0')
        S_SP = S_FP; PB = 19
        a(f's_mov_b32 s{S_SP}, 0')
        a(f'v_min_u32 v{PB}, 7, v0'); a(f'v_mul_u32_u24 v{PB}, 1152, v{PB}')
        if opt.get('vprobe') == 'x': a(f'v_add_u32 v{PB}, {w * 9216}, v{PB}')
        AW = T + 4; HV = 26
        a(f'''
        v_bfe_u32 v{T}, v0, 4, 1
        v_lshlrev_b32 v{T}, 10, v{T}
        v_lshrrev_b32 v{T+1}, 5, v0
        v_lshl_add_u32 v{T}, v{T+1}, 8, v{T}
        v_and_b32 v{T+1}, 15, v0
        v_lshl_add_u32 v{AW}, v{T+1}, 4, v{T}
        ''')
        L = f'L_ffn_l{w}'
        if 'f' in opt.get('wal', ''): a('.p2align 5')
        a.label(L)
        a(f's_mul_i32 s{S_OB}, s{S_SEG}, 36864'); a(f's_add_u32 s{S_T+1}, s{S_OB}, {XN2}')
        a(f's_add_u32 s{S_T}, s{S_OB}, {HB + w * 9216}')
        a(f's_bfe_u32 s{S_TAG}, s{S_N}, 0x10001'); a(f's_and_b32 s{S_Q}, s{S_N}, 1')
        a(f's_lshl1_add_u32 s{S_Q}, s{S_G}, s{S_Q}'); a(f's_mul_i32 s{S_Q}, s{S_Q}, {PF_SLOT}'); a(f's_add_u32 s{S_Q}, s{S_Q}, {PF}')
        S_NX = S_FC
        a(f's_cmp_ge_u32 s{S_SEG}, {F4 or 64}'); a(f's_addc_u32 s{S_NX}, s{S_SEG}, 3')
        tk(a, opt, 3)
        XL = 32
        spec = opt.get('fspec')
        if spec:
            a(f's_cmp_eq_u32 s{S_SP}, 0'); a(f's_cbranch_scc1 {L}_reg')
            a('s_waitcnt vmcnt(1)')
            for i in range(9): a(f'ds_read_b128 {vr(XL+4*i,4)}, v{XW} offset:{1024 * i}')
            for i in range(9):
                a(f's_waitcnt lgkmcnt({8 - i})')
                if i == 0: a(f'v_max_u32 v{T}, v{XL}, v{XL+2}')
                else: a(f'v_max3_u32 v{T}, v{T}, v{XL+4*i}, v{XL+4*i+2}')
            a(f'v_cmp_eq_u32 vcc, -1, v{T}')
            tk(a, opt, 4)
            a(f's_cbranch_vccz {L}_xok')
            if opt.get('wacc'): a(f's_add_u32 s{S_TM+26}, s{S_TM+26}, 0x10000')
            a.label(L + '_reg')
        if opt.get('vprobe'):
            LP = L + '_p'
            if opt.get('fdir'): a(f's_cmp_ge_u32 s{S_SEG}, {opt["fdir"]}'); a(f's_cbranch_scc1 {LP}_x')
            a.label(LP)
            a(f'buffer_load_dword v{T}, v{PB}, {WS}, s{S_T + (1 if opt["vprobe"] == "x" else 0)} offen sc1')
            a(f's_add_u32 s{S_SPIN}, s{S_SPIN}, 1')
            a(f's_cmp_ge_u32 s{S_SPIN}, {SPIN}')
            a('s_waitcnt vmcnt(0)')
            a(f's_cbranch_scc1 {LP}_x')
            a(f'v_cmp_eq_u32 vcc, -1, v{T}')
            a(f's_cbranch_vccnz {LP}')
            a.label(LP + '_x')
        else: spoll(a, None, None, [(1, f's{S_T}')], 'fh', sentinel=True)
        tk(a, opt, 4)
        tacc(a, opt, 3, 4, 12)
        def xl(g0):
            for i in range(3 * g0, 9): a(f'buffer_load_dwordx4 {vr(XL+4*i,4)}, v{DO+i}, {WS}, s{S_T+1} offen sc1')
        xl(0)
        for g3 in range(3):
            LX = f'L_ffn_x{w}_{g3}'
            a.label(LX)
            z = [XL + 4 * (3 * g3 + u) for u in range(3)]
            for u in range(3):
                a(f's_waitcnt vmcnt({8 - 3 * g3 - u})')
                a(f'ds_write_b128 v{XW}, {vr(z[u],4)} offset:{1024 * (3 * g3 + u)}')
                if u == 0: a(f'v_max_u32 v{T}, v{z[u]}, v{z[u]+2}')
                else: a(f'v_max3_u32 v{T}, v{T}, v{z[u]}, v{z[u]+2}')
            a(f'v_cmp_eq_u32 vcc, -1, v{T}')
            a(f's_cbranch_vccz {LX}_x')
            retry(a, LX + '_x')
            a('s_waitcnt lgkmcnt(0)')
            xl(g3)
            a(f's_branch {LX}')
            a.label(LX + '_x')
        a('s_waitcnt lgkmcnt(0)')
        a.label(L + '_xok')
        a('s_barrier')
        tk(a, opt, 5)
        if opt.get('wst'): a('s_waitcnt lgkmcnt(0)')
        lg = Cnt(a, 'lgkmcnt', 15)
        def rd(kk):
            a(f'ds_read_b128 {vr(XR[kk % 4], 4)}, v{XA + (kk & 3)} offset:{(kk >> 2) * 128}'); lg.issue(kk)
        for kk in range(3): rd(kk)
        a(f's_add_u32 s{S_T}, s{S_OB}, {HB}')
        for kk in range(36):
            lg.wait(kk)
            for m in range(2):
                if opt.get('f_nomf') and kk > 0: a('s_nop 7')
                else: a(f'{MF32} {vr(ACC[m],16)}, {ur(GU(m,kk),4)}, {vr(XR[kk%4],4)}, {"0" if kk == 0 else vr(ACC[m],16)}')
                if m == 0 and kk + 3 < 36: rd(kk + 3)
            if kk == 8: a(f'buffer_load_dwordx2 {vr(HV,2)}, v{OA}, {WS}, s{S_T} offen sc1')
        g, u = ACC
        tk(a, opt, 6)
        for r in range(16): a(f'v_max_f32 v{g+r}, 0, v{g+r}')
        for b in range(2):
            for r in range(4): a(f'v_pk_mul_f32 {vr(g+8*b+2*r,2)}, {vr(g+8*b+2*r,2)}, {vr(u+8*b+2*r,2)}')
            for d in range(4): a(f'v_cvt_pk_bf16_f32 v{g+8*b+d}, v{g+8*b+2*d}, v{g+8*b+2*d+1}')
            a(f'ds_write_b128 v{AW}, {vr(g+8*b,4)} offset:{ACTL + w * 2048 + b * 512}')
        a('s_waitcnt lgkmcnt(0)')
        a('s_barrier')
        for ks in range(4):
            for tt in range(2):
                a(f'ds_read_b128 {vr(AF+4*(2*ks+tt),4)}, v{L16} offset:{ACTL + ks * 2048 + tt * 1024}'); lg.issue((ks, tt))
        groups = [(gi, tt) for gi in range(5) for tt in range(2)]
        def fin(n):
            gi, tt = groups[n]; q = DA + 8 * (n & 1); P = tl[2 * gi][0]
            a(f's_add_u32 s{S_P}, s{S_Q}, {(tt * 18 + P) * 36864}')
            if gi < 4:
                for d in range(4): a(f'v_cvt_pk_bf16_f32 v{q+d}, v{q+2*d}, v{q+2*d+1}')
                for d in (0, 2): a(f'v_bfi_b32 v{q+d}, 1, s{S_TAG}, v{q+d}')
                a(f'buffer_store_dwordx4 {vr(q,4)}, v{PST}, {WS}, s{S_P} offen {opt.get("fsc", "sc1")}')
            else:
                for d in range(2): a(f'v_cvt_pk_bf16_f32 v{q+d}, v{q+2*d}, v{q+2*d+1}')
                a(f'v_bfi_b32 v{q}, 1, s{S_TAG}, v{q}')
                a(f'buffer_store_dwordx2 {vr(q,2)}, v{PST}, {WS}, s{S_P} offen offset:{8*tl[8][1]} {opt.get("fsc", "sc1")}')
        for n, (gi, tt) in enumerate(groups):
            for ks in range(4):
                if n < 2: lg.wait((ks, tt))
                for TT in range(2 if gi < 4 else 1):
                    q = DA + 8 * (n & 1) + 4 * TT
                    if opt.get('f_nomf') and ks > 0: a('s_nop 3')
                    else: a(f'{MF} {vr(q,4)}, {ur(WDF(2*gi+TT,ks),4)}, {vr(AF+4*(2*ks+tt),4)}, {"0" if ks == 0 else vr(q,4)}')
                if ks == 1 and n > 0: fin(n - 1)
                if spec and ks == 3 and n == opt.get('spn', 7):
                    a(f's_mul_i32 s{S_T+1}, s{S_NX}, 36864'); a(f's_add_u32 s{S_T+1}, s{S_T+1}, {XN2}')
                    for r in range(8): a(f's_load_dword s{S_MK+r}, s[{S_WS}:{S_WS+1}], s{S_T+1} offset:{w * 9216 + r * 1152} glc')
        fin(9)
        tk(a, opt, 7)
        RA = 68; RR = 32
        def pl(g0):
            for u9 in range(3 * g0, 9):
                a(f's_add_u32 s{S_P}, s{S_Q}, {u9 * 4096}')
                a(f'buffer_load_dwordx4 {vr(RR+4*u9,4)}, v{RB}, {WS}, s{S_P} offen sc1')
        if opt.get('fwait') is not None:
            a(f's_waitcnt vmcnt({opt["fwait"]})'); tk(a, opt, 11)
        pl(0)
        tk(a, opt, 8)
        def red(extra):
            for g3 in range(3):
                LF = f'L_ffn_f{w}_{g3}'
                if not extra: a.label(LF)
                a(f's_waitcnt vmcnt({6 - 3 * g3 + extra})')
                z = [RR + 4 * (3 * g3 + u) for u in range(3)]
                for u in range(3): a(f'v_bitop3_b32 v{T+u}, v{z[u]}, v{z[u]+2}, s{S_TAG} bitop3:0x7e')
                a(f'v_or3_b32 v{T}, v{T}, v{T+1}, v{T+2}')
                a(f'v_and_b32 v{T}, 1, v{T}')
                if g3 == 0:
                    a(f'v_cmp_eq_u32 vcc, -1, v{HV}'); a(f'v_cndmask_b32 v{T}, v{T}, 1, vcc')
                a(f'v_cmp_eq_u32 vcc, 1, v{T}')
                if extra: a(f's_cbranch_vccnz {LF}_r')
                else:
                    a(f's_cbranch_vccz {LF}_x')
                    a.label(LF + '_r')
                    if opt.get('wacc'): a(f's_add_u32 s{S_TM+26}, s{S_TM+26}, 0x10000')
                    retry(a, LF + '_x')
                    if g3 == 0: a(f'buffer_load_dwordx2 {vr(HV,2)}, v{OA}, {WS}, s{S_T} offen sc1')
                    pl(g3)
                    a(f's_branch {LF}')
                    a.label(LF + '_x')
                if g3 == 0:
                    for d in range(2): a(f'v_lshlrev_b32 v{RA+2*d}, 16, v{HV+d}'); a(f'v_and_b32 v{RA+2*d+1}, 0xffff0000, v{HV+d}')
                if g3 == 2: tk(a, opt, 9)
                for u in range(3): a(f'{MF} {vr(RA,4)}, {vr(SEL,4)}, {vr(z[u],4)}, {vr(RA,4)}')
        if spec:
            a('s_waitcnt lgkmcnt(0)')
            for r in range(1, 8): a(f's_max_u32 s{S_MK}, s{S_MK}, s{S_MK+r}')
            a(f's_cmp_lt_u32 s{S_NX}, 64'); a(f's_cselect_b32 s{S_MK}, s{S_MK}, -1')
            a(f's_cmp_lg_u32 s{S_MK}, -1'); a(f's_cselect_b32 s{S_SP}, 1, 0')
            a(f's_cbranch_scc0 L_ffn_f{w}_0')
            x_dma(a, DO, S_T + 1, S_B)
            red(9)
            a(f's_branch {L}_out')
        red(0)
        a.label(L + '_out')
        tk(a, opt, 10)
        for d in range(2): a(f'v_cvt_pk_bf16_f32 v{RA+d}, v{RA+2*d}, v{RA+2*d+1}')
        a(f'buffer_store_dwordx2 {vr(RA,2)}, v{OA}, {R(OUT)}, s{S_OB} offen')
        tfirst(a, opt, f's_cmp_lt_u32 s{S_SEG}, 3')
        a(f's_mov_b32 s{S_SEG}, s{S_NX}'); a(f's_add_u32 s{S_N}, s{S_N}, 1')
        a(f's_cmp_lt_u32 s{S_SEG}, 64'); a(f's_cbranch_scc1 {L}')
        if opt.get('times'): a('s_waitcnt vmcnt(0)')
        finish(a, opt)

def roles(a, opt):
    if opt.get('xcc'): a(f's_getreg_b32 s{S_TM+24}, hwreg(HW_REG_XCC_ID)'); a(f's_getreg_b32 s{S_TM+26}, hwreg(HW_REG_HW_ID)')
    if opt.get('wacc'): a(f's_mov_b32 s{S_TM+24}, 0'); a(f's_mov_b32 s{S_TM+26}, 0')
    if opt.get('ek') and opt.get('plc'):
        a(f's_cmp_lt_u32 s{S_ROLE}, 112'); a('s_cbranch_scc1 L_noffn')
        a(f's_cmp_ge_u32 s{S_ROLE}, 144'); a('s_cbranch_scc1 L_ffn')
        a(f's_mov_b32 s100, s{S_ROLE}'); a(f's_sub_u32 s{S_ROLE}, s{S_ROLE}, 112')
        a('s_branch L_chain_e')
        a.label('L_noffn')
    elif opt.get('ek'):
        t0 = opt.get('et0', 14)
        a(f's_cmp_lt_u32 s{S_ROLE}, 112'); a('s_cbranch_scc1 L_noffn')
        a(f's_sub_u32 s{S_T}, s{S_ROLE}, {32 + 6 * t0}')
        a(f's_cmp_ge_u32 s{S_T}, {48 if opt.get("exd") == "47" else 32}'); a('s_cbranch_scc1 L_ffn')
        a(f's_mul_i32 s{S_T+1}, s{S_T}, 43'); a(f's_lshr_b32 s{S_T+1}, s{S_T+1}, 8')
        a(f's_mul_i32 s{S_T+2}, s{S_T+1}, 6'); a(f's_sub_u32 s{S_T+2}, s{S_T}, s{S_T+2}')
        if opt.get('exd') == '47':
            a(f's_cmp_lt_u32 s{S_T+2}, 2'); a('s_cbranch_scc1 L_ffn')
            a(f's_sub_u32 s{S_T+2}, s{S_T+2}, 2'); a(f's_lshl3_add_u32 s{S_T}, s{S_T+2}, s{S_T+1}')
        else:
            a(f's_min_u32 s{S_T}, s{S_T+2}, 2'); a(f's_add_u32 s{S_T}, s{S_T}, s{S_T+1}')
            a(f's_mul_i32 s{S_T+2}, s{S_T+2}, 5'); a(f's_add_u32 s{S_T}, s{S_T}, s{S_T+2}')
        a(f's_mov_b32 s100, s{S_ROLE}'); a(f's_mov_b32 s{S_ROLE}, s{S_T}')
        a('s_branch L_chain_e')
        a.label('L_noffn')
        assert all((x * 43) >> 8 == x // 6 for x in range(48))
    else: a(f's_cmp_ge_u32 s{S_ROLE}, 112'); a('s_cbranch_scc1 L_ffn')
    a(f's_cmp_ge_u32 s{S_ROLE}, 48'); a('s_cbranch_scc1 L_att')
    proj(a, opt); att(a, opt); ffn(a, opt)
```

```python
import sys, json
sys.path.insert(0, 'gen')
from asm import *
from lay import *
import os, importlib, workers
chain = importlib.import_module(os.environ.get('CHAIN', 'chain3'))
NAME = 'sequential_preLN__memory_aug_recurrent_mem_tr__glu_gated_reglu__prompt'

def build(opt):
    a = Asm(); a.timed = opt.get('timed', True)
    DBG = f's[{S_DBG}:{S_DBG+3}]'; WS = f's[{S_WS}:{S_WS+3}]'
    a(f's_cmp_ge_u32 s{S_WG}, 256'); a('s_cbranch_scc1 L_exit')
    if opt.get('times', False) or 'dly' in opt: a('s_memrealtime s[62:63]')
    a(f's_load_dwordx4 s[{S_DBG}:{S_DBG+3}], s[0:1], 96')
    if opt.get('opf'): a(f's_load_dwordx2 s[{S_R4}:{S_R4+1}], s[0:1], 40')
    if opt.get('warm'): a(f's_load_dwordx8 s[{S_R0}:{S_R0+7}], s[0:1], 16')
    a(f's_getreg_b32 s{S_T}, hwreg(HW_REG_XCC_ID)')
    a(f'v_readfirstlane_b32 s{S_WAVE}, v0')
    a(f's_and_b32 s{S_T}, s{S_T}, 15')
    a(f's_lshr_b32 s{S_WAVE}, s{S_WAVE}, 6')
    a('v_and_b32 v0, 63, v0')
    a('s_waitcnt lgkmcnt(0)')
    a(f's_mov_b32 s{S_WS}, s{S_DBG+2}'); a(f's_and_b32 s{S_WS+1}, s{S_DBG+3}, 0xffff')
    a(f's_mov_b32 s{S_WS+2}, {WS_BYTES}'); a(f's_mov_b32 s{S_WS+3}, 0x20000')
    a(f's_and_b32 s{S_DBG+1}, s{S_DBG+1}, 0xffff'); a(f's_mov_b32 s{S_DBG+2}, 256'); a(f's_mov_b32 s{S_DBG+3}, 0x20000')
    if opt.get('force_slow'): a(f's_or_b32 s{S_T}, s{S_T}, {opt["force_slow"]}')
    if opt.get('cpf'):
        nsh = opt['cpf']; per = 1024 // nsh // 2
        a(f's_cmp_lt_u32 s{S_WAVE}, 2'); a('s_cbranch_scc1 L_nocpf')
        a(f's_getpc_b64 s[{S_T+2}:{S_T+3}]')
        a.label('L_pc')
        a(f's_lshr_b32 s{S_T+1}, s{S_WG}, 3'); a(f's_and_b32 s{S_T+1}, s{S_T+1}, {nsh - 1}')
        a(f's_lshl1_add_u32 s{S_T+1}, s{S_T+1}, s{S_WAVE}'); a(f's_sub_u32 s{S_T+1}, s{S_T+1}, 2')
        a(f's_mul_i32 s{S_T+1}, s{S_T+1}, {per * 128}')
        a('v_lshlrev_b32 v1, 7, v0'); a(f'v_add_u32 v1, s{S_T+1}, v1')
        a(f's_mov_b32 s{S_T+1}, L_code_end-L_pc-4')
        for i in range(per // 64):
            a(f'v_min_u32 v2, s{S_T+1}, v1')
            a(f'v_mov_b32 v3, s{S_T+3}')
            a(f'v_add_co_u32 v2, vcc, s{S_T+2}, v2'); a('v_addc_co_u32 v3, vcc, 0, v3, vcc')
            a(f'global_load_dword v{4 + i}, v[2:3], off')
            a('v_add_u32 v1, 8192, v1')
        a('s_waitcnt vmcnt(0)')
        a('s_branch L_noticket')
        a.label('L_nocpf')
    def early():
        lab = a.newlabel('L_early')
        if opt.get('ecq'): a(f's_bitcmp0_b32 13, s{S_T}'); a(f's_cbranch_scc1 {lab}')
        else: a(f's_cmp_lg_u32 s{S_T}, 0'); a(f's_cbranch_scc1 {lab}')
        if opt.get('ecp'):
            a(f's_getpc_b64 s[{S_T+2}:{S_T+3}]')
            a.label(lab + '_pc')
            a(f's_mov_b32 s{S_T+4}, L_chain-{lab}_pc')
            for w in range(1, 4): a(f's_cmp_eq_u32 s{S_WAVE}, {w}'); a(f's_cselect_b32 s{S_T+4}, L_chain_w{w}-{lab}_pc, s{S_T+4}')
            a('v_lshlrev_b32 v10, 6, v0'); a(f'v_add_u32 v10, s{S_T+4}, v10')
            for i in range(opt['ecp']):
                if i: a('v_add_u32 v10, 0x1000, v10')
                a(f'v_min_u32 v8, L_code_end-{lab}_pc-4, v10'); a(f'v_mov_b32 v9, s{S_T+3}')
                a(f'v_add_co_u32 v8, vcc, s{S_T+2}, v8'); a('v_addc_co_u32 v9, vcc, 0, v9, vcc')
                a('global_load_dword v255, v[8:9], off')
        if opt.get('opf'):
            a(f's_cmp_lt_u32 s{S_WAVE}, 2'); a(f's_cbranch_scc1 {lab}')
            if opt.get('ecq'): a(f's_cmp_lg_u32 s{S_T}, 0'); a(f's_cbranch_scc1 {lab}')
            a(f's_and_b32 s{S_R4+1}, s{S_R4+1}, 0xffff'); a(f's_mov_b32 s{S_R4+2}, 4718592'); a(f's_mov_b32 s{S_R4+3}, 0x20000')
            a(f's_bfe_u32 s{S_T+2}, s{S_WG}, 0x50003'); a(f's_mul_i32 s{S_T+2}, s{S_T+2}, 147456')
            a(f's_and_b32 s{S_T+3}, s{S_WAVE}, 1'); a(f's_lshl_b32 s{S_T+3}, s{S_T+3}, 12'); a(f's_add_u32 s{S_T+2}, s{S_T+2}, s{S_T+3}')
            a('v_lshlrev_b32 v8, 6, v0')
            for i in range(opt['opf']):
                a(f'buffer_load_dword v255, v8, s[{S_R4}:{S_R4+3}], s{S_T+2} offen')
                a(f's_add_u32 s{S_T+2}, s{S_T+2}, 8192')
        a.label(lab)
    if opt.get('ecp') or opt.get('opf'):
        a(f's_cmp_eq_u32 s{S_WAVE}, 0'); a('s_cbranch_scc1 L_nozero')
        early()
    if opt.get('warm'):
        st = opt.get('wst_', 64)
        a(f's_cmp_lt_u32 s{S_WAVE}, 2'); a('s_cbranch_scc1 L_nowarm')
        a(f's_cmp_eq_u32 s{S_T}, 0'); a('s_cbranch_scc1 L_nowarm')
        a(f's_and_b32 s{S_T+1}, s{S_WG}, 7'); a(f's_lshr_b32 s{S_T+2}, s{S_WG}, 3')
        a(f's_cmp_eq_u32 s{S_T+1}, 0'); a('s_cbranch_scc1 L_nowarm')
        a(f'v_mul_u32_u24 v8, {st}, v0')
        a(f's_cmp_ge_u32 s{S_T+1}, 4'); a('s_cbranch_scc1 L_warm1')
        for c, (n, lo) in enumerate(((3, 1), (4, 4))):
            if c: a.label('L_warm1')
            ms = opt['warm'][c]
            nl = -(-4718592 // (32 * n * 2 * 64 * st))
            a(f's_mul_i32 s{S_T+2}, s{S_T+2}, {n}'); a(f's_add_u32 s{S_T+2}, s{S_T+2}, s{S_T+1}'); a(f's_sub_u32 s{S_T+2}, s{S_T+2}, {lo}')
            a(f's_lshl1_add_u32 s{S_T+2}, s{S_T+2}, s{S_WAVE}'); a(f's_sub_u32 s{S_T+2}, s{S_T+2}, 2')
            rows = opt.get('wrow', 1)
            a(f's_mul_i32 s{S_T+2}, s{S_T+2}, {64 * st * (1 if rows else nl)}')
            for m in ms:
                r = {'q': S_R0, 'k': S_R0 + 2, 'v': S_R1, 'o': S_R1 + 2}[m]
                a(f's_mov_b32 s{S_R2}, s{r}'); a(f's_and_b32 s{S_R2+1}, s{r+1}, 0xffff'); a(f's_mov_b32 s{S_R2+2}, 4718592'); a(f's_mov_b32 s{S_R2+3}, 0x20000')
                for i in range(nl):
                    a(f's_add_u32 s{S_T+3}, s{S_T+2}, {i * 64 * st * (64 * n if rows else 1)}')
                    a(f'buffer_load_dword v255, v8, s[{S_R2}:{S_R2+3}], s{S_T+3} offen')
            if c == 0: a('s_branch L_nowarm')
        a.label('L_nowarm')
    a(f's_cmp_lg_u32 s{S_WAVE}, 1'); a('s_cbranch_scc1 L_nozero')
    a(f's_cmp_lt_u32 s{S_WG}, {256 - 2 * NZ}'); a('s_cbranch_scc1 L_noticket')
    a(f's_bitcmp0_b32 s{S_WG}, 0'); a('s_cbranch_scc1 L_noticket')
    a('v_mov_b64 v[4:5], 0'); a('v_mov_b64 v[6:7], 0'); a('v_lshlrev_b32 v3, 4, v0')
    a(f's_sub_u32 s{S_T+2}, s{S_WG}, {257 - 2 * NZ}'); a(f's_lshl_b32 s{S_T+2}, s{S_T+2}, 9')
    a(f'buffer_store_dwordx4 v[4:7], v3, {WS}, s{S_T+2} offen sc1')
    a('v_mov_b32 v1, 1')
    a('s_waitcnt vmcnt(0)')
    a('s_mov_b64 exec, 1')
    if opt.get('pq'):
        a(f'buffer_atomic_add v1, off, {DBG}, 0 offset:{DB_Z} sc0')
        a('s_waitcnt vmcnt(0)')
        a(f'v_cmp_eq_u32 vcc, {NZ - 1}, v1'); a('v_mov_b32 v1, 1'); a('s_and_b64 exec, exec, vcc')
        a('s_cbranch_execz L_nogz')
        a(f'buffer_store_dword v1, off, {DBG}, 0 offset:{GO_Z} sc1')
        a.label('L_nogz')
    else: a(f'buffer_atomic_add v1, off, {DBG}, 0 offset:{DB_Z}')
    a('s_mov_b64 exec, -1')
    a('s_branch L_noticket')
    a.label('L_nozero')
    if opt.get('even', True):
        x1 = opt.get('x1', 'att')
        a(f's_cmp_lg_u32 s{S_WAVE}, 0'); a('s_cbranch_scc1 L_noticket')
        a('v_mov_b32 v2, 0')
        a('s_mov_b64 exec, 1')
        a('v_mov_b32 v1, 1')
        a(f's_and_b32 s{S_T}, s{S_T}, 7')
        a(f's_lshl_b32 s{S_T+2}, s{S_T}, 2'); a(f's_add_u32 s{S_T+2}, s{S_T+2}, {DB_CX - 8}')
        a(f's_cmp_eq_u32 s{S_T}, 1'); a(f's_cselect_b32 s{S_T+2}, {DB_C1}, s{S_T+2}')
        a(f's_cmp_eq_u32 s{S_T}, 0'); a(f's_cselect_b32 s{S_T+2}, {DB_CT}, s{S_T+2}')
        a(f'buffer_atomic_add v1, off, {DBG}, s{S_T+2} sc0')
        if opt.get('ecp'):
            a('s_mov_b64 exec, -1'); o_ = opt.pop('opf', None); early(); opt['opf'] = o_; a('s_mov_b64 exec, 1')
            a(f's_bitcmp1_b32 13, s{S_T}' if opt.get('ecq') else f's_cmp_eq_u32 s{S_T}, 0'); a('s_cbranch_scc0 L_tk0')
            a(f's_waitcnt vmcnt({opt["ecp"]})'); a('s_branch L_tk1')
            a.label('L_tk0')
        a('s_waitcnt vmcnt(0)')
        a.label('L_tk1')
        a(f's_lshl_b32 s{S_T+2}, s{S_T}, 16')
        a(f'v_readfirstlane_b32 s{S_T+1}, v1')
        a(f'v_or_b32 v1, s{S_T+2}, v1')
        a(f's_cmp_lt_u32 s{S_T+1}, 32'); a('s_cbranch_scc1 L_ticket')
        a('v_mov_b32 v1, 1')
        a(f'buffer_atomic_add v1, off, {DBG}, 0 offset:{DB_WT} sc0')
        a('s_waitcnt vmcnt(0)')
        a('v_or_b32 v1, 0x80000, v1')
        a.label('L_ticket')
        a('ds_write_b32 v2, v1')
        a('s_waitcnt lgkmcnt(0)')
        a('s_mov_b64 exec, -1')
        a.label('L_noticket')
        a('s_barrier')
        a('v_mov_b32 v2, 0'); a('ds_read_b32 v1, v2'); a('s_waitcnt lgkmcnt(0)')
        a(f'v_readfirstlane_b32 s{S_T+1}, v1')
        a('s_barrier')
        a(f's_and_b32 s{S_ROLE}, s{S_T+1}, 0xffff')
        a(f's_lshr_b32 s{S_T}, s{S_T+1}, 16')
        a(f's_cmp_lt_u32 s{S_T}, 8'); a('s_cbranch_scc1 L_drawn')
        a(f's_mov_b32 s{S_T+3}, 0')
        a('v_lshlrev_b32 v2, 2, v0'); a(f'v_add_u32 v2, {DB_CX - 8}, v2')
        a(f'v_mov_b32 v3, {DB_CT}'); a('v_cmp_eq_u32 vcc, 0, v0'); a('v_cndmask_b32 v2, v2, v3, vcc')
        a(f'v_mov_b32 v3, {DB_C1}'); a('v_cmp_eq_u32 vcc, 1, v0'); a('v_cndmask_b32 v2, v2, v3, vcc')
        a(f'v_mov_b32 v3, {DB_WT}'); a('v_cmp_lt_u32 vcc, 7, v0'); a('v_cndmask_b32 v2, v2, v3, vcc')
        a.label('L_spare')
        a(f'buffer_load_dword v1, v2, {DBG}, 0 offen sc1')
        a(f's_add_u32 s{S_T+3}, s{S_T+3}, 1')
        a('s_waitcnt vmcnt(0)')
        a(f'v_readlane_b32 s{S_T+1}, v1, 8')
        a('v_min_u32 v1, 32, v1')
        a(f's_cmp_ge_u32 s{S_T+3}, {chain.SPIN}'); a('s_cbranch_scc1 L_exit')
        for k in range(8): a(f'v_readlane_b32 s{S_T+2}, v1, {k}'); a(f's_add_u32 s{S_T+1}, s{S_T+1}, s{S_T+2}')
        a(f's_cmp_lt_u32 s{S_T+1}, 256'); a('s_cbranch_scc1 L_spare')
        for k in range(8):
            a(f'v_readlane_b32 s{S_T+2}, v1, {k}')
            a(f's_mov_b32 s{S_T}, {k}')
            a(f's_add_u32 s{S_ROLE}, s{S_ROLE}, s{S_T+2}')
            a(f's_cmp_lt_u32 s{S_ROLE}, 32'); a('s_cbranch_scc1 L_drawn')
            a(f's_sub_u32 s{S_ROLE}, s{S_ROLE}, 32')
        a('s_branch L_exit')
        a.label('L_drawn')
        a(f's_cmp_eq_u32 s{S_T}, 0'); a('s_cbranch_scc1 L_chain')
        if opt.get('xa'):
            tab = placement(opt)
            for x in range(1, 7): a(f's_cmp_eq_u32 s{S_T}, {x}'); a(f's_cbranch_scc1 L_tab{x}')
            for x in (7, 1, 2, 3, 4, 5, 6):
                a.label(f'L_tab{x}')
                for i in range(8): a(f's_mov_b32 s{64 + i}, 0x{sum(r << 8 * j for j, r in enumerate(tab[x][4 * i:4 * i + 4])):x}')
                if x != 6: a('s_branch L_tabx')
            a.label('L_tabx')
            a(f's_bitcmp1_b32 s{S_ROLE}, 3'); a('s_cselect_b64 s[64:65], s[66:67], s[64:65]'); a('s_cselect_b64 s[68:69], s[70:71], s[68:69]')
            a(f's_bitcmp1_b32 s{S_ROLE}, 4'); a('s_cselect_b64 s[64:65], s[68:69], s[64:65]')
            a(f's_and_b32 s{S_ROLE}, s{S_ROLE}, 7'); a(f's_lshl_b32 s{S_ROLE}, s{S_ROLE}, 3')
            a(f's_lshr_b64 s[64:65], s[64:65], s{S_ROLE}'); a(f's_and_b32 s{S_ROLE}, s64, 0xff')
            a(f's_cmp_ge_u32 s{S_ROLE}, 220'); a('s_cbranch_scc1 L_exit')
            a('s_branch L_roles')
        if opt.get('plc'):
            assert x1 == 'att2'
            a(f's_cmp_eq_u32 s{S_T}, 1'); a('s_cbranch_scc1 L_plc1')
            a(f's_cmp_lt_u32 s{S_T}, 4'); a(f's_cselect_b32 s{S_T+1}, 16, 12')
            a(f's_cmp_ge_u32 s{S_ROLE}, s{S_T+1}'); a('s_cbranch_scc1 L_plcr')
            a(f's_cmp_lt_u32 s{S_T}, 4'); a('s_cbranch_scc0 L_plcp')
            a(f's_lshl4_add_u32 s{S_ROLE}, s{S_T}, s{S_ROLE}'); a(f's_add_u32 s{S_ROLE}, s{S_ROLE}, {112 - 32}')
            a('s_branch L_roles')
            a.label('L_plcp')
            if opt['plc'] == 2:
                assert 0
            a(f's_lshl3_add_u32 s{S_T+1}, s{S_T}, s{S_ROLE}'); a(f's_sub_u32 s{S_T+1}, s{S_T+1}, 32')
            a(f's_lshl2_add_u32 s{S_T+2}, s{S_T}, s{S_ROLE}'); a(f's_add_u32 s{S_T+2}, s{S_T+2}, {32 - 16 - 8}')
            a(f's_cmp_lt_u32 s{S_ROLE}, 8'); a(f's_cselect_b32 s{S_ROLE}, s{S_T+1}, s{S_T+2}')
            a('s_branch L_roles')
            a.label('L_plcr')
            a(f's_sub_u32 s{S_ROLE}, s{S_ROLE}, s{S_T+1}')
            a(f's_mul_i32 s{S_T+1}, s{S_ROLE}, 6'); a(f's_add_u32 s{S_T+1}, s{S_T+1}, s{S_T}'); a(f's_sub_u32 s{S_T+1}, s{S_T+1}, 2')
            a(f's_lshl2_add_u32 s{S_T+2}, s{S_ROLE}, s{S_T}'); a(f's_add_u32 s{S_T+2}, s{S_T+2}, {96 - 64 - 4}')
            a(f's_cmp_lt_u32 s{S_ROLE}, 16'); a(f's_cselect_b32 s{S_ROLE}, s{S_T+1}, s{S_T+2}')
            a(f's_cmp_lt_u32 s{S_ROLE}, 32'); a(f's_cselect_b32 s{S_T+1}, 64, 112')
            a(f's_add_u32 s{S_ROLE}, s{S_ROLE}, s{S_T+1}')
            a(f's_cmp_ge_u32 s{S_ROLE}, 220'); a('s_cbranch_scc1 L_exit')
            a('s_branch L_roles')
            a.label('L_plc1')
        a(f's_mul_i32 s{S_T+1}, s{S_ROLE}, 6'); a(f's_add_u32 s{S_T+1}, s{S_T+1}, s{S_T}'); a(f's_sub_u32 s{S_T+1}, s{S_T+1}, 2')
        a(f's_sub_u32 s{S_ROLE}, 223, s{S_ROLE}')
        a(f's_cmp_eq_u32 s{S_T}, 1'); a(f's_cselect_b32 s{S_ROLE}, s{S_ROLE}, s{S_T+1}')
    else:
        x1 = opt.get('x1', 'att')
        a(f's_cmp_lg_u32 s{S_WAVE}, 0'); a('s_cbranch_scc1 L_noticket')
        a('v_mov_b32 v2, 0')
        a('s_mov_b64 exec, 1')
        a(f's_cmp_gt_u32 s{S_T}, {1 if x1 else 0}'); a('s_cbranch_scc1 L_wticket')
        a('v_mov_b32 v1, 1')
        a(f's_mul_i32 s{S_T+2}, s{S_T}, {DB_C1 - DB_CT}')
        a(f'buffer_atomic_add v1, off, {DBG}, s{S_T+2} offset:{DB_CT} sc0')
        a(f's_add_u32 s{S_T+2}, s{S_T}, 1'); a(f's_lshl_b32 s{S_T+2}, s{S_T+2}, 16')
        a('s_waitcnt vmcnt(0)')
        a(f'v_readfirstlane_b32 s{S_T+1}, v1')
        a(f'v_or_b32 v1, s{S_T+2}, v1')
        a(f's_cmp_lt_u32 s{S_T+1}, 32'); a('s_cbranch_scc1 L_ticket')
        a.label('L_wticket')
        a('v_mov_b32 v1, 1')
        a(f'buffer_atomic_add v1, off, {DBG}, 0 offset:{DB_WT} sc0')
        a('s_waitcnt vmcnt(0)')
        a.label('L_ticket')
        a('ds_write_b32 v2, v1')
        a('s_waitcnt lgkmcnt(0)')
        a('s_mov_b64 exec, -1')
        a.label('L_noticket')
        a('s_barrier')
        a('v_mov_b32 v2, 0'); a('ds_read_b32 v1, v2'); a('s_waitcnt lgkmcnt(0)')
        a(f'v_readfirstlane_b32 s{S_T+1}, v1')
        a('s_barrier')
        a(f's_and_b32 s{S_ROLE}, s{S_T+1}, 0xffff')
        a(f's_bitcmp1_b32 s{S_T+1}, 16'); a('s_cbranch_scc1 L_chain')
        a(f's_bitcmp0_b32 s{S_T+1}, 17'); a('s_cbranch_scc1 L_front')
        a(f's_sub_u32 s{S_ROLE}, 223, s{S_ROLE}')
        a('s_branch L_list')
        a.label('L_front')
        a(f's_cmp_lt_u32 s{S_ROLE}, {192 if x1 else 220}'); a('s_cbranch_scc1 L_list')
        a(f's_mov_b32 s{S_T+3}, 0')
        a.label('L_spare')
        a(f'buffer_load_dword v1, off, {DBG}, 0 offset:{DB_CT} sc1')
        a(f'buffer_load_dword v2, off, {DBG}, 0 offset:{DB_WT} sc1')
        a(f'buffer_load_dword v3, off, {DBG}, 0 offset:{DB_C1} sc1')
        a(f's_add_u32 s{S_T+3}, s{S_T+3}, 1')
        a('s_waitcnt vmcnt(0)')
        a(f'v_readfirstlane_b32 s{S_T+2}, v1'); a(f'v_readfirstlane_b32 s{S_T+1}, v2'); a(f'v_readfirstlane_b32 s{S_T}, v3')
        a(f's_cmp_ge_u32 s{S_T+3}, {chain.SPIN}'); a('s_cbranch_scc1 L_exit')
        a(f's_min_u32 s{S_T+2}, s{S_T+2}, 32'); a(f's_min_u32 s{S_T}, s{S_T}, 32')
        a(f's_add_u32 s{S_T+1}, s{S_T+1}, s{S_T+2}'); a(f's_add_u32 s{S_T+1}, s{S_T+1}, s{S_T}')
        a(f's_cmp_lt_u32 s{S_T+1}, 256'); a('s_cbranch_scc1 L_spare')
        a(f's_sub_u32 s{S_T}, 224, s{S_T}')
        a(f's_cmp_lt_u32 s{S_ROLE}, s{S_T}'); a('s_cbranch_scc1 L_list')
        a(f's_sub_u32 s{S_ROLE}, s{S_ROLE}, s{S_T}')
        a(f's_add_u32 s{S_ROLE}, s{S_ROLE}, s{S_T+2}')
        a(f's_cmp_lt_u32 s{S_ROLE}, 32'); a('s_cbranch_scc1 L_chain')
        a('s_branch L_exit')
    a.label('L_list')
    if x1 == 'att2':
        a(f's_cmp_lt_u32 s{S_ROLE}, 48'); a('s_cbranch_scc1 L_roles')
        a(f's_cmp_lt_u32 s{S_ROLE}, 80'); a(f's_cselect_b32 s{S_T}, 16, 32')
        a(f's_cmp_lt_u32 s{S_ROLE}, 192'); a(f's_cselect_b32 s{S_T}, s{S_T}, -144')
        a(f's_cmp_lt_u32 s{S_ROLE}, 208'); a(f's_cselect_b32 s{S_T}, s{S_T}, -112')
        a(f's_add_u32 s{S_ROLE}, s{S_ROLE}, s{S_T}')
    a(f's_cmp_ge_u32 s{S_ROLE}, 220'); a('s_cbranch_scc1 L_exit')
    if x1 == 'att':
        a(f's_cmp_lt_u32 s{S_ROLE}, 84'); a('s_cbranch_scc1 L_roles')
        a(f's_cmp_lt_u32 s{S_ROLE}, 192'); a(f's_cselect_b32 s{S_T}, 28, -108')
        a(f's_add_u32 s{S_ROLE}, s{S_ROLE}, s{S_T}')
    a('s_branch L_roles')
    a.label('L_exit')
    a('s_endpgm')
    a.label('L_roles')
    for _ in range(opt.get('pad', 0)): a('s_nop 0')
    if opt.get('flags'): workers.roles(a, opt)
    else: a('s_endpgm')
    chain.entry(a, opt)
    a.label('L_code_end')
    n = a.fix(verbose=opt.get('verbose', False))
    if opt.get('fal'):
        off = opt['lal'][1:]
        for w in range(4):
            log = [] if opt.get('verbose') is not None else None
            r = place_loop(a, f'L_loop_c{w}f', off[w % len(off)] % 8, (f'L_okA_c{w}f', f'L_okB_c{w}f'), opt.get('fwt', (1, 1)), opt['fal'], log=log, **opt.get('fkw', {}))
            if opt.get('verbose') is not None: print('wave', w, r, *log, sep='\n   ', file=sys.stderr)
    head = open('cdna_kernels/' + NAME + '.s.ref').read().split('\n')
    hdr = [l for l in head if l.startswith(';') and '@launch' not in l]
    hdr = hdr[:[i for i, l in enumerate(hdr) if 'Override launch' in l][0]]
    out = '\n'.join(hdr) + '\n; @launch grid=(256,1,1) block=(256,1,1) lds=163840\n'
    out += f'''.amdgcn_target "amdgcn-amd-amdhsa--gfx950"
.text
.globl {NAME}_kernel
.p2align 8
.type {NAME}_kernel,@function
{NAME}_kernel:
''' + a.text() + f'''.section .rodata,"a"
.p2align 6
.amdhsa_kernel {NAME}_kernel
  .amdhsa_next_free_vgpr 512
  .amdhsa_next_free_sgpr 102
  .amdhsa_accum_offset 256
  .amdhsa_group_segment_fixed_size 0
  .amdhsa_kernarg_size 112
  .amdhsa_user_sgpr_count 2
  .amdhsa_user_sgpr_kernarg_segment_ptr 1
  .amdhsa_system_sgpr_workgroup_id_x 1
.end_amdhsa_kernel
'''
    return out

if __name__ == '__main__':
    opt = json.loads(sys.argv[2]) if len(sys.argv) > 2 else {}
    open(sys.argv[1], 'w').write(build(opt))
```

```python
import re

REG_RE = re.compile(r'^(-?)(?:abs\()?([vas])(?:(\d+)|\[(\d+):(\d+)\])\)?$')

def regs_of(op):
    op = op.strip()
    if op in ('vcc',): return [('s', 'vcc_lo'), ('s', 'vcc_hi')]
    if op in ('vcc_lo', 'vcc_hi', 'm0', 'exec_lo', 'exec_hi', 'scc'): return [('s', op)]
    if op == 'exec': return [('s', 'exec_lo'), ('s', 'exec_hi')]
    m = REG_RE.match(op)
    if not m: return []
    c = m.group(2)
    if m.group(3) is not None: return [(c, int(m.group(3)))]
    return [(c, i) for i in range(int(m.group(4)), int(m.group(5)) + 1)]

TRANS = ('v_exp_f32', 'v_log_f32', 'v_rcp_f32', 'v_rsq_f32', 'v_sqrt_f32', 'v_sin_f32', 'v_cos_f32', 'v_rcp_iflag_f32')

class I:
    __slots__ = ('text', 'mn', 'ops', 'kind', 'defs', 'uses', 'passes', 'srcc', 'states', 'wide_store', 'label', 'target', 'dpp', 'sdefs', 'ab', 'lds_dma')
    def __init__(self, text):
        self.text = text
        t = text.split(';')[0].strip()
        self.label = None; self.target = None; self.kind = 'none'; self.defs = []; self.uses = []
        self.passes = 0; self.srcc = []; self.states = 0; self.wide_store = False; self.dpp = False; self.ab = []
        self.lds_dma = False
        self.mn = ''
        if not t or t.startswith('.'):
            return
        if t.endswith(':'):
            self.label = t[:-1]; self.kind = 'label'; return
        parts = t.split(None, 1)
        mn = parts[0]; self.mn = mn
        rest = parts[1] if len(parts) > 1 else ''
        ops = []; cur = ''; depth = 0
        for ch in rest:
            if ch in '[(': depth += 1
            if ch in '])': depth -= 1
            if ch == ',' and depth == 0: ops.append(cur.strip()); cur = ''
            else: cur += ch
        if cur.strip(): ops.append(cur.strip())
        mods = ''
        if ops:
            sp = ops[-1].split(None, 1)
            if len(sp) > 1 and not ops[-1].startswith('hwreg') and mn not in ('s_waitcnt',):
                ops[-1] = sp[0]; mods = sp[1]
        self.ops = ops
        self.states = 1
        base = mn.replace('_e32', '').replace('_e64', '').replace('_dpp', '').replace('_sdwa', '')
        R = regs_of
        if mn == 's_nop':
            self.kind = 'nop'; self.states = int(ops[0], 0) + 1
        elif mn.startswith('v_mfma') or mn.startswith('v_smfmac'):
            self.kind = 'mfma'
            self.passes = 8 if '32x32' in mn else 4
            self.defs = R(ops[0]); self.ab = R(ops[1]) + R(ops[2])
            if mn.startswith('v_smfmac'):
                self.srcc = R(ops[0]); self.ab += R(ops[3])
            else:
                self.srcc = R(ops[3])
            self.uses = self.ab + self.srcc
        elif mn.startswith('v_'):
            self.kind = 'trans' if base in TRANS else 'valu'
            if 'quad_perm' in mods or 'row_' in mods or 'wave_' in mods or mn.endswith('_dpp'): self.dpp = True
            if base.startswith('v_cmpx'):
                self.defs = R(ops[0]) + R('exec'); self.uses = sum((R(o) for o in ops[1:]), [])
            elif base.startswith('v_permlane') and 'swap' in base:
                self.defs = R(ops[0]) + R(ops[1]); self.uses = list(self.defs); self.kind = 'perm'
            elif base in ('v_add_co_u32', 'v_sub_co_u32', 'v_addc_co_u32', 'v_mad_u64_u32'):
                self.defs = R(ops[0]) + R(ops[1]); self.uses = sum((R(o) for o in ops[2:]), [])
            elif base == 'v_nop':
                pass
            else:
                self.defs = R(ops[0]); self.uses = sum((R(o) for o in ops[1:]), [])
                if base in ('v_fmac_f32', 'v_writelane_b32', 'v_dot2c_f32_bf16') or self.dpp: self.uses += R(ops[0])
                if base == 'v_cndmask_b32' and len(ops) == 3: self.uses += R('vcc')
        elif mn.startswith('ds_'):
            self.kind = 'ds'
            if 'read' in mn or 'bpermute' in mn or 'swizzle' in mn or 'permute' in mn or '_rtn' in mn:
                self.defs = R(ops[0]); self.uses = sum((R(o) for o in ops[1:]), [])
            else:
                self.uses = sum((R(o) for o in ops), [])
        elif mn.startswith('buffer_') or mn.startswith('global_'):
            self.kind = 'vmem'
            allmods = mods + ' ' + ' '.join(ops)
            if mn in ('buffer_wbl2', 'buffer_inv'):
                pass
            elif re.search(r'\blds\b', allmods) or 'load_lds' in mn:
                self.lds_dma = True
                self.uses = sum((R(o) for o in ops), []) + R('m0')
            elif 'load' in mn:
                self.defs = R(ops[0]); self.uses = sum((R(o) for o in ops[1:]), [])
            elif 'atomic' in mn:
                self.uses = sum((R(o) for o in ops), [])
                if 'sc0' in allmods: self.defs = R(ops[0])
            else:
                self.uses = sum((R(o) for o in ops), [])
                if 'x3' in mn or 'x4' in mn:
                    self.wide_store = True
                    self.srcc = R(ops[0]) if mn.startswith('buffer') else R(ops[1])
        elif mn.startswith('s_'):
            self.kind = 'salu'
            if mn.startswith('s_cbranch') or mn == 's_branch':
                self.target = ops[0]; self.kind = 'branch'
                if 'vcc' in mn: self.uses = R('vcc')
                if 'exec' in mn: self.uses = R('exec')
            elif mn in ('s_waitcnt', 's_barrier', 's_endpgm', 's_setprio', 's_sleep'):
                pass
            elif mn.startswith('s_cmp') or mn.startswith('s_bitcmp'):
                self.uses = sum((R(o) for o in ops), [])
            elif mn.startswith('s_load') or mn in ('s_memtime', 's_memrealtime', 's_getreg_b32'):
                self.defs = R(ops[0]); self.uses = sum((R(o) for o in ops[1:]), [])
            else:
                self.defs = R(ops[0]); self.uses = sum((R(o) for o in ops[1:]), [])
                if 'saveexec' in mn: self.defs += R('exec'); self.uses += R('exec')
                if mn in ('s_addk_i32', 's_mulk_i32'): self.uses += R(ops[0])
        else:
            raise ValueError('unknown instr: ' + text)

def isv(k): return k in ('valu', 'trans', 'perm')

def need(p, c):
    n = 0
    pd = set(p.defs)
    vd = {r for r in pd if r[0] in 'va'}
    sd = {r for r in pd if r[0] == 's'}
    cu = set(c.uses); cd = set(c.defs)
    if isv(p.kind):
        if c.kind == 'mfma' and vd & cu: n = max(n, 2)
        if c.kind == 'perm' and vd & cu: n = max(n, 2)
        if c.dpp and vd & cu: n = max(n, 2)
        if c.mn.startswith('v_readlane') or c.mn.startswith('v_readfirstlane'):
            if vd & cu: n = max(n, 1)
            if any(r[1] in ('exec_lo', 'exec_hi') for r in sd): n = max(n, 4)
            if c.mn.startswith('v_readlane') and sd & cu: n = max(n, 4)
        if c.mn.startswith('v_writelane') and sd & cu: n = max(n, 4)
        if p.kind == 'trans' and (isv(c.kind) or c.kind == 'mfma') and c.kind != 'trans' and vd & cu: n = max(n, 1)
        if p.kind == 'trans' and c.kind == 'trans' and vd & cu: n = max(n, 1)
        if sd:
            if c.kind == 'vmem' and sd & cu: n = max(n, 5)
            if isv(c.kind) and sd & cu: n = max(n, 2)
            ex = any(r[1] in ('exec_lo', 'exec_hi') for r in sd)
            if ex and c.kind == 'mfma': n = max(n, 4)
            if ex and c.dpp: n = max(n, 5)
            if ex and c.kind == 'perm': n = max(n, 4)
            if c.kind in ('salu', 'branch') and sd & cu: n = max(n, 1)
    if p.kind == 'mfma':
        far = 8 if p.passes == 4 else 12
        if c.kind == 'mfma':
            if vd & set(c.ab): n = max(n, far)
            if vd & set(c.srcc):
                same = (p.defs == c.srcc) and p.mn == c.mn
                if not same: n = max(n, far - 2)
            elif vd & cd:
                n = max(n, far)
        elif c.kind in ('valu', 'trans', 'perm', 'ds', 'vmem'):
            if vd & (cu | cd): n = max(n, far)
            if isv(c.kind) and set(p.srcc) & cd: n = max(n, 3 if p.passes == 4 else 7)
    if p.wide_store:
        if set(p.srcc) & cd: n = max(n, 2 if isv(c.kind) else 1)
    if p.kind == 'salu' and ('s', 'm0') in pd and c.lds_dma: n = max(n, 1)
    return n

def timed_dist(p, between, c):
    occ = lambda z: 2 if '16x16x16' in z.mn else z.passes
    t = 1; last = 0; lp = occ(p)
    for x in between + [c]:
        if x.kind == 'mfma':
            t = max(t, last + lp); last = t; lp = occ(x)
        if x is c: return t - 1
        t += x.states

class Asm:
    def __init__(self):
        self.timed = False
        self.L = []
        self.uid = 0
    def __call__(self, text):
        for line in text.split('\n'):
            s = line.strip()
            if s: self.L.append(I(s))
    def label(self, name): self.L.append(I(name + ':'))
    def newlabel(self, base):
        self.uid += 1
        return '%s_%d' % (base, self.uid)
    def fix(self, verbose=False):
        out = []
        nins = 0
        for c in self.L:
            if c.kind not in ('none', 'label'):
                req = 0; dist = 0
                seq = []
                for p in reversed(out):
                    if p.kind in ('none', 'label'): continue
                    if p.mn in ('s_branch', 's_endpgm'): break
                    if dist >= 20: break
                    nd = need(p, c)
                    if nd > dist:
                        r = nd - dist
                        if self.timed and p.kind == 'mfma':
                            r = 0
                            while r < nd - dist and timed_dist(p, seq[::-1] + ([I('s_nop %d' % (r - 1))] if r else []), c) - 1 < nd: r += 1
                        req = max(req, r)
                    seq.append(p)
                    dist += p.states
                if req > 0:
                    out.append(I('s_nop %d' % (req - 1))); nins += 1
                    if verbose: print('nop', req, 'before', c.text)
            out.append(c)
        self.L = out
        pos = {x.label: i for i, x in enumerate(out) if x.label}
        changed = True
        while changed:
            changed = False
            out = self.L
            pos = {x.label: i for i, x in enumerate(out) if x.label}
            for bi, b in enumerate(out):
                if b.kind != 'branch': continue
                hist = []; d = 0; j = bi
                while j >= 0 and d < 20:
                    p = out[j]
                    if p.kind not in ('none', 'label'):
                        if j != bi and p.mn in ('s_branch', 's_endpgm'): break
                        hist.append((p, d)); d += p.states
                    j -= 1
                j = pos[b.target]; fwd = 0; worst = 0
                while j < len(out) and fwd < 20:
                    c = out[j]
                    if c.kind not in ('none', 'label'):
                        for p, dd in hist:
                            r = need(p, c) - (dd + fwd)
                            worst = max(worst, r)
                        fwd += c.states
                        if c.mn in ('s_branch', 's_endpgm'): break
                    j += 1
                if worst > 0:
                    self.L.insert(bi, I('s_nop %d' % (worst - 1)))
                    if verbose: print('branch nop', worst, 'before', b.text)
                    changed = True
                    break
        return nins
    def text(self):
        o = []
        for x in self.L:
            o.append(x.text if x.kind == 'label' or x.text.startswith('.') else '  ' + x.text)
        return '\n'.join(o) + '\n'

def vr(i, n=1):
    return 'v%d' % i if n == 1 else 'v[%d:%d]' % (i, i + n - 1)
def ar(i, n=1):
    return 'a%d' % i if n == 1 else 'a[%d:%d]' % (i, i + n - 1)
def sr(i, n=1):
    return 's%d' % i if n == 1 else 's[%d:%d]' % (i, i + n - 1)
def ur(i, n=1):
    return vr(i, n) if i < 256 else ar(i - 256, n)

class Cnt:
    def __init__(self, a, name, mx):
        self.a = a; self.name = name; self.mx = mx; self.q = []
    def issue(self, tag=None): self.q.append(tag)
    def wait(self, *tags):
        idx = -1
        for t in tags:
            for i, x in enumerate(self.q):
                if x == t: idx = max(idx, i)
        if idx < 0: return
        n = len(self.q) - 1 - idx
        n = min(n, self.mx)
        self.a('s_waitcnt %s(%d)' % (self.name, n))
        self.q = self.q[len(self.q) - n:] if n else []
    def all(self):
        self.a('s_waitcnt %s(0)' % self.name); self.q = []
    def reset(self): self.q = []

BIG = ('ds_', 'buffer_', 'global_', 's_load', 's_memtime', 's_memrealtime', 'v_mfma', 'v_smfmac', 'v_pk_', 'v_cvt_pk', 'v_max3', 'v_min3',
       'v_or3', 'v_bfi', 'v_bitop3', 'v_bfe', 'v_fma_', 'v_add3', 'v_lshl_', 'v_mul_lo', 'v_and_or', 'v_perm_', 'v_readlane', 'v_accvgpr')
WIDE = ('v_mov_b32', 'v_mov_b64', 'v_max_f32', 'v_max_u32', 'v_add_f32', 'v_mul_f32', 'v_exp_f32', 'v_rcp_f32', 'v_or_b32', 'v_and_b32', 'v_xor_b32',
        'v_lshrrev_b32', 'v_lshlrev_b32', 'v_cmp_eq_u32', 'v_cmp_le_u32', 'v_cndmask_b32', 'v_permlane32_swap_b32', 'v_permlane16_swap_b32')
def has_lit(x):
    if x.mn in ('s_waitcnt', 's_nop', 's_barrier') or x.kind == 'branch' or x.mn.endswith('k_i32'): return False
    for o in x.ops:
        try: v = int(o, 0)
        except ValueError:
            if 'L_' in o: return True
            continue
        if not -16 <= v <= 64: return True
    return False
def vop3(x):
    t = x.text
    if x.mn.startswith('v_cndmask') and not t.rstrip().endswith('vcc'): return True
    if x.mn.startswith('v_cmp') and not x.ops[0].startswith('vcc'): return True
    if x.mn.startswith('v_') and ('row_' in t or 'quad_perm' in t or 'dst_sel' in t or 'src0_sel' in t or 'op_sel' in t or 'clamp' in t or '|' in t): return True
    if x.mn.startswith('v_') and len(x.ops) >= 3:
        o = x.ops[3] if x.ops[1] == 'vcc' else x.ops[2]
        if o[0] not in 'va': return True
    return False
def isize(x):
    if x.mn.startswith(BIG) or x.mn.endswith('_e64') or has_lit(x) or vop3(x): return 8
    return 4
def can_widen(x): return x.mn in WIDE and not has_lit(x) and not vop3(x)
def fetch_plan(code, ph, wt, beam=400, wait=4, FL=20, wc=0.01, log=None, mft=8):
    S = [(0, ph * 4, tuple((0, 0, 16) for _ in wt), (), ())]
    rep = {}
    for k, (x, who, jump) in enumerate(code):
        nxt = {}
        for cost, ad, P, ch, lg0 in S:
            for wd in ((0, 1) if can_widen(x) else (0,)):
                n = isize(x) + 4 * wd; ad1 = ad + n; c = cost + wc * wd; Q = []; lg = ()
                for p, (mf, a0, a1) in enumerate(P):
                    if p not in who: Q.append((mf, a0, a1)); continue
                    t0 = mf if x.kind == 'mfma' else 0
                    st = max(0, (a1 if ad1 > 32 else a0) - t0); t0 += st; c += wt[p] * st
                    if st and log is not None: lg += ((k, p, st, ad),)
                    m2 = t0 + (16 if 'smfmac' in x.mn else mft if 'x32' in x.mn else 8) if x.kind == 'mfma' else mf
                    d = 4 * x.states if x.kind == 'nop' else 8 if x.kind == 'trans' else 12 if x.mn == 's_barrier' else wait if x.mn == 's_waitcnt' else 4
                    t1 = t0 + d
                    if p in jump: t1 = t0 + 24; b0, b1 = t1, t1 + 16
                    elif x.kind == 'branch': b0, b1 = (t0 + 24, t0 + 40) if ad1 == 32 else (a0, t0 + 24)
                    elif ad1 >= 32: b0, b1 = a1, t0 + FL
                    else: b0, b1 = a0, a1
                    Q.append((max(m2 - t1, 0), max(b0 - t1, 0), max(b1 - t1, 0)))
                key = (ad1 % 32, tuple(Q))
                if key not in nxt or c < nxt[key][0]: nxt[key] = (c, key[0], key[1], ch + ((k,) if wd else ()), lg0 + lg)
        S = sorted(nxt.values())[:beam]
    if log is not None: log += [(code[k][0].text, p, st, ad) for k, p, st, ad in S[0][4]]
    return S[0][3], S[0][0]
def place_loop(a, head, ph, skip, wt=(1, 1), wait=4, end=None, **kw):
    pos = {x.label: i for i, x in enumerate(a.L) if x.label}
    i = pos[head]; code = []; idx = []; away = None
    while True:
        x = a.L[i]; i += 1
        if x.label == away: away = None
        if x.kind in ('none', 'label'):
            assert not x.text.startswith('.fill')
            continue
        who = {1} if away else {0, 1}; jump = set()
        if x.kind == 'branch' and x.target in skip: jump = {0}; away = x.target
        code.append((x, who, jump)); idx.append(i - 1)
        if x.kind == 'branch' and x.target == (end or head): break
    ch, cost = fetch_plan(code, ph, wt, wait=wait, **kw)
    for k in ch:
        x = a.L[idx[k]]; a.L[idx[k]] = I(x.text.replace(x.mn, x.mn + '_e64', 1))
    return len(ch), cost, head, sum(isize(a.L[j]) for j in idx)
```

```python
import sys, json
sys.path.insert(0, 'gen')
from asm import *
from lay import *
import os, importlib, workers
chain = importlib.import_module(os.environ.get('CHAIN', 'chain3'))
NAME = 'sequential_preLN__memory_aug_recurrent_mem_tr__glu_gated_reglu__prompt'

def build(opt):
    a = Asm(); a.timed = opt.get('timed', True)
    DBG = f's[{S_DBG}:{S_DBG+3}]'; WS = f's[{S_WS}:{S_WS+3}]'
    a(f's_cmp_ge_u32 s{S_WG}, 256'); a('s_cbranch_scc1 L_exit')
    if opt.get('times', False) or 'dly' in opt: a('s_memrealtime s[62:63]')
    a(f's_load_dwordx4 s[{S_DBG}:{S_DBG+3}], s[0:1], 96')
    if opt.get('opf'): a(f's_load_dwordx2 s[{S_R4}:{S_R4+1}], s[0:1], 40')
    if opt.get('warm'): a(f's_load_dwordx8 s[{S_R0}:{S_R0+7}], s[0:1], 16')
    a(f's_getreg_b32 s{S_T}, hwreg(HW_REG_XCC_ID)')
    a(f'v_readfirstlane_b32 s{S_WAVE}, v0')
    a(f's_and_b32 s{S_T}, s{S_T}, 15')
    a(f's_lshr_b32 s{S_WAVE}, s{S_WAVE}, 6')
    a('v_and_b32 v0, 63, v0')
    a('s_waitcnt lgkmcnt(0)')
    a(f's_mov_b32 s{S_WS}, s{S_DBG+2}'); a(f's_and_b32 s{S_WS+1}, s{S_DBG+3}, 0xffff')
    a(f's_mov_b32 s{S_WS+2}, {WS_BYTES}'); a(f's_mov_b32 s{S_WS+3}, 0x20000')
    a(f's_and_b32 s{S_DBG+1}, s{S_DBG+1}, 0xffff'); a(f's_mov_b32 s{S_DBG+2}, 256'); a(f's_mov_b32 s{S_DBG+3}, 0x20000')
    if opt.get('force_slow'): a(f's_or_b32 s{S_T}, s{S_T}, {opt["force_slow"]}')
    if opt.get('cpf'):
        nsh = opt['cpf']; per = 1024 // nsh // 2
        a(f's_cmp_lt_u32 s{S_WAVE}, 2'); a('s_cbranch_scc1 L_nocpf')
        a(f's_getpc_b64 s[{S_T+2}:{S_T+3}]')
        a.label('L_pc')
        a(f's_lshr_b32 s{S_T+1}, s{S_WG}, 3'); a(f's_and_b32 s{S_T+1}, s{S_T+1}, {nsh - 1}')
        a(f's_lshl1_add_u32 s{S_T+1}, s{S_T+1}, s{S_WAVE}'); a(f's_sub_u32 s{S_T+1}, s{S_T+1}, 2')
        a(f's_mul_i32 s{S_T+1}, s{S_T+1}, {per * 128}')
        a('v_lshlrev_b32 v1, 7, v0'); a(f'v_add_u32 v1, s{S_T+1}, v1')
        a(f's_mov_b32 s{S_T+1}, L_code_end-L_pc-4')
        for i in range(per // 64):
            a(f'v_min_u32 v2, s{S_T+1}, v1')
            a(f'v_mov_b32 v3, s{S_T+3}')
            a(f'v_add_co_u32 v2, vcc, s{S_T+2}, v2'); a('v_addc_co_u32 v3, vcc, 0, v3, vcc')
            a(f'global_load_dword v{4 + i}, v[2:3], off')
            a('v_add_u32 v1, 8192, v1')
        a('s_waitcnt vmcnt(0)')
        a('s_branch L_noticket')
        a.label('L_nocpf')
    def early():
        lab = a.newlabel('L_early')
        if opt.get('ecq'): a(f's_bitcmp0_b32 13, s{S_T}'); a(f's_cbranch_scc1 {lab}')
        else: a(f's_cmp_lg_u32 s{S_T}, 0'); a(f's_cbranch_scc1 {lab}')
        if opt.get('ecp'):
            a(f's_getpc_b64 s[{S_T+2}:{S_T+3}]')
            a.label(lab + '_pc')
            a(f's_mov_b32 s{S_T+4}, L_chain-{lab}_pc')
            for w in range(1, 4): a(f's_cmp_eq_u32 s{S_WAVE}, {w}'); a(f's_cselect_b32 s{S_T+4}, L_chain_w{w}-{lab}_pc, s{S_T+4}')
            a('v_lshlrev_b32 v10, 6, v0'); a(f'v_add_u32 v10, s{S_T+4}, v10')
            for i in range(opt['ecp']):
                if i: a('v_add_u32 v10, 0x1000, v10')
                a(f'v_min_u32 v8, L_code_end-{lab}_pc-4, v10'); a(f'v_mov_b32 v9, s{S_T+3}')
                a(f'v_add_co_u32 v8, vcc, s{S_T+2}, v8'); a('v_addc_co_u32 v9, vcc, 0, v9, vcc')
                a('global_load_dword v255, v[8:9], off')
        if opt.get('opf'):
            a(f's_cmp_lt_u32 s{S_WAVE}, 2'); a(f's_cbranch_scc1 {lab}')
            if opt.get('ecq'): a(f's_cmp_lg_u32 s{S_T}, 0'); a(f's_cbranch_scc1 {lab}')
            a(f's_and_b32 s{S_R4+1}, s{S_R4+1}, 0xffff'); a(f's_mov_b32 s{S_R4+2}, 4718592'); a(f's_mov_b32 s{S_R4+3}, 0x20000')
            a(f's_bfe_u32 s{S_T+2}, s{S_WG}, 0x50003'); a(f's_mul_i32 s{S_T+2}, s{S_T+2}, 147456')
            a(f's_and_b32 s{S_T+3}, s{S_WAVE}, 1'); a(f's_lshl_b32 s{S_T+3}, s{S_T+3}, 12'); a(f's_add_u32 s{S_T+2}, s{S_T+2}, s{S_T+3}')
            a('v_lshlrev_b32 v8, 6, v0')
            for i in range(opt['opf']):
                a(f'buffer_load_dword v255, v8, s[{S_R4}:{S_R4+3}], s{S_T+2} offen')
                a(f's_add_u32 s{S_T+2}, s{S_T+2}, 8192')
        a.label(lab)
    if opt.get('ecp') or opt.get('opf'):
        a(f's_cmp_eq_u32 s{S_WAVE}, 0'); a('s_cbranch_scc1 L_nozero')
        early()
    if opt.get('warm'):
        st = opt.get('wst_', 64)
        a(f's_cmp_lt_u32 s{S_WAVE}, 2'); a('s_cbranch_scc1 L_nowarm')
        a(f's_cmp_eq_u32 s{S_T}, 0'); a('s_cbranch_scc1 L_nowarm')
        a(f's_and_b32 s{S_T+1}, s{S_WG}, 7'); a(f's_lshr_b32 s{S_T+2}, s{S_WG}, 3')
        a(f's_cmp_eq_u32 s{S_T+1}, 0'); a('s_cbranch_scc1 L_nowarm')
        a(f'v_mul_u32_u24 v8, {st}, v0')
        a(f's_cmp_ge_u32 s{S_T+1}, 4'); a('s_cbranch_scc1 L_warm1')
        for c, (n, lo) in enumerate(((3, 1), (4, 4))):
            if c: a.label('L_warm1')
            ms = opt['warm'][c]
            nl = -(-4718592 // (32 * n * 2 * 64 * st))
            a(f's_mul_i32 s{S_T+2}, s{S_T+2}, {n}'); a(f's_add_u32 s{S_T+2}, s{S_T+2}, s{S_T+1}'); a(f's_sub_u32 s{S_T+2}, s{S_T+2}, {lo}')
            a(f's_lshl1_add_u32 s{S_T+2}, s{S_T+2}, s{S_WAVE}'); a(f's_sub_u32 s{S_T+2}, s{S_T+2}, 2')
            rows = opt.get('wrow', 1)
            a(f's_mul_i32 s{S_T+2}, s{S_T+2}, {64 * st * (1 if rows else nl)}')
            for m in ms:
                r = {'q': S_R0, 'k': S_R0 + 2, 'v': S_R1, 'o': S_R1 + 2}[m]
                a(f's_mov_b32 s{S_R2}, s{r}'); a(f's_and_b32 s{S_R2+1}, s{r+1}, 0xffff'); a(f's_mov_b32 s{S_R2+2}, 4718592'); a(f's_mov_b32 s{S_R2+3}, 0x20000')
                for i in range(nl):
                    a(f's_add_u32 s{S_T+3}, s{S_T+2}, {i * 64 * st * (64 * n if rows else 1)}')
                    a(f'buffer_load_dword v255, v8, s[{S_R2}:{S_R2+3}], s{S_T+3} offen')
            if c == 0: a('s_branch L_nowarm')
        a.label('L_nowarm')
    a(f's_cmp_lg_u32 s{S_WAVE}, 1'); a('s_cbranch_scc1 L_nozero')
    a(f's_cmp_lt_u32 s{S_WG}, {256 - 2 * NZ}'); a('s_cbranch_scc1 L_noticket')
    a(f's_bitcmp0_b32 s{S_WG}, 0'); a('s_cbranch_scc1 L_noticket')
    a('v_mov_b64 v[4:5], 0'); a('v_mov_b64 v[6:7], 0'); a('v_lshlrev_b32 v3, 4, v0')
    a(f's_sub_u32 s{S_T+2}, s{S_WG}, {257 - 2 * NZ}'); a(f's_lshl_b32 s{S_T+2}, s{S_T+2}, 9')
    a(f'buffer_store_dwordx4 v[4:7], v3, {WS}, s{S_T+2} offen sc1')
    a('v_mov_b32 v1, 1')
    a('s_waitcnt vmcnt(0)')
    a('s_mov_b64 exec, 1')
    if opt.get('pq'):
        a(f'buffer_atomic_add v1, off, {DBG}, 0 offset:{DB_Z} sc0')
        a('s_waitcnt vmcnt(0)')
        a(f'v_cmp_eq_u32 vcc, {NZ - 1}, v1'); a('v_mov_b32 v1, 1'); a('s_and_b64 exec, exec, vcc')
        a('s_cbranch_execz L_nogz')
        a(f'buffer_store_dword v1, off, {DBG}, 0 offset:{GO_Z} sc1')
        a.label('L_nogz')
    else: a(f'buffer_atomic_add v1, off, {DBG}, 0 offset:{DB_Z}')
    a('s_mov_b64 exec, -1')
    a('s_branch L_noticket')
    a.label('L_nozero')
    if opt.get('even', True):
        x1 = opt.get('x1', 'att')
        a(f's_cmp_lg_u32 s{S_WAVE}, 0'); a('s_cbranch_scc1 L_noticket')
        a('v_mov_b32 v2, 0')
        a('s_mov_b64 exec, 1')
        a('v_mov_b32 v1, 1')
        a(f's_and_b32 s{S_T}, s{S_T}, 7')
        a(f's_lshl_b32 s{S_T+2}, s{S_T}, 2'); a(f's_add_u32 s{S_T+2}, s{S_T+2}, {DB_CX - 8}')
        a(f's_cmp_eq_u32 s{S_T}, 1'); a(f's_cselect_b32 s{S_T+2}, {DB_C1}, s{S_T+2}')
        a(f's_cmp_eq_u32 s{S_T}, 0'); a(f's_cselect_b32 s{S_T+2}, {DB_CT}, s{S_T+2}')
        a(f'buffer_atomic_add v1, off, {DBG}, s{S_T+2} sc0')
        if opt.get('ecp'):
            a('s_mov_b64 exec, -1'); o_ = opt.pop('opf', None); early(); opt['opf'] = o_; a('s_mov_b64 exec, 1')
            a(f's_bitcmp1_b32 13, s{S_T}' if opt.get('ecq') else f's_cmp_eq_u32 s{S_T}, 0'); a('s_cbranch_scc0 L_tk0')
            a(f's_waitcnt vmcnt({opt["ecp"]})'); a('s_branch L_tk1')
            a.label('L_tk0')
        a('s_waitcnt vmcnt(0)')
        a.label('L_tk1')
        a(f's_lshl_b32 s{S_T+2}, s{S_T}, 16')
        a(f'v_readfirstlane_b32 s{S_T+1}, v1')
        a(f'v_or_b32 v1, s{S_T+2}, v1')
        a(f's_cmp_lt_u32 s{S_T+1}, 32'); a('s_cbranch_scc1 L_ticket')
        a('v_mov_b32 v1, 1')
        a(f'buffer_atomic_add v1, off, {DBG}, 0 offset:{DB_WT} sc0')
        a('s_waitcnt vmcnt(0)')
        a('v_or_b32 v1, 0x80000, v1')
        a.label('L_ticket')
        a('ds_write_b32 v2, v1')
        a('s_waitcnt lgkmcnt(0)')
        a('s_mov_b64 exec, -1')
        a.label('L_noticket')
        a('s_barrier')
        a('v_mov_b32 v2, 0'); a('ds_read_b32 v1, v2'); a('s_waitcnt lgkmcnt(0)')
        a(f'v_readfirstlane_b32 s{S_T+1}, v1')
        a('s_barrier')
        a(f's_and_b32 s{S_ROLE}, s{S_T+1}, 0xffff')
        a(f's_lshr_b32 s{S_T}, s{S_T+1}, 16')
        a(f's_cmp_lt_u32 s{S_T}, 8'); a('s_cbranch_scc1 L_drawn')
        a(f's_mov_b32 s{S_T+3}, 0')
        a('v_lshlrev_b32 v2, 2, v0'); a(f'v_add_u32 v2, {DB_CX - 8}, v2')
        a(f'v_mov_b32 v3, {DB_CT}'); a('v_cmp_eq_u32 vcc, 0, v0'); a('v_cndmask_b32 v2, v2, v3, vcc')
        a(f'v_mov_b32 v3, {DB_C1}'); a('v_cmp_eq_u32 vcc, 1, v0'); a('v_cndmask_b32 v2, v2, v3, vcc')
        a(f'v_mov_b32 v3, {DB_WT}'); a('v_cmp_lt_u32 vcc, 7, v0'); a('v_cndmask_b32 v2, v2, v3, vcc')
        a.label('L_spare')
        a(f'buffer_load_dword v1, v2, {DBG}, 0 offen sc1')
        a(f's_add_u32 s{S_T+3}, s{S_T+3}, 1')
        a('s_waitcnt vmcnt(0)')
        a(f'v_readlane_b32 s{S_T+1}, v1, 8')
        a('v_min_u32 v1, 32, v1')
        a(f's_cmp_ge_u32 s{S_T+3}, {chain.SPIN}'); a('s_cbranch_scc1 L_exit')
        for k in range(8): a(f'v_readlane_b32 s{S_T+2}, v1, {k}'); a(f's_add_u32 s{S_T+1}, s{S_T+1}, s{S_T+2}')
        a(f's_cmp_lt_u32 s{S_T+1}, 256'); a('s_cbranch_scc1 L_spare')
        for k in range(8):
            a(f'v_readlane_b32 s{S_T+2}, v1, {k}')
            a(f's_mov_b32 s{S_T}, {k}')
            a(f's_add_u32 s{S_ROLE}, s{S_ROLE}, s{S_T+2}')
            a(f's_cmp_lt_u32 s{S_ROLE}, 32'); a('s_cbranch_scc1 L_drawn')
            a(f's_sub_u32 s{S_ROLE}, s{S_ROLE}, 32')
        a('s_branch L_exit')
        a.label('L_drawn')
        a(f's_cmp_eq_u32 s{S_T}, 0'); a('s_cbranch_scc1 L_chain')
        if opt.get('xa'):
            tab = placement(opt)
            for x in range(1, 7): a(f's_cmp_eq_u32 s{S_T}, {x}'); a(f's_cbranch_scc1 L_tab{x}')
            for x in (7, 1, 2, 3, 4, 5, 6):
                a.label(f'L_tab{x}')
                for i in range(8): a(f's_mov_b32 s{64 + i}, 0x{sum(r << 8 * j for j, r in enumerate(tab[x][4 * i:4 * i + 4])):x}')
                if x != 6: a('s_branch L_tabx')
            a.label('L_tabx')
            a(f's_bitcmp1_b32 s{S_ROLE}, 3'); a('s_cselect_b64 s[64:65], s[66:67], s[64:65]'); a('s_cselect_b64 s[68:69], s[70:71], s[68:69]')
            a(f's_bitcmp1_b32 s{S_ROLE}, 4'); a('s_cselect_b64 s[64:65], s[68:69], s[64:65]')
            a(f's_and_b32 s{S_ROLE}, s{S_ROLE}, 7'); a(f's_lshl_b32 s{S_ROLE}, s{S_ROLE}, 3')
            a(f's_lshr_b64 s[64:65], s[64:65], s{S_ROLE}'); a(f's_and_b32 s{S_ROLE}, s64, 0xff')
            a(f's_cmp_ge_u32 s{S_ROLE}, 220'); a('s_cbranch_scc1 L_exit')
            a('s_branch L_roles')
        if opt.get('plc'):
            assert x1 == 'att2'
            a(f's_cmp_eq_u32 s{S_T}, 1'); a('s_cbranch_scc1 L_plc1')
            a(f's_cmp_lt_u32 s{S_T}, 4'); a(f's_cselect_b32 s{S_T+1}, 16, 12')
            a(f's_cmp_ge_u32 s{S_ROLE}, s{S_T+1}'); a('s_cbranch_scc1 L_plcr')
            a(f's_cmp_lt_u32 s{S_T}, 4'); a('s_cbranch_scc0 L_plcp')
            a(f's_lshl4_add_u32 s{S_ROLE}, s{S_T}, s{S_ROLE}'); a(f's_add_u32 s{S_ROLE}, s{S_ROLE}, {112 - 32}')
            a('s_branch L_roles')
            a.label('L_plcp')
            if opt['plc'] == 2:
                assert 0
            a(f's_lshl3_add_u32 s{S_T+1}, s{S_T}, s{S_ROLE}'); a(f's_sub_u32 s{S_T+1}, s{S_T+1}, 32')
            a(f's_lshl2_add_u32 s{S_T+2}, s{S_T}, s{S_ROLE}'); a(f's_add_u32 s{S_T+2}, s{S_T+2}, {32 - 16 - 8}')
            a(f's_cmp_lt_u32 s{S_ROLE}, 8'); a(f's_cselect_b32 s{S_ROLE}, s{S_T+1}, s{S_T+2}')
            a('s_branch L_roles')
            a.label('L_plcr')
            a(f's_sub_u32 s{S_ROLE}, s{S_ROLE}, s{S_T+1}')
            a(f's_mul_i32 s{S_T+1}, s{S_ROLE}, 6'); a(f's_add_u32 s{S_T+1}, s{S_T+1}, s{S_T}'); a(f's_sub_u32 s{S_T+1}, s{S_T+1}, 2')
            a(f's_lshl2_add_u32 s{S_T+2}, s{S_ROLE}, s{S_T}'); a(f's_add_u32 s{S_T+2}, s{S_T+2}, {96 - 64 - 4}')
            a(f's_cmp_lt_u32 s{S_ROLE}, 16'); a(f's_cselect_b32 s{S_ROLE}, s{S_T+1}, s{S_T+2}')
            a(f's_cmp_lt_u32 s{S_ROLE}, 32'); a(f's_cselect_b32 s{S_T+1}, 64, 112')
            a(f's_add_u32 s{S_ROLE}, s{S_ROLE}, s{S_T+1}')
            a(f's_cmp_ge_u32 s{S_ROLE}, 220'); a('s_cbranch_scc1 L_exit')
            a('s_branch L_roles')
            a.label('L_plc1')
        a(f's_mul_i32 s{S_T+1}, s{S_ROLE}, 6'); a(f's_add_u32 s{S_T+1}, s{S_T+1}, s{S_T}'); a(f's_sub_u32 s{S_T+1}, s{S_T+1}, 2')
        a(f's_sub_u32 s{S_ROLE}, 223, s{S_ROLE}')
        a(f's_cmp_eq_u32 s{S_T}, 1'); a(f's_cselect_b32 s{S_ROLE}, s{S_ROLE}, s{S_T+1}')
    else:
        x1 = opt.get('x1', 'att')
        a(f's_cmp_lg_u32 s{S_WAVE}, 0'); a('s_cbranch_scc1 L_noticket')
        a('v_mov_b32 v2, 0')
        a('s_mov_b64 exec, 1')
        a(f's_cmp_gt_u32 s{S_T}, {1 if x1 else 0}'); a('s_cbranch_scc1 L_wticket')
        a('v_mov_b32 v1, 1')
        a(f's_mul_i32 s{S_T+2}, s{S_T}, {DB_C1 - DB_CT}')
        a(f'buffer_atomic_add v1, off, {DBG}, s{S_T+2} offset:{DB_CT} sc0')
        a(f's_add_u32 s{S_T+2}, s{S_T}, 1'); a(f's_lshl_b32 s{S_T+2}, s{S_T+2}, 16')
        a('s_waitcnt vmcnt(0)')
        a(f'v_readfirstlane_b32 s{S_T+1}, v1')
        a(f'v_or_b32 v1, s{S_T+2}, v1')
        a(f's_cmp_lt_u32 s{S_T+1}, 32'); a('s_cbranch_scc1 L_ticket')
        a.label('L_wticket')
        a('v_mov_b32 v1, 1')
        a(f'buffer_atomic_add v1, off, {DBG}, 0 offset:{DB_WT} sc0')
        a('s_waitcnt vmcnt(0)')
        a.label('L_ticket')
        a('ds_write_b32 v2, v1')
        a('s_waitcnt lgkmcnt(0)')
        a('s_mov_b64 exec, -1')
        a.label('L_noticket')
        a('s_barrier')
        a('v_mov_b32 v2, 0'); a('ds_read_b32 v1, v2'); a('s_waitcnt lgkmcnt(0)')
        a(f'v_readfirstlane_b32 s{S_T+1}, v1')
        a('s_barrier')
        a(f's_and_b32 s{S_ROLE}, s{S_T+1}, 0xffff')
        a(f's_bitcmp1_b32 s{S_T+1}, 16'); a('s_cbranch_scc1 L_chain')
        a(f's_bitcmp0_b32 s{S_T+1}, 17'); a('s_cbranch_scc1 L_front')
        a(f's_sub_u32 s{S_ROLE}, 223, s{S_ROLE}')
        a('s_branch L_list')
        a.label('L_front')
        a(f's_cmp_lt_u32 s{S_ROLE}, {192 if x1 else 220}'); a('s_cbranch_scc1 L_list')
        a(f's_mov_b32 s{S_T+3}, 0')
        a.label('L_spare')
        a(f'buffer_load_dword v1, off, {DBG}, 0 offset:{DB_CT} sc1')
        a(f'buffer_load_dword v2, off, {DBG}, 0 offset:{DB_WT} sc1')
        a(f'buffer_load_dword v3, off, {DBG}, 0 offset:{DB_C1} sc1')
        a(f's_add_u32 s{S_T+3}, s{S_T+3}, 1')
        a('s_waitcnt vmcnt(0)')
        a(f'v_readfirstlane_b32 s{S_T+2}, v1'); a(f'v_readfirstlane_b32 s{S_T+1}, v2'); a(f'v_readfirstlane_b32 s{S_T}, v3')
        a(f's_cmp_ge_u32 s{S_T+3}, {chain.SPIN}'); a('s_cbranch_scc1 L_exit')
        a(f's_min_u32 s{S_T+2}, s{S_T+2}, 32'); a(f's_min_u32 s{S_T}, s{S_T}, 32')
        a(f's_add_u32 s{S_T+1}, s{S_T+1}, s{S_T+2}'); a(f's_add_u32 s{S_T+1}, s{S_T+1}, s{S_T}')
        a(f's_cmp_lt_u32 s{S_T+1}, 256'); a('s_cbranch_scc1 L_spare')
        a(f's_sub_u32 s{S_T}, 224, s{S_T}')
        a(f's_cmp_lt_u32 s{S_ROLE}, s{S_T}'); a('s_cbranch_scc1 L_list')
        a(f's_sub_u32 s{S_ROLE}, s{S_ROLE}, s{S_T}')
        a(f's_add_u32 s{S_ROLE}, s{S_ROLE}, s{S_T+2}')
        a(f's_cmp_lt_u32 s{S_ROLE}, 32'); a('s_cbranch_scc1 L_chain')
        a('s_branch L_exit')
    a.label('L_list')
    if x1 == 'att2':
        a(f's_cmp_lt_u32 s{S_ROLE}, 48'); a('s_cbranch_scc1 L_roles')
        a(f's_cmp_lt_u32 s{S_ROLE}, 80'); a(f's_cselect_b32 s{S_T}, 16, 32')
        a(f's_cmp_lt_u32 s{S_ROLE}, 192'); a(f's_cselect_b32 s{S_T}, s{S_T}, -144')
        a(f's_cmp_lt_u32 s{S_ROLE}, 208'); a(f's_cselect_b32 s{S_T}, s{S_T}, -112')
        a(f's_add_u32 s{S_ROLE}, s{S_ROLE}, s{S_T}')
    a(f's_cmp_ge_u32 s{S_ROLE}, 220'); a('s_cbranch_scc1 L_exit')
    if x1 == 'att':
        a(f's_cmp_lt_u32 s{S_ROLE}, 84'); a('s_cbranch_scc1 L_roles')
        a(f's_cmp_lt_u32 s{S_ROLE}, 192'); a(f's_cselect_b32 s{S_T}, 28, -108')
        a(f's_add_u32 s{S_ROLE}, s{S_ROLE}, s{S_T}')
    a('s_branch L_roles')
    a.label('L_exit')
    a('s_endpgm')
    a.label('L_roles')
    for _ in range(opt.get('pad', 0)): a('s_nop 0')
    if opt.get('flags'): workers.roles(a, opt)
    else: a('s_endpgm')
    chain.entry(a, opt)
    a.label('L_code_end')
    n = a.fix(verbose=opt.get('verbose', False))
    if opt.get('fal'):
        off = opt['lal'][1:]
        for w in range(4):
            log = [] if opt.get('verbose') is not None else None
            r = place_loop(a, f'L_loop_c{w}f', off[w % len(off)] % 8, (f'L_okA_c{w}f', f'L_okB_c{w}f'), opt.get('fwt', (1, 1)), opt['fal'], log=log, **opt.get('fkw', {}))
            if opt.get('verbose') is not None: print('wave', w, r, *log, sep='\n   ', file=sys.stderr)
    wal = opt.get('wal', '')
    labs = [x.label for x in a.L if x.label]
    for w in range(4):
        kw = dict(opt.get('fkw', {})); r = []
        if 'l' in wal: r.append(place_loop(a, f'L_last_{w}', 0, (), (1, 0), opt['fal'], end='L_chain_end', **kw))
        if 'a' in wal:
            L = f'L_att_l{w}'
            sk = [x for x in labs if x.endswith('_x') and x.startswith((f'L_att_k{w}', f'L_att_r{w}'))] + [L + '_wx']
            r.append(place_loop(a, L, 0, sk, (1, 0), opt['fal'], **kw))
        if 'f' in wal:
            L = f'L_ffn_l{w}'
            sk = [x for x in labs if x.endswith('_x') and x.startswith((f'L_ffn_x{w}', f'L_ffn_f{w}'))] + [L + '_reg', f'L_ffn_f{w}_0']
            r.append(place_loop(a, L, 0, sk, (1, 0), opt['fal'], **kw))
        if opt.get('verbose') is not None: print(r, file=sys.stderr)
    head = open('cdna_kernels/' + NAME + '.s.ref').read().split('\n')
    hdr = [l for l in head if l.startswith(';') and '@launch' not in l]
    hdr = hdr[:[i for i, l in enumerate(hdr) if 'Override launch' in l][0]]
    out = '\n'.join(hdr) + '\n; @launch grid=(256,1,1) block=(256,1,1) lds=163840\n'
    out += f'''.amdgcn_target "amdgcn-amd-amdhsa--gfx950"
.text
.globl {NAME}_kernel
.p2align 8
.type {NAME}_kernel,@function
{NAME}_kernel:
''' + a.text() + f'''.section .rodata,"a"
.p2align 6
.amdhsa_kernel {NAME}_kernel
  .amdhsa_next_free_vgpr 512
  .amdhsa_next_free_sgpr 102
  .amdhsa_accum_offset 256
  .amdhsa_group_segment_fixed_size 0
  .amdhsa_kernarg_size 112
  .amdhsa_user_sgpr_count 2
  .amdhsa_user_sgpr_kernarg_segment_ptr 1
  .amdhsa_system_sgpr_workgroup_id_x 1
.end_amdhsa_kernel
'''
    return out

if __name__ == '__main__':
    opt = json.loads(sys.argv[2]) if len(sys.argv) > 2 else {}
    open(sys.argv[1], 'w').write(build(opt))
```
